```python
import torch

def _softmax(x, axis=-1):
    return torch.softmax(x, dim=axis)
def _gelu(x):
    return torch.nn.functional.gelu(x, approximate="tanh")
def _silu(x):
    return torch.nn.functional.silu(x)
def _sigmoid(x):
    return torch.sigmoid(x)
def _layernorm(x, axis=-1, eps=1e-5):
    m = x.mean(dim=axis, keepdim=True)
    v = x.var(dim=axis, keepdim=True, unbiased=False)
    return (x - m) / torch.sqrt(v + eps)
def _scatter_add(tgt, idx, src, axis=0):
    return tgt.clone().index_add_(axis, idx, src)
def _segment_sum(src, seg, n):
    out = torch.zeros((n,) + src.shape[1:], dtype=src.dtype)
    return out.index_add_(0, seg, src)
def _pad(x, pw):
    flat = tuple(v for pair in reversed(pw) for v in pair)
    return torch.nn.functional.pad(x, flat)

kernel_name = 'sequential_preLN__mha_block_cached__mixer_channel_mlp__decode'

def setup_inputs():

    _w = (lambda a: (lambda t: t.to(torch.bfloat16) if t.is_floating_point() else t)(torch.as_tensor(a)))
    def _A_setup():
        B, Sq, D = 2, 1, 512
        H, Sk, Dh = 32, 8192, 128
        return {
            "x": _w((lambda *s: torch.randn(*s, dtype=torch.bfloat16) * 0.05)(B, Sq, D)),
            "k_cache": _w((lambda *s: torch.randn(*s, dtype=torch.bfloat16) * 3.2)(B, H, Sk, Dh)),
            "v_cache": _w((lambda *s: torch.randn(*s, dtype=torch.bfloat16) * 0.4)(B, H, Sk, Dh)),
            "wq": _w((lambda *s: torch.randn(*s, dtype=torch.bfloat16) * 3.2)(D, H * Dh) * (D ** -0.5)),
            "wo": _w((lambda *s: torch.randn(*s, dtype=torch.bfloat16) * 0.4)(H * Dh, D) * ((H * Dh) ** -0.5)),
        }
    _A_in = _A_setup()

    def _B_setup():
        B, S, D, F = 2, 1, 512, 1792
        return {
            "x": _w((lambda *s: torch.randn(*s, dtype=torch.bfloat16) * 0.05)(B, S, D)),
            "w1": _w((lambda *s: torch.randn(*s, dtype=torch.bfloat16) * 3.2)(D, F) * (D ** -0.5)),
            "b1": _w((lambda *s: torch.randn(*s, dtype=torch.bfloat16) * 3.2)(F)),
            "w2": _w((lambda *s: torch.randn(*s, dtype=torch.bfloat16) * 0.8)(F, D) * (F ** -0.5)),
            "b2": _w((lambda *s: torch.randn(*s, dtype=torch.bfloat16) * 1.6)(D)),
        }
    _B_in = _B_setup()

    return {
        "A_x": _A_in["x"],
        "A_k_cache": _A_in["k_cache"],
        "A_v_cache": _A_in["v_cache"],
        "A_wq": _A_in["wq"],
        "A_wo": _A_in["wo"],
        "B_x": _B_in["x"],
        "B_w1": _B_in["w1"],
        "B_b1": _B_in["b1"],
        "B_w2": _B_in["w2"],
        "B_b2": _B_in["b2"],
    }

def reference(A_x, A_k_cache, A_v_cache, A_wq, A_wo, B_x, B_w1, B_b1, B_w2, B_b2):
    def _A_ref(x, k_cache, v_cache, wq, wo):
        B, Sq, D = x.shape
        H, Dh = 32, 128
        q = (lambda x, *d: x.permute(*d))((x @ wq).reshape(B, Sq, H, Dh), 0, 2, 1, 3)
        scores = torch.einsum("bhqd,bhkd->bhqk", q, k_cache) * (Dh ** -0.5)
        p = _softmax(scores, axis=-1)
        o = torch.einsum("bhqk,bhkd->bhqd", p, v_cache)
        return (lambda x, *d: x.permute(*d))(o, 0, 2, 1, 3).reshape(B, Sq, H * Dh) @ wo

    def _B_ref(x, w1, b1, w2, b2):
        y = _layernorm(x, axis=-1)
        h = _gelu(torch.einsum("bsd,df->bsf", y, w1) + b1)
        return torch.einsum("bsf,fd->bsd", h, w2) + b2

    x = A_x
    h = x + _A_ref(_layernorm(x, axis=-1), A_k_cache, A_v_cache, A_wq, A_wo)
    h2 = h + _B_ref(_layernorm(h, axis=-1), B_w1, B_b1, B_w2, B_b2)
    return h2
```

```python
import re

TRANS = ('v_exp_', 'v_log_', 'v_rcp_', 'v_rsq_', 'v_sqrt_', 'v_sin_', 'v_cos_')

def split_ops(s):
    out = []; depth = 0; cur = ''
    for ch in s:
        if ch == '[': depth += 1
        if ch == ']': depth -= 1
        if ch == ',' and depth == 0:
            out.append(cur.strip()); cur = ''
        else:
            cur += ch
    if cur.strip(): out.append(cur.strip())
    return out

def regs(tok):
    tok = tok.strip()
    tok = tok.split(' ')[0]
    neg = tok.lstrip('-')
    m = re.match(r'^abs\((.*)\)$', neg)
    if m: neg = m.group(1)
    neg = neg.strip('|')
    m = re.match(r'^([vas])(\d+)$', neg)
    if m: return {(m.group(1), int(m.group(2)))}
    m = re.match(r'^([vas])\[(\d+):(\d+)\]$', neg)
    if m: return {(m.group(1), i) for i in range(int(m.group(2)), int(m.group(3)) + 1)}
    if neg in ('vcc', 'vcc_lo', 'vcc_hi'): return {('vcc', 0)}
    if neg in ('exec', 'exec_lo', 'exec_hi'): return {('exec', 0)}
    if neg == 'm0': return {('m0', 0)}
    return set()

class I:
    pass

def parse(line):
    t = line.split(';')[0].strip()
    if not t or t.startswith('.'): return None
    if t.endswith(':'):
        i = I(); i.kind = 'label'; i.name = t[:-1]; return i
    sp = t.split(None, 1)
    op = sp[0]; rest = sp[1] if len(sp) > 1 else ''
    ops = split_ops(rest)
    i = I(); i.op = op; i.ops = ops; i.text = t
    i.w = set(); i.r = set(); i.kind = 'other'
    i.dpp = False; i.trans = False; i.states = 1
    i.A = set(); i.B = set(); i.C = set()
    i.store_wide = False; i.data = set()
    if op == 's_nop':
        i.kind = 'nop'; i.states = int(ops[0], 0) + 1
    elif op.startswith('v_mfma'):
        i.kind = 'mfma'
        i.w = regs(ops[0]); i.A = regs(ops[1]); i.B = regs(ops[2]); i.C = regs(ops[3])
        i.r = i.A | i.B | i.C
        assert '16x16x32_bf16' in op, op
    elif op.startswith('v_'):
        i.kind = 'valu'
        i.trans = op.startswith(TRANS)
        i.dpp = ('_dpp' in op) or ('row_' in t) or ('quad_perm' in t)
        if op.startswith('v_permlane'):
            i.w = regs(ops[0]) | regs(ops[1]); i.r = set(i.w); i.perml = True
        elif op.startswith('v_div_scale'):
            i.w = regs(ops[0]) | regs(ops[1])
            for o in ops[2:]: i.r |= regs(o)
        else:
            i.w = regs(ops[0])
            for o in ops[1:]: i.r |= regs(o)
            if op.startswith('v_cndmask') and len(ops) == 3: i.r |= {('vcc', 0)}
            if op.startswith(('v_fmac', 'v_pk_fmac', 'v_writelane')) or i.dpp: i.r |= regs(ops[0])
            if op.startswith('v_div_fmas'): i.r |= {('vcc', 0)}
        assert not op.startswith('v_cmpx'), op
    elif op.startswith(('buffer_', 'global_')):
        i.kind = 'vmem'
        if op.startswith('buffer_'):
            isload = op.startswith('buffer_load')
            isatomic = 'atomic' in op
            if isload:
                i.w = regs(ops[0])
                for o in ops[1:]: i.r |= regs(o)
            else:
                for o in ops: i.r |= regs(o)
                i.data = regs(ops[0])
                if isatomic and ' sc0' in t: i.w = regs(ops[0])
                if 'x4' in op or 'x3' in op: i.store_wide = True
        else:
            raise Exception('global not supported in hz: ' + t)
    elif op.startswith('ds_'):
        i.kind = 'ds'
        if op.startswith(('ds_read', 'ds_bpermute', 'ds_permute', 'ds_swizzle')):
            i.w = regs(ops[0])
            for o in ops[1:]: i.r |= regs(o)
        else:
            for o in ops: i.r |= regs(o)
    elif op.startswith('s_'):
        i.kind = 'salu'
        if op.startswith(('s_cbranch', 's_branch')):
            i.kind = 'branch'; i.target = ops[0]
        elif op.startswith(('s_waitcnt', 's_barrier', 's_endpgm', 's_setprio', 's_sleep')):
            pass
        elif op.startswith('s_cmp'):
            for o in ops: i.r |= regs(o)
        else:
            if ops: i.w = regs(ops[0])
            for o in ops[1:]: i.r |= regs(o)
    else:
        raise Exception('unknown op ' + t)
    return i

def isv(rs): return {r for r in rs if r[0] in ('v', 'a')}
def iss(rs): return {r for r in rs if r[0] in ('s', 'vcc')}

def need(p, c):
    n = 0
    if p.kind == 'valu':
        pv = isv(p.w); ps = iss(p.w)
        if c.kind == 'mfma' and pv & c.r: n = max(n, 2)
        if c.kind == 'valu':
            if c.dpp and pv & isv(c.r): n = max(n, 2)
            if c.op.startswith('v_permlane') and pv & c.r: n = max(n, 2)
            if c.op.startswith(('v_readfirstlane', 'v_readlane')) and pv & c.r: n = max(n, 1)
            if p.trans and pv & c.r: n = max(n, 1)
            if ps & c.r:
                n = max(n, 2)
                if c.op.startswith(('v_readlane', 'v_writelane', 'v_div_fmas')): n = max(n, 4)
        if c.kind == 'vmem' and ps & c.r: n = max(n, 5)
        if c.kind == 'mfma' and p.trans and pv & c.r: n = max(n, 2)
    elif p.kind == 'mfma':
        D = p.w
        if c.kind == 'mfma':
            if D & (c.A | c.B): n = max(n, 8)
            if D & c.C and c.C != D: n = max(n, 6)
            if D & c.w and c.w != D: n = max(n, 6)
        elif c.kind == 'valu':
            if D & (c.r | c.w): n = max(n, 8)
            if p.C & c.w: n = max(n, 3)
        elif c.kind in ('vmem', 'ds'):
            if D & (c.r | c.w): n = max(n, 8)
    elif p.kind == 'vmem':
        if p.store_wide:
            if c.kind == 'valu' and p.data & c.w: n = max(n, 2)
            elif c.kind in ('mfma', 'ds', 'vmem') and p.data & c.w: n = max(n, 2)
    elif p.kind == 'salu':
        if ('m0', 0) in p.w and c.kind in ('vmem', 'ds'): n = max(n, 1)
    return n

MAXAGE = 12

def run_once(lines, backstates):
    out = []
    pend = []
    fwd = {}
    reachable = True
    ninserted = 0
    newback = {}
    labels_seen = set()
    for line in lines:
        i = parse(line)
        if i is None:
            out.append(line); continue
        if i.kind == 'label':
            srcs = []
            if reachable: srcs.append(pend)
            if i.name in fwd: srcs += fwd[i.name]
            if i.name in backstates: srcs += backstates[i.name]
            merged = {}
            for s in srcs:
                for (p, a) in s:
                    k = id(p) if not hasattr(p, 'uid') else p.uid
                    if k not in merged or merged[k][1] > a: merged[k] = (p, a)
            pend = list(merged.values())
            reachable = True
            labels_seen.add(i.name)
            out.append(line); continue
        req = 0
        for (p, a) in pend:
            n = need(p, i)
            if n - a > req: req = n - a
        if req > 0 and i.kind != 'nop':
            k = req
            while k > 0:
                m = min(k, 16)
                out.append('  s_nop %d' % (m - 1)); k -= m
            ninserted += 1
            pend = [(p, a + req) for (p, a) in pend]
        out.append(line)
        pend = [(p, a + i.states) for (p, a) in pend if a + i.states < MAXAGE]
        if i.kind in ('valu', 'mfma', 'vmem', 'salu'):
            i.uid = i.text + '@' + str(len(out))
            pend.append((i, 0))
        if i.kind == 'branch':
            snap = list(pend)
            if i.target in labels_seen:
                newback.setdefault(i.target, []).append(snap)
            else:
                fwd.setdefault(i.target, []).append(snap)
            if i.op == 's_branch': reachable = False; pend = []
        if i.op == 's_endpgm':
            reachable = False; pend = []
    return out, newback, ninserted

def fix(lines):
    L = []
    for l in lines: L += l.split('\n')
    back = {}
    for it in range(4):
        out, nb, n = run_once(L, back)
        L = out
        back = nb
        if n == 0 and it > 0: break
    out, nb, n = run_once(L, back)
    assert n == 0
    return L
```

```python
import sys
import hz
KN = 'sequential_preLN__mha_block_cached__mixer_channel_mlp__decode_kernel'

WS_ML = 0x0
WS_H  = 0x2000
WS_C1 = 0x10000
WS_C2 = 0x90000
WS_SIZE = 0x100000
WS_DIAG = 0x100000
OOB = 0x7ff00000

L_XN = 0
L_QP = 4096
L_QB = 6144
L_OP = 7168
L_OH = 9216
L_YB = 11264
L_TP = 13312
L_DUMMY = 13824
LDS_SIZE = 16384

SCALE = 0x3DB504F3
LOG2E = 0x3FB8AA3B

class Gen:
    def __init__(self, diag=False, nt='nt', wnt='', spin=1 << 15, ring=8, pre=6, stop=None):
        self.L = []
        self.vm = []
        self.done = -1
        self.diag = diag; self.nt = nt; self.wnt = wnt; self.spin = spin
        self.ring = ring; self.pre = pre; self.stop = stop
        self.nstamp = 0
    def A(self, s): self.L.append('  ' + s if not s.endswith(':') else s)
    def vmop(self, s, tag, optional=False):
        self.A(s); self.vm.append((tag, optional))
        out = len(self.vm) - 1 - self.done
        assert out <= 63, ('too many outstanding', out, tag)
    def vmwait(self, tag):
        idx = max(i for i, (t, o) in enumerate(self.vm) if t == tag)
        n = sum(1 for (t, o) in self.vm[idx + 1:] if not o)
        assert n <= 63
        self.A('s_waitcnt vmcnt(%d)' % n)
        self.done = max(self.done, idx)
    def vmdrain(self):
        self.A('s_waitcnt vmcnt(0)'); self.done = len(self.vm) - 1
    def stamp(self, k):
        if self.diag:
            self.A('s_memrealtime s[96:97]'); self.A('s_waitcnt lgkmcnt(0)')
            self.A('v_mov_b32 v250, s96'); self.A('v_writelane_b32 v251, s96, %d' % k)

    def srd(self, r, lo, hi, size, off=None):
        A = self.A
        if off is None:
            A(f's_mov_b32 s{r}, s{lo}'); A(f's_and_b32 s{r+1}, s{hi}, 0xffff')
        else:
            A(f's_add_u32 s{r}, s{lo}, {off}'); A(f's_addc_u32 s{r+1}, s{hi}, 0'); A(f's_and_b32 s{r+1}, s{r+1}, 0xffff')
        A(f's_mov_b32 s{r+2}, {size}'); A(f's_mov_b32 s{r+3}, 0x20000')

    def wave_allreduce(self, op, v, t):
        A = self.A
        for r in (1, 2, 4, 8):
            A(f'v_{op}_f32_dpp v{v}, v{v}, v{v} row_ror:{r} row_mask:0xf bank_mask:0xf')
        A(f'v_mov_b32 v{t}, v{v}'); A(f'v_permlane16_swap_b32 v{v}, v{t}'); A(f'v_{op}_f32 v{v}, v{v}, v{t}')
        A(f'v_mov_b32 v{t}, v{v}'); A(f'v_permlane32_swap_b32 v{v}, v{t}'); A(f'v_{op}_f32 v{v}, v{v}, v{t}')
    def half_allreduce(self, op, v, t):
        A = self.A
        for r in (1, 2, 4, 8):
            A(f'v_{op}_f32_dpp v{v}, v{v}, v{v} row_ror:{r} row_mask:0xf bank_mask:0xf')
        A(f'v_mov_b32 v{t}, v{v}'); A(f'v_permlane16_swap_b32 v{v}, v{t}'); A(f'v_{op}_f32 v{v}, v{v}, v{t}')
    def rbf(self, v, src=None):
        A = self.A
        s = v if src is None else src
        A(f'v_cvt_pk_bf16_f32 v{v}, v{s}, v{s}'); A(f'v_and_b32 v{v}, 0xffff0000, v{v}')

    def gen(self):
        A = self.A; G = self
        RING = self.ring; nt = self.nt; wnt = self.wnt
        sW = 3
        pX, pK, pV, pWQ, pWO, pW1, pB1, pW2, pB2, pOUT, pDBG, pWS = 4, 6, 8, 10, 12, 16, 18, 20, 22, 24, 26, 28
        rK, rV, rWQ, rWO, rWS, rDBG, rX, rW1, rW2, rB1, rB2, rOUT = 32, 36, 40, 44, 48, 52, 56, 60, 64, 68, 72, 76
        sOff, sT, sH, sB, sS, sBH, sRole, sSpin, sT2, sU = 80, 81, 82, 83, 84, 85, 86, 87, 88, 89
        sM = 90
        sPK = 92
        vL, vN, vG = 1, 2, 3
        vK, vV, vWQ, vWO, vC1, vMLp, vMLq, vRS = 4, 5, 6, 7, 8, 9, 10, 11
        vSEL = 12
        vMASK = 20
        vBQ = 24
        vS = 32
        vD = 64
        vO = 80
        vB = 88
        vXP = 104
        vDQ = 120
        vT = 124
        vMX, vLS, vM, vNM, vF, vML0, vML1, vCNT = 140, 141, 142, 143, 208, 210, 211, 212
        vW1 = 144
        vW2 = 160
        vR = 176
        vB1, vXV, vB2V, vHV, vOPA, vSENT, vOUTA = 213, 214, 215, 216, 217, 220, 218
        vA1, vA2, vA3, vA4 = 224, 225, 226, 227
        vXR = 228
        vWOFF1, vWOFF2, vB1OFF, vHOFF, vGA = 232, 233, 234, 235, 236
        aW = 128
        T = lambda i: vT + i

        A('s_cmp_ge_u32 s2, 256'); A('s_cbranch_scc1 L_end')
        A(f's_load_dwordx16 s[4:19], s[0:1], 0'); A('s_load_dwordx8 s[20:27], s[0:1], 64'); A('s_load_dwordx2 s[28:29], s[0:1], 96')
        if self.diag:
            A('v_mov_b32 v251, 0')
        A(f'v_and_b32 v{vL}, 63, v0'); A(f'v_lshrrev_b32 v{T(0)}, 6, v0'); A(f'v_and_b32 v{vN}, 15, v0')
        A(f'v_readfirstlane_b32 s{sW}, v{T(0)}')
        A(f'v_lshrrev_b32 v{vG}, 4, v{vL}')
        A(f's_and_b32 s{sH}, s2, 31'); A(f's_lshr_b32 s{sB}, s2, 5'); A(f's_and_b32 s{sB}, s{sB}, 1'); A(f's_lshr_b32 s{sS}, s2, 6'); A(f's_and_b32 s{sBH}, s2, 63')
        A(f's_lshl_b32 s{sT}, s{sW}, 12')
        A(f'v_lshrrev_b32 v{T(0)}, 1, v{vN}'); A(f'v_lshlrev_b32 v{T(0)}, 8, v{T(0)}')
        A(f'v_and_b32 v{T(1)}, 1, v{vN}'); A(f'v_lshl_add_u32 v{T(0)}, v{T(1)}, 6, v{T(0)}')
        A(f'v_lshl_add_u32 v{T(0)}, v{vG}, 4, v{T(0)}'); A(f'v_add_u32 v{vK}, s{sT}, v{T(0)}')
        A(f'v_lshlrev_b32 v{T(0)}, 9, v{vG}'); A(f'v_lshl_add_u32 v{T(0)}, v{vN}, 4, v{T(0)}'); A(f'v_add_u32 v{vV}, s{sT}, v{T(0)}')
        A(f's_lshl_b32 s{sT}, s{sW}, 20'); A(f'v_lshlrev_b32 v{T(0)}, 18, v{vG}'); A(f'v_lshl_add_u32 v{T(0)}, v{vN}, 4, v{T(0)}'); A(f'v_add_u32 v{vWQ}, s{sT}, v{T(0)}')
        A(f's_lshl_b32 s{sT}, s{sB}, 10'); A(f'v_lshlrev_b32 v{T(2)}, 4, v{vL}'); A(f'v_add_u32 v{T(2)}, s{sT}, v{T(2)}')
        A(f's_lshl_b32 s{sT}, s{sB}, 5'); A(f's_lshl_b32 s{sT2}, s{sW}, 3'); A(f's_add_u32 s{sT}, s{sT}, s{sT2}')
        A(f's_lshl_b32 s{sT}, s{sT}, 13')
        A(f's_lshl_b32 s{sT2}, s{sH}, 2'); A(f's_add_u32 s{sT2}, s{sT2}, s{sS}'); A(f's_lshl_b32 s{sT2}, s{sT2}, 6')
        A(f's_add_u32 s{sT}, s{sT}, s{sT2}'); A(f's_add_u32 s{sT}, s{sT}, {WS_C1}')
        A(f'v_lshlrev_b32 v{T(0)}, 1, v{vG}'); A(f'v_lshrrev_b32 v{T(1)}, 2, v{vN}'); A(f'v_add_u32 v{T(0)}, v{T(0)}, v{T(1)}')
        A(f'v_lshlrev_b32 v{T(0)}, 13, v{T(0)}'); A(f'v_and_b32 v{T(1)}, 3, v{vN}'); A(f'v_lshl_add_u32 v{T(0)}, v{T(1)}, 4, v{T(0)}')
        A(f'v_add_u32 v{T(0)}, s{sT}, v{T(0)}')
        A(f'v_mov_b32 v{T(1)}, {OOB}'); A(f'v_cmp_gt_u32 vcc, 8, v{vN}')
        A(f'v_cndmask_b32 v{vC1}, v{T(1)}, v{T(0)}, vcc')
        A(f's_lshl_b32 s{sT}, s{sBH}, 7'); A(f's_lshl_b32 s{sT2}, s{sS}, 2'); A(f's_add_u32 s{sT2}, s{sT2}, s{sW}'); A(f's_lshl_b32 s{sT2}, s{sT2}, 3')
        A(f's_add_u32 s{sT2}, s{sT2}, s{sT}'); A(f'v_mov_b32 v{T(0)}, s{sT2}'); A(f'v_mov_b32 v{T(1)}, {OOB}')
        A(f'v_cmp_eq_u32 vcc, 0, v{vL}'); A(f'v_cndmask_b32 v{vMLp}, v{T(1)}, v{T(0)}, vcc')
        A(f'v_lshlrev_b32 v{T(0)}, 3, v{vN}'); A(f'v_add_u32 v{vMLq}, s{sT}, v{T(0)}')
        A(f's_mov_b32 s{sRole}, 0')
        A(f's_and_b32 s{sT}, s2, 7'); A(f's_mul_i32 s{sT}, s{sT}, 14'); A(f's_lshr_b32 s{sT2}, s2, 3'); A(f's_add_u32 s{sU}, s{sT}, s{sT2}')
        A(f's_cmp_lt_u32 s2, 112'); A(f's_cselect_b32 s{sRole}, 1, 0')
        A(f's_sub_u32 s{sT}, s2, 128'); A(f's_cmp_lt_u32 s{sT}, 64'); A(f's_cselect_b32 s{sRole}, 2, s{sRole}'); A(f's_cselect_b32 s{sU}, s{sT}, s{sU}')
        for r_ in (vRS, vWOFF1, vWOFF2, vB1OFF, vHOFF, vOUTA): A(f'v_mov_b32 v{r_}, {OOB}')
        A(f's_cmp_eq_u32 s{sRole}, 1'); A('s_cbranch_scc0 L_r1')
        A(f'v_lshrrev_b32 v{T(0)}, 3, v{vN}'); A(f'v_lshlrev_b32 v{T(0)}, 5, v{T(0)}')
        A(f'v_lshl_add_u32 v{T(0)}, v{vG}, 1, v{T(0)}'); A(f'v_bfe_u32 v{T(1)}, v{vN}, 2, 1'); A(f'v_add_u32 v{T(0)}, v{T(0)}, v{T(1)}')
        A(f's_lshl_b32 s{sT}, s{sW}, 3'); A(f'v_add_u32 v{T(0)}, s{sT}, v{T(0)}')
        A(f'v_mul_u32_u24 v{T(0)}, {112*64}, v{T(0)}'); A(f'v_and_b32 v{T(1)}, 3, v{vN}'); A(f'v_lshl_add_u32 v{T(0)}, v{T(1)}, 4, v{T(0)}')
        A(f's_lshl_b32 s{sT}, s{sU}, 6'); A(f's_add_u32 s{sT}, s{sT}, {WS_C2}'); A(f'v_add_u32 v{vRS}, s{sT}, v{T(0)}')
        A(f'v_lshrrev_b32 v{T(0)}, 1, v{vG}'); A(f'v_lshlrev_b32 v{T(0)}, 2, v{T(0)}'); A(f'v_and_b32 v{T(1)}, 1, v{vG}'); A(f'v_lshl_add_u32 v{T(0)}, v{T(1)}, 1, v{T(0)}')
        A(f's_lshl_b32 s{sT}, s{sW}, 7'); A(f'v_add_u32 v{T(0)}, s{sT}, v{T(0)}'); A(f'v_mul_u32_u24 v{T(0)}, 3584, v{T(0)}')
        A(f's_lshl_b32 s{sT}, s{sU}, 5'); A(f'v_lshl_add_u32 v{T(0)}, v{vN}, 1, v{T(0)}'); A(f'v_add_u32 v{vWOFF1}, s{sT}, v{T(0)}')
        A(f's_lshl_b32 s{sT}, s{sU}, 14'); A(f's_lshl_b32 s{sT2}, s{sW}, 8'); A(f's_add_u32 s{sT}, s{sT}, s{sT2}')
        A(f'v_lshlrev_b32 v{T(0)}, 12, v{vG}'); A(f'v_lshl_add_u32 v{T(0)}, v{vN}, 4, v{T(0)}'); A(f'v_add_u32 v{vWOFF2}, s{sT}, v{T(0)}')
        A(f's_lshl_b32 s{sT}, s{sU}, 5'); A(f'v_and_b32 v{T(0)}, 3, v{vN}'); A(f'v_lshl_add_u32 v{T(0)}, v{vG}, 2, v{T(0)}'); A(f'v_lshlrev_b32 v{T(0)}, 1, v{T(0)}'); A(f'v_add_u32 v{vB1OFF}, s{sT}, v{T(0)}')
        A(f'v_lshrrev_b32 v{T(0)}, 5, v{vL}'); A(f'v_lshlrev_b32 v{T(0)}, 11, v{T(0)}'); A(f'v_and_b32 v{T(1)}, 31, v{vL}'); A(f'v_lshl_add_u32 v{T(0)}, v{T(1)}, 4, v{T(0)}')
        A(f'v_add_u32 v{vHOFF}, {WS_H}, v{T(0)}')
        A('s_branch L_r2')
        A('L_r1:')
        A(f's_cmp_eq_u32 s{sRole}, 2'); A('s_cbranch_scc0 L_r2')
        A(f's_cmp_eq_u32 s{sW}, 0'); A('s_cbranch_scc0 L_r2')
        A(f's_lshl_b32 s{sT}, s{sU}, 6'); A(f's_add_u32 s{sT}, s{sT}, {WS_H}')
        A(f'v_lshlrev_b32 v{T(0)}, 4, v{vN}'); A(f'v_lshl_add_u32 v{T(0)}, v{vG}, 2, v{T(0)}'); A(f'v_add_u32 v{T(0)}, s{sT}, v{T(0)}')
        A(f'v_mov_b32 v{T(1)}, {OOB}'); A(f'v_cmp_gt_u32 vcc, 4, v{vN}'); A(f'v_cndmask_b32 v{vRS}, v{T(1)}, v{T(0)}, vcc')
        A(f's_and_b32 s{sT}, s{sU}, 31'); A(f's_lshr_b32 s{sT2}, s{sT}, 1'); A(f's_lshl_b32 s{sT2}, s{sT2}, 5')
        A(f's_and_b32 s{sT}, s{sT}, 1'); A(f's_lshl_b32 s{sT}, s{sT}, 2'); A(f's_add_u32 s{sT}, s{sT}, s{sT2}')
        A(f'v_and_b32 v{T(0)}, 3, v{vN}'); A(f'v_lshl_add_u32 v{T(0)}, v{vG}, 3, v{T(0)}'); A(f'v_add_u32 v{T(0)}, s{sT}, v{T(0)}')
        A(f'v_lshlrev_b32 v{vB1OFF}, 1, v{T(0)}')
        A(f's_lshr_b32 s{sT}, s{sU}, 5'); A(f's_lshl_b32 s{sT}, s{sT}, 10'); A(f'v_add_u32 v{vWOFF1}, s{sT}, v{vB1OFF}')
        A(f'v_mov_b32 v{T(1)}, {OOB}'); A(f'v_cmp_gt_u32 vcc, 4, v{vN}'); A(f'v_cndmask_b32 v{vOUTA}, v{T(1)}, v{vWOFF1}, vcc')
        A(f's_lshl_b32 s{sT}, s{sU}, 13'); A(f's_add_u32 s{sT}, s{sT}, {WS_C1}'); A(f'v_lshlrev_b32 v{T(0)}, 4, v{vL}'); A(f'v_add_u32 v{vHOFF}, s{sT}, v{T(0)}')
        A(f's_mul_i32 s{sT}, s{sU}, 7168'); A(f's_add_u32 s{sT}, s{sT}, {WS_C2}'); A(f'v_add_u32 v{vWOFF2}, s{sT}, v{T(0)}')
        A('L_r2:')
        for i in range(4): A(f'v_mov_b32 v{vSENT+i}, -1')
        A('s_waitcnt lgkmcnt(0)')
        A(f's_lshl_b32 s{sT}, s{sBH}, 21'); A(f's_lshl_b32 s{sT2}, s{sS}, 19'); A(f's_add_u32 s{sT}, s{sT}, s{sT2}')
        G.srd(rX, pX, pX + 1, 2048)
        G.srd(rK, pK, pK + 1, 0x80000, f's{sT}')
        G.vmop(f'buffer_load_dwordx4 v[{vXR}:{vXR+3}], v{T(2)}, s[{rX}:{rX+3}], 0 offen', 'x')
        koffs = [0, 2048, 128, 2176]
        voffs = [0, 2048, 256, 2304]
        def unit_loads(u):
            isK = u < 32; t = u % 32
            A(f's_mov_b32 s{sOff}, {t*16384}')
            for q in range(4):
                r = ((u % RING) * 4 + q) * 4
                if isK: G.vmop(f'buffer_load_dwordx4 a[{r}:{r+3}], v{vK}, s[{rK}:{rK+3}], s{sOff} offen offset:{koffs[q]} {nt}', f'u{u}')
                else:   G.vmop(f'buffer_load_dwordx4 a[{r}:{r+3}], v{vV}, s[{rV}:{rV+3}], s{sOff} offen offset:{voffs[q]} {nt}', f'u{u}')
        unit_loads(0)
        G.srd(rV, pV, pV + 1, 0x80000, f's{sT}')
        G.srd(rWS, pWS, pWS + 1, WS_SIZE + (0x100000 if self.diag else 0))
        A(f's_lshl_b32 s{sT}, s{sH}, 8')
        G.srd(rWQ, pWQ, pWQ + 1, 0, f's{sT}'); A(f's_sub_u32 s{rWQ+2}, {512*8192}, s{sT}')
        G.vmop(f'buffer_store_dwordx4 v[{vSENT}:{vSENT+3}], v{vC1}, s[{rWS}:{rWS+3}], 0 offen sc1', 'init')
        G.vmop(f'buffer_store_dwordx2 v[{vSENT}:{vSENT+1}], v{vMLp}, s[{rWS}:{rWS+3}], 0 offen sc1', 'init')
        A(f's_cmp_eq_u32 s{sRole}, 1'); A('s_cbranch_scc0 L_i1')
        G.vmop(f'buffer_store_dwordx4 v[{vSENT}:{vSENT+3}], v{vRS}, s[{rWS}:{rWS+3}], 0 offen sc1', 'init', True)
        A('L_i1:')
        A(f's_cmp_eq_u32 s{sRole}, 2'); A('s_cbranch_scc0 L_i2')
        G.vmop(f'buffer_store_dword v{vSENT}, v{vRS}, s[{rWS}:{rWS+3}], 0 offen sc1', 'init', True)
        A('L_i2:')
        for i in range(32):
            A(f's_mov_b32 s{sT}, {i*8192}')
            r = aW + 4 * i
            G.vmop(f'buffer_load_dwordx4 a[{r}:{r+3}], v{vWQ}, s[{rWQ}:{rWQ+3}], s{sT} offen {wnt}', f'wq{i}')
        for u in range(1, self.pre): unit_loads(u)
        G.stamp(0)
        A(f's_lshl_b32 s{sT}, s{sH}, 17')
        G.srd(rWO, pWO, pWO + 1, 131072, f's{sT}')
        G.srd(rDBG, pDBG, pDBG + 1, 256)
        G.srd(rW1, pW1, pW1 + 1, 512 * 3584)
        G.srd(rW2, pW2, pW2 + 1, 1792 * 1024)
        G.srd(rB1, pB1, pB1 + 1, 3584)
        G.srd(rB2, pB2, pB2 + 1, 1024)
        G.srd(rOUT, pOUT, pOUT + 1, 2048)
        A(f's_mov_b32 s{sPK}, 0x05040100')
        A(f's_lshl_b32 s{sT}, s{sW}, 8'); A(f'v_lshlrev_b32 v{T(0)}, 15, v{vG}'); A(f'v_lshl_add_u32 v{T(0)}, v{vN}, 4, v{T(0)}'); A(f'v_add_u32 v{vWO}, s{sT}, v{T(0)}')
        A(f'v_and_b32 v{T(0)}, 1, v{vN}'); A(f'v_cmp_eq_u32 vcc, 1, v{T(0)}')
        A(f'v_mov_b32 v{T(1)}, 0x0c0c0100'); A(f'v_mov_b32 v{T(2)}, 0x01000c0c'); A(f'v_cndmask_b32 v{T(3)}, v{T(1)}, v{T(2)}, vcc')
        A(f'v_mov_b32 v{T(1)}, 0x0c0c0302'); A(f'v_mov_b32 v{T(2)}, 0x03020c0c'); A(f'v_cndmask_b32 v{T(4)}, v{T(1)}, v{T(2)}, vcc')
        A(f'v_mov_b32 v{T(1)}, 0x0000ffff'); A(f'v_mov_b32 v{T(2)}, 0xffff0000'); A(f'v_cndmask_b32 v{T(5)}, v{T(1)}, v{T(2)}, vcc')
        A(f'v_bfe_u32 v{T(0)}, v{vN}, 1, 2'); A(f'v_mov_b32 v{T(6)}, 0x0c0c0c0c')
        for jj in range(4):
            A(f'v_cmp_eq_u32 vcc, {jj}, v{T(0)}')
            A(f'v_cndmask_b32 v{vSEL+jj}, v{T(6)}, v{T(3)}, vcc'); A(f'v_cndmask_b32 v{vSEL+4+jj}, v{T(6)}, v{T(4)}, vcc')
            A(f'v_cndmask_b32 v{vMASK+jj}, 0, v{T(5)}, vcc')
        A(f's_lshl_b32 s{sT}, s{sW}, 10'); A(f'v_lshlrev_b32 v{T(0)}, 4, v{vL}'); A(f'v_add_u32 v{vA1}, s{sT}, v{T(0)}')
        A(f's_mul_i32 s{sT}, s{sW}, 1280'); A(f'v_lshlrev_b32 v{T(0)}, 6, v{vG}'); A(f'v_add_u32 v{vA2}, s{sT}, v{T(0)}')
        G.vmwait('x')
        X = [T(i) for i in range(8)]
        for k in range(4):
            A(f'v_lshlrev_b32 v{X[2*k]}, 16, v{vXR+k}'); A(f'v_and_b32 v{X[2*k+1]}, 0xffff0000, v{vXR+k}')
        self.ln_stats(X, T(8), T(9), T(10), T(11), 1.0 / 512, self.wave_allreduce)
        self.ln_apply(X, T(8), T(9))
        for k in range(4): A(f'v_cvt_pk_bf16_f32 v{vXR+k}, v{X[2*k]}, v{X[2*k+1]}')
        A(f'ds_write_b128 v{vA1}, v[{vXR}:{vXR+3}] offset:{L_XN}')
        A('s_waitcnt lgkmcnt(0)')
        for k in range(4): A(f'ds_read_b128 v[{vXP+4*k}:{vXP+4*k+3}], v{vA2} offset:{L_XN+16*k}')
        A(f's_lshl_b32 s{sT}, s{sW}, 9'); A(f'v_and_b32 v{T(0)}, 7, v{vN}'); A(f'v_lshl_add_u32 v{T(0)}, v{vG}, 5, v{T(0)}'); A(f'v_lshlrev_b32 v{T(0)}, 2, v{T(0)}')
        A(f'v_add_u32 v{vA1}, s{sT}, v{T(0)}')
        A(f'v_mov_b32 v{T(1)}, {L_DUMMY - L_OP}'); A(f'v_cmp_gt_u32 vcc, 8, v{vN}'); A(f'v_cndmask_b32 v{vOPA}, v{T(1)}, v{vA1}, vcc')
        A(f'v_lshlrev_b32 v{vA3}, 3, v{vL}')
        A('s_waitcnt lgkmcnt(0)')
        def delta_steps(nsteps, acc, tagf, first_zero=True):
            for i in range(nsteps):
                bset = vB + 4 * (i & 1)
                for jj in range(4):
                    A(f'v_perm_b32 v{bset+jj}, v{vXP+(i>>1)}, v{vXP+(i>>1)}, v{vSEL+4*(i&1)+jj}')
                if tagf is not None and i % 4 == 0: G.vmwait(tagf(i + 3))
                r = aW + 4 * i
                c = '0' if i == 0 else f'v[{acc}:{acc+3}]'
                A(f'v_mfma_f32_16x16x32_bf16 v[{acc}:{acc+3}], a[{r}:{r+3}], v[{bset}:{bset+3}], {c}')
        delta_steps(32, vDQ, lambda i: f'wq{i}')
        for i in range(4): A(f'ds_write_b32 v{vA1}, v{vDQ+i} offset:{L_QP + 32*i}')
        A('s_waitcnt lgkmcnt(0)'); A('s_barrier')
        A(f's_cmp_eq_u32 s{sW}, 0'); A('s_cbranch_scc0 L_c1')
        A(f'v_mov_b32 v{T(0)}, 1'); A(f'v_mov_b32 v{T(1)}, {OOB}'); A(f'v_cmp_eq_u32 vcc, 0, v{vL}'); A(f'v_cndmask_b32 v{T(1)}, v{T(1)}, 0, vcc')
        G.vmop(f'buffer_atomic_add v{T(0)}, v{T(1)}, s[{rDBG}:{rDBG+3}], 0 offen', 'atom', True)
        A('L_c1:')
        for w in range(4): A(f'ds_read_b64 v[{T(2*w+2)}:{T(2*w+3)}], v{vA3} offset:{L_QP + 512*w}')
        for u in range(self.pre, RING): unit_loads(u)
        A(f's_lshl_b32 s{sT}, s{sW}, 8'); A(f'v_lshlrev_b32 v{T(0)}, 2, v{vL}'); A(f'v_add_u32 v{T(0)}, s{sT}, v{T(0)}')
        A(f'v_lshrrev_b32 v{T(1)}, 3, v{vN}'); A(f'v_lshlrev_b32 v{T(1)}, 6, v{T(1)}'); A(f'v_lshl_add_u32 v{T(1)}, v{vG}, 4, v{T(1)}'); A(f'v_add_u32 v{T(1)}, s{sT}, v{T(1)}')
        A('s_waitcnt lgkmcnt(0)')
        A(f'v_pk_add_f32 v[{T(2)}:{T(3)}], v[{T(2)}:{T(3)}], v[{T(4)}:{T(5)}]'); A(f'v_pk_add_f32 v[{T(6)}:{T(7)}], v[{T(6)}:{T(7)}], v[{T(8)}:{T(9)}]')
        A(f'v_pk_add_f32 v[{T(2)}:{T(3)}], v[{T(2)}:{T(3)}], v[{T(6)}:{T(7)}]')
        A(f'v_cvt_pk_bf16_f32 v{T(2)}, v{T(2)}, v{T(3)}')
        A(f'ds_write_b32 v{T(0)}, v{T(2)} offset:{L_QB}')
        A('s_waitcnt lgkmcnt(0)')
        A(f'ds_read_b128 v[{vBQ}:{vBQ+3}], v{T(1)} offset:{L_QB}'); A(f'ds_read_b128 v[{vBQ+4}:{vBQ+7}], v{T(1)} offset:{L_QB+128}')
        A(f'v_mov_b32 v{vMX}, 0xff800000')
        for i in range(8): A(f'v_mov_b32 v{vO+i}, 0')
        A('s_waitcnt lgkmcnt(0)')
        G.stamp(1)
        if self.stop == 'q':
            return self.finish_debug([vBQ + i for i in range(8)])

        wo_loads = []
        for i in range(32):
            r = aW + 4 * i
            wo_loads.append((i // 4 * 4096, f'buffer_load_dwordx4 a[{r}:{r+3}], v{vWO}, s[{rWO}:{rWO+3}], s{sT} offen offset:{(i%4)*1024} {wnt}', f'wo{i}'))
        def emit_wo(k0, k1):
            for k in range(k0, k1):
                so, s, tag = wo_loads[k]
                if k == k0 or k % 4 == 0: A(f's_mov_b32 s{sT}, {so}')
                G.vmop(s, tag)
        def emit_role_loads(part):
            lab = f'L_rl{part}'
            if part < 16:
                A(f's_cmp_eq_u32 s{sRole}, 1'); A(f's_cbranch_scc0 {lab}')
                s_ = part // 4; e3 = part % 4
                A(f's_mov_b32 s{sT}, {(32*s_ + 8*e3)*3584}')
                for eh in (0, 1):
                    e = e3 + 4 * eh
                    G.vmop(f'buffer_load_ushort v{vR + 8*s_ + e}, v{vWOFF1}, s[{rW1}:{rW1+3}], s{sT} offen offset:{eh*3584}', 'w1g', True)
                A(f'{lab}:')
            else:
                A(f's_cmp_eq_u32 s{sRole}, 1'); A(f's_cbranch_scc0 {lab}a')
                for ii in range(4):
                    G.vmop(f'buffer_load_dwordx4 v[{vW2+4*ii}:{vW2+4*ii+3}], v{vWOFF2}, s[{rW2}:{rW2+3}], 0 offen offset:{ii*1024}', 'w2l', True)
                G.vmop(f'buffer_load_ushort v{vB1}, v{vB1OFF}, s[{rB1}:{rB1+3}], 0 offen', 'b1l', True)
                A(f'{lab}a:')
                A(f's_cmp_eq_u32 s{sRole}, 2'); A(f's_cbranch_scc0 {lab}b')
                G.vmop(f'buffer_load_ushort v{vXV}, v{vWOFF1}, s[{rX}:{rX+3}], 0 offen', 'xv', True)
                G.vmop(f'buffer_load_ushort v{vB2V}, v{vB1OFF}, s[{rB2}:{rB2+3}], 0 offen', 'b2l', True)
                A(f'{lab}b:')
        def kproc(t):
            D0 = vD + 8 * (t & 1); D1 = D0 + 4
            sA, sB_ = T(0), T(1)
            A(f'v_add_f32_dpp v{sA}, v{D0+1}, v{D0} row_ror:8 row_mask:0xf bank_mask:0x3')
            A(f'v_add_f32_dpp v{sB_}, v{D0+3}, v{D0+2} row_ror:8 row_mask:0xf bank_mask:0x3')
            A(f'v_add_f32_dpp v{sA}, v{D1}, v{D1+1} row_ror:8 row_mask:0xf bank_mask:0xc')
            A(f'v_add_f32_dpp v{sB_}, v{D1+2}, v{D1+3} row_ror:8 row_mask:0xf bank_mask:0xc')
            A(f'v_cvt_pk_bf16_f32 v{T(2)}, v{sA}, v{sB_}')
            A(f'v_max3_f32 v{vMX}, v{vMX}, v{sA}, v{sB_}')
            A(f'v_lshlrev_b32 v{T(3)}, 16, v{T(2)}'); A(f'v_and_b32 v{T(4)}, 0xffff0000, v{T(2)}')
            A(f'v_mul_f32 v{T(3)}, {SCALE}, v{T(3)}'); A(f'v_mul_f32 v{T(4)}, {SCALE}, v{T(4)}')
            A(f'v_cvt_pk_bf16_f32 v{vS+t}, v{T(3)}, v{T(4)}')
        for t in range(32):
            u = t
            D0 = vD + 8 * (t & 1); D1 = D0 + 4
            r = (u % RING) * 16
            G.vmwait(f'u{u}')
            A(f'v_mfma_f32_16x16x32_bf16 v[{D0}:{D0+3}], a[{r}:{r+3}], v[{vBQ}:{vBQ+3}], 0')
            A(f'v_mfma_f32_16x16x32_bf16 v[{D1}:{D1+3}], a[{r+4}:{r+7}], v[{vBQ}:{vBQ+3}], 0')
            A(f'v_mfma_f32_16x16x32_bf16 v[{D0}:{D0+3}], a[{r+8}:{r+11}], v[{vBQ+4}:{vBQ+7}], v[{D0}:{D0+3}]')
            A(f'v_mfma_f32_16x16x32_bf16 v[{D1}:{D1+3}], a[{r+12}:{r+15}], v[{vBQ+4}:{vBQ+7}], v[{D1}:{D1+3}]')
            unit_loads(u + RING)
            if 2 <= t < 18: emit_wo(2 * (t - 2), 2 * (t - 2) + 2)
            if t == 27:
                A(f'v_mov_b32 v{T(5)}, 0')
                G.vmop(f'buffer_load_dword v{vCNT}, v{T(5)}, s[{rDBG}:{rDBG+3}], 0 offen sc1', 'cnt')
            if t > 0: kproc(t - 1)
        kproc(31)
        G.stamp(2)
        self.wave_allreduce('max', vMX, T(0))
        G.rbf(vM, vMX); A(f'v_mul_f32 v{vM}, {SCALE}, v{vM}'); G.rbf(vM)
        A(f'v_mul_f32 v{vNM}, {LOG2E}, v{vM}'); A(f'v_sub_f32 v{vNM}, 0, v{vNM}')
        A(f's_mov_b32 s{sT2}, {LOG2E}')
        A(f'v_mov_b32 v{vLS}, 0')
        for t in range(32):
            a, b = T(2 * (t & 1)), T(2 * (t & 1) + 1)
            A(f'v_lshlrev_b32 v{a}, 16, v{vS+t}'); A(f'v_and_b32 v{b}, 0xffff0000, v{vS+t}')
            A(f'v_fma_f32 v{a}, v{a}, s{sT2}, v{vNM}'); A(f'v_fma_f32 v{b}, v{b}, s{sT2}, v{vNM}')
            A(f'v_exp_f32 v{a}, v{a}'); A(f'v_exp_f32 v{b}, v{b}')
            A(f'v_add_f32 v{vLS}, v{vLS}, v{a}'); A(f'v_cvt_pk_bf16_f32 v{vS+t}, v{a}, v{b}'); A(f'v_add_f32 v{vLS}, v{vLS}, v{b}')
        self.wave_allreduce('add', vLS, T(0))
        A(f'v_mul_f32 v{vLS}, 0.125, v{vLS}') if False else A(f'v_mul_f32 v{vLS}, 0x3e000000, v{vLS}')
        A(f'v_mov_b32 v{T(0)}, v{vM}'); A(f'v_mov_b32 v{T(1)}, v{vLS}')
        G.vmop(f'buffer_store_dwordx2 v[{T(0)}:{T(1)}], v{vMLp}, s[{rWS}:{rWS+3}], 0 offen sc1', 'mlst')
        G.vmwait('cnt')
        A(f's_mov_b32 s{sSpin}, {self.spin}')
        A('L_cnt:')
        A(f'v_readfirstlane_b32 s{sT}, v{vCNT}')
        A(f's_cmp_ge_u32 s{sT}, 256'); A('s_cbranch_scc1 L_cnt_ok')
        A(f's_sub_u32 s{sSpin}, s{sSpin}, 1'); A('s_cbranch_scc1 L_cnt_ok')
        A(f'v_mov_b32 v{T(5)}, 0')
        A(f'buffer_load_dword v{vCNT}, v{T(5)}, s[{rDBG}:{rDBG+3}], 0 offen sc1'); A('s_waitcnt vmcnt(0)')
        A('s_branch L_cnt')
        A('L_cnt_ok:')
        G.stamp(3)
        def vprep(t):
            for ab in range(2):
                bs = vB + 8 * (t & 1) + 4 * ab
                for jj in range(4):
                    A(f'v_perm_b32 v{bs+jj}, v{vS+t}, v{vS+t}, v{vSEL+4*ab+jj}')
        def ml_compute():
            A(f'v_mov_b32 v{T(10)}, v{vML0}')
            for r_ in (1, 2, 4, 8): A(f'v_max_f32_dpp v{T(10)}, v{T(10)}, v{T(10)} row_ror:{r_} row_mask:0xf bank_mask:0xf')
            A(f'v_sub_f32 v{T(11)}, v{vML0}, v{T(10)}'); A(f'v_mul_f32 v{T(11)}, {LOG2E}, v{T(11)}'); A(f'v_exp_f32 v{T(11)}, v{T(11)}')
            A(f'v_mul_f32 v{T(11)}, v{T(11)}, v{vML1}')
            for r_ in (1, 2, 4, 8): A(f'v_add_f32_dpp v{T(11)}, v{T(11)}, v{T(11)} row_ror:{r_} row_mask:0xf bank_mask:0xf')
            A(f'v_sub_f32 v{T(10)}, v{vM}, v{T(10)}'); A(f'v_mul_f32 v{T(10)}, {LOG2E}, v{T(10)}'); A(f'v_exp_f32 v{T(10)}, v{T(10)}')
            A(f'v_rcp_f32 v{T(12)}, v{T(11)}'); A(f'v_mul_f32 v{vF}, v{T(10)}, v{T(12)}')
            A(f'v_cmp_u_f32 vcc, v{T(11)}, v{T(11)}')
        vprep(0)
        for t in range(32):
            u = 32 + t
            r = (u % RING) * 16
            G.vmwait(f'u{u}')
            bs = vB + 8 * (t & 1)
            A(f'v_mfma_f32_16x16x32_bf16 v[{vO}:{vO+3}], a[{r}:{r+3}], v[{bs}:{bs+3}], v[{vO}:{vO+3}]')
            A(f'v_mfma_f32_16x16x32_bf16 v[{vO+4}:{vO+7}], a[{r+4}:{r+7}], v[{bs}:{bs+3}], v[{vO+4}:{vO+7}]')
            A(f'v_mfma_f32_16x16x32_bf16 v[{vO}:{vO+3}], a[{r+8}:{r+11}], v[{bs+4}:{bs+7}], v[{vO}:{vO+3}]')
            A(f'v_mfma_f32_16x16x32_bf16 v[{vO+4}:{vO+7}], a[{r+12}:{r+15}], v[{bs+4}:{bs+7}], v[{vO+4}:{vO+7}]')
            if u + RING < 64: unit_loads(u + RING)
            if t < 17: emit_role_loads(t)
            if t == 27:
                A(f's_cmp_eq_u32 s{sRole}, 1'); A('s_cbranch_scc0 L_pk1')
                for s_ in range(4):
                    for jj in range(4):
                        A(f'v_perm_b32 v{vW1+4*s_+jj}, v{vR+8*s_+2*jj+1}, v{vR+8*s_+2*jj}, s{sPK}')
                A('L_pk1:')
            if t == 17:
                G.vmop(f'buffer_load_dwordx2 v[{vML0}:{vML1}], v{vMLq}, s[{rWS}:{rWS+3}], 0 offen sc1', 'mlq')
            if t == 25:
                G.vmwait('mlq')
                A(f's_mov_b32 s{sSpin}, {self.spin}')
                A('L_ml:')
                ml_compute()
                A('s_cbranch_vccz L_ml_ok')
                A(f's_sub_u32 s{sSpin}, s{sSpin}, 1'); A('s_cbranch_scc1 L_ml_ok')
                A(f'buffer_load_dwordx2 v[{vML0}:{vML1}], v{vMLq}, s[{rWS}:{rWS+3}], 0 offen sc1'); A('s_waitcnt vmcnt(0)')
                A('s_branch L_ml')
                A('L_ml_ok:')
            if t < 31: vprep(t + 1)
        G.stamp(4)
        for i in range(4): A(f'v_add_f32_dpp v{T(i)}, v{vO+4+i}, v{vO+i} row_ror:8 row_mask:0xf bank_mask:0xf')
        for i in range(4): A(f'v_mul_f32 v{T(i)}, v{vF}, v{T(i)}')
        for i in range(4): A(f'ds_write_b32 v{vOPA}, v{T(i)} offset:{L_OP + 32*i}')
        A(f's_lshl_b32 s{sT}, s{sW}, 9'); A(f'v_lshlrev_b32 v{T(10)}, 2, v{vL}'); A(f'v_add_u32 v{T(10)}, s{sT}, v{T(10)}')
        A(f'v_lshrrev_b32 v{T(11)}, 3, v{vN}'); A(f'v_lshlrev_b32 v{T(11)}, 8, v{T(11)}'); A(f'v_lshl_add_u32 v{T(11)}, v{vG}, 6, v{T(11)}'); A(f'v_add_u32 v{T(11)}, s{sT}, v{T(11)}')
        A('s_waitcnt lgkmcnt(0)'); A('s_barrier')
        for w in range(4): A(f'ds_read_b64 v[{T(2*w+2)}:{T(2*w+3)}], v{vA3} offset:{L_OP + 512*w}')
        A('s_waitcnt lgkmcnt(0)')
        A(f'v_pk_add_f32 v[{T(2)}:{T(3)}], v[{T(2)}:{T(3)}], v[{T(4)}:{T(5)}]'); A(f'v_pk_add_f32 v[{T(6)}:{T(7)}], v[{T(6)}:{T(7)}], v[{T(8)}:{T(9)}]')
        A(f'v_pk_add_f32 v[{T(2)}:{T(3)}], v[{T(2)}:{T(3)}], v[{T(6)}:{T(7)}]')
        A(f'v_cvt_pk_bf16_f32 v{T(4)}, v{T(2)}, v{T(3)}')
        A(f'v_lshlrev_b32 v{T(5)}, 16, v{T(4)}'); A(f'v_and_b32 v{T(6)}, 0xffff0000, v{T(4)}')
        A(f'v_sub_f32 v{T(5)}, v{T(2)}, v{T(5)}'); A(f'v_sub_f32 v{T(6)}, v{T(3)}, v{T(6)}')
        A(f'ds_write_b32 v{T(10)}, v{T(4)} offset:{L_OH}')
        A(f'v_cvt_pk_bf16_f32 v{T(5)}, v{T(5)}, v{T(6)}')
        A(f'ds_write_b32 v{T(10)}, v{T(5)} offset:{L_OH+256}')
        A('s_waitcnt lgkmcnt(0)')
        for k in range(4): A(f'ds_read_b128 v[{vXP+4*k}:{vXP+4*k+3}], v{T(11)} offset:{L_OH+16*k}')
        A('s_waitcnt lgkmcnt(0)')
        delta_steps(32, vDQ, None)
        for i in range(4): A(f'v_add_f32_dpp v{T(i)}, v{vDQ+i}, v{vDQ+i} row_ror:8 row_mask:0xf bank_mask:0xf')
        G.vmop(f'buffer_store_dwordx4 v[{T(0)}:{T(3)}], v{vC1}, s[{rWS}:{rWS+3}], 0 offen sc1', 'c1st')
        G.stamp(5)
        A(f's_cmp_eq_u32 s{sRole}, 1'); A('s_cbranch_scc1 L_m1')
        A(f's_cmp_eq_u32 s{sRole}, 2'); A('s_cbranch_scc0 L_fin')
        A(f's_cmp_eq_u32 s{sW}, 0'); A('s_cbranch_scc0 L_fin')
        def gather_reduce(nl, voff, lab):
            A(f's_mov_b32 s{sSpin}, {self.spin}')
            A(f'{lab}:')
            for k in range(nl):
                if k % 4 == 0: A(f's_mov_b32 s{sT}, {(k//4)*4096}')
                A(f'buffer_load_dwordx4 v[{vR+4*k}:{vR+4*k+3}], v{voff}, s[{rWS}:{rWS+3}], s{sT} offen offset:{(k%4)*1024} sc1')
            k = 1
            A(f's_waitcnt vmcnt({nl-2})')
            for c in (0, 2): A(f'v_pk_add_f32 v[{T(c)}:{T(c+1)}], v[{vR+c}:{vR+c+1}], v[{vR+4+c}:{vR+4+c+1}]')
            for k in range(2, nl):
                A(f's_waitcnt vmcnt({nl-1-k})')
                for c in (0, 2): A(f'v_pk_add_f32 v[{T(c)}:{T(c+1)}], v[{T(c)}:{T(c+1)}], v[{vR+4*k+c}:{vR+4*k+c+1}]')
            A(f'v_cmp_u_f32 vcc, v{T(0)}, v{T(1)}'); A(f'v_cmp_u_f32 s[{sM}:{sM+1}], v{T(2)}, v{T(3)}')
            A(f's_or_b64 vcc, vcc, s[{sM}:{sM+1}]')
            A(f's_cbranch_vccz {lab}_ok')
            A(f's_sub_u32 s{sSpin}, s{sSpin}, 1'); A(f's_cbranch_scc0 {lab}')
            A(f'{lab}_ok:')
            A(f'v_permlane32_swap_b32 v{T(0)}, v{T(2)}'); A(f'v_permlane32_swap_b32 v{T(1)}, v{T(3)}')
            A(f'v_add_f32 v{T(0)}, v{T(0)}, v{T(2)}'); A(f'v_add_f32 v{T(1)}, v{T(1)}, v{T(3)}')
            A(f'v_permlane16_swap_b32 v{T(0)}, v{T(1)}'); A(f'v_add_f32 v{T(0)}, v{T(0)}, v{T(1)}')
            A(f'v_add_f32_dpp v{T(0)}, v{T(0)}, v{T(0)} row_ror:4 row_mask:0xf bank_mask:0xf')
            A(f'v_add_f32_dpp v{T(0)}, v{T(0)}, v{T(0)} row_ror:8 row_mask:0xf bank_mask:0xf')
        A(f'v_lshlrev_b32 v{vXV}, 16, v{vXV}'); A(f'v_lshlrev_b32 v{vB2V}, 16, v{vB2V}')
        gather_reduce(8, vHOFF, 'L_g1')
        G.stamp(6)
        G.rbf(T(0)); A(f'v_add_f32 v{T(0)}, v{vXV}, v{T(0)}'); G.rbf(vHV, T(0))
        A(f'buffer_store_dword v{vHV}, v{vRS}, s[{rWS}:{rWS+3}], 0 offen sc1')
        G.stamp(7)
        gather_reduce(7, vWOFF2, 'L_g2')
        G.stamp(8)
        G.rbf(T(0)); A(f'v_add_f32 v{T(0)}, v{vB2V}, v{T(0)}'); G.rbf(T(0)); A(f'v_add_f32 v{T(0)}, v{vHV}, v{T(0)}')
        A(f'v_cvt_pk_bf16_f32 v{T(0)}, v{T(0)}, v{T(0)}')
        A(f'buffer_store_short v{T(0)}, v{vOUTA}, s[{rOUT}:{rOUT+3}], 0 offen')
        A('s_branch L_fin')
        A('L_m1:')
        A(f's_lshl_b32 s{sT}, s{sW}, 9'); A(f'v_lshrrev_b32 v{T(0)}, 5, v{vL}'); A(f'v_lshlrev_b32 v{T(0)}, 8, v{T(0)}'); A(f'v_and_b32 v{T(1)}, 31, v{vL}')
        A(f'v_lshl_add_u32 v{T(0)}, v{T(1)}, 3, v{T(0)}'); A(f'v_add_u32 v{vA1}, s{sT}, v{T(0)}')
        A(f'v_and_b32 v{T(0)}, 1, v{vN}'); A(f'v_lshlrev_b32 v{T(0)}, 8, v{T(0)}'); A(f'v_lshl_add_u32 v{T(0)}, v{vG}, 4, v{T(0)}'); A(f'v_add_u32 v{vA2}, s{sT}, v{T(0)}')
        A(f's_lshl_b32 s{sT}, s{sW}, 7'); A(f'v_lshlrev_b32 v{T(0)}, 2, v{vN}'); A(f'v_add_u32 v{vA3}, s{sT}, v{T(0)}')
        A(f'v_lshrrev_b32 v{T(0)}, 3, v{vN}'); A(f'v_lshlrev_b32 v{T(0)}, 6, v{T(0)}'); A(f'v_and_b32 v{T(1)}, 3, v{vN}'); A(f'v_lshl_add_u32 v{T(1)}, v{vG}, 2, v{T(1)}')
        A(f'v_lshl_add_u32 v{vA4}, v{T(1)}, 2, v{T(0)}')
        A(f'v_lshlrev_b32 v{vB1}, 16, v{vB1}')
        A(f's_mov_b32 s{sSpin}, {self.spin}')
        H = [vR + i for i in range(16)]
        A('L_g3:')
        for kk in range(4):
            A(f's_add_u32 s{sT}, s{sW}, {kk}'); A(f's_and_b32 s{sT}, s{sT}, 3'); A(f's_lshl_b32 s{sT}, s{sT}, 9')
            A(f'buffer_load_dwordx4 v[{vR+4*kk}:{vR+4*kk+3}], v{vHOFF}, s[{rWS}:{rWS+3}], s{sT} offen sc1')
        A('s_waitcnt vmcnt(0)')
        A(f'v_pk_add_f32 v[{T(0)}:{T(1)}], v[{H[0]}:{H[1]}], v[{H[2]}:{H[3]}]')
        for k in range(2, 8): A(f'v_pk_add_f32 v[{T(0)}:{T(1)}], v[{T(0)}:{T(1)}], v[{H[2*k]}:{H[2*k+1]}]')
        A(f'v_add_f32 v{T(0)}, v{T(0)}, v{T(1)}')
        A(f'v_cmp_u_f32 vcc, v{T(0)}, v{T(0)}')
        A('s_cbranch_vccz L_g3_ok')
        A(f's_sub_u32 s{sSpin}, s{sSpin}, 1'); A('s_cbranch_scc0 L_g3')
        A('L_g3_ok:')
        G.stamp(6)
        self.half_allreduce('add', T(0), T(1))
        A(f'v_mul_f32 v{T(0)}, 0x3b000000, v{T(0)}')
        A(f'v_sub_f32 v{T(2)}, v{H[0]}, v{T(0)}'); A(f'v_mul_f32 v{T(3)}, v{T(2)}, v{T(2)}')
        A(f'v_sub_f32 v{T(4)}, v{H[1]}, v{T(0)}'); A(f'v_mul_f32 v{T(5)}, v{T(4)}, v{T(4)}')
        for k in range(2, 16, 2):
            A(f'v_sub_f32 v{T(2)}, v{H[k]}, v{T(0)}'); A(f'v_sub_f32 v{T(4)}, v{H[k+1]}, v{T(0)}')
            A(f'v_fmac_f32 v{T(3)}, v{T(2)}, v{T(2)}'); A(f'v_fmac_f32 v{T(5)}, v{T(4)}, v{T(4)}')
        A(f'v_add_f32 v{T(3)}, v{T(3)}, v{T(5)}')
        self.half_allreduce('add', T(3), T(1))
        self.ln_finish(T(0), T(3), T(8), T(9), 1.0 / 512)
        Y = H[0:4]
        self.ln_apply(Y, T(8), T(9))
        A(f'v_cvt_pk_bf16_f32 v{T(4)}, v{Y[0]}, v{Y[1]}'); A(f'v_cvt_pk_bf16_f32 v{T(5)}, v{Y[2]}, v{Y[3]}')
        A(f'ds_write_b64 v{vA1}, v[{T(4)}:{T(5)}] offset:{L_YB}')
        A('s_waitcnt lgkmcnt(0)')
        for s_ in range(4): A(f'ds_read_b128 v[{vXP+4*s_}:{vXP+4*s_+3}], v{vA2} offset:{L_YB+64*s_}')
        for s_ in range(4):
            A(f's_waitcnt lgkmcnt({3-s_})')
            c = '0' if s_ == 0 else f'v[{vDQ}:{vDQ+3}]'
            A(f'v_mfma_f32_16x16x32_bf16 v[{vDQ}:{vDQ+3}], v[{vXP+4*s_}:{vXP+4*s_+3}], v[{vW1+4*s_}:{vW1+4*s_+3}], {c}')
        A(f'ds_write_b32 v{vA3}, v{vDQ} offset:{L_TP}'); A(f'ds_write_b32 v{vA3}, v{vDQ+1} offset:{L_TP+64}')
        A('s_waitcnt lgkmcnt(0)'); A('s_barrier')
        for w in range(4): A(f'ds_read_b32 v{T(w)}, v{vA4} offset:{L_TP+128*w}')
        A('s_waitcnt lgkmcnt(0)')
        A(f'v_add_f32 v{T(0)}, v{T(0)}, v{T(1)}'); A(f'v_add_f32 v{T(2)}, v{T(2)}, v{T(3)}'); A(f'v_add_f32 v{T(0)}, v{T(0)}, v{T(2)}')
        G.rbf(T(0)); A(f'v_add_f32 v{T(0)}, v{vB1}, v{T(0)}'); G.rbf(T(0))
        import struct, math
        f2u = lambda f: struct.unpack('<I', struct.pack('<f', f))[0]
        K0 = -2 * math.log2(math.e) * math.sqrt(2 / math.pi); K1 = K0 * 0.044715
        A(f'v_mul_f32 v{T(1)}, v{T(0)}, v{T(0)}'); A(f'v_mov_b32 v{T(2)}, {hex(f2u(K0))}'); A(f'v_fmac_f32 v{T(2)}, {hex(f2u(K1))}, v{T(1)}')
        A(f'v_mul_f32 v{T(1)}, v{T(0)}, v{T(2)}'); A(f'v_exp_f32 v{T(1)}, v{T(1)}'); A(f'v_add_f32 v{T(1)}, 1.0, v{T(1)}'); A(f'v_rcp_f32 v{T(1)}, v{T(1)}')
        A(f'v_mul_f32 v{T(0)}, v{T(0)}, v{T(1)}'); A(f'v_cvt_pk_bf16_f32 v{vGA}, v{T(0)}, v{T(0)}')
        for ii in range(4):
            bs = vB + 4 * ii
            for jj in range(4):
                A(f'v_and_b32_dpp v{bs+jj}, v{vGA}, v{vMASK+jj} quad_perm:[{ii},{ii},{ii},{ii}] row_mask:0xf bank_mask:0xf')
        for ii in range(4):
            bs = vB + 4 * ii
            c = '0' if ii == 0 else f'v[{vDQ}:{vDQ+3}]'
            A(f'v_mfma_f32_16x16x32_bf16 v[{vDQ}:{vDQ+3}], v[{vW2+4*ii}:{vW2+4*ii+3}], v[{bs}:{bs+3}], {c}')
        A(f'buffer_store_dwordx4 v[{vDQ}:{vDQ+3}], v{vRS}, s[{rWS}:{rWS+3}], 0 offen sc1')
        G.stamp(7)
        A('L_fin:')
        if self.diag:
            A(f's_lshl_b32 s{sT}, s2, 2'); A(f's_add_u32 s{sT}, s{sT}, s{sW}'); A(f's_lshl_b32 s{sT}, s{sT}, 6'); A(f's_add_u32 s{sT}, s{sT}, {WS_DIAG}')
            A('s_memrealtime s[96:97]'); A('s_getreg_b32 s98, hwreg(HW_REG_XCC_ID)'); A('s_waitcnt lgkmcnt(0)')
            A('v_writelane_b32 v251, s96, 14'); A('v_writelane_b32 v251, s98, 15')
            A(f'v_lshlrev_b32 v{T(0)}, 2, v{vL}'); A(f'v_add_u32 v{T(0)}, s{sT}, v{T(0)}')
            A(f'v_mov_b32 v{T(1)}, {OOB}'); A(f'v_cmp_gt_u32 vcc, 16, v{vL}'); A(f'v_cndmask_b32 v{T(0)}, v{T(1)}, v{T(0)}, vcc')
            A(f'buffer_store_dword v251, v{T(0)}, s[{rWS}:{rWS+3}], 0 offen')
        A('L_end:')
        A('s_endpgm')
        return self.wrap()

    def ln_finish(self, mean, ss, om, orstd, inv_n):
        A = self.A
        import struct
        f2u = lambda f: struct.unpack('<I', struct.pack('<f', f))[0]
        A(f'v_mul_f32 v{ss}, {hex(f2u(inv_n))}, v{ss}'); self.rbf(ss)
        A(f'v_add_f32 v{ss}, {hex(f2u(1e-5))}, v{ss}'); self.rbf(ss)
        A(f'v_sqrt_f32 v{ss}, v{ss}'); self.rbf(ss)
        A(f'v_rcp_f32 v{orstd}, v{ss}')
        self.rbf(om, mean)
    def ln_stats(self, X, om, orstd, t0, t1, inv_n, red):
        A = self.A
        import struct
        f2u = lambda f: struct.unpack('<I', struct.pack('<f', f))[0]
        A(f'v_add_f32 v{t0}, v{X[0]}, v{X[1]}')
        for x in X[2:]: A(f'v_add_f32 v{t0}, v{t0}, v{x}')
        red('add', t0, t1)
        A(f'v_mul_f32 v{t0}, {hex(f2u(inv_n))}, v{t0}')
        A(f'v_sub_f32 v{t1}, v{X[0]}, v{t0}'); A(f'v_mul_f32 v{orstd}, v{t1}, v{t1}')
        for x in X[1:]:
            A(f'v_sub_f32 v{t1}, v{x}, v{t0}'); A(f'v_fmac_f32 v{orstd}, v{t1}, v{t1}')
        red('add', orstd, t1)
        A(f'v_mov_b32 v{t1}, v{orstd}')
        self.ln_finish(t0, t1, om, orstd, inv_n)
    def ln_apply(self, X, m, rstd):
        A = self.A
        for k in range(0, len(X), 2):
            A(f'v_sub_f32 v{X[k]}, v{X[k]}, v{m}'); A(f'v_sub_f32 v{X[k+1]}, v{X[k+1]}, v{m}')
            A(f'v_cvt_pk_bf16_f32 v{X[k+1]}, v{X[k]}, v{X[k+1]}')
            A(f'v_lshlrev_b32 v{X[k]}, 16, v{X[k+1]}'); A(f'v_and_b32 v{X[k+1]}, 0xffff0000, v{X[k+1]}')
            A(f'v_mul_f32 v{X[k]}, v{X[k]}, v{rstd}'); A(f'v_mul_f32 v{X[k+1]}, v{X[k+1]}, v{rstd}')

    def finish_debug(self, regs):
        raise NotImplementedError

    def wrap(self):
        body = hz.fix(self.L)
        H = []
        H.append(f'; @launch grid=(256,1,1) block=(256,1,1) lds={LDS_SIZE}')
        H.append('.amdgcn_target "amdgcn-amd-amdhsa--gfx950"')
        H.append('.text'); H.append(f'.globl {KN}'); H.append('.p2align 8'); H.append(f'.type {KN},@function'); H.append(f'{KN}:')
        H += body
        H.append('.section .rodata,"a"'); H.append('.p2align 6'); H.append(f'.amdhsa_kernel {KN}')
        H.append('  .amdhsa_next_free_vgpr 512'); H.append('  .amdhsa_next_free_sgpr 102'); H.append('  .amdhsa_accum_offset 256')
        H.append('  .amdhsa_group_segment_fixed_size 0'); H.append('  .amdhsa_kernarg_size 104'); H.append('  .amdhsa_user_sgpr_count 2')
        H.append('  .amdhsa_user_sgpr_kernarg_segment_ptr 1'); H.append('  .amdhsa_system_sgpr_workgroup_id_x 1')
        H.append('.end_amdhsa_kernel')
        return '\n'.join(H) + '\n'

if __name__ == '__main__':
    import ast
    kw = eval('dict(%s)' % (sys.argv[2] if len(sys.argv) > 2 else ''))
    open(sys.argv[1], 'w').write(Gen(**kw).gen())
```

```python
import sys
import hz
KN = 'sequential_preLN__mha_block_cached__mixer_channel_mlp__decode_kernel'

WS_ML = 0x0
WS_H  = 0x2000
WS_C1 = 0x10000
WS_C2 = 0x90000
WS_SIZE = 0x100000
WS_DIAG = 0x100000
OOB = 0x7ff00000

L_XN = 0
L_QP = 4096
L_QB = 6144
L_OP = 7168
L_OH = 9216
L_YB = 11264
L_TP = 13312
L_DUMMY = 13824
LDS_SIZE = 16384

SCALE = 0x3DB504F3
LOG2E = 0x3FB8AA3B

class Gen:
    def __init__(self, diag=False, nt='nt', wnt='', spin=1 << 15, ring=8, pre=6, stop=None, nowo=False, nowq=False, norole=False, **kw):
        self.L = []
        self.vm = []
        self.done = -1
        self.diag = diag; self.nt = nt; self.wnt = wnt; self.spin = spin
        self.ring = ring; self.pre = pre; self.stop = stop
        self.nstamp = 0; self.n3 = 0
        self.nowo = nowo; self.nowq = nowq; self.norole = norole; self.kw = kw
    def A(self, s): self.L.append('  ' + s if not s.endswith(':') else s)
    def vmop(self, s, tag, optional=False):
        self.A(s); self.vm.append((tag, optional))
        if self.kw.get('st3') and self.n3 < 64 and not optional:
            self.A('s_memrealtime s[96:97]'); self.A('s_waitcnt lgkmcnt(0)'); self.A('v_writelane_b32 v252, s96, %d' % self.n3); self.n3 += 1
        out = len(self.vm) - 1 - self.done
        assert out <= 63, ('too many outstanding', out, tag)
    def vmwait(self, tag):
        idx = max(i for i, (t, o) in enumerate(self.vm) if t == tag)
        n = sum(1 for (t, o) in self.vm[idx + 1:] if not o)
        assert n <= 63
        self.A('s_waitcnt vmcnt(%d)' % n)
        self.done = max(self.done, idx)
    def vmdrain(self):
        self.A('s_waitcnt vmcnt(0)'); self.done = len(self.vm) - 1
    def stamp(self, k):
        if self.diag:
            self.A('s_memrealtime s[96:97]'); self.A('s_waitcnt lgkmcnt(0)')
            self.A('v_mov_b32 v250, s96'); self.A('v_writelane_b32 v251, s96, %d' % k)

    def srd(self, r, lo, hi, size, off=None):
        A = self.A
        if off is None:
            A(f's_mov_b32 s{r}, s{lo}'); A(f's_and_b32 s{r+1}, s{hi}, 0xffff')
        else:
            A(f's_add_u32 s{r}, s{lo}, {off}'); A(f's_addc_u32 s{r+1}, s{hi}, 0'); A(f's_and_b32 s{r+1}, s{r+1}, 0xffff')
        A(f's_mov_b32 s{r+2}, {size}'); A(f's_mov_b32 s{r+3}, 0x20000')

    def wave_allreduce(self, op, v, t):
        A = self.A
        for r in (1, 2, 4, 8):
            A(f'v_{op}_f32_dpp v{v}, v{v}, v{v} row_ror:{r} row_mask:0xf bank_mask:0xf')
        A(f'v_mov_b32 v{t}, v{v}'); A(f'v_permlane16_swap_b32 v{v}, v{t}'); A(f'v_{op}_f32 v{v}, v{v}, v{t}')
        A(f'v_mov_b32 v{t}, v{v}'); A(f'v_permlane32_swap_b32 v{v}, v{t}'); A(f'v_{op}_f32 v{v}, v{v}, v{t}')
    def half_allreduce(self, op, v, t):
        A = self.A
        for r in (1, 2, 4, 8):
            A(f'v_{op}_f32_dpp v{v}, v{v}, v{v} row_ror:{r} row_mask:0xf bank_mask:0xf')
        A(f'v_mov_b32 v{t}, v{v}'); A(f'v_permlane16_swap_b32 v{v}, v{t}'); A(f'v_{op}_f32 v{v}, v{v}, v{t}')
    def rbf(self, v, src=None):
        A = self.A
        s = v if src is None else src
        A(f'v_cvt_pk_bf16_f32 v{v}, v{s}, v{s}'); A(f'v_and_b32 v{v}, 0xffff0000, v{v}')

    def gen(self):
        A = self.A; G = self
        RING = self.ring; nt = self.nt; wnt = self.wnt
        sW = 3
        pX, pK, pV, pWQ, pWO, pW1, pB1, pW2, pB2, pOUT, pDBG, pWS = 4, 6, 8, 10, 12, 16, 18, 20, 22, 24, 26, 28
        rK, rV, rWQ, rWO, rWS, rDBG, rX, rW1, rW2, rB1, rB2, rOUT = 32, 36, 40, 44, 48, 52, 56, 60, 64, 68, 72, 76
        sOff, sT, sH, sB, sS, sBH, sRole, sSpin, sT2, sU = 80, 81, 82, 83, 84, 85, 86, 87, 88, 89
        sM = 90
        sPK = 92
        vL, vN, vG = 1, 2, 3
        vK, vV, vWQ, vWO, vC1, vMLp, vMLq, vRS = 4, 5, 6, 7, 8, 9, 10, 11
        vSEL = 12
        vMASK = 20
        vBQ = 24
        vS = 32
        vD = 64
        vO = 80
        vB = 88
        vXP = 104
        vDQ = 120
        vT = 124
        vMX, vLS, vM, vNM, vF, vML0, vML1, vCNT = 140, 141, 142, 143, 208, 210, 211, 212
        vW1 = 144
        vW2 = 160
        vR = 176
        vB1, vXV, vB2V, vHV, vOPA, vSENT, vOUTA = 213, 214, 215, 216, 217, 220, 218
        vA1, vA2, vA3, vA4 = 224, 225, 226, 227
        vXR = 228
        vWOFF1, vWOFF2, vB1OFF, vHOFF, vGA = 232, 233, 234, 235, 236
        aW = 128
        T = lambda i: vT + i

        A('s_cmp_ge_u32 s2, 256'); A('s_cbranch_scc1 L_end')
        A(f's_load_dwordx16 s[4:19], s[0:1], 0'); A('s_load_dwordx8 s[20:27], s[0:1], 64'); A('s_load_dwordx2 s[28:29], s[0:1], 96')
        if self.diag:
            A('v_mov_b32 v251, 0')
            G.stamp(0)
        A(f'v_and_b32 v{vL}, 63, v0'); A(f'v_lshrrev_b32 v{T(0)}, 6, v0'); A(f'v_and_b32 v{vN}, 15, v0')
        A(f'v_readfirstlane_b32 s{sW}, v{T(0)}')
        A(f'v_lshrrev_b32 v{vG}, 4, v{vL}')
        A(f's_and_b32 s{sH}, s2, 31'); A(f's_lshr_b32 s{sB}, s2, 5'); A(f's_and_b32 s{sB}, s{sB}, 1'); A(f's_lshr_b32 s{sS}, s2, 6'); A(f's_and_b32 s{sBH}, s2, 63')
        A(f's_lshl_b32 s{sT}, s{sW}, 12')
        A(f'v_lshrrev_b32 v{T(0)}, 1, v{vN}'); A(f'v_lshlrev_b32 v{T(0)}, 8, v{T(0)}')
        A(f'v_and_b32 v{T(1)}, 1, v{vN}'); A(f'v_lshl_add_u32 v{T(0)}, v{T(1)}, 6, v{T(0)}')
        A(f'v_lshl_add_u32 v{T(0)}, v{vG}, 4, v{T(0)}'); A(f'v_add_u32 v{vK}, s{sT}, v{T(0)}')
        A(f'v_lshlrev_b32 v{T(0)}, 9, v{vG}'); A(f'v_lshl_add_u32 v{T(0)}, v{vN}, 4, v{T(0)}'); A(f'v_add_u32 v{vV}, s{sT}, v{T(0)}')
        A(f's_lshl_b32 s{sT}, s{sW}, 20'); A(f'v_lshlrev_b32 v{T(0)}, 18, v{vG}'); A(f'v_lshl_add_u32 v{T(0)}, v{vN}, 4, v{T(0)}'); A(f'v_add_u32 v{vWQ}, s{sT}, v{T(0)}')
        A(f's_lshl_b32 s{sT}, s{sB}, 10'); A(f'v_lshlrev_b32 v{T(2)}, 4, v{vL}'); A(f'v_add_u32 v{T(2)}, s{sT}, v{T(2)}')
        A(f's_lshl_b32 s{sT}, s{sB}, 5'); A(f's_lshl_b32 s{sT2}, s{sW}, 3'); A(f's_add_u32 s{sT}, s{sT}, s{sT2}')
        A(f's_lshl_b32 s{sT}, s{sT}, 13')
        A(f's_lshl_b32 s{sT2}, s{sH}, 2'); A(f's_add_u32 s{sT2}, s{sT2}, s{sS}'); A(f's_lshl_b32 s{sT2}, s{sT2}, 6')
        A(f's_add_u32 s{sT}, s{sT}, s{sT2}'); A(f's_add_u32 s{sT}, s{sT}, {WS_C1}')
        A(f'v_lshlrev_b32 v{T(0)}, 1, v{vG}'); A(f'v_lshrrev_b32 v{T(1)}, 2, v{vN}'); A(f'v_add_u32 v{T(0)}, v{T(0)}, v{T(1)}')
        A(f'v_lshlrev_b32 v{T(0)}, 13, v{T(0)}'); A(f'v_and_b32 v{T(1)}, 3, v{vN}'); A(f'v_lshl_add_u32 v{T(0)}, v{T(1)}, 4, v{T(0)}')
        A(f'v_add_u32 v{T(0)}, s{sT}, v{T(0)}')
        A(f'v_mov_b32 v{T(1)}, {OOB}'); A(f'v_cmp_gt_u32 vcc, 8, v{vN}')
        A(f'v_cndmask_b32 v{vC1}, v{T(1)}, v{T(0)}, vcc')
        A(f's_lshl_b32 s{sT}, s{sBH}, 7'); A(f's_lshl_b32 s{sT2}, s{sS}, 2'); A(f's_add_u32 s{sT2}, s{sT2}, s{sW}'); A(f's_lshl_b32 s{sT2}, s{sT2}, 3')
        A(f's_add_u32 s{sT2}, s{sT2}, s{sT}'); A(f'v_mov_b32 v{T(0)}, s{sT2}'); A(f'v_mov_b32 v{T(1)}, {OOB}')
        A(f'v_cmp_eq_u32 vcc, 0, v{vL}'); A(f'v_cndmask_b32 v{vMLp}, v{T(1)}, v{T(0)}, vcc')
        A(f'v_lshlrev_b32 v{T(0)}, 3, v{vN}'); A(f'v_add_u32 v{vMLq}, s{sT}, v{T(0)}')
        A(f's_mov_b32 s{sRole}, 0')
        A(f's_and_b32 s{sT}, s2, 7'); A(f's_mul_i32 s{sT}, s{sT}, 14'); A(f's_lshr_b32 s{sT2}, s2, 3'); A(f's_add_u32 s{sU}, s{sT}, s{sT2}')
        A(f's_cmp_lt_u32 s2, 112'); A(f's_cselect_b32 s{sRole}, 1, 0')
        A(f's_sub_u32 s{sT}, s2, 128'); A(f's_cmp_lt_u32 s{sT}, 64'); A(f's_cselect_b32 s{sRole}, 2, s{sRole}'); A(f's_cselect_b32 s{sU}, s{sT}, s{sU}')
        for r_ in (vRS, vWOFF1, vWOFF2, vB1OFF, vHOFF, vOUTA): A(f'v_mov_b32 v{r_}, {OOB}')
        A(f's_cmp_eq_u32 s{sRole}, 1'); A('s_cbranch_scc0 L_r1')
        A(f'v_lshrrev_b32 v{T(0)}, 3, v{vN}'); A(f'v_lshlrev_b32 v{T(0)}, 5, v{T(0)}')
        A(f'v_lshl_add_u32 v{T(0)}, v{vG}, 1, v{T(0)}'); A(f'v_bfe_u32 v{T(1)}, v{vN}, 2, 1'); A(f'v_add_u32 v{T(0)}, v{T(0)}, v{T(1)}')
        A(f's_lshl_b32 s{sT}, s{sW}, 3'); A(f'v_add_u32 v{T(0)}, s{sT}, v{T(0)}')
        A(f'v_mul_u32_u24 v{T(0)}, {112*64}, v{T(0)}'); A(f'v_and_b32 v{T(1)}, 3, v{vN}'); A(f'v_lshl_add_u32 v{T(0)}, v{T(1)}, 4, v{T(0)}')
        A(f's_lshl_b32 s{sT}, s{sU}, 6'); A(f's_add_u32 s{sT}, s{sT}, {WS_C2}'); A(f'v_add_u32 v{vRS}, s{sT}, v{T(0)}')
        A(f'v_lshrrev_b32 v{T(0)}, 1, v{vG}'); A(f'v_lshlrev_b32 v{T(0)}, 2, v{T(0)}'); A(f'v_and_b32 v{T(1)}, 1, v{vG}'); A(f'v_lshl_add_u32 v{T(0)}, v{T(1)}, 1, v{T(0)}')
        A(f's_lshl_b32 s{sT}, s{sW}, 7'); A(f'v_add_u32 v{T(0)}, s{sT}, v{T(0)}'); A(f'v_mul_u32_u24 v{T(0)}, 3584, v{T(0)}')
        A(f's_lshl_b32 s{sT}, s{sU}, 5'); A(f'v_lshl_add_u32 v{T(0)}, v{vN}, 1, v{T(0)}'); A(f'v_add_u32 v{vWOFF1}, s{sT}, v{T(0)}')
        A(f's_lshl_b32 s{sT}, s{sU}, 14'); A(f's_lshl_b32 s{sT2}, s{sW}, 8'); A(f's_add_u32 s{sT}, s{sT}, s{sT2}')
        A(f'v_lshlrev_b32 v{T(0)}, 12, v{vG}'); A(f'v_lshl_add_u32 v{T(0)}, v{vN}, 4, v{T(0)}'); A(f'v_add_u32 v{vWOFF2}, s{sT}, v{T(0)}')
        A(f's_lshl_b32 s{sT}, s{sU}, 5'); A(f'v_and_b32 v{T(0)}, 3, v{vN}'); A(f'v_lshl_add_u32 v{T(0)}, v{vG}, 2, v{T(0)}'); A(f'v_lshlrev_b32 v{T(0)}, 1, v{T(0)}'); A(f'v_add_u32 v{vB1OFF}, s{sT}, v{T(0)}')
        A(f'v_lshrrev_b32 v{T(0)}, 5, v{vL}'); A(f'v_lshlrev_b32 v{T(0)}, 11, v{T(0)}'); A(f'v_and_b32 v{T(1)}, 31, v{vL}'); A(f'v_lshl_add_u32 v{T(0)}, v{T(1)}, 4, v{T(0)}')
        A(f'v_add_u32 v{vHOFF}, {WS_H}, v{T(0)}')
        A('s_branch L_r2')
        A('L_r1:')
        A(f's_cmp_eq_u32 s{sRole}, 2'); A('s_cbranch_scc0 L_r2')
        A(f's_cmp_eq_u32 s{sW}, 0'); A('s_cbranch_scc0 L_r2')
        A(f's_lshl_b32 s{sT}, s{sU}, 6'); A(f's_add_u32 s{sT}, s{sT}, {WS_H}')
        A(f'v_lshlrev_b32 v{T(0)}, 4, v{vN}'); A(f'v_lshl_add_u32 v{T(0)}, v{vG}, 2, v{T(0)}'); A(f'v_add_u32 v{T(0)}, s{sT}, v{T(0)}')
        A(f'v_mov_b32 v{T(1)}, {OOB}'); A(f'v_cmp_gt_u32 vcc, 4, v{vN}'); A(f'v_cndmask_b32 v{vRS}, v{T(1)}, v{T(0)}, vcc')
        A(f's_and_b32 s{sT}, s{sU}, 31'); A(f's_lshr_b32 s{sT2}, s{sT}, 1'); A(f's_lshl_b32 s{sT2}, s{sT2}, 5')
        A(f's_and_b32 s{sT}, s{sT}, 1'); A(f's_lshl_b32 s{sT}, s{sT}, 2'); A(f's_add_u32 s{sT}, s{sT}, s{sT2}')
        A(f'v_and_b32 v{T(0)}, 3, v{vN}'); A(f'v_lshl_add_u32 v{T(0)}, v{vG}, 3, v{T(0)}'); A(f'v_add_u32 v{T(0)}, s{sT}, v{T(0)}')
        A(f'v_lshlrev_b32 v{vB1OFF}, 1, v{T(0)}')
        A(f's_lshr_b32 s{sT}, s{sU}, 5'); A(f's_lshl_b32 s{sT}, s{sT}, 10'); A(f'v_add_u32 v{vWOFF1}, s{sT}, v{vB1OFF}')
        A(f'v_mov_b32 v{T(1)}, {OOB}'); A(f'v_cmp_gt_u32 vcc, 4, v{vN}'); A(f'v_cndmask_b32 v{vOUTA}, v{T(1)}, v{vWOFF1}, vcc')
        A(f's_lshl_b32 s{sT}, s{sU}, 13'); A(f's_add_u32 s{sT}, s{sT}, {WS_C1}'); A(f'v_lshlrev_b32 v{T(0)}, 4, v{vL}'); A(f'v_add_u32 v{vHOFF}, s{sT}, v{T(0)}')
        A(f's_mul_i32 s{sT}, s{sU}, 7168'); A(f's_add_u32 s{sT}, s{sT}, {WS_C2}'); A(f'v_add_u32 v{vWOFF2}, s{sT}, v{T(0)}')
        A('L_r2:')
        for i in range(4): A(f'v_mov_b32 v{vSENT+i}, -1')
        A('s_waitcnt lgkmcnt(0)')
        if self.kw.get('st2'): G.stamp(24)
        A(f's_lshl_b32 s{sT}, s{sBH}, 21'); A(f's_lshl_b32 s{sT2}, s{sS}, 19'); A(f's_add_u32 s{sT}, s{sT}, s{sT2}')
        G.srd(rX, pX, pX + 1, 2048)
        G.srd(rK, pK, pK + 1, 0x80000, f's{sT}')
        G.vmop(f'buffer_load_dwordx4 v[{vXR}:{vXR+3}], v{T(2)}, s[{rX}:{rX+3}], 0 offen', 'x')
        koffs = [0, 2048, 128, 2176]
        voffs = [0, 2048, 256, 2304]
        def unit_loads(u):
            isK = u < 32; t = u % 32
            A(f's_mov_b32 s{sOff}, {t*16384}')
            for q in range(4):
                r = ((u % RING) * 4 + q) * 4
                if isK: G.vmop(f'buffer_load_dwordx4 a[{r}:{r+3}], v{vK}, s[{rK}:{rK+3}], s{sOff} offen offset:{koffs[q]} {nt}', f'u{u}')
                else:   G.vmop(f'buffer_load_dwordx4 a[{r}:{r+3}], v{vV}, s[{rV}:{rV+3}], s{sOff} offen offset:{voffs[q]} {nt}', f'u{u}')
        unit_loads(0)
        if self.kw.get('st2'): G.stamp(25)
        G.srd(rV, pV, pV + 1, 0x80000, f's{sT}')
        G.srd(rWS, pWS, pWS + 1, WS_SIZE + (0x100000 if self.diag else 0))
        A(f's_lshl_b32 s{sT}, s{sH}, 8')
        G.srd(rWQ, pWQ, pWQ + 1, 0, f's{sT}'); A(f's_sub_u32 s{rWQ+2}, {512*8192}, s{sT}')
        G.vmop(f'buffer_store_dwordx4 v[{vSENT}:{vSENT+3}], v{vC1}, s[{rWS}:{rWS+3}], 0 offen sc1', 'init')
        G.vmop(f'buffer_store_dwordx2 v[{vSENT}:{vSENT+1}], v{vMLp}, s[{rWS}:{rWS+3}], 0 offen sc1', 'init')
        A(f's_cmp_eq_u32 s{sRole}, 1'); A('s_cbranch_scc0 L_i1')
        G.vmop(f'buffer_store_dwordx4 v[{vSENT}:{vSENT+3}], v{vRS}, s[{rWS}:{rWS+3}], 0 offen sc1', 'init', True)
        A('L_i1:')
        A(f's_cmp_eq_u32 s{sRole}, 2'); A('s_cbranch_scc0 L_i2')
        G.vmop(f'buffer_store_dword v{vSENT}, v{vRS}, s[{rWS}:{rWS+3}], 0 offen sc1', 'init', True)
        A('L_i2:')
        if self.kw.get('st2'): G.stamp(26)
        def wq_load(i):
            if self.nowq and i >= 4: return
            A(f's_mov_b32 s{sT}, {i*8192}')
            r = aW + 4 * i
            G.vmop(f'buffer_load_dwordx4 a[{r}:{r+3}], v{vWQ}, s[{rWQ}:{rWQ+3}], s{sT} offen {wnt}', f'wq{i}')
            if self.kw.get('st2') and i == 15: G.stamp(27)
            if self.kw.get('st2') and i == 31: G.stamp(28)
        il = self.kw.get('il', 0)
        done_u = 1
        for i in range(32):
            wq_load(i)
            if il and i % 4 == 3 and done_u < 1 + il and i < 31:
                unit_loads(done_u); done_u += 1
        for u in range(done_u, self.pre): unit_loads(u)
        G.stamp(9)
        A(f's_lshl_b32 s{sT}, s{sH}, 17')
        G.srd(rWO, pWO, pWO + 1, 131072, f's{sT}')
        G.srd(rDBG, pDBG, pDBG + 1, 256)
        G.srd(rW1, pW1, pW1 + 1, 512 * 3584)
        G.srd(rW2, pW2, pW2 + 1, 1792 * 1024)
        G.srd(rB1, pB1, pB1 + 1, 3584)
        G.srd(rB2, pB2, pB2 + 1, 1024)
        G.srd(rOUT, pOUT, pOUT + 1, 2048)
        A(f's_mov_b32 s{sPK}, 0x05040100')
        A(f's_lshl_b32 s{sT}, s{sW}, 8'); A(f'v_lshlrev_b32 v{T(0)}, 15, v{vG}'); A(f'v_lshl_add_u32 v{T(0)}, v{vN}, 4, v{T(0)}'); A(f'v_add_u32 v{vWO}, s{sT}, v{T(0)}')
        A(f'v_and_b32 v{T(0)}, 1, v{vN}'); A(f'v_cmp_eq_u32 vcc, 1, v{T(0)}')
        A(f'v_mov_b32 v{T(1)}, 0x0c0c0100'); A(f'v_mov_b32 v{T(2)}, 0x01000c0c'); A(f'v_cndmask_b32 v{T(3)}, v{T(1)}, v{T(2)}, vcc')
        A(f'v_mov_b32 v{T(1)}, 0x0c0c0302'); A(f'v_mov_b32 v{T(2)}, 0x03020c0c'); A(f'v_cndmask_b32 v{T(4)}, v{T(1)}, v{T(2)}, vcc')
        A(f'v_mov_b32 v{T(1)}, 0x0000ffff'); A(f'v_mov_b32 v{T(2)}, 0xffff0000'); A(f'v_cndmask_b32 v{T(5)}, v{T(1)}, v{T(2)}, vcc')
        A(f'v_bfe_u32 v{T(0)}, v{vN}, 1, 2'); A(f'v_mov_b32 v{T(6)}, 0x0c0c0c0c')
        for jj in range(4):
            A(f'v_cmp_eq_u32 vcc, {jj}, v{T(0)}')
            A(f'v_cndmask_b32 v{vSEL+jj}, v{T(6)}, v{T(3)}, vcc'); A(f'v_cndmask_b32 v{vSEL+4+jj}, v{T(6)}, v{T(4)}, vcc')
            A(f'v_cndmask_b32 v{vMASK+jj}, 0, v{T(5)}, vcc')
        A(f's_lshl_b32 s{sT}, s{sW}, 10'); A(f'v_lshlrev_b32 v{T(0)}, 4, v{vL}'); A(f'v_add_u32 v{vA1}, s{sT}, v{T(0)}')
        A(f's_mul_i32 s{sT}, s{sW}, 1280'); A(f'v_lshlrev_b32 v{T(0)}, 6, v{vG}'); A(f'v_add_u32 v{vA2}, s{sT}, v{T(0)}')
        if self.kw.get('st2'): G.stamp(29)
        G.vmwait('x')
        if self.kw.get('st2'): G.stamp(30)
        X = [T(i) for i in range(8)]
        for k in range(4):
            A(f'v_lshlrev_b32 v{X[2*k]}, 16, v{vXR+k}'); A(f'v_and_b32 v{X[2*k+1]}, 0xffff0000, v{vXR+k}')
        self.ln_stats(X, T(8), T(9), T(10), T(11), 1.0 / 512, self.wave_allreduce)
        self.ln_apply(X, T(8), T(9))
        for k in range(4): A(f'v_cvt_pk_bf16_f32 v{vXR+k}, v{X[2*k]}, v{X[2*k+1]}')
        A(f'ds_write_b128 v{vA1}, v[{vXR}:{vXR+3}] offset:{L_XN}')
        A('s_waitcnt lgkmcnt(0)')
        for k in range(4): A(f'ds_read_b128 v[{vXP+4*k}:{vXP+4*k+3}], v{vA2} offset:{L_XN+16*k}')
        A(f's_lshl_b32 s{sT}, s{sW}, 9'); A(f'v_and_b32 v{T(0)}, 7, v{vN}'); A(f'v_lshl_add_u32 v{T(0)}, v{vG}, 5, v{T(0)}'); A(f'v_lshlrev_b32 v{T(0)}, 2, v{T(0)}')
        A(f'v_add_u32 v{vA1}, s{sT}, v{T(0)}')
        A(f'v_mov_b32 v{T(1)}, {L_DUMMY - L_OP}'); A(f'v_cmp_gt_u32 vcc, 8, v{vN}'); A(f'v_cndmask_b32 v{vOPA}, v{T(1)}, v{vA1}, vcc')
        A(f'v_lshlrev_b32 v{vA3}, 3, v{vL}')
        A('s_waitcnt lgkmcnt(0)')
        if self.kw.get('st2'): G.stamp(31)
        def delta_steps(nsteps, acc, tagf, first_zero=True):
            for i in range(nsteps):
                bset = vB + 4 * (i & 1)
                for jj in range(4):
                    A(f'v_perm_b32 v{bset+jj}, v{vXP+(i>>1)}, v{vXP+(i>>1)}, v{vSEL+4*(i&1)+jj}')
                if tagf is not None and i % 4 == 0: G.vmwait(tagf(i + 3))
                r = aW + 4 * i
                c = '0' if i == 0 else f'v[{acc}:{acc+3}]'
                A(f'v_mfma_f32_16x16x32_bf16 v[{acc}:{acc+3}], a[{r}:{r+3}], v[{bset}:{bset+3}], {c}')
        delta_steps(32, vDQ, lambda i: f'wq{min(i, 3) if self.nowq else i}')
        for i in range(4): A(f'ds_write_b32 v{vA1}, v{vDQ+i} offset:{L_QP + 32*i}')
        A('s_waitcnt lgkmcnt(0)'); A('s_barrier')
        A(f's_cmp_eq_u32 s{sW}, 0'); A('s_cbranch_scc0 L_c1')
        A(f'v_mov_b32 v{T(0)}, 1'); A(f'v_mov_b32 v{T(1)}, {OOB}'); A(f'v_cmp_eq_u32 vcc, 0, v{vL}'); A(f'v_cndmask_b32 v{T(1)}, v{T(1)}, 0, vcc')
        G.vmop(f'buffer_atomic_add v{T(0)}, v{T(1)}, s[{rDBG}:{rDBG+3}], 0 offen', 'atom', True)
        A('L_c1:')
        for w in range(4): A(f'ds_read_b64 v[{T(2*w+2)}:{T(2*w+3)}], v{vA3} offset:{L_QP + 512*w}')
        for u in range(self.pre, RING): unit_loads(u)
        A(f's_lshl_b32 s{sT}, s{sW}, 8'); A(f'v_lshlrev_b32 v{T(0)}, 2, v{vL}'); A(f'v_add_u32 v{T(0)}, s{sT}, v{T(0)}')
        A(f'v_lshrrev_b32 v{T(1)}, 3, v{vN}'); A(f'v_lshlrev_b32 v{T(1)}, 6, v{T(1)}'); A(f'v_lshl_add_u32 v{T(1)}, v{vG}, 4, v{T(1)}'); A(f'v_add_u32 v{T(1)}, s{sT}, v{T(1)}')
        A('s_waitcnt lgkmcnt(0)')
        A(f'v_pk_add_f32 v[{T(2)}:{T(3)}], v[{T(2)}:{T(3)}], v[{T(4)}:{T(5)}]'); A(f'v_pk_add_f32 v[{T(6)}:{T(7)}], v[{T(6)}:{T(7)}], v[{T(8)}:{T(9)}]')
        A(f'v_pk_add_f32 v[{T(2)}:{T(3)}], v[{T(2)}:{T(3)}], v[{T(6)}:{T(7)}]')
        A(f'v_cvt_pk_bf16_f32 v{T(2)}, v{T(2)}, v{T(3)}')
        A(f'ds_write_b32 v{T(0)}, v{T(2)} offset:{L_QB}')
        A('s_waitcnt lgkmcnt(0)')
        A(f'ds_read_b128 v[{vBQ}:{vBQ+3}], v{T(1)} offset:{L_QB}'); A(f'ds_read_b128 v[{vBQ+4}:{vBQ+7}], v{T(1)} offset:{L_QB+128}')
        A(f'v_mov_b32 v{vMX}, 0xff800000')
        for i in range(8): A(f'v_mov_b32 v{vO+i}, 0')
        A('s_waitcnt lgkmcnt(0)')
        G.stamp(1)
        if self.stop == 'q':
            return self.finish_debug([vBQ + i for i in range(8)])

        wo_loads = []
        for i in range(32):
            r = aW + 4 * i
            wo_loads.append((i // 4 * 4096, f'buffer_load_dwordx4 a[{r}:{r+3}], v{vWO}, s[{rWO}:{rWO+3}], s{sT} offen offset:{(i%4)*1024} {wnt}', f'wo{i}'))
        def emit_wo(k0, k1):
            for k in range(k0, k1):
                so, s, tag = wo_loads[k]
                if k == k0 or k % 4 == 0: A(f's_mov_b32 s{sT}, {so}')
                G.vmop(s, tag)
        def emit_role_loads(part):
            lab = f'L_rl{part}'
            if part < 16:
                A(f's_cmp_eq_u32 s{sRole}, 1'); A(f's_cbranch_scc0 {lab}')
                s_ = part // 4; e3 = part % 4
                A(f's_mov_b32 s{sT}, {(32*s_ + 8*e3)*3584}')
                for eh in (0, 1):
                    e = e3 + 4 * eh
                    G.vmop(f'buffer_load_ushort v{vR + 8*s_ + e}, v{vWOFF1}, s[{rW1}:{rW1+3}], s{sT} offen offset:{eh*3584} {wnt}', 'w1g', True)
                A(f'{lab}:')
            else:
                A(f's_cmp_eq_u32 s{sRole}, 1'); A(f's_cbranch_scc0 {lab}a')
                for ii in range(4):
                    G.vmop(f'buffer_load_dwordx4 v[{vW2+4*ii}:{vW2+4*ii+3}], v{vWOFF2}, s[{rW2}:{rW2+3}], 0 offen offset:{ii*1024} {wnt}', 'w2l', True)
                G.vmop(f'buffer_load_ushort v{vB1}, v{vB1OFF}, s[{rB1}:{rB1+3}], 0 offen', 'b1l', True)
                A(f'{lab}a:')
                A(f's_cmp_eq_u32 s{sRole}, 2'); A(f's_cbranch_scc0 {lab}b')
                G.vmop(f'buffer_load_ushort v{vXV}, v{vWOFF1}, s[{rX}:{rX+3}], 0 offen', 'xv', True)
                G.vmop(f'buffer_load_ushort v{vB2V}, v{vB1OFF}, s[{rB2}:{rB2+3}], 0 offen', 'b2l', True)
                A(f'{lab}b:')
        def kproc(t):
            D0 = vD + 8 * (t & 1); D1 = D0 + 4
            sA, sB_ = T(0), T(1)
            A(f'v_add_f32_dpp v{sA}, v{D0+1}, v{D0} row_ror:8 row_mask:0xf bank_mask:0x3')
            A(f'v_add_f32_dpp v{sB_}, v{D0+3}, v{D0+2} row_ror:8 row_mask:0xf bank_mask:0x3')
            A(f'v_add_f32_dpp v{sA}, v{D1}, v{D1+1} row_ror:8 row_mask:0xf bank_mask:0xc')
            A(f'v_add_f32_dpp v{sB_}, v{D1+2}, v{D1+3} row_ror:8 row_mask:0xf bank_mask:0xc')
            A(f'v_cvt_pk_bf16_f32 v{T(2)}, v{sA}, v{sB_}')
            A(f'v_max3_f32 v{vMX}, v{vMX}, v{sA}, v{sB_}')
            A(f'v_lshlrev_b32 v{T(3)}, 16, v{T(2)}'); A(f'v_and_b32 v{T(4)}, 0xffff0000, v{T(2)}')
            A(f'v_mul_f32 v{T(3)}, {SCALE}, v{T(3)}'); A(f'v_mul_f32 v{T(4)}, {SCALE}, v{T(4)}')
            A(f'v_cvt_pk_bf16_f32 v{vS+t}, v{T(3)}, v{T(4)}')
        for t in range(32):
            u = t
            D0 = vD + 8 * (t & 1); D1 = D0 + 4
            r = (u % RING) * 16
            G.vmwait(f'u{u}')
            A(f'v_mfma_f32_16x16x32_bf16 v[{D0}:{D0+3}], a[{r}:{r+3}], v[{vBQ}:{vBQ+3}], 0')
            A(f'v_mfma_f32_16x16x32_bf16 v[{D1}:{D1+3}], a[{r+4}:{r+7}], v[{vBQ}:{vBQ+3}], 0')
            A(f'v_mfma_f32_16x16x32_bf16 v[{D0}:{D0+3}], a[{r+8}:{r+11}], v[{vBQ+4}:{vBQ+7}], v[{D0}:{D0+3}]')
            A(f'v_mfma_f32_16x16x32_bf16 v[{D1}:{D1+3}], a[{r+12}:{r+15}], v[{vBQ+4}:{vBQ+7}], v[{D1}:{D1+3}]')
            unit_loads(u + RING)
            if 2 <= t < 18 and not self.nowo: emit_wo(2 * (t - 2), 2 * (t - 2) + 2)
            if t in (7, 15, 23): G.stamp(16 + t // 8)
            if t == 27:
                A(f'v_mov_b32 v{T(5)}, 0')
                G.vmop(f'buffer_load_dword v{vCNT}, v{T(5)}, s[{rDBG}:{rDBG+3}], 0 offen sc1', 'cnt')
            if t > 0: kproc(t - 1)
        kproc(31)
        G.stamp(2)
        self.wave_allreduce('max', vMX, T(0))
        G.rbf(vM, vMX); A(f'v_mul_f32 v{vM}, {SCALE}, v{vM}'); G.rbf(vM)
        A(f'v_mul_f32 v{vNM}, {LOG2E}, v{vM}'); A(f'v_sub_f32 v{vNM}, 0, v{vNM}')
        A(f's_mov_b32 s{sT2}, {LOG2E}')
        A(f'v_mov_b32 v{vLS}, 0')
        for t in range(32):
            a, b = T(2 * (t & 1)), T(2 * (t & 1) + 1)
            A(f'v_lshlrev_b32 v{a}, 16, v{vS+t}'); A(f'v_and_b32 v{b}, 0xffff0000, v{vS+t}')
            A(f'v_fma_f32 v{a}, v{a}, s{sT2}, v{vNM}'); A(f'v_fma_f32 v{b}, v{b}, s{sT2}, v{vNM}')
            A(f'v_exp_f32 v{a}, v{a}'); A(f'v_exp_f32 v{b}, v{b}')
            A(f'v_add_f32 v{vLS}, v{vLS}, v{a}'); A(f'v_cvt_pk_bf16_f32 v{vS+t}, v{a}, v{b}'); A(f'v_add_f32 v{vLS}, v{vLS}, v{b}')
        self.wave_allreduce('add', vLS, T(0))
        A(f'v_mul_f32 v{vLS}, 0.125, v{vLS}') if False else A(f'v_mul_f32 v{vLS}, 0x3e000000, v{vLS}')
        A(f'v_mov_b32 v{T(0)}, v{vM}'); A(f'v_mov_b32 v{T(1)}, v{vLS}')
        G.vmop(f'buffer_store_dwordx2 v[{T(0)}:{T(1)}], v{vMLp}, s[{rWS}:{rWS+3}], 0 offen sc1', 'mlst')
        G.vmwait('cnt')
        A(f's_mov_b32 s{sSpin}, {self.spin}')
        A('L_cnt:')
        A(f'v_readfirstlane_b32 s{sT}, v{vCNT}')
        A(f's_cmp_ge_u32 s{sT}, 256'); A('s_cbranch_scc1 L_cnt_ok')
        A(f's_sub_u32 s{sSpin}, s{sSpin}, 1'); A('s_cbranch_scc1 L_cnt_ok')
        A(f'v_mov_b32 v{T(5)}, 0')
        A(f'buffer_load_dword v{vCNT}, v{T(5)}, s[{rDBG}:{rDBG+3}], 0 offen sc1'); A('s_waitcnt vmcnt(0)')
        A('s_branch L_cnt')
        A('L_cnt_ok:')
        G.stamp(3)
        def vprep(t):
            for ab in range(2):
                bs = vB + 8 * (t & 1) + 4 * ab
                for jj in range(4):
                    A(f'v_perm_b32 v{bs+jj}, v{vS+t}, v{vS+t}, v{vSEL+4*ab+jj}')
        def ml_compute():
            A(f'v_mov_b32 v{T(10)}, v{vML0}')
            for r_ in (1, 2, 4, 8): A(f'v_max_f32_dpp v{T(10)}, v{T(10)}, v{T(10)} row_ror:{r_} row_mask:0xf bank_mask:0xf')
            A(f'v_sub_f32 v{T(11)}, v{vML0}, v{T(10)}'); A(f'v_mul_f32 v{T(11)}, {LOG2E}, v{T(11)}'); A(f'v_exp_f32 v{T(11)}, v{T(11)}')
            A(f'v_mul_f32 v{T(11)}, v{T(11)}, v{vML1}')
            for r_ in (1, 2, 4, 8): A(f'v_add_f32_dpp v{T(11)}, v{T(11)}, v{T(11)} row_ror:{r_} row_mask:0xf bank_mask:0xf')
            A(f'v_sub_f32 v{T(10)}, v{vM}, v{T(10)}'); A(f'v_mul_f32 v{T(10)}, {LOG2E}, v{T(10)}'); A(f'v_exp_f32 v{T(10)}, v{T(10)}')
            A(f'v_rcp_f32 v{T(12)}, v{T(11)}'); A(f'v_mul_f32 v{vF}, v{T(10)}, v{T(12)}')
            A(f'v_cmp_u_f32 vcc, v{T(11)}, v{T(11)}')
        vprep(0)
        for t in range(32):
            u = 32 + t
            r = (u % RING) * 16
            G.vmwait(f'u{u}')
            bs = vB + 8 * (t & 1)
            A(f'v_mfma_f32_16x16x32_bf16 v[{vO}:{vO+3}], a[{r}:{r+3}], v[{bs}:{bs+3}], v[{vO}:{vO+3}]')
            A(f'v_mfma_f32_16x16x32_bf16 v[{vO+4}:{vO+7}], a[{r+4}:{r+7}], v[{bs}:{bs+3}], v[{vO+4}:{vO+7}]')
            A(f'v_mfma_f32_16x16x32_bf16 v[{vO}:{vO+3}], a[{r+8}:{r+11}], v[{bs+4}:{bs+7}], v[{vO}:{vO+3}]')
            A(f'v_mfma_f32_16x16x32_bf16 v[{vO+4}:{vO+7}], a[{r+12}:{r+15}], v[{bs+4}:{bs+7}], v[{vO+4}:{vO+7}]')
            if u + RING < 64: unit_loads(u + RING)
            if t < 17 and not self.norole: emit_role_loads(t)
            if t in (7, 15, 23): G.stamp(20 + t // 8)
            if t == 27:
                A(f's_cmp_eq_u32 s{sRole}, 1'); A('s_cbranch_scc0 L_pk1')
                for s_ in range(4):
                    for jj in range(4):
                        A(f'v_perm_b32 v{vW1+4*s_+jj}, v{vR+8*s_+2*jj+1}, v{vR+8*s_+2*jj}, s{sPK}')
                A('L_pk1:')
            if t == 17:
                G.vmop(f'buffer_load_dwordx2 v[{vML0}:{vML1}], v{vMLq}, s[{rWS}:{rWS+3}], 0 offen sc1', 'mlq')
            if t == 25:
                G.vmwait('mlq')
                A(f's_mov_b32 s{sSpin}, {self.spin}')
                A('L_ml:')
                ml_compute()
                A('s_cbranch_vccz L_ml_ok')
                A(f's_sub_u32 s{sSpin}, s{sSpin}, 1'); A('s_cbranch_scc1 L_ml_ok')
                A(f'buffer_load_dwordx2 v[{vML0}:{vML1}], v{vMLq}, s[{rWS}:{rWS+3}], 0 offen sc1'); A('s_waitcnt vmcnt(0)')
                A('s_branch L_ml')
                A('L_ml_ok:')
            if t < 31: vprep(t + 1)
        G.stamp(4)
        for i in range(4): A(f'v_add_f32_dpp v{T(i)}, v{vO+4+i}, v{vO+i} row_ror:8 row_mask:0xf bank_mask:0xf')
        for i in range(4): A(f'v_mul_f32 v{T(i)}, v{vF}, v{T(i)}')
        for i in range(4): A(f'ds_write_b32 v{vOPA}, v{T(i)} offset:{L_OP + 32*i}')
        A(f's_lshl_b32 s{sT}, s{sW}, 9'); A(f'v_lshlrev_b32 v{T(10)}, 2, v{vL}'); A(f'v_add_u32 v{T(10)}, s{sT}, v{T(10)}')
        A(f'v_lshrrev_b32 v{T(11)}, 3, v{vN}'); A(f'v_lshlrev_b32 v{T(11)}, 8, v{T(11)}'); A(f'v_lshl_add_u32 v{T(11)}, v{vG}, 6, v{T(11)}'); A(f'v_add_u32 v{T(11)}, s{sT}, v{T(11)}')
        A('s_waitcnt lgkmcnt(0)'); A('s_barrier')
        for w in range(4): A(f'ds_read_b64 v[{T(2*w+2)}:{T(2*w+3)}], v{vA3} offset:{L_OP + 512*w}')
        A('s_waitcnt lgkmcnt(0)')
        A(f'v_pk_add_f32 v[{T(2)}:{T(3)}], v[{T(2)}:{T(3)}], v[{T(4)}:{T(5)}]'); A(f'v_pk_add_f32 v[{T(6)}:{T(7)}], v[{T(6)}:{T(7)}], v[{T(8)}:{T(9)}]')
        A(f'v_pk_add_f32 v[{T(2)}:{T(3)}], v[{T(2)}:{T(3)}], v[{T(6)}:{T(7)}]')
        A(f'v_cvt_pk_bf16_f32 v{T(4)}, v{T(2)}, v{T(3)}')
        A(f'v_lshlrev_b32 v{T(5)}, 16, v{T(4)}'); A(f'v_and_b32 v{T(6)}, 0xffff0000, v{T(4)}')
        A(f'v_sub_f32 v{T(5)}, v{T(2)}, v{T(5)}'); A(f'v_sub_f32 v{T(6)}, v{T(3)}, v{T(6)}')
        A(f'ds_write_b32 v{T(10)}, v{T(4)} offset:{L_OH}')
        A(f'v_cvt_pk_bf16_f32 v{T(5)}, v{T(5)}, v{T(6)}')
        A(f'ds_write_b32 v{T(10)}, v{T(5)} offset:{L_OH+256}')
        A('s_waitcnt lgkmcnt(0)')
        for k in range(4): A(f'ds_read_b128 v[{vXP+4*k}:{vXP+4*k+3}], v{T(11)} offset:{L_OH+16*k}')
        A('s_waitcnt lgkmcnt(0)')
        delta_steps(32, vDQ, None)
        for i in range(4): A(f'v_add_f32_dpp v{T(i)}, v{vDQ+i}, v{vDQ+i} row_ror:8 row_mask:0xf bank_mask:0xf')
        G.vmop(f'buffer_store_dwordx4 v[{T(0)}:{T(3)}], v{vC1}, s[{rWS}:{rWS+3}], 0 offen sc1', 'c1st')
        G.stamp(5)
        A(f's_cmp_eq_u32 s{sRole}, 1'); A('s_cbranch_scc1 L_m1')
        A(f's_cmp_eq_u32 s{sRole}, 2'); A('s_cbranch_scc0 L_fin')
        A(f's_cmp_eq_u32 s{sW}, 0'); A('s_cbranch_scc0 L_fin')
        def gather_reduce(nl, voff, lab):
            A(f's_mov_b32 s{sSpin}, {self.spin}')
            A(f'{lab}:')
            for k in range(nl):
                if k % 4 == 0: A(f's_mov_b32 s{sT}, {(k//4)*4096}')
                A(f'buffer_load_dwordx4 v[{vR+4*k}:{vR+4*k+3}], v{voff}, s[{rWS}:{rWS+3}], s{sT} offen offset:{(k%4)*1024} sc1')
            k = 1
            A(f's_waitcnt vmcnt({nl-2})')
            for c in (0, 2): A(f'v_pk_add_f32 v[{T(c)}:{T(c+1)}], v[{vR+c}:{vR+c+1}], v[{vR+4+c}:{vR+4+c+1}]')
            for k in range(2, nl):
                A(f's_waitcnt vmcnt({nl-1-k})')
                for c in (0, 2): A(f'v_pk_add_f32 v[{T(c)}:{T(c+1)}], v[{T(c)}:{T(c+1)}], v[{vR+4*k+c}:{vR+4*k+c+1}]')
            A(f'v_cmp_u_f32 vcc, v{T(0)}, v{T(1)}'); A(f'v_cmp_u_f32 s[{sM}:{sM+1}], v{T(2)}, v{T(3)}')
            A(f's_or_b64 vcc, vcc, s[{sM}:{sM+1}]')
            A(f's_cbranch_vccz {lab}_ok')
            A(f's_sub_u32 s{sSpin}, s{sSpin}, 1'); A(f's_cbranch_scc0 {lab}')
            A(f'{lab}_ok:')
            A(f'v_permlane32_swap_b32 v{T(0)}, v{T(2)}'); A(f'v_permlane32_swap_b32 v{T(1)}, v{T(3)}')
            A(f'v_add_f32 v{T(0)}, v{T(0)}, v{T(2)}'); A(f'v_add_f32 v{T(1)}, v{T(1)}, v{T(3)}')
            A(f'v_permlane16_swap_b32 v{T(0)}, v{T(1)}'); A(f'v_add_f32 v{T(0)}, v{T(0)}, v{T(1)}')
            A(f'v_add_f32_dpp v{T(0)}, v{T(0)}, v{T(0)} row_ror:4 row_mask:0xf bank_mask:0xf')
            A(f'v_add_f32_dpp v{T(0)}, v{T(0)}, v{T(0)} row_ror:8 row_mask:0xf bank_mask:0xf')
        A(f'v_lshlrev_b32 v{vXV}, 16, v{vXV}'); A(f'v_lshlrev_b32 v{vB2V}, 16, v{vB2V}')
        gather_reduce(8, vHOFF, 'L_g1')
        G.stamp(6)
        G.rbf(T(0)); A(f'v_add_f32 v{T(0)}, v{vXV}, v{T(0)}'); G.rbf(vHV, T(0))
        A(f'buffer_store_dword v{vHV}, v{vRS}, s[{rWS}:{rWS+3}], 0 offen sc1')
        G.stamp(7)
        gather_reduce(7, vWOFF2, 'L_g2')
        G.stamp(8)
        G.rbf(T(0)); A(f'v_add_f32 v{T(0)}, v{vB2V}, v{T(0)}'); G.rbf(T(0)); A(f'v_add_f32 v{T(0)}, v{vHV}, v{T(0)}')
        A(f'v_cvt_pk_bf16_f32 v{T(0)}, v{T(0)}, v{T(0)}')
        A(f'buffer_store_short v{T(0)}, v{vOUTA}, s[{rOUT}:{rOUT+3}], 0 offen')
        A('s_branch L_fin')
        A('L_m1:')
        A(f's_lshl_b32 s{sT}, s{sW}, 9'); A(f'v_lshrrev_b32 v{T(0)}, 5, v{vL}'); A(f'v_lshlrev_b32 v{T(0)}, 8, v{T(0)}'); A(f'v_and_b32 v{T(1)}, 31, v{vL}')
        A(f'v_lshl_add_u32 v{T(0)}, v{T(1)}, 3, v{T(0)}'); A(f'v_add_u32 v{vA1}, s{sT}, v{T(0)}')
        A(f'v_and_b32 v{T(0)}, 1, v{vN}'); A(f'v_lshlrev_b32 v{T(0)}, 8, v{T(0)}'); A(f'v_lshl_add_u32 v{T(0)}, v{vG}, 4, v{T(0)}'); A(f'v_add_u32 v{vA2}, s{sT}, v{T(0)}')
        A(f's_lshl_b32 s{sT}, s{sW}, 7'); A(f'v_lshlrev_b32 v{T(0)}, 2, v{vN}'); A(f'v_add_u32 v{vA3}, s{sT}, v{T(0)}')
        A(f'v_lshrrev_b32 v{T(0)}, 3, v{vN}'); A(f'v_lshlrev_b32 v{T(0)}, 6, v{T(0)}'); A(f'v_and_b32 v{T(1)}, 3, v{vN}'); A(f'v_lshl_add_u32 v{T(1)}, v{vG}, 2, v{T(1)}')
        A(f'v_lshl_add_u32 v{vA4}, v{T(1)}, 2, v{T(0)}')
        A(f'v_lshlrev_b32 v{vB1}, 16, v{vB1}')
        A(f's_mov_b32 s{sSpin}, {self.spin}')
        H = [vR + i for i in range(16)]
        A('L_g3:')
        for kk in range(4):
            A(f's_add_u32 s{sT}, s{sW}, {kk}'); A(f's_and_b32 s{sT}, s{sT}, 3'); A(f's_lshl_b32 s{sT}, s{sT}, 9')
            A(f'buffer_load_dwordx4 v[{vR+4*kk}:{vR+4*kk+3}], v{vHOFF}, s[{rWS}:{rWS+3}], s{sT} offen sc1')
        A('s_waitcnt vmcnt(0)')
        A(f'v_pk_add_f32 v[{T(0)}:{T(1)}], v[{H[0]}:{H[1]}], v[{H[2]}:{H[3]}]')
        for k in range(2, 8): A(f'v_pk_add_f32 v[{T(0)}:{T(1)}], v[{T(0)}:{T(1)}], v[{H[2*k]}:{H[2*k+1]}]')
        A(f'v_add_f32 v{T(0)}, v{T(0)}, v{T(1)}')
        A(f'v_cmp_u_f32 vcc, v{T(0)}, v{T(0)}')
        A('s_cbranch_vccz L_g3_ok')
        A(f's_sub_u32 s{sSpin}, s{sSpin}, 1'); A('s_cbranch_scc0 L_g3')
        A('L_g3_ok:')
        G.stamp(6)
        self.half_allreduce('add', T(0), T(1))
        A(f'v_mul_f32 v{T(0)}, 0x3b000000, v{T(0)}')
        A(f'v_sub_f32 v{T(2)}, v{H[0]}, v{T(0)}'); A(f'v_mul_f32 v{T(3)}, v{T(2)}, v{T(2)}')
        A(f'v_sub_f32 v{T(4)}, v{H[1]}, v{T(0)}'); A(f'v_mul_f32 v{T(5)}, v{T(4)}, v{T(4)}')
        for k in range(2, 16, 2):
            A(f'v_sub_f32 v{T(2)}, v{H[k]}, v{T(0)}'); A(f'v_sub_f32 v{T(4)}, v{H[k+1]}, v{T(0)}')
            A(f'v_fmac_f32 v{T(3)}, v{T(2)}, v{T(2)}'); A(f'v_fmac_f32 v{T(5)}, v{T(4)}, v{T(4)}')
        A(f'v_add_f32 v{T(3)}, v{T(3)}, v{T(5)}')
        self.half_allreduce('add', T(3), T(1))
        self.ln_finish(T(0), T(3), T(8), T(9), 1.0 / 512)
        Y = H[0:4]
        self.ln_apply(Y, T(8), T(9))
        A(f'v_cvt_pk_bf16_f32 v{T(4)}, v{Y[0]}, v{Y[1]}'); A(f'v_cvt_pk_bf16_f32 v{T(5)}, v{Y[2]}, v{Y[3]}')
        A(f'ds_write_b64 v{vA1}, v[{T(4)}:{T(5)}] offset:{L_YB}')
        A('s_waitcnt lgkmcnt(0)')
        for s_ in range(4): A(f'ds_read_b128 v[{vXP+4*s_}:{vXP+4*s_+3}], v{vA2} offset:{L_YB+64*s_}')
        for s_ in range(4):
            A(f's_waitcnt lgkmcnt({3-s_})')
            c = '0' if s_ == 0 else f'v[{vDQ}:{vDQ+3}]'
            A(f'v_mfma_f32_16x16x32_bf16 v[{vDQ}:{vDQ+3}], v[{vXP+4*s_}:{vXP+4*s_+3}], v[{vW1+4*s_}:{vW1+4*s_+3}], {c}')
        A(f'ds_write_b32 v{vA3}, v{vDQ} offset:{L_TP}'); A(f'ds_write_b32 v{vA3}, v{vDQ+1} offset:{L_TP+64}')
        A('s_waitcnt lgkmcnt(0)'); A('s_barrier')
        for w in range(4): A(f'ds_read_b32 v{T(w)}, v{vA4} offset:{L_TP+128*w}')
        A('s_waitcnt lgkmcnt(0)')
        A(f'v_add_f32 v{T(0)}, v{T(0)}, v{T(1)}'); A(f'v_add_f32 v{T(2)}, v{T(2)}, v{T(3)}'); A(f'v_add_f32 v{T(0)}, v{T(0)}, v{T(2)}')
        G.rbf(T(0)); A(f'v_add_f32 v{T(0)}, v{vB1}, v{T(0)}'); G.rbf(T(0))
        import struct, math
        f2u = lambda f: struct.unpack('<I', struct.pack('<f', f))[0]
        K0 = -2 * math.log2(math.e) * math.sqrt(2 / math.pi); K1 = K0 * 0.044715
        A(f'v_mul_f32 v{T(1)}, v{T(0)}, v{T(0)}'); A(f'v_mov_b32 v{T(2)}, {hex(f2u(K0))}'); A(f'v_fmac_f32 v{T(2)}, {hex(f2u(K1))}, v{T(1)}')
        A(f'v_mul_f32 v{T(1)}, v{T(0)}, v{T(2)}'); A(f'v_exp_f32 v{T(1)}, v{T(1)}'); A(f'v_add_f32 v{T(1)}, 1.0, v{T(1)}'); A(f'v_rcp_f32 v{T(1)}, v{T(1)}')
        A(f'v_mul_f32 v{T(0)}, v{T(0)}, v{T(1)}'); A(f'v_cvt_pk_bf16_f32 v{vGA}, v{T(0)}, v{T(0)}')
        for ii in range(4):
            bs = vB + 4 * ii
            for jj in range(4):
                A(f'v_and_b32_dpp v{bs+jj}, v{vGA}, v{vMASK+jj} quad_perm:[{ii},{ii},{ii},{ii}] row_mask:0xf bank_mask:0xf')
        for ii in range(4):
            bs = vB + 4 * ii
            c = '0' if ii == 0 else f'v[{vDQ}:{vDQ+3}]'
            A(f'v_mfma_f32_16x16x32_bf16 v[{vDQ}:{vDQ+3}], v[{vW2+4*ii}:{vW2+4*ii+3}], v[{bs}:{bs+3}], {c}')
        A(f'buffer_store_dwordx4 v[{vDQ}:{vDQ+3}], v{vRS}, s[{rWS}:{rWS+3}], 0 offen sc1')
        G.stamp(7)
        A('L_fin:')
        if self.diag:
            A(f's_lshl_b32 s{sT}, s2, 2'); A(f's_add_u32 s{sT}, s{sT}, s{sW}'); A(f's_lshl_b32 s{sT}, s{sT}, 7'); A(f's_add_u32 s{sT}, s{sT}, {WS_DIAG}')
            A('s_memrealtime s[96:97]'); A('s_getreg_b32 s98, hwreg(HW_REG_XCC_ID)'); A('s_waitcnt lgkmcnt(0)')
            A('v_writelane_b32 v251, s96, 14'); A('v_writelane_b32 v251, s98, 15')
            A(f'v_lshlrev_b32 v{T(0)}, 2, v{vL}'); A(f'v_add_u32 v{T(0)}, s{sT}, v{T(0)}')
            A(f'v_mov_b32 v{T(1)}, {OOB}'); A(f'v_cmp_gt_u32 vcc, 32, v{vL}'); A(f'v_cndmask_b32 v{T(0)}, v{T(1)}, v{T(0)}, vcc')
            A(f'buffer_store_dword v251, v{T(0)}, s[{rWS}:{rWS+3}], 0 offen')
            if self.kw.get('st3'):
                A(f's_lshl_b32 s{sT}, s2, 2'); A(f's_add_u32 s{sT}, s{sT}, s{sW}'); A(f's_lshl_b32 s{sT}, s{sT}, 8'); A(f's_add_u32 s{sT}, s{sT}, {WS_DIAG + 0x20000}')
                A(f'v_lshlrev_b32 v{T(0)}, 2, v{vL}'); A(f'v_add_u32 v{T(0)}, s{sT}, v{T(0)}')
                A(f'buffer_store_dword v252, v{T(0)}, s[{rWS}:{rWS+3}], 0 offen')
        A('L_end:')
        A('s_endpgm')
        return self.wrap()

    def ln_finish(self, mean, ss, om, orstd, inv_n):
        A = self.A
        import struct
        f2u = lambda f: struct.unpack('<I', struct.pack('<f', f))[0]
        A(f'v_mul_f32 v{ss}, {hex(f2u(inv_n))}, v{ss}'); self.rbf(ss)
        A(f'v_add_f32 v{ss}, {hex(f2u(1e-5))}, v{ss}'); self.rbf(ss)
        A(f'v_sqrt_f32 v{ss}, v{ss}'); self.rbf(ss)
        A(f'v_rcp_f32 v{orstd}, v{ss}')
        self.rbf(om, mean)
    def ln_stats(self, X, om, orstd, t0, t1, inv_n, red):
        A = self.A
        import struct
        f2u = lambda f: struct.unpack('<I', struct.pack('<f', f))[0]
        A(f'v_add_f32 v{t0}, v{X[0]}, v{X[1]}')
        for x in X[2:]: A(f'v_add_f32 v{t0}, v{t0}, v{x}')
        red('add', t0, t1)
        A(f'v_mul_f32 v{t0}, {hex(f2u(inv_n))}, v{t0}')
        A(f'v_sub_f32 v{t1}, v{X[0]}, v{t0}'); A(f'v_mul_f32 v{orstd}, v{t1}, v{t1}')
        for x in X[1:]:
            A(f'v_sub_f32 v{t1}, v{x}, v{t0}'); A(f'v_fmac_f32 v{orstd}, v{t1}, v{t1}')
        red('add', orstd, t1)
        A(f'v_mov_b32 v{t1}, v{orstd}')
        self.ln_finish(t0, t1, om, orstd, inv_n)
    def ln_apply(self, X, m, rstd):
        A = self.A
        for k in range(0, len(X), 2):
            A(f'v_sub_f32 v{X[k]}, v{X[k]}, v{m}'); A(f'v_sub_f32 v{X[k+1]}, v{X[k+1]}, v{m}')
            A(f'v_cvt_pk_bf16_f32 v{X[k+1]}, v{X[k]}, v{X[k+1]}')
            A(f'v_lshlrev_b32 v{X[k]}, 16, v{X[k+1]}'); A(f'v_and_b32 v{X[k+1]}, 0xffff0000, v{X[k+1]}')
            A(f'v_mul_f32 v{X[k]}, v{X[k]}, v{rstd}'); A(f'v_mul_f32 v{X[k+1]}, v{X[k+1]}, v{rstd}')

    def finish_debug(self, regs):
        raise NotImplementedError

    def wrap(self):
        body = hz.fix(self.L)
        H = []
        H.append(f'; @launch grid=(256,1,1) block=(256,1,1) lds={LDS_SIZE}')
        H.append('.amdgcn_target "amdgcn-amd-amdhsa--gfx950"')
        H.append('.text'); H.append(f'.globl {KN}'); H.append('.p2align 8'); H.append(f'.type {KN},@function'); H.append(f'{KN}:')
        H += body
        H.append('.section .rodata,"a"'); H.append('.p2align 6'); H.append(f'.amdhsa_kernel {KN}')
        H.append('  .amdhsa_next_free_vgpr 512'); H.append('  .amdhsa_next_free_sgpr 102'); H.append('  .amdhsa_accum_offset 256')
        H.append('  .amdhsa_group_segment_fixed_size 0'); H.append('  .amdhsa_kernarg_size 104'); H.append('  .amdhsa_user_sgpr_count 2')
        H.append('  .amdhsa_user_sgpr_kernarg_segment_ptr 1'); H.append('  .amdhsa_system_sgpr_workgroup_id_x 1')
        H.append('.end_amdhsa_kernel')
        return '\n'.join(H) + '\n'

if __name__ == '__main__':
    import ast
    kw = eval('dict(%s)' % (sys.argv[2] if len(sys.argv) > 2 else ''))
    open(sys.argv[1], 'w').write(Gen(**kw).gen())
```

```python
import sys
import hz
KN = 'sequential_preLN__mha_block_cached__mixer_channel_mlp__decode_kernel'

WS_ML = 0x0
WS_H  = 0x2000
WS_C1 = 0x10000
WS_C2 = 0x90000
WS_SIZE = 0x100000
WS_DIAG = 0x100000
OOB = 0x7ff00000

L_XN = 0
L_QP = 4096
L_QB = 6144
L_OP = 7168
L_OH = 9216
L_YB = 11264
L_TP = 13312
L_DUMMY = 13824
LDS_SIZE = 16384

SCALE = 0x3DB504F3
LOG2E = 0x3FB8AA3B

class Gen:
    def __init__(self, diag=False, nt='nt', wnt='', spin=1 << 15, ring=8, pre=6, stop=None, nowo=False, nowq=False, norole=False, **kw):
        self.L = []
        self.vm = []
        self.done = -1
        self.diag = diag; self.nt = nt; self.wnt = wnt; self.spin = spin
        self.ring = ring; self.pre = pre; self.stop = stop
        self.nstamp = 0; self.n3 = 0
        self.nowo = nowo; self.nowq = nowq; self.norole = norole; self.kw = kw
    def A(self, s): self.L.append('  ' + s if not s.endswith(':') else s)
    def vmop(self, s, tag, optional=False):
        self.A(s); self.vm.append((tag, optional))
        if self.kw.get('st3') and self.n3 < 64 and not optional:
            self.A('s_memrealtime s[96:97]'); self.A('s_waitcnt lgkmcnt(0)'); self.A('v_writelane_b32 v252, s96, %d' % self.n3); self.n3 += 1
        out = len(self.vm) - 1 - self.done
        assert out <= 63, ('too many outstanding', out, tag)
    def vmwait(self, tag):
        idx = max(i for i, (t, o) in enumerate(self.vm) if t == tag)
        n = sum(1 for (t, o) in self.vm[idx + 1:] if not o)
        assert n <= 63
        self.A('s_waitcnt vmcnt(%d)' % n)
        self.done = max(self.done, idx)
    def vmdrain(self):
        self.A('s_waitcnt vmcnt(0)'); self.done = len(self.vm) - 1
    def stamp(self, k):
        if self.diag:
            self.A('s_memrealtime s[96:97]'); self.A('s_waitcnt lgkmcnt(0)')
            self.A('v_mov_b32 v250, s96'); self.A('v_writelane_b32 v251, s96, %d' % k)

    def srd(self, r, lo, hi, size, off=None):
        A = self.A
        if off is None:
            A(f's_mov_b32 s{r}, s{lo}'); A(f's_and_b32 s{r+1}, s{hi}, 0xffff')
        else:
            A(f's_add_u32 s{r}, s{lo}, {off}'); A(f's_addc_u32 s{r+1}, s{hi}, 0'); A(f's_and_b32 s{r+1}, s{r+1}, 0xffff')
        A(f's_mov_b32 s{r+2}, {size}'); A(f's_mov_b32 s{r+3}, 0x20000')

    def wave_allreduce(self, op, v, t):
        A = self.A
        for r in (1, 2, 4, 8):
            A(f'v_{op}_f32_dpp v{v}, v{v}, v{v} row_ror:{r} row_mask:0xf bank_mask:0xf')
        A(f'v_mov_b32 v{t}, v{v}'); A(f'v_permlane16_swap_b32 v{v}, v{t}'); A(f'v_{op}_f32 v{v}, v{v}, v{t}')
        A(f'v_mov_b32 v{t}, v{v}'); A(f'v_permlane32_swap_b32 v{v}, v{t}'); A(f'v_{op}_f32 v{v}, v{v}, v{t}')
    def half_allreduce(self, op, v, t):
        A = self.A
        for r in (1, 2, 4, 8):
            A(f'v_{op}_f32_dpp v{v}, v{v}, v{v} row_ror:{r} row_mask:0xf bank_mask:0xf')
        A(f'v_mov_b32 v{t}, v{v}'); A(f'v_permlane16_swap_b32 v{v}, v{t}'); A(f'v_{op}_f32 v{v}, v{v}, v{t}')
    def rbf(self, v, src=None):
        A = self.A
        s = v if src is None else src
        A(f'v_cvt_pk_bf16_f32 v{v}, v{s}, v{s}'); A(f'v_and_b32 v{v}, 0xffff0000, v{v}')

    def gen(self):
        A = self.A; G = self
        RING = self.ring; nt = self.nt; wnt = self.wnt
        sW = 3
        pX, pK, pV, pWQ, pWO, pW1, pB1, pW2, pB2, pOUT, pDBG, pWS = 4, 6, 8, 10, 12, 16, 18, 20, 22, 24, 26, 28
        rK, rV, rWQ, rWO, rWS, rDBG, rX, rW1, rW2, rB1, rB2, rOUT = 32, 36, 40, 44, 48, 52, 56, 60, 64, 68, 72, 76
        sOff, sT, sH, sB, sS, sBH, sRole, sSpin, sT2, sU = 80, 81, 82, 83, 84, 85, 86, 87, 88, 89
        sM = 90
        sPK = 92
        vL, vN, vG = 1, 2, 3
        vK, vV, vWQ, vWO, vC1, vMLp, vMLq, vRS = 4, 5, 6, 7, 8, 9, 10, 11
        vSEL = 12
        vMASK = 20
        vBQ = 24
        vS = 32
        vD = 64
        vO = 80
        vB = 88
        vXP = 104
        vDQ = 120
        vT = 124
        vMX, vLS, vM, vNM, vF, vML0, vML1, vCNT = 140, 141, 142, 143, 208, 210, 211, 212
        vW1 = 144
        vW2 = 160
        vR = 176
        vB1, vXV, vB2V, vHV, vOPA, vSENT, vOUTA = 213, 214, 215, 216, 217, 220, 218
        vA1, vA2, vA3, vA4 = 224, 225, 226, 227
        vXR = 228
        vWOFF1, vWOFF2, vB1OFF, vHOFF, vGA = 232, 233, 234, 235, 236
        aW = 128
        T = lambda i: vT + i

        A('s_cmp_ge_u32 s2, 256'); A('s_cbranch_scc1 L_end')
        A(f's_load_dwordx16 s[4:19], s[0:1], 0'); A('s_load_dwordx8 s[20:27], s[0:1], 64'); A('s_load_dwordx2 s[28:29], s[0:1], 96')
        if self.diag:
            A('v_mov_b32 v251, 0')
            G.stamp(0)
        A(f'v_and_b32 v{vL}, 63, v0'); A(f'v_lshrrev_b32 v{T(0)}, 6, v0'); A(f'v_and_b32 v{vN}, 15, v0')
        A(f'v_readfirstlane_b32 s{sW}, v{T(0)}')
        A(f'v_lshrrev_b32 v{vG}, 4, v{vL}')
        A(f's_and_b32 s{sH}, s2, 31'); A(f's_lshr_b32 s{sB}, s2, 5'); A(f's_and_b32 s{sB}, s{sB}, 1'); A(f's_lshr_b32 s{sS}, s2, 6'); A(f's_and_b32 s{sBH}, s2, 63')
        A(f's_lshl_b32 s{sT}, s{sW}, 12')
        A(f'v_lshrrev_b32 v{T(0)}, 1, v{vN}'); A(f'v_lshlrev_b32 v{T(0)}, 8, v{T(0)}')
        A(f'v_and_b32 v{T(1)}, 1, v{vN}'); A(f'v_lshl_add_u32 v{T(0)}, v{T(1)}, 6, v{T(0)}')
        A(f'v_lshl_add_u32 v{T(0)}, v{vG}, 4, v{T(0)}'); A(f'v_add_u32 v{vK}, s{sT}, v{T(0)}')
        A(f'v_lshlrev_b32 v{T(0)}, 9, v{vG}'); A(f'v_lshl_add_u32 v{T(0)}, v{vN}, 4, v{T(0)}'); A(f'v_add_u32 v{vV}, s{sT}, v{T(0)}')
        A(f's_lshl_b32 s{sT}, s{sW}, 20'); A(f'v_lshlrev_b32 v{T(0)}, 18, v{vG}'); A(f'v_lshl_add_u32 v{T(0)}, v{vN}, 4, v{T(0)}'); A(f'v_add_u32 v{vWQ}, s{sT}, v{T(0)}')
        A(f's_lshl_b32 s{sT}, s{sB}, 10'); A(f'v_lshlrev_b32 v{T(2)}, 4, v{vL}'); A(f'v_add_u32 v{T(2)}, s{sT}, v{T(2)}')
        A(f's_lshl_b32 s{sT}, s{sB}, 5'); A(f's_lshl_b32 s{sT2}, s{sW}, 3'); A(f's_add_u32 s{sT}, s{sT}, s{sT2}')
        A(f's_lshl_b32 s{sT}, s{sT}, 13')
        A(f's_lshl_b32 s{sT2}, s{sH}, 2'); A(f's_add_u32 s{sT2}, s{sT2}, s{sS}'); A(f's_lshl_b32 s{sT2}, s{sT2}, 6')
        A(f's_add_u32 s{sT}, s{sT}, s{sT2}'); A(f's_add_u32 s{sT}, s{sT}, {WS_C1}')
        A(f'v_lshlrev_b32 v{T(0)}, 1, v{vG}'); A(f'v_lshrrev_b32 v{T(1)}, 2, v{vN}'); A(f'v_add_u32 v{T(0)}, v{T(0)}, v{T(1)}')
        A(f'v_lshlrev_b32 v{T(0)}, 13, v{T(0)}'); A(f'v_and_b32 v{T(1)}, 3, v{vN}'); A(f'v_lshl_add_u32 v{T(0)}, v{T(1)}, 4, v{T(0)}')
        A(f'v_add_u32 v{T(0)}, s{sT}, v{T(0)}')
        A(f'v_mov_b32 v{T(1)}, {OOB}'); A(f'v_cmp_gt_u32 vcc, 8, v{vN}')
        A(f'v_cndmask_b32 v{vC1}, v{T(1)}, v{T(0)}, vcc')
        A(f's_lshl_b32 s{sT}, s{sBH}, 7'); A(f's_lshl_b32 s{sT2}, s{sS}, 2'); A(f's_add_u32 s{sT2}, s{sT2}, s{sW}'); A(f's_lshl_b32 s{sT2}, s{sT2}, 3')
        A(f's_add_u32 s{sT2}, s{sT2}, s{sT}'); A(f'v_mov_b32 v{T(0)}, s{sT2}'); A(f'v_mov_b32 v{T(1)}, {OOB}')
        A(f'v_cmp_eq_u32 vcc, 0, v{vL}'); A(f'v_cndmask_b32 v{vMLp}, v{T(1)}, v{T(0)}, vcc')
        A(f'v_lshlrev_b32 v{T(0)}, 3, v{vN}'); A(f'v_add_u32 v{vMLq}, s{sT}, v{T(0)}')
        A(f's_mov_b32 s{sRole}, 0')
        A(f's_and_b32 s{sT}, s2, 7'); A(f's_mul_i32 s{sT}, s{sT}, 14'); A(f's_lshr_b32 s{sT2}, s2, 3'); A(f's_add_u32 s{sU}, s{sT}, s{sT2}')
        A(f's_cmp_lt_u32 s2, 112'); A(f's_cselect_b32 s{sRole}, 1, 0')
        A(f's_sub_u32 s{sT}, s2, 128'); A(f's_cmp_lt_u32 s{sT}, 64'); A(f's_cselect_b32 s{sRole}, 2, s{sRole}'); A(f's_cselect_b32 s{sU}, s{sT}, s{sU}')
        for r_ in (vRS, vWOFF1, vWOFF2, vB1OFF, vHOFF, vOUTA): A(f'v_mov_b32 v{r_}, {OOB}')
        A(f's_cmp_eq_u32 s{sRole}, 1'); A('s_cbranch_scc0 L_r1')
        A(f'v_lshrrev_b32 v{T(0)}, 3, v{vN}'); A(f'v_lshlrev_b32 v{T(0)}, 5, v{T(0)}')
        A(f'v_lshl_add_u32 v{T(0)}, v{vG}, 1, v{T(0)}'); A(f'v_bfe_u32 v{T(1)}, v{vN}, 2, 1'); A(f'v_add_u32 v{T(0)}, v{T(0)}, v{T(1)}')
        A(f's_lshl_b32 s{sT}, s{sW}, 3'); A(f'v_add_u32 v{T(0)}, s{sT}, v{T(0)}')
        A(f'v_mul_u32_u24 v{T(0)}, {112*64}, v{T(0)}'); A(f'v_and_b32 v{T(1)}, 3, v{vN}'); A(f'v_lshl_add_u32 v{T(0)}, v{T(1)}, 4, v{T(0)}')
        A(f's_lshl_b32 s{sT}, s{sU}, 6'); A(f's_add_u32 s{sT}, s{sT}, {WS_C2}'); A(f'v_add_u32 v{vRS}, s{sT}, v{T(0)}')
        A(f'v_lshrrev_b32 v{T(0)}, 1, v{vG}'); A(f'v_lshlrev_b32 v{T(0)}, 2, v{T(0)}'); A(f'v_and_b32 v{T(1)}, 1, v{vG}'); A(f'v_lshl_add_u32 v{T(0)}, v{T(1)}, 1, v{T(0)}')
        A(f's_lshl_b32 s{sT}, s{sW}, 7'); A(f'v_add_u32 v{T(0)}, s{sT}, v{T(0)}'); A(f'v_mul_u32_u24 v{T(0)}, 3584, v{T(0)}')
        A(f's_lshl_b32 s{sT}, s{sU}, 5'); A(f'v_lshl_add_u32 v{T(0)}, v{vN}, 1, v{T(0)}'); A(f'v_add_u32 v{vWOFF1}, s{sT}, v{T(0)}')
        A(f's_lshl_b32 s{sT}, s{sU}, 14'); A(f's_lshl_b32 s{sT2}, s{sW}, 8'); A(f's_add_u32 s{sT}, s{sT}, s{sT2}')
        A(f'v_lshlrev_b32 v{T(0)}, 12, v{vG}'); A(f'v_lshl_add_u32 v{T(0)}, v{vN}, 4, v{T(0)}'); A(f'v_add_u32 v{vWOFF2}, s{sT}, v{T(0)}')
        A(f's_lshl_b32 s{sT}, s{sU}, 5'); A(f'v_and_b32 v{T(0)}, 3, v{vN}'); A(f'v_lshl_add_u32 v{T(0)}, v{vG}, 2, v{T(0)}'); A(f'v_lshlrev_b32 v{T(0)}, 1, v{T(0)}'); A(f'v_add_u32 v{vB1OFF}, s{sT}, v{T(0)}')
        A(f'v_lshrrev_b32 v{T(0)}, 5, v{vL}'); A(f'v_lshlrev_b32 v{T(0)}, 11, v{T(0)}'); A(f'v_and_b32 v{T(1)}, 31, v{vL}'); A(f'v_lshl_add_u32 v{T(0)}, v{T(1)}, 4, v{T(0)}')
        A(f'v_add_u32 v{vHOFF}, {WS_H}, v{T(0)}')
        A('s_branch L_r2')
        A('L_r1:')
        A(f's_cmp_eq_u32 s{sRole}, 2'); A('s_cbranch_scc0 L_r2')
        A(f's_cmp_eq_u32 s{sW}, 0'); A('s_cbranch_scc0 L_r2')
        A(f's_lshl_b32 s{sT}, s{sU}, 6'); A(f's_add_u32 s{sT}, s{sT}, {WS_H}')
        A(f'v_lshlrev_b32 v{T(0)}, 4, v{vN}'); A(f'v_lshl_add_u32 v{T(0)}, v{vG}, 2, v{T(0)}'); A(f'v_add_u32 v{T(0)}, s{sT}, v{T(0)}')
        A(f'v_mov_b32 v{T(1)}, {OOB}'); A(f'v_cmp_gt_u32 vcc, 4, v{vN}'); A(f'v_cndmask_b32 v{vRS}, v{T(1)}, v{T(0)}, vcc')
        A(f's_and_b32 s{sT}, s{sU}, 31'); A(f's_lshr_b32 s{sT2}, s{sT}, 1'); A(f's_lshl_b32 s{sT2}, s{sT2}, 5')
        A(f's_and_b32 s{sT}, s{sT}, 1'); A(f's_lshl_b32 s{sT}, s{sT}, 2'); A(f's_add_u32 s{sT}, s{sT}, s{sT2}')
        A(f'v_and_b32 v{T(0)}, 3, v{vN}'); A(f'v_lshl_add_u32 v{T(0)}, v{vG}, 3, v{T(0)}'); A(f'v_add_u32 v{T(0)}, s{sT}, v{T(0)}')
        A(f'v_lshlrev_b32 v{vB1OFF}, 1, v{T(0)}')
        A(f's_lshr_b32 s{sT}, s{sU}, 5'); A(f's_lshl_b32 s{sT}, s{sT}, 10'); A(f'v_add_u32 v{vWOFF1}, s{sT}, v{vB1OFF}')
        A(f'v_mov_b32 v{T(1)}, {OOB}'); A(f'v_cmp_gt_u32 vcc, 4, v{vN}'); A(f'v_cndmask_b32 v{vOUTA}, v{T(1)}, v{vWOFF1}, vcc')
        A(f's_lshl_b32 s{sT}, s{sU}, 13'); A(f's_add_u32 s{sT}, s{sT}, {WS_C1}'); A(f'v_lshlrev_b32 v{T(0)}, 4, v{vL}'); A(f'v_add_u32 v{vHOFF}, s{sT}, v{T(0)}')
        A(f's_mul_i32 s{sT}, s{sU}, 7168'); A(f's_add_u32 s{sT}, s{sT}, {WS_C2}'); A(f'v_add_u32 v{vWOFF2}, s{sT}, v{T(0)}')
        A('L_r2:')
        for i in range(4): A(f'v_mov_b32 v{vSENT+i}, -1')
        A('s_waitcnt lgkmcnt(0)')
        if self.kw.get('st2'): G.stamp(24)
        A(f's_lshl_b32 s{sT}, s{sBH}, 21'); A(f's_lshl_b32 s{sT2}, s{sS}, 19'); A(f's_add_u32 s{sT}, s{sT}, s{sT2}')
        G.srd(rX, pX, pX + 1, 2048)
        G.srd(rK, pK, pK + 1, 0x80000, f's{sT}')
        G.vmop(f'buffer_load_dwordx4 v[{vXR}:{vXR+3}], v{T(2)}, s[{rX}:{rX+3}], 0 offen', 'x')
        koffs = [0, 2048, 128, 2176]
        voffs = [0, 2048, 256, 2304]
        def unit_loads(u):
            isK = u < 32; t = u % 32
            A(f's_mov_b32 s{sOff}, {t*16384}')
            for q in range(4):
                r = ((u % RING) * 4 + q) * 4
                if isK: G.vmop(f'buffer_load_dwordx4 a[{r}:{r+3}], v{vK}, s[{rK}:{rK+3}], s{sOff} offen offset:{koffs[q]} {nt}', f'u{u}')
                else:   G.vmop(f'buffer_load_dwordx4 a[{r}:{r+3}], v{vV}, s[{rV}:{rV+3}], s{sOff} offen offset:{voffs[q]} {nt}', f'u{u}')
        unit_loads(0)
        if self.kw.get('st2'): G.stamp(25)
        G.srd(rV, pV, pV + 1, 0x80000, f's{sT}')
        G.srd(rWS, pWS, pWS + 1, WS_SIZE + (0x100000 if self.diag else 0))
        A(f's_lshl_b32 s{sT}, s{sH}, 8')
        if self.kw.get('wqsame'): A(f's_mov_b32 s{sT}, 0')
        G.srd(rWQ, pWQ, pWQ + 1, 0, f's{sT}'); A(f's_sub_u32 s{rWQ+2}, {512*8192}, s{sT}')
        G.vmop(f'buffer_store_dwordx4 v[{vSENT}:{vSENT+3}], v{vC1}, s[{rWS}:{rWS+3}], 0 offen sc1', 'init')
        G.vmop(f'buffer_store_dwordx2 v[{vSENT}:{vSENT+1}], v{vMLp}, s[{rWS}:{rWS+3}], 0 offen sc1', 'init')
        A(f's_cmp_eq_u32 s{sRole}, 1'); A('s_cbranch_scc0 L_i1')
        G.vmop(f'buffer_store_dwordx4 v[{vSENT}:{vSENT+3}], v{vRS}, s[{rWS}:{rWS+3}], 0 offen sc1', 'init', True)
        A('L_i1:')
        A(f's_cmp_eq_u32 s{sRole}, 2'); A('s_cbranch_scc0 L_i2')
        G.vmop(f'buffer_store_dword v{vSENT}, v{vRS}, s[{rWS}:{rWS+3}], 0 offen sc1', 'init', True)
        A('L_i2:')
        if self.kw.get('st2'): G.stamp(26)
        def wq_load(i):
            if self.nowq and i >= 4: return
            A(f's_mov_b32 s{sT}, {i*8192}')
            r = aW + 4 * i
            G.vmop(f'buffer_load_dwordx4 a[{r}:{r+3}], v{vWQ}, s[{rWQ}:{rWQ+3}], s{sT} offen {wnt}', f'wq{i}')
            if self.kw.get('st2') and i == 15: G.stamp(27)
            if self.kw.get('st2') and i == 31: G.stamp(28)
        il = self.kw.get('il', 0)
        done_u = 1
        for i in range(32):
            wq_load(i)
            if il and i % 4 == 3 and done_u < 1 + il and i < 31:
                unit_loads(done_u); done_u += 1
        for u in range(done_u, self.pre): unit_loads(u)
        G.stamp(9)
        A(f's_lshl_b32 s{sT}, s{sH}, 17')
        if self.kw.get('wosame'): A(f's_mov_b32 s{sT}, 0')
        if self.kw.get('woxcd'): A(f's_and_b32 s{sT}, s{sH}, 7'); A(f's_lshl_b32 s{sT}, s{sT}, 17')
        G.srd(rWO, pWO, pWO + 1, 131072, f's{sT}')
        G.srd(rDBG, pDBG, pDBG + 1, 256)
        G.srd(rW1, pW1, pW1 + 1, 512 * 3584)
        G.srd(rW2, pW2, pW2 + 1, 1792 * 1024)
        G.srd(rB1, pB1, pB1 + 1, 3584)
        G.srd(rB2, pB2, pB2 + 1, 1024)
        G.srd(rOUT, pOUT, pOUT + 1, 2048)
        A(f's_mov_b32 s{sPK}, 0x05040100')
        A(f's_lshl_b32 s{sT}, s{sW}, 8'); A(f'v_lshlrev_b32 v{T(0)}, 15, v{vG}'); A(f'v_lshl_add_u32 v{T(0)}, v{vN}, 4, v{T(0)}'); A(f'v_add_u32 v{vWO}, s{sT}, v{T(0)}')
        A(f'v_and_b32 v{T(0)}, 1, v{vN}'); A(f'v_cmp_eq_u32 vcc, 1, v{T(0)}')
        A(f'v_mov_b32 v{T(1)}, 0x0c0c0100'); A(f'v_mov_b32 v{T(2)}, 0x01000c0c'); A(f'v_cndmask_b32 v{T(3)}, v{T(1)}, v{T(2)}, vcc')
        A(f'v_mov_b32 v{T(1)}, 0x0c0c0302'); A(f'v_mov_b32 v{T(2)}, 0x03020c0c'); A(f'v_cndmask_b32 v{T(4)}, v{T(1)}, v{T(2)}, vcc')
        A(f'v_mov_b32 v{T(1)}, 0x0000ffff'); A(f'v_mov_b32 v{T(2)}, 0xffff0000'); A(f'v_cndmask_b32 v{T(5)}, v{T(1)}, v{T(2)}, vcc')
        A(f'v_bfe_u32 v{T(0)}, v{vN}, 1, 2'); A(f'v_mov_b32 v{T(6)}, 0x0c0c0c0c')
        for jj in range(4):
            A(f'v_cmp_eq_u32 vcc, {jj}, v{T(0)}')
            A(f'v_cndmask_b32 v{vSEL+jj}, v{T(6)}, v{T(3)}, vcc'); A(f'v_cndmask_b32 v{vSEL+4+jj}, v{T(6)}, v{T(4)}, vcc')
            A(f'v_cndmask_b32 v{vMASK+jj}, 0, v{T(5)}, vcc')
        A(f's_lshl_b32 s{sT}, s{sW}, 10'); A(f'v_lshlrev_b32 v{T(0)}, 4, v{vL}'); A(f'v_add_u32 v{vA1}, s{sT}, v{T(0)}')
        A(f's_mul_i32 s{sT}, s{sW}, 1280'); A(f'v_lshlrev_b32 v{T(0)}, 6, v{vG}'); A(f'v_add_u32 v{vA2}, s{sT}, v{T(0)}')
        if self.kw.get('st2'): G.stamp(29)
        G.vmwait('x')
        if self.kw.get('st2'): G.stamp(30)
        X = [T(i) for i in range(8)]
        for k in range(4):
            A(f'v_lshlrev_b32 v{X[2*k]}, 16, v{vXR+k}'); A(f'v_and_b32 v{X[2*k+1]}, 0xffff0000, v{vXR+k}')
        self.ln_stats(X, T(8), T(9), T(10), T(11), 1.0 / 512, self.wave_allreduce)
        self.ln_apply(X, T(8), T(9))
        for k in range(4): A(f'v_cvt_pk_bf16_f32 v{vXR+k}, v{X[2*k]}, v{X[2*k+1]}')
        A(f'ds_write_b128 v{vA1}, v[{vXR}:{vXR+3}] offset:{L_XN}')
        A('s_waitcnt lgkmcnt(0)')
        for k in range(4): A(f'ds_read_b128 v[{vXP+4*k}:{vXP+4*k+3}], v{vA2} offset:{L_XN+16*k}')
        A(f's_lshl_b32 s{sT}, s{sW}, 9'); A(f'v_and_b32 v{T(0)}, 7, v{vN}'); A(f'v_lshl_add_u32 v{T(0)}, v{vG}, 5, v{T(0)}'); A(f'v_lshlrev_b32 v{T(0)}, 2, v{T(0)}')
        A(f'v_add_u32 v{vA1}, s{sT}, v{T(0)}')
        A(f'v_mov_b32 v{T(1)}, {L_DUMMY - L_OP}'); A(f'v_cmp_gt_u32 vcc, 8, v{vN}'); A(f'v_cndmask_b32 v{vOPA}, v{T(1)}, v{vA1}, vcc')
        A(f'v_lshlrev_b32 v{vA3}, 3, v{vL}')
        A('s_waitcnt lgkmcnt(0)')
        if self.kw.get('st2'): G.stamp(31)
        def delta_steps(nsteps, acc, tagf, first_zero=True):
            for i in range(nsteps):
                bset = vB + 4 * (i & 1)
                for jj in range(4):
                    A(f'v_perm_b32 v{bset+jj}, v{vXP+(i>>1)}, v{vXP+(i>>1)}, v{vSEL+4*(i&1)+jj}')
                if tagf is not None and i % 4 == 0: G.vmwait(tagf(i + 3))
                r = aW + 4 * i
                c = '0' if i == 0 else f'v[{acc}:{acc+3}]'
                A(f'v_mfma_f32_16x16x32_bf16 v[{acc}:{acc+3}], a[{r}:{r+3}], v[{bset}:{bset+3}], {c}')
        delta_steps(32, vDQ, lambda i: f'wq{min(i, 3) if self.nowq else i}')
        for i in range(4): A(f'ds_write_b32 v{vA1}, v{vDQ+i} offset:{L_QP + 32*i}')
        A('s_waitcnt lgkmcnt(0)'); A('s_barrier')
        A(f's_cmp_eq_u32 s{sW}, 0'); A('s_cbranch_scc0 L_c1')
        A(f'v_mov_b32 v{T(0)}, 1'); A(f'v_mov_b32 v{T(1)}, {OOB}'); A(f'v_cmp_eq_u32 vcc, 0, v{vL}'); A(f'v_cndmask_b32 v{T(1)}, v{T(1)}, 0, vcc')
        G.vmop(f'buffer_atomic_add v{T(0)}, v{T(1)}, s[{rDBG}:{rDBG+3}], 0 offen', 'atom', True)
        A('L_c1:')
        for w in range(4): A(f'ds_read_b64 v[{T(2*w+2)}:{T(2*w+3)}], v{vA3} offset:{L_QP + 512*w}')
        for u in range(self.pre, RING): unit_loads(u)
        A(f's_lshl_b32 s{sT}, s{sW}, 8'); A(f'v_lshlrev_b32 v{T(0)}, 2, v{vL}'); A(f'v_add_u32 v{T(0)}, s{sT}, v{T(0)}')
        A(f'v_lshrrev_b32 v{T(1)}, 3, v{vN}'); A(f'v_lshlrev_b32 v{T(1)}, 6, v{T(1)}'); A(f'v_lshl_add_u32 v{T(1)}, v{vG}, 4, v{T(1)}'); A(f'v_add_u32 v{T(1)}, s{sT}, v{T(1)}')
        A('s_waitcnt lgkmcnt(0)')
        A(f'v_pk_add_f32 v[{T(2)}:{T(3)}], v[{T(2)}:{T(3)}], v[{T(4)}:{T(5)}]'); A(f'v_pk_add_f32 v[{T(6)}:{T(7)}], v[{T(6)}:{T(7)}], v[{T(8)}:{T(9)}]')
        A(f'v_pk_add_f32 v[{T(2)}:{T(3)}], v[{T(2)}:{T(3)}], v[{T(6)}:{T(7)}]')
        A(f'v_cvt_pk_bf16_f32 v{T(2)}, v{T(2)}, v{T(3)}')
        A(f'ds_write_b32 v{T(0)}, v{T(2)} offset:{L_QB}')
        A('s_waitcnt lgkmcnt(0)')
        A(f'ds_read_b128 v[{vBQ}:{vBQ+3}], v{T(1)} offset:{L_QB}'); A(f'ds_read_b128 v[{vBQ+4}:{vBQ+7}], v{T(1)} offset:{L_QB+128}')
        A(f'v_mov_b32 v{vMX}, 0xff800000')
        for i in range(8): A(f'v_mov_b32 v{vO+i}, 0')
        A('s_waitcnt lgkmcnt(0)')
        G.stamp(1)
        if self.stop == 'q':
            return self.finish_debug([vBQ + i for i in range(8)])

        wo_loads = []
        for i in range(32):
            r = aW + 4 * i
            wo_loads.append((i // 4 * 4096, f'buffer_load_dwordx4 a[{r}:{r+3}], v{vWO}, s[{rWO}:{rWO+3}], s{sT} offen offset:{(i%4)*1024} {wnt}', f'wo{i}'))
        def emit_wo(k0, k1):
            for k in range(k0, k1):
                so, s, tag = wo_loads[k]
                if self.kw.get('wotiny'): so = 0
                if k == k0 or k % 4 == 0: A(f's_mov_b32 s{sT}, {so}')
                G.vmop(s, tag)
        def emit_role_loads(part):
            lab = f'L_rl{part}'
            if part < 16:
                A(f's_cmp_eq_u32 s{sRole}, 1'); A(f's_cbranch_scc0 {lab}')
                s_ = part // 4; e3 = part % 4
                A(f's_mov_b32 s{sT}, {(32*s_ + 8*e3)*3584}')
                for eh in (0, 1):
                    e = e3 + 4 * eh
                    G.vmop(f'buffer_load_ushort v{vR + 8*s_ + e}, v{vWOFF1}, s[{rW1}:{rW1+3}], s{sT} offen offset:{eh*3584} {wnt}', 'w1g', True)
                A(f'{lab}:')
            else:
                A(f's_cmp_eq_u32 s{sRole}, 1'); A(f's_cbranch_scc0 {lab}a')
                for ii in range(4):
                    G.vmop(f'buffer_load_dwordx4 v[{vW2+4*ii}:{vW2+4*ii+3}], v{vWOFF2}, s[{rW2}:{rW2+3}], 0 offen offset:{ii*1024} {wnt}', 'w2l', True)
                G.vmop(f'buffer_load_ushort v{vB1}, v{vB1OFF}, s[{rB1}:{rB1+3}], 0 offen', 'b1l', True)
                A(f'{lab}a:')
                A(f's_cmp_eq_u32 s{sRole}, 2'); A(f's_cbranch_scc0 {lab}b')
                G.vmop(f'buffer_load_ushort v{vXV}, v{vWOFF1}, s[{rX}:{rX+3}], 0 offen', 'xv', True)
                G.vmop(f'buffer_load_ushort v{vB2V}, v{vB1OFF}, s[{rB2}:{rB2+3}], 0 offen', 'b2l', True)
                A(f'{lab}b:')
        def kproc(t):
            D0 = vD + 8 * (t & 1); D1 = D0 + 4
            sA, sB_ = T(0), T(1)
            A(f'v_add_f32_dpp v{sA}, v{D0+1}, v{D0} row_ror:8 row_mask:0xf bank_mask:0x3')
            A(f'v_add_f32_dpp v{sB_}, v{D0+3}, v{D0+2} row_ror:8 row_mask:0xf bank_mask:0x3')
            A(f'v_add_f32_dpp v{sA}, v{D1}, v{D1+1} row_ror:8 row_mask:0xf bank_mask:0xc')
            A(f'v_add_f32_dpp v{sB_}, v{D1+2}, v{D1+3} row_ror:8 row_mask:0xf bank_mask:0xc')
            A(f'v_cvt_pk_bf16_f32 v{T(2)}, v{sA}, v{sB_}')
            A(f'v_max3_f32 v{vMX}, v{vMX}, v{sA}, v{sB_}')
            A(f'v_lshlrev_b32 v{T(3)}, 16, v{T(2)}'); A(f'v_and_b32 v{T(4)}, 0xffff0000, v{T(2)}')
            A(f'v_mul_f32 v{T(3)}, {SCALE}, v{T(3)}'); A(f'v_mul_f32 v{T(4)}, {SCALE}, v{T(4)}')
            A(f'v_cvt_pk_bf16_f32 v{vS+t}, v{T(3)}, v{T(4)}')
        for t in range(32):
            u = t
            D0 = vD + 8 * (t & 1); D1 = D0 + 4
            r = (u % RING) * 16
            G.vmwait(f'u{u}')
            A(f'v_mfma_f32_16x16x32_bf16 v[{D0}:{D0+3}], a[{r}:{r+3}], v[{vBQ}:{vBQ+3}], 0')
            A(f'v_mfma_f32_16x16x32_bf16 v[{D1}:{D1+3}], a[{r+4}:{r+7}], v[{vBQ}:{vBQ+3}], 0')
            A(f'v_mfma_f32_16x16x32_bf16 v[{D0}:{D0+3}], a[{r+8}:{r+11}], v[{vBQ+4}:{vBQ+7}], v[{D0}:{D0+3}]')
            A(f'v_mfma_f32_16x16x32_bf16 v[{D1}:{D1+3}], a[{r+12}:{r+15}], v[{vBQ+4}:{vBQ+7}], v[{D1}:{D1+3}]')
            unit_loads(u + RING)
            if 2 <= t < 18 and not self.nowo: emit_wo(2 * (t - 2), 2 * (t - 2) + 2)
            if t in (7, 15, 23): G.stamp(16 + t // 8)
            if t == 27:
                A(f'v_mov_b32 v{T(5)}, 0')
                G.vmop(f'buffer_load_dword v{vCNT}, v{T(5)}, s[{rDBG}:{rDBG+3}], 0 offen sc1', 'cnt')
            if t > 0: kproc(t - 1)
        kproc(31)
        G.stamp(2)
        self.wave_allreduce('max', vMX, T(0))
        G.rbf(vM, vMX); A(f'v_mul_f32 v{vM}, {SCALE}, v{vM}'); G.rbf(vM)
        A(f'v_mul_f32 v{vNM}, {LOG2E}, v{vM}'); A(f'v_sub_f32 v{vNM}, 0, v{vNM}')
        A(f's_mov_b32 s{sT2}, {LOG2E}')
        A(f'v_mov_b32 v{vLS}, 0')
        for t in range(32):
            a, b = T(2 * (t & 1)), T(2 * (t & 1) + 1)
            A(f'v_lshlrev_b32 v{a}, 16, v{vS+t}'); A(f'v_and_b32 v{b}, 0xffff0000, v{vS+t}')
            A(f'v_fma_f32 v{a}, v{a}, s{sT2}, v{vNM}'); A(f'v_fma_f32 v{b}, v{b}, s{sT2}, v{vNM}')
            A(f'v_exp_f32 v{a}, v{a}'); A(f'v_exp_f32 v{b}, v{b}')
            A(f'v_add_f32 v{vLS}, v{vLS}, v{a}'); A(f'v_cvt_pk_bf16_f32 v{vS+t}, v{a}, v{b}'); A(f'v_add_f32 v{vLS}, v{vLS}, v{b}')
        self.wave_allreduce('add', vLS, T(0))
        A(f'v_mul_f32 v{vLS}, 0.125, v{vLS}') if False else A(f'v_mul_f32 v{vLS}, 0x3e000000, v{vLS}')
        A(f'v_mov_b32 v{T(0)}, v{vM}'); A(f'v_mov_b32 v{T(1)}, v{vLS}')
        G.vmop(f'buffer_store_dwordx2 v[{T(0)}:{T(1)}], v{vMLp}, s[{rWS}:{rWS+3}], 0 offen sc1', 'mlst')
        G.vmwait('cnt')
        A(f's_mov_b32 s{sSpin}, {self.spin}')
        A('L_cnt:')
        A(f'v_readfirstlane_b32 s{sT}, v{vCNT}')
        A(f's_cmp_ge_u32 s{sT}, 256'); A('s_cbranch_scc1 L_cnt_ok')
        A(f's_sub_u32 s{sSpin}, s{sSpin}, 1'); A('s_cbranch_scc1 L_cnt_ok')
        A(f'v_mov_b32 v{T(5)}, 0')
        A(f'buffer_load_dword v{vCNT}, v{T(5)}, s[{rDBG}:{rDBG+3}], 0 offen sc1'); A('s_waitcnt vmcnt(0)')
        A('s_branch L_cnt')
        A('L_cnt_ok:')
        G.stamp(3)
        def vprep(t):
            for ab in range(2):
                bs = vB + 8 * (t & 1) + 4 * ab
                for jj in range(4):
                    A(f'v_perm_b32 v{bs+jj}, v{vS+t}, v{vS+t}, v{vSEL+4*ab+jj}')
        def ml_compute():
            A(f'v_mov_b32 v{T(10)}, v{vML0}')
            for r_ in (1, 2, 4, 8): A(f'v_max_f32_dpp v{T(10)}, v{T(10)}, v{T(10)} row_ror:{r_} row_mask:0xf bank_mask:0xf')
            A(f'v_sub_f32 v{T(11)}, v{vML0}, v{T(10)}'); A(f'v_mul_f32 v{T(11)}, {LOG2E}, v{T(11)}'); A(f'v_exp_f32 v{T(11)}, v{T(11)}')
            A(f'v_mul_f32 v{T(11)}, v{T(11)}, v{vML1}')
            for r_ in (1, 2, 4, 8): A(f'v_add_f32_dpp v{T(11)}, v{T(11)}, v{T(11)} row_ror:{r_} row_mask:0xf bank_mask:0xf')
            A(f'v_sub_f32 v{T(10)}, v{vM}, v{T(10)}'); A(f'v_mul_f32 v{T(10)}, {LOG2E}, v{T(10)}'); A(f'v_exp_f32 v{T(10)}, v{T(10)}')
            A(f'v_rcp_f32 v{T(12)}, v{T(11)}'); A(f'v_mul_f32 v{vF}, v{T(10)}, v{T(12)}')
            A(f'v_cmp_u_f32 vcc, v{T(11)}, v{T(11)}')
        vprep(0)
        for t in range(32):
            u = 32 + t
            r = (u % RING) * 16
            G.vmwait(f'u{u}')
            bs = vB + 8 * (t & 1)
            A(f'v_mfma_f32_16x16x32_bf16 v[{vO}:{vO+3}], a[{r}:{r+3}], v[{bs}:{bs+3}], v[{vO}:{vO+3}]')
            A(f'v_mfma_f32_16x16x32_bf16 v[{vO+4}:{vO+7}], a[{r+4}:{r+7}], v[{bs}:{bs+3}], v[{vO+4}:{vO+7}]')
            A(f'v_mfma_f32_16x16x32_bf16 v[{vO}:{vO+3}], a[{r+8}:{r+11}], v[{bs+4}:{bs+7}], v[{vO}:{vO+3}]')
            A(f'v_mfma_f32_16x16x32_bf16 v[{vO+4}:{vO+7}], a[{r+12}:{r+15}], v[{bs+4}:{bs+7}], v[{vO+4}:{vO+7}]')
            if u + RING < 64: unit_loads(u + RING)
            if t < 17 and not self.norole: emit_role_loads(t)
            if t in (7, 15, 23): G.stamp(20 + t // 8)
            if t == 27:
                A(f's_cmp_eq_u32 s{sRole}, 1'); A('s_cbranch_scc0 L_pk1')
                for s_ in range(4):
                    for jj in range(4):
                        A(f'v_perm_b32 v{vW1+4*s_+jj}, v{vR+8*s_+2*jj+1}, v{vR+8*s_+2*jj}, s{sPK}')
                A('L_pk1:')
            if t == 17:
                G.vmop(f'buffer_load_dwordx2 v[{vML0}:{vML1}], v{vMLq}, s[{rWS}:{rWS+3}], 0 offen sc1', 'mlq')
            if t == 25:
                G.vmwait('mlq')
                A(f's_mov_b32 s{sSpin}, {self.spin}')
                A('L_ml:')
                ml_compute()
                A('s_cbranch_vccz L_ml_ok')
                A(f's_sub_u32 s{sSpin}, s{sSpin}, 1'); A('s_cbranch_scc1 L_ml_ok')
                A(f'buffer_load_dwordx2 v[{vML0}:{vML1}], v{vMLq}, s[{rWS}:{rWS+3}], 0 offen sc1'); A('s_waitcnt vmcnt(0)')
                A('s_branch L_ml')
                A('L_ml_ok:')
            if t < 31: vprep(t + 1)
        G.stamp(4)
        for i in range(4): A(f'v_add_f32_dpp v{T(i)}, v{vO+4+i}, v{vO+i} row_ror:8 row_mask:0xf bank_mask:0xf')
        for i in range(4): A(f'v_mul_f32 v{T(i)}, v{vF}, v{T(i)}')
        for i in range(4): A(f'ds_write_b32 v{vOPA}, v{T(i)} offset:{L_OP + 32*i}')
        A(f's_lshl_b32 s{sT}, s{sW}, 9'); A(f'v_lshlrev_b32 v{T(10)}, 2, v{vL}'); A(f'v_add_u32 v{T(10)}, s{sT}, v{T(10)}')
        A(f'v_lshrrev_b32 v{T(11)}, 3, v{vN}'); A(f'v_lshlrev_b32 v{T(11)}, 8, v{T(11)}'); A(f'v_lshl_add_u32 v{T(11)}, v{vG}, 6, v{T(11)}'); A(f'v_add_u32 v{T(11)}, s{sT}, v{T(11)}')
        A('s_waitcnt lgkmcnt(0)'); A('s_barrier')
        for w in range(4): A(f'ds_read_b64 v[{T(2*w+2)}:{T(2*w+3)}], v{vA3} offset:{L_OP + 512*w}')
        A('s_waitcnt lgkmcnt(0)')
        A(f'v_pk_add_f32 v[{T(2)}:{T(3)}], v[{T(2)}:{T(3)}], v[{T(4)}:{T(5)}]'); A(f'v_pk_add_f32 v[{T(6)}:{T(7)}], v[{T(6)}:{T(7)}], v[{T(8)}:{T(9)}]')
        A(f'v_pk_add_f32 v[{T(2)}:{T(3)}], v[{T(2)}:{T(3)}], v[{T(6)}:{T(7)}]')
        A(f'v_cvt_pk_bf16_f32 v{T(4)}, v{T(2)}, v{T(3)}')
        A(f'v_lshlrev_b32 v{T(5)}, 16, v{T(4)}'); A(f'v_and_b32 v{T(6)}, 0xffff0000, v{T(4)}')
        A(f'v_sub_f32 v{T(5)}, v{T(2)}, v{T(5)}'); A(f'v_sub_f32 v{T(6)}, v{T(3)}, v{T(6)}')
        A(f'ds_write_b32 v{T(10)}, v{T(4)} offset:{L_OH}')
        A(f'v_cvt_pk_bf16_f32 v{T(5)}, v{T(5)}, v{T(6)}')
        A(f'ds_write_b32 v{T(10)}, v{T(5)} offset:{L_OH+256}')
        A('s_waitcnt lgkmcnt(0)')
        for k in range(4): A(f'ds_read_b128 v[{vXP+4*k}:{vXP+4*k+3}], v{T(11)} offset:{L_OH+16*k}')
        A('s_waitcnt lgkmcnt(0)')
        delta_steps(32, vDQ, None)
        for i in range(4): A(f'v_add_f32_dpp v{T(i)}, v{vDQ+i}, v{vDQ+i} row_ror:8 row_mask:0xf bank_mask:0xf')
        G.vmop(f'buffer_store_dwordx4 v[{T(0)}:{T(3)}], v{vC1}, s[{rWS}:{rWS+3}], 0 offen sc1', 'c1st')
        G.stamp(5)
        A(f's_cmp_eq_u32 s{sRole}, 1'); A('s_cbranch_scc1 L_m1')
        A(f's_cmp_eq_u32 s{sRole}, 2'); A('s_cbranch_scc0 L_fin')
        A(f's_cmp_eq_u32 s{sW}, 0'); A('s_cbranch_scc0 L_fin')
        def gather_reduce(nl, voff, lab):
            A(f's_mov_b32 s{sSpin}, {self.spin}')
            A(f'{lab}:')
            for k in range(nl):
                if k % 4 == 0: A(f's_mov_b32 s{sT}, {(k//4)*4096}')
                A(f'buffer_load_dwordx4 v[{vR+4*k}:{vR+4*k+3}], v{voff}, s[{rWS}:{rWS+3}], s{sT} offen offset:{(k%4)*1024} sc1')
            k = 1
            A(f's_waitcnt vmcnt({nl-2})')
            for c in (0, 2): A(f'v_pk_add_f32 v[{T(c)}:{T(c+1)}], v[{vR+c}:{vR+c+1}], v[{vR+4+c}:{vR+4+c+1}]')
            for k in range(2, nl):
                A(f's_waitcnt vmcnt({nl-1-k})')
                for c in (0, 2): A(f'v_pk_add_f32 v[{T(c)}:{T(c+1)}], v[{T(c)}:{T(c+1)}], v[{vR+4*k+c}:{vR+4*k+c+1}]')
            A(f'v_cmp_u_f32 vcc, v{T(0)}, v{T(1)}'); A(f'v_cmp_u_f32 s[{sM}:{sM+1}], v{T(2)}, v{T(3)}')
            A(f's_or_b64 vcc, vcc, s[{sM}:{sM+1}]')
            A(f's_cbranch_vccz {lab}_ok')
            A(f's_sub_u32 s{sSpin}, s{sSpin}, 1'); A(f's_cbranch_scc0 {lab}')
            A(f'{lab}_ok:')
            A(f'v_permlane32_swap_b32 v{T(0)}, v{T(2)}'); A(f'v_permlane32_swap_b32 v{T(1)}, v{T(3)}')
            A(f'v_add_f32 v{T(0)}, v{T(0)}, v{T(2)}'); A(f'v_add_f32 v{T(1)}, v{T(1)}, v{T(3)}')
            A(f'v_permlane16_swap_b32 v{T(0)}, v{T(1)}'); A(f'v_add_f32 v{T(0)}, v{T(0)}, v{T(1)}')
            A(f'v_add_f32_dpp v{T(0)}, v{T(0)}, v{T(0)} row_ror:4 row_mask:0xf bank_mask:0xf')
            A(f'v_add_f32_dpp v{T(0)}, v{T(0)}, v{T(0)} row_ror:8 row_mask:0xf bank_mask:0xf')
        A(f'v_lshlrev_b32 v{vXV}, 16, v{vXV}'); A(f'v_lshlrev_b32 v{vB2V}, 16, v{vB2V}')
        gather_reduce(8, vHOFF, 'L_g1')
        G.stamp(6)
        G.rbf(T(0)); A(f'v_add_f32 v{T(0)}, v{vXV}, v{T(0)}'); G.rbf(vHV, T(0))
        A(f'buffer_store_dword v{vHV}, v{vRS}, s[{rWS}:{rWS+3}], 0 offen sc1')
        G.stamp(7)
        gather_reduce(7, vWOFF2, 'L_g2')
        G.stamp(8)
        G.rbf(T(0)); A(f'v_add_f32 v{T(0)}, v{vB2V}, v{T(0)}'); G.rbf(T(0)); A(f'v_add_f32 v{T(0)}, v{vHV}, v{T(0)}')
        A(f'v_cvt_pk_bf16_f32 v{T(0)}, v{T(0)}, v{T(0)}')
        A(f'buffer_store_short v{T(0)}, v{vOUTA}, s[{rOUT}:{rOUT+3}], 0 offen')
        A('s_branch L_fin')
        A('L_m1:')
        A(f's_lshl_b32 s{sT}, s{sW}, 9'); A(f'v_lshrrev_b32 v{T(0)}, 5, v{vL}'); A(f'v_lshlrev_b32 v{T(0)}, 8, v{T(0)}'); A(f'v_and_b32 v{T(1)}, 31, v{vL}')
        A(f'v_lshl_add_u32 v{T(0)}, v{T(1)}, 3, v{T(0)}'); A(f'v_add_u32 v{vA1}, s{sT}, v{T(0)}')
        A(f'v_and_b32 v{T(0)}, 1, v{vN}'); A(f'v_lshlrev_b32 v{T(0)}, 8, v{T(0)}'); A(f'v_lshl_add_u32 v{T(0)}, v{vG}, 4, v{T(0)}'); A(f'v_add_u32 v{vA2}, s{sT}, v{T(0)}')
        A(f's_lshl_b32 s{sT}, s{sW}, 7'); A(f'v_lshlrev_b32 v{T(0)}, 2, v{vN}'); A(f'v_add_u32 v{vA3}, s{sT}, v{T(0)}')
        A(f'v_lshrrev_b32 v{T(0)}, 3, v{vN}'); A(f'v_lshlrev_b32 v{T(0)}, 6, v{T(0)}'); A(f'v_and_b32 v{T(1)}, 3, v{vN}'); A(f'v_lshl_add_u32 v{T(1)}, v{vG}, 2, v{T(1)}')
        A(f'v_lshl_add_u32 v{vA4}, v{T(1)}, 2, v{T(0)}')
        A(f'v_lshlrev_b32 v{vB1}, 16, v{vB1}')
        A(f's_mov_b32 s{sSpin}, {self.spin}')
        H = [vR + i for i in range(16)]
        A('L_g3:')
        for kk in range(4):
            A(f's_add_u32 s{sT}, s{sW}, {kk}'); A(f's_and_b32 s{sT}, s{sT}, 3'); A(f's_lshl_b32 s{sT}, s{sT}, 9')
            A(f'buffer_load_dwordx4 v[{vR+4*kk}:{vR+4*kk+3}], v{vHOFF}, s[{rWS}:{rWS+3}], s{sT} offen sc1')
        A('s_waitcnt vmcnt(0)')
        A(f'v_pk_add_f32 v[{T(0)}:{T(1)}], v[{H[0]}:{H[1]}], v[{H[2]}:{H[3]}]')
        for k in range(2, 8): A(f'v_pk_add_f32 v[{T(0)}:{T(1)}], v[{T(0)}:{T(1)}], v[{H[2*k]}:{H[2*k+1]}]')
        A(f'v_add_f32 v{T(0)}, v{T(0)}, v{T(1)}')
        A(f'v_cmp_u_f32 vcc, v{T(0)}, v{T(0)}')
        A('s_cbranch_vccz L_g3_ok')
        A(f's_sub_u32 s{sSpin}, s{sSpin}, 1'); A('s_cbranch_scc0 L_g3')
        A('L_g3_ok:')
        G.stamp(6)
        self.half_allreduce('add', T(0), T(1))
        A(f'v_mul_f32 v{T(0)}, 0x3b000000, v{T(0)}')
        A(f'v_sub_f32 v{T(2)}, v{H[0]}, v{T(0)}'); A(f'v_mul_f32 v{T(3)}, v{T(2)}, v{T(2)}')
        A(f'v_sub_f32 v{T(4)}, v{H[1]}, v{T(0)}'); A(f'v_mul_f32 v{T(5)}, v{T(4)}, v{T(4)}')
        for k in range(2, 16, 2):
            A(f'v_sub_f32 v{T(2)}, v{H[k]}, v{T(0)}'); A(f'v_sub_f32 v{T(4)}, v{H[k+1]}, v{T(0)}')
            A(f'v_fmac_f32 v{T(3)}, v{T(2)}, v{T(2)}'); A(f'v_fmac_f32 v{T(5)}, v{T(4)}, v{T(4)}')
        A(f'v_add_f32 v{T(3)}, v{T(3)}, v{T(5)}')
        self.half_allreduce('add', T(3), T(1))
        self.ln_finish(T(0), T(3), T(8), T(9), 1.0 / 512)
        Y = H[0:4]
        self.ln_apply(Y, T(8), T(9))
        A(f'v_cvt_pk_bf16_f32 v{T(4)}, v{Y[0]}, v{Y[1]}'); A(f'v_cvt_pk_bf16_f32 v{T(5)}, v{Y[2]}, v{Y[3]}')
        A(f'ds_write_b64 v{vA1}, v[{T(4)}:{T(5)}] offset:{L_YB}')
        A('s_waitcnt lgkmcnt(0)')
        for s_ in range(4): A(f'ds_read_b128 v[{vXP+4*s_}:{vXP+4*s_+3}], v{vA2} offset:{L_YB+64*s_}')
        for s_ in range(4):
            A(f's_waitcnt lgkmcnt({3-s_})')
            c = '0' if s_ == 0 else f'v[{vDQ}:{vDQ+3}]'
            A(f'v_mfma_f32_16x16x32_bf16 v[{vDQ}:{vDQ+3}], v[{vXP+4*s_}:{vXP+4*s_+3}], v[{vW1+4*s_}:{vW1+4*s_+3}], {c}')
        A(f'ds_write_b32 v{vA3}, v{vDQ} offset:{L_TP}'); A(f'ds_write_b32 v{vA3}, v{vDQ+1} offset:{L_TP+64}')
        A('s_waitcnt lgkmcnt(0)'); A('s_barrier')
        for w in range(4): A(f'ds_read_b32 v{T(w)}, v{vA4} offset:{L_TP+128*w}')
        A('s_waitcnt lgkmcnt(0)')
        A(f'v_add_f32 v{T(0)}, v{T(0)}, v{T(1)}'); A(f'v_add_f32 v{T(2)}, v{T(2)}, v{T(3)}'); A(f'v_add_f32 v{T(0)}, v{T(0)}, v{T(2)}')
        G.rbf(T(0)); A(f'v_add_f32 v{T(0)}, v{vB1}, v{T(0)}'); G.rbf(T(0))
        import struct, math
        f2u = lambda f: struct.unpack('<I', struct.pack('<f', f))[0]
        K0 = -2 * math.log2(math.e) * math.sqrt(2 / math.pi); K1 = K0 * 0.044715
        A(f'v_mul_f32 v{T(1)}, v{T(0)}, v{T(0)}'); A(f'v_mov_b32 v{T(2)}, {hex(f2u(K0))}'); A(f'v_fmac_f32 v{T(2)}, {hex(f2u(K1))}, v{T(1)}')
        A(f'v_mul_f32 v{T(1)}, v{T(0)}, v{T(2)}'); A(f'v_exp_f32 v{T(1)}, v{T(1)}'); A(f'v_add_f32 v{T(1)}, 1.0, v{T(1)}'); A(f'v_rcp_f32 v{T(1)}, v{T(1)}')
        A(f'v_mul_f32 v{T(0)}, v{T(0)}, v{T(1)}'); A(f'v_cvt_pk_bf16_f32 v{vGA}, v{T(0)}, v{T(0)}')
        for ii in range(4):
            bs = vB + 4 * ii
            for jj in range(4):
                A(f'v_and_b32_dpp v{bs+jj}, v{vGA}, v{vMASK+jj} quad_perm:[{ii},{ii},{ii},{ii}] row_mask:0xf bank_mask:0xf')
        for ii in range(4):
            bs = vB + 4 * ii
            c = '0' if ii == 0 else f'v[{vDQ}:{vDQ+3}]'
            A(f'v_mfma_f32_16x16x32_bf16 v[{vDQ}:{vDQ+3}], v[{vW2+4*ii}:{vW2+4*ii+3}], v[{bs}:{bs+3}], {c}')
        A(f'buffer_store_dwordx4 v[{vDQ}:{vDQ+3}], v{vRS}, s[{rWS}:{rWS+3}], 0 offen sc1')
        G.stamp(7)
        A('L_fin:')
        if self.diag:
            A(f's_lshl_b32 s{sT}, s2, 2'); A(f's_add_u32 s{sT}, s{sT}, s{sW}'); A(f's_lshl_b32 s{sT}, s{sT}, 7'); A(f's_add_u32 s{sT}, s{sT}, {WS_DIAG}')
            A('s_memrealtime s[96:97]'); A('s_getreg_b32 s98, hwreg(HW_REG_XCC_ID)'); A('s_waitcnt lgkmcnt(0)')
            A('v_writelane_b32 v251, s96, 14'); A('v_writelane_b32 v251, s98, 15')
            A(f'v_lshlrev_b32 v{T(0)}, 2, v{vL}'); A(f'v_add_u32 v{T(0)}, s{sT}, v{T(0)}')
            A(f'v_mov_b32 v{T(1)}, {OOB}'); A(f'v_cmp_gt_u32 vcc, 32, v{vL}'); A(f'v_cndmask_b32 v{T(0)}, v{T(1)}, v{T(0)}, vcc')
            A(f'buffer_store_dword v251, v{T(0)}, s[{rWS}:{rWS+3}], 0 offen')
            if self.kw.get('st3'):
                A(f's_lshl_b32 s{sT}, s2, 2'); A(f's_add_u32 s{sT}, s{sT}, s{sW}'); A(f's_lshl_b32 s{sT}, s{sT}, 8'); A(f's_add_u32 s{sT}, s{sT}, {WS_DIAG + 0x20000}')
                A(f'v_lshlrev_b32 v{T(0)}, 2, v{vL}'); A(f'v_add_u32 v{T(0)}, s{sT}, v{T(0)}')
                A(f'buffer_store_dword v252, v{T(0)}, s[{rWS}:{rWS+3}], 0 offen')
        A('L_end:')
        A('s_endpgm')
        return self.wrap()

    def ln_finish(self, mean, ss, om, orstd, inv_n):
        A = self.A
        import struct
        f2u = lambda f: struct.unpack('<I', struct.pack('<f', f))[0]
        A(f'v_mul_f32 v{ss}, {hex(f2u(inv_n))}, v{ss}'); self.rbf(ss)
        A(f'v_add_f32 v{ss}, {hex(f2u(1e-5))}, v{ss}'); self.rbf(ss)
        A(f'v_sqrt_f32 v{ss}, v{ss}'); self.rbf(ss)
        A(f'v_rcp_f32 v{orstd}, v{ss}')
        self.rbf(om, mean)
    def ln_stats(self, X, om, orstd, t0, t1, inv_n, red):
        A = self.A
        import struct
        f2u = lambda f: struct.unpack('<I', struct.pack('<f', f))[0]
        A(f'v_add_f32 v{t0}, v{X[0]}, v{X[1]}')
        for x in X[2:]: A(f'v_add_f32 v{t0}, v{t0}, v{x}')
        red('add', t0, t1)
        A(f'v_mul_f32 v{t0}, {hex(f2u(inv_n))}, v{t0}')
        A(f'v_sub_f32 v{t1}, v{X[0]}, v{t0}'); A(f'v_mul_f32 v{orstd}, v{t1}, v{t1}')
        for x in X[1:]:
            A(f'v_sub_f32 v{t1}, v{x}, v{t0}'); A(f'v_fmac_f32 v{orstd}, v{t1}, v{t1}')
        red('add', orstd, t1)
        A(f'v_mov_b32 v{t1}, v{orstd}')
        self.ln_finish(t0, t1, om, orstd, inv_n)
    def ln_apply(self, X, m, rstd):
        A = self.A
        for k in range(0, len(X), 2):
            A(f'v_sub_f32 v{X[k]}, v{X[k]}, v{m}'); A(f'v_sub_f32 v{X[k+1]}, v{X[k+1]}, v{m}')
            A(f'v_cvt_pk_bf16_f32 v{X[k+1]}, v{X[k]}, v{X[k+1]}')
            A(f'v_lshlrev_b32 v{X[k]}, 16, v{X[k+1]}'); A(f'v_and_b32 v{X[k+1]}, 0xffff0000, v{X[k+1]}')
            A(f'v_mul_f32 v{X[k]}, v{X[k]}, v{rstd}'); A(f'v_mul_f32 v{X[k+1]}, v{X[k+1]}, v{rstd}')

    def finish_debug(self, regs):
        raise NotImplementedError

    def wrap(self):
        body = hz.fix(self.L)
        H = []
        H.append(f'; @launch grid=(256,1,1) block=(256,1,1) lds={LDS_SIZE}')
        H.append('.amdgcn_target "amdgcn-amd-amdhsa--gfx950"')
        H.append('.text'); H.append(f'.globl {KN}'); H.append('.p2align 8'); H.append(f'.type {KN},@function'); H.append(f'{KN}:')
        H += body
        H.append('.section .rodata,"a"'); H.append('.p2align 6'); H.append(f'.amdhsa_kernel {KN}')
        H.append('  .amdhsa_next_free_vgpr 512'); H.append('  .amdhsa_next_free_sgpr 102'); H.append('  .amdhsa_accum_offset 256')
        H.append('  .amdhsa_group_segment_fixed_size 0'); H.append('  .amdhsa_kernarg_size 104'); H.append('  .amdhsa_user_sgpr_count 2')
        H.append('  .amdhsa_user_sgpr_kernarg_segment_ptr 1'); H.append('  .amdhsa_system_sgpr_workgroup_id_x 1')
        H.append('.end_amdhsa_kernel')
        return '\n'.join(H) + '\n'

if __name__ == '__main__':
    import ast
    kw = eval('dict(%s)' % (sys.argv[2] if len(sys.argv) > 2 else ''))
    open(sys.argv[1], 'w').write(Gen(**kw).gen())
```

```python
import sys
import hz
KN = 'sequential_preLN__mha_block_cached__mixer_channel_mlp__decode_kernel'

WS_ML = 0x0
WS_H  = 0x2000
WS_C1 = 0x10000
WS_C2 = 0x90000
WS_SIZE = 0x100000
WS_DIAG = 0x100000
OOB = 0x7ff00000

L_XN = 0
L_QP = 4096
L_QB = 6144
L_OP = 7168
L_OH = 9216
L_YB = 11264
L_TP = 13312
L_DUMMY = 13824
LDS_SIZE = 16384

SCALE = 0x3DB504F3
LOG2E = 0x3FB8AA3B

class Gen:
    def __init__(self, diag=False, nt='nt', wnt='', spin=1 << 15, ring=8, pre=6, stop=None, nowo=False, nowq=False, norole=False, **kw):
        self.L = []
        self.vm = []
        self.done = -1
        self.diag = diag; self.nt = nt; self.wnt = wnt; self.spin = spin
        self.ring = ring; self.pre = pre; self.stop = stop
        self.nstamp = 0; self.n3 = 0
        self.nowo = nowo; self.nowq = nowq; self.norole = norole; self.kw = kw
    def A(self, s): self.L.append('  ' + s if not s.endswith(':') else s)
    def vmop(self, s, tag, optional=False):
        self.A(s); self.vm.append((tag, optional))
        if self.kw.get('st3') and self.n3 < 64 and not optional:
            self.A('s_memrealtime s[96:97]'); self.A('s_waitcnt lgkmcnt(0)'); self.A('v_writelane_b32 v252, s96, %d' % self.n3); self.n3 += 1
        out = len(self.vm) - 1 - self.done
        assert out <= 63, ('too many outstanding', out, tag)
    def vmwait(self, tag):
        idx = max(i for i, (t, o) in enumerate(self.vm) if t == tag)
        n = sum(1 for (t, o) in self.vm[idx + 1:] if not o)
        assert n <= 63
        self.A('s_waitcnt vmcnt(%d)' % n)
        self.done = max(self.done, idx)
    def vmdrain(self):
        self.A('s_waitcnt vmcnt(0)'); self.done = len(self.vm) - 1
    def stamp(self, k):
        if self.diag:
            self.A('s_memrealtime s[96:97]'); self.A('s_waitcnt lgkmcnt(0)')
            self.A('v_mov_b32 v250, s96'); self.A('v_writelane_b32 v251, s96, %d' % k)

    def srd(self, r, lo, hi, size, off=None):
        A = self.A
        if off is None:
            A(f's_mov_b32 s{r}, s{lo}'); A(f's_and_b32 s{r+1}, s{hi}, 0xffff')
        else:
            A(f's_add_u32 s{r}, s{lo}, {off}'); A(f's_addc_u32 s{r+1}, s{hi}, 0'); A(f's_and_b32 s{r+1}, s{r+1}, 0xffff')
        A(f's_mov_b32 s{r+2}, {size}'); A(f's_mov_b32 s{r+3}, 0x20000')

    def wave_allreduce(self, op, v, t):
        A = self.A
        for r in (1, 2, 4, 8):
            A(f'v_{op}_f32_dpp v{v}, v{v}, v{v} row_ror:{r} row_mask:0xf bank_mask:0xf')
        A(f'v_mov_b32 v{t}, v{v}'); A(f'v_permlane16_swap_b32 v{v}, v{t}'); A(f'v_{op}_f32 v{v}, v{v}, v{t}')
        A(f'v_mov_b32 v{t}, v{v}'); A(f'v_permlane32_swap_b32 v{v}, v{t}'); A(f'v_{op}_f32 v{v}, v{v}, v{t}')
    def half_allreduce(self, op, v, t):
        A = self.A
        for r in (1, 2, 4, 8):
            A(f'v_{op}_f32_dpp v{v}, v{v}, v{v} row_ror:{r} row_mask:0xf bank_mask:0xf')
        A(f'v_mov_b32 v{t}, v{v}'); A(f'v_permlane16_swap_b32 v{v}, v{t}'); A(f'v_{op}_f32 v{v}, v{v}, v{t}')
    def rbf(self, v, src=None):
        A = self.A
        s = v if src is None else src
        A(f'v_cvt_pk_bf16_f32 v{v}, v{s}, v{s}'); A(f'v_and_b32 v{v}, 0xffff0000, v{v}')

    def gen(self):
        A = self.A; G = self
        RING = self.ring; nt = self.nt; wnt = self.wnt
        sW = 3
        pX, pK, pV, pWQ, pWO, pW1, pB1, pW2, pB2, pOUT, pDBG, pWS = 4, 6, 8, 10, 12, 16, 18, 20, 22, 24, 26, 28
        rK, rV, rWQ, rWO, rWS, rDBG, rX, rW1, rW2, rB1, rB2, rOUT = 32, 36, 40, 44, 48, 52, 56, 60, 64, 68, 72, 76
        sOff, sT, sH, sB, sS, sBH, sRole, sSpin, sT2, sU = 80, 81, 82, 83, 84, 85, 86, 87, 88, 89
        sM = 90
        sPK = 92
        vL, vN, vG = 1, 2, 3
        vK, vV, vWQ, vWO, vC1, vMLp, vMLq, vRS = 4, 5, 6, 7, 8, 9, 10, 11
        vSEL = 12
        vMASK = 20
        vBQ = 24
        vS = 32
        vD = 64
        vO = 80
        vB = 88
        vXP = 104
        vDQ = 120
        vT = 124
        vMX, vLS, vM, vNM, vF, vML0, vML1, vCNT = 140, 141, 142, 143, 208, 210, 211, 212
        vW1 = 144
        vW2 = 160
        vR = 176
        vB1, vXV, vB2V, vHV, vOPA, vSENT, vOUTA = 213, 214, 215, 216, 217, 220, 218
        vA1, vA2, vA3, vA4 = 224, 225, 226, 227
        vXR = 228
        vWOFF1, vWOFF2, vB1OFF, vHOFF, vGA = 232, 233, 234, 235, 236
        aW = 128
        T = lambda i: vT + i

        A('s_cmp_ge_u32 s2, 256'); A('s_cbranch_scc1 L_end')
        A(f's_load_dwordx16 s[4:19], s[0:1], 0'); A('s_load_dwordx8 s[20:27], s[0:1], 64'); A('s_load_dwordx2 s[28:29], s[0:1], 96')
        if self.diag:
            A('v_mov_b32 v251, 0')
            G.stamp(0)
        A(f'v_and_b32 v{vL}, 63, v0'); A(f'v_lshrrev_b32 v{T(0)}, 6, v0'); A(f'v_and_b32 v{vN}, 15, v0')
        A(f'v_readfirstlane_b32 s{sW}, v{T(0)}')
        A(f'v_lshrrev_b32 v{vG}, 4, v{vL}')
        A(f's_and_b32 s{sH}, s2, 31'); A(f's_lshr_b32 s{sB}, s2, 5'); A(f's_and_b32 s{sB}, s{sB}, 1'); A(f's_lshr_b32 s{sS}, s2, 6'); A(f's_and_b32 s{sBH}, s2, 63')
        A(f's_lshl_b32 s{sT}, s{sW}, 12')
        A(f'v_lshrrev_b32 v{T(0)}, 1, v{vN}'); A(f'v_lshlrev_b32 v{T(0)}, 8, v{T(0)}')
        A(f'v_and_b32 v{T(1)}, 1, v{vN}'); A(f'v_lshl_add_u32 v{T(0)}, v{T(1)}, 6, v{T(0)}')
        A(f'v_lshl_add_u32 v{T(0)}, v{vG}, 4, v{T(0)}'); A(f'v_add_u32 v{vK}, s{sT}, v{T(0)}')
        A(f'v_lshlrev_b32 v{T(0)}, 9, v{vG}'); A(f'v_lshl_add_u32 v{T(0)}, v{vN}, 4, v{T(0)}'); A(f'v_add_u32 v{vV}, s{sT}, v{T(0)}')
        A(f's_lshl_b32 s{sT}, s{sW}, 20'); A(f'v_lshlrev_b32 v{T(0)}, 18, v{vG}'); A(f'v_lshl_add_u32 v{T(0)}, v{vN}, 4, v{T(0)}'); A(f'v_add_u32 v{vWQ}, s{sT}, v{T(0)}')
        A(f's_lshl_b32 s{sT}, s{sB}, 10'); A(f'v_lshlrev_b32 v{T(2)}, 4, v{vL}'); A(f'v_add_u32 v{T(2)}, s{sT}, v{T(2)}')
        A(f's_lshl_b32 s{sT}, s{sB}, 5'); A(f's_lshl_b32 s{sT2}, s{sW}, 3'); A(f's_add_u32 s{sT}, s{sT}, s{sT2}')
        A(f's_lshl_b32 s{sT}, s{sT}, 13')
        A(f's_lshl_b32 s{sT2}, s{sH}, 2'); A(f's_add_u32 s{sT2}, s{sT2}, s{sS}'); A(f's_lshl_b32 s{sT2}, s{sT2}, 6')
        A(f's_add_u32 s{sT}, s{sT}, s{sT2}'); A(f's_add_u32 s{sT}, s{sT}, {WS_C1}')
        A(f'v_lshlrev_b32 v{T(0)}, 1, v{vG}'); A(f'v_lshrrev_b32 v{T(1)}, 2, v{vN}'); A(f'v_add_u32 v{T(0)}, v{T(0)}, v{T(1)}')
        A(f'v_lshlrev_b32 v{T(0)}, 13, v{T(0)}'); A(f'v_and_b32 v{T(1)}, 3, v{vN}'); A(f'v_lshl_add_u32 v{T(0)}, v{T(1)}, 4, v{T(0)}')
        A(f'v_add_u32 v{T(0)}, s{sT}, v{T(0)}')
        A(f'v_mov_b32 v{T(1)}, {OOB}'); A(f'v_cmp_gt_u32 vcc, 8, v{vN}')
        A(f'v_cndmask_b32 v{vC1}, v{T(1)}, v{T(0)}, vcc')
        A(f's_lshl_b32 s{sT}, s{sBH}, 7'); A(f's_lshl_b32 s{sT2}, s{sS}, 2'); A(f's_add_u32 s{sT2}, s{sT2}, s{sW}'); A(f's_lshl_b32 s{sT2}, s{sT2}, 3')
        A(f's_add_u32 s{sT2}, s{sT2}, s{sT}'); A(f'v_mov_b32 v{T(0)}, s{sT2}'); A(f'v_mov_b32 v{T(1)}, {OOB}')
        A(f'v_cmp_eq_u32 vcc, 0, v{vL}'); A(f'v_cndmask_b32 v{vMLp}, v{T(1)}, v{T(0)}, vcc')
        A(f'v_lshlrev_b32 v{T(0)}, 3, v{vN}'); A(f'v_add_u32 v{vMLq}, s{sT}, v{T(0)}')
        A(f's_mov_b32 s{sRole}, 0')
        A(f's_and_b32 s{sT}, s2, 7'); A(f's_mul_i32 s{sT}, s{sT}, 14'); A(f's_lshr_b32 s{sT2}, s2, 3'); A(f's_add_u32 s{sU}, s{sT}, s{sT2}')
        A(f's_cmp_lt_u32 s2, 112'); A(f's_cselect_b32 s{sRole}, 1, 0')
        A(f's_sub_u32 s{sT}, s2, 128'); A(f's_cmp_lt_u32 s{sT}, 64'); A(f's_cselect_b32 s{sRole}, 2, s{sRole}'); A(f's_cselect_b32 s{sU}, s{sT}, s{sU}')
        for r_ in (vRS, vWOFF1, vWOFF2, vB1OFF, vHOFF, vOUTA): A(f'v_mov_b32 v{r_}, {OOB}')
        A(f's_cmp_eq_u32 s{sRole}, 1'); A('s_cbranch_scc0 L_r1')
        A(f'v_lshrrev_b32 v{T(0)}, 3, v{vN}'); A(f'v_lshlrev_b32 v{T(0)}, 5, v{T(0)}')
        A(f'v_lshl_add_u32 v{T(0)}, v{vG}, 1, v{T(0)}'); A(f'v_bfe_u32 v{T(1)}, v{vN}, 2, 1'); A(f'v_add_u32 v{T(0)}, v{T(0)}, v{T(1)}')
        A(f's_lshl_b32 s{sT}, s{sW}, 3'); A(f'v_add_u32 v{T(0)}, s{sT}, v{T(0)}')
        A(f'v_mul_u32_u24 v{T(0)}, {112*64}, v{T(0)}'); A(f'v_and_b32 v{T(1)}, 3, v{vN}'); A(f'v_lshl_add_u32 v{T(0)}, v{T(1)}, 4, v{T(0)}')
        A(f's_lshl_b32 s{sT}, s{sU}, 6'); A(f's_add_u32 s{sT}, s{sT}, {WS_C2}'); A(f'v_add_u32 v{vRS}, s{sT}, v{T(0)}')
        A(f'v_lshrrev_b32 v{T(0)}, 1, v{vG}'); A(f'v_lshlrev_b32 v{T(0)}, 2, v{T(0)}'); A(f'v_and_b32 v{T(1)}, 1, v{vG}'); A(f'v_lshl_add_u32 v{T(0)}, v{T(1)}, 1, v{T(0)}')
        A(f's_lshl_b32 s{sT}, s{sW}, 7'); A(f'v_add_u32 v{T(0)}, s{sT}, v{T(0)}'); A(f'v_mul_u32_u24 v{T(0)}, 3584, v{T(0)}')
        A(f's_lshl_b32 s{sT}, s{sU}, 5'); A(f'v_lshl_add_u32 v{T(0)}, v{vN}, 1, v{T(0)}'); A(f'v_add_u32 v{vWOFF1}, s{sT}, v{T(0)}')
        A(f's_lshl_b32 s{sT}, s{sU}, 14'); A(f's_lshl_b32 s{sT2}, s{sW}, 8'); A(f's_add_u32 s{sT}, s{sT}, s{sT2}')
        A(f'v_lshlrev_b32 v{T(0)}, 12, v{vG}'); A(f'v_lshl_add_u32 v{T(0)}, v{vN}, 4, v{T(0)}'); A(f'v_add_u32 v{vWOFF2}, s{sT}, v{T(0)}')
        A(f's_lshl_b32 s{sT}, s{sU}, 5'); A(f'v_and_b32 v{T(0)}, 3, v{vN}'); A(f'v_lshl_add_u32 v{T(0)}, v{vG}, 2, v{T(0)}'); A(f'v_lshlrev_b32 v{T(0)}, 1, v{T(0)}'); A(f'v_add_u32 v{vB1OFF}, s{sT}, v{T(0)}')
        A(f'v_lshrrev_b32 v{T(0)}, 5, v{vL}'); A(f'v_lshlrev_b32 v{T(0)}, 11, v{T(0)}'); A(f'v_and_b32 v{T(1)}, 31, v{vL}'); A(f'v_lshl_add_u32 v{T(0)}, v{T(1)}, 4, v{T(0)}')
        A(f'v_add_u32 v{vHOFF}, {WS_H}, v{T(0)}')
        A('s_branch L_r2')
        A('L_r1:')
        A(f's_cmp_eq_u32 s{sRole}, 2'); A('s_cbranch_scc0 L_r2')
        A(f's_cmp_eq_u32 s{sW}, 0'); A('s_cbranch_scc0 L_r2')
        A(f's_lshl_b32 s{sT}, s{sU}, 6'); A(f's_add_u32 s{sT}, s{sT}, {WS_H}')
        A(f'v_lshlrev_b32 v{T(0)}, 4, v{vN}'); A(f'v_lshl_add_u32 v{T(0)}, v{vG}, 2, v{T(0)}'); A(f'v_add_u32 v{T(0)}, s{sT}, v{T(0)}')
        A(f'v_mov_b32 v{T(1)}, {OOB}'); A(f'v_cmp_gt_u32 vcc, 4, v{vN}'); A(f'v_cndmask_b32 v{vRS}, v{T(1)}, v{T(0)}, vcc')
        A(f's_and_b32 s{sT}, s{sU}, 31'); A(f's_lshr_b32 s{sT2}, s{sT}, 1'); A(f's_lshl_b32 s{sT2}, s{sT2}, 5')
        A(f's_and_b32 s{sT}, s{sT}, 1'); A(f's_lshl_b32 s{sT}, s{sT}, 2'); A(f's_add_u32 s{sT}, s{sT}, s{sT2}')
        A(f'v_and_b32 v{T(0)}, 3, v{vN}'); A(f'v_lshl_add_u32 v{T(0)}, v{vG}, 3, v{T(0)}'); A(f'v_add_u32 v{T(0)}, s{sT}, v{T(0)}')
        A(f'v_lshlrev_b32 v{vB1OFF}, 1, v{T(0)}')
        A(f's_lshr_b32 s{sT}, s{sU}, 5'); A(f's_lshl_b32 s{sT}, s{sT}, 10'); A(f'v_add_u32 v{vWOFF1}, s{sT}, v{vB1OFF}')
        A(f'v_mov_b32 v{T(1)}, {OOB}'); A(f'v_cmp_gt_u32 vcc, 4, v{vN}'); A(f'v_cndmask_b32 v{vOUTA}, v{T(1)}, v{vWOFF1}, vcc')
        A(f's_lshl_b32 s{sT}, s{sU}, 13'); A(f's_add_u32 s{sT}, s{sT}, {WS_C1}'); A(f'v_lshlrev_b32 v{T(0)}, 4, v{vL}'); A(f'v_add_u32 v{vHOFF}, s{sT}, v{T(0)}')
        A(f's_mul_i32 s{sT}, s{sU}, 7168'); A(f's_add_u32 s{sT}, s{sT}, {WS_C2}'); A(f'v_add_u32 v{vWOFF2}, s{sT}, v{T(0)}')
        A('L_r2:')
        for i in range(4): A(f'v_mov_b32 v{vSENT+i}, -1')
        A('s_waitcnt lgkmcnt(0)')
        if self.kw.get('st2'): G.stamp(24)
        A(f's_lshl_b32 s{sT}, s{sBH}, 21'); A(f's_lshl_b32 s{sT2}, s{sS}, 19'); A(f's_add_u32 s{sT}, s{sT}, s{sT2}')
        G.srd(rX, pX, pX + 1, 2048)
        G.srd(rK, pK, pK + 1, 0x80000, f's{sT}')
        G.vmop(f'buffer_load_dwordx4 v[{vXR}:{vXR+3}], v{T(2)}, s[{rX}:{rX+3}], 0 offen', 'x')
        koffs = [0, 2048, 128, 2176]
        voffs = [0, 2048, 256, 2304]
        def unit_loads(u):
            isK = u < 32; t = u % 32
            A(f's_mov_b32 s{sOff}, {t*16384}')
            for q in range(4):
                r = ((u % RING) * 4 + q) * 4
                if isK: G.vmop(f'buffer_load_dwordx4 a[{r}:{r+3}], v{vK}, s[{rK}:{rK+3}], s{sOff} offen offset:{koffs[q]} {nt}', f'u{u}')
                else:   G.vmop(f'buffer_load_dwordx4 a[{r}:{r+3}], v{vV}, s[{rV}:{rV+3}], s{sOff} offen offset:{voffs[q]} {nt}', f'u{u}')
        unit_loads(0)
        if self.kw.get('st2'): G.stamp(25)
        G.srd(rV, pV, pV + 1, 0x80000, f's{sT}')
        G.srd(rWS, pWS, pWS + 1, WS_SIZE + (0x100000 if self.diag else 0))
        A(f's_lshl_b32 s{sT}, s{sH}, 8')
        if self.kw.get('wqsame'): A(f's_mov_b32 s{sT}, 0')
        G.srd(rWQ, pWQ, pWQ + 1, 0, f's{sT}'); A(f's_sub_u32 s{rWQ+2}, {512*8192}, s{sT}')
        G.vmop(f'buffer_store_dwordx4 v[{vSENT}:{vSENT+3}], v{vC1}, s[{rWS}:{rWS+3}], 0 offen sc1', 'init')
        G.vmop(f'buffer_store_dwordx2 v[{vSENT}:{vSENT+1}], v{vMLp}, s[{rWS}:{rWS+3}], 0 offen sc1', 'init')
        A(f's_cmp_eq_u32 s{sRole}, 1'); A('s_cbranch_scc0 L_i1')
        G.vmop(f'buffer_store_dwordx4 v[{vSENT}:{vSENT+3}], v{vRS}, s[{rWS}:{rWS+3}], 0 offen sc1', 'init', True)
        A('L_i1:')
        A(f's_cmp_eq_u32 s{sRole}, 2'); A('s_cbranch_scc0 L_i2')
        G.vmop(f'buffer_store_dword v{vSENT}, v{vRS}, s[{rWS}:{rWS+3}], 0 offen sc1', 'init', True)
        A('L_i2:')
        if self.kw.get('st2'): G.stamp(26)
        def wq_load(i):
            if self.nowq and i >= 4: return
            A(f's_mov_b32 s{sT}, {i*8192}')
            r = aW + 4 * i
            G.vmop(f'buffer_load_dwordx4 a[{r}:{r+3}], v{vWQ}, s[{rWQ}:{rWQ+3}], s{sT} offen {wnt}', f'wq{i}')
            if self.kw.get('st2') and i == 15: G.stamp(27)
            if self.kw.get('st2') and i == 31: G.stamp(28)
        il = self.kw.get('il', 0)
        done_u = 1
        for i in range(32):
            wq_load(i)
            if il and i % 4 == 3 and done_u < 1 + il and i < 31:
                unit_loads(done_u); done_u += 1
        for u in range(done_u, self.pre): unit_loads(u)
        G.stamp(9)
        A(f's_lshl_b32 s{sT}, s{sH}, 17')
        if self.kw.get('wosame'): A(f's_mov_b32 s{sT}, 0')
        if self.kw.get('woxcd'): A(f's_and_b32 s{sT}, s{sH}, 7'); A(f's_lshl_b32 s{sT}, s{sT}, 17')
        G.srd(rWO, pWO, pWO + 1, 131072, f's{sT}')
        G.srd(rDBG, pDBG, pDBG + 1, 256)
        G.srd(rW1, pW1, pW1 + 1, 512 * 3584)
        G.srd(rW2, pW2, pW2 + 1, 1792 * 1024)
        G.srd(rB1, pB1, pB1 + 1, 3584)
        G.srd(rB2, pB2, pB2 + 1, 1024)
        G.srd(rOUT, pOUT, pOUT + 1, 2048)
        A(f's_mov_b32 s{sPK}, 0x05040100')
        A(f's_lshl_b32 s{sT}, s{sW}, 8'); A(f'v_lshlrev_b32 v{T(0)}, 15, v{vG}'); A(f'v_lshl_add_u32 v{T(0)}, v{vN}, 4, v{T(0)}'); A(f'v_add_u32 v{vWO}, s{sT}, v{T(0)}')
        A(f'v_and_b32 v{T(0)}, 1, v{vN}'); A(f'v_cmp_eq_u32 vcc, 1, v{T(0)}')
        A(f'v_mov_b32 v{T(1)}, 0x0c0c0100'); A(f'v_mov_b32 v{T(2)}, 0x01000c0c'); A(f'v_cndmask_b32 v{T(3)}, v{T(1)}, v{T(2)}, vcc')
        A(f'v_mov_b32 v{T(1)}, 0x0c0c0302'); A(f'v_mov_b32 v{T(2)}, 0x03020c0c'); A(f'v_cndmask_b32 v{T(4)}, v{T(1)}, v{T(2)}, vcc')
        A(f'v_mov_b32 v{T(1)}, 0x0000ffff'); A(f'v_mov_b32 v{T(2)}, 0xffff0000'); A(f'v_cndmask_b32 v{T(5)}, v{T(1)}, v{T(2)}, vcc')
        A(f'v_bfe_u32 v{T(0)}, v{vN}, 1, 2'); A(f'v_mov_b32 v{T(6)}, 0x0c0c0c0c')
        for jj in range(4):
            A(f'v_cmp_eq_u32 vcc, {jj}, v{T(0)}')
            A(f'v_cndmask_b32 v{vSEL+jj}, v{T(6)}, v{T(3)}, vcc'); A(f'v_cndmask_b32 v{vSEL+4+jj}, v{T(6)}, v{T(4)}, vcc')
            A(f'v_cndmask_b32 v{vMASK+jj}, 0, v{T(5)}, vcc')
        A(f's_lshl_b32 s{sT}, s{sW}, 10'); A(f'v_lshlrev_b32 v{T(0)}, 4, v{vL}'); A(f'v_add_u32 v{vA1}, s{sT}, v{T(0)}')
        A(f's_mul_i32 s{sT}, s{sW}, 1280'); A(f'v_lshlrev_b32 v{T(0)}, 6, v{vG}'); A(f'v_add_u32 v{vA2}, s{sT}, v{T(0)}')
        if self.kw.get('st2'): G.stamp(29)
        G.vmwait('x')
        if self.kw.get('st2'): G.stamp(30)
        X = [T(i) for i in range(8)]
        for k in range(4):
            A(f'v_lshlrev_b32 v{X[2*k]}, 16, v{vXR+k}'); A(f'v_and_b32 v{X[2*k+1]}, 0xffff0000, v{vXR+k}')
        self.ln_stats(X, T(8), T(9), T(10), T(11), 1.0 / 512, self.wave_allreduce)
        self.ln_apply(X, T(8), T(9))
        for k in range(4): A(f'v_cvt_pk_bf16_f32 v{vXR+k}, v{X[2*k]}, v{X[2*k+1]}')
        A(f'ds_write_b128 v{vA1}, v[{vXR}:{vXR+3}] offset:{L_XN}')
        A('s_waitcnt lgkmcnt(0)')
        for k in range(4): A(f'ds_read_b128 v[{vXP+4*k}:{vXP+4*k+3}], v{vA2} offset:{L_XN+16*k}')
        A(f's_lshl_b32 s{sT}, s{sW}, 9'); A(f'v_and_b32 v{T(0)}, 7, v{vN}'); A(f'v_lshl_add_u32 v{T(0)}, v{vG}, 5, v{T(0)}'); A(f'v_lshlrev_b32 v{T(0)}, 2, v{T(0)}')
        A(f'v_add_u32 v{vA1}, s{sT}, v{T(0)}')
        A(f'v_mov_b32 v{T(1)}, {L_DUMMY - L_OP}'); A(f'v_cmp_gt_u32 vcc, 8, v{vN}'); A(f'v_cndmask_b32 v{vOPA}, v{T(1)}, v{vA1}, vcc')
        A(f'v_lshlrev_b32 v{vA3}, 3, v{vL}')
        A('s_waitcnt lgkmcnt(0)')
        if self.kw.get('st2'): G.stamp(31)
        def delta_steps(nsteps, acc, tagf, first_zero=True):
            for i in range(nsteps):
                bset = vB + 4 * (i & 1)
                for jj in range(4):
                    A(f'v_perm_b32 v{bset+jj}, v{vXP+(i>>1)}, v{vXP+(i>>1)}, v{vSEL+4*(i&1)+jj}')
                if tagf is not None and i % 4 == 0: G.vmwait(tagf(i + 3))
                r = aW + 4 * i
                c = '0' if i == 0 else f'v[{acc}:{acc+3}]'
                A(f'v_mfma_f32_16x16x32_bf16 v[{acc}:{acc+3}], a[{r}:{r+3}], v[{bset}:{bset+3}], {c}')
        delta_steps(32, vDQ, lambda i: f'wq{min(i, 3) if self.nowq else i}')
        for i in range(4): A(f'ds_write_b32 v{vA1}, v{vDQ+i} offset:{L_QP + 32*i}')
        A('s_waitcnt lgkmcnt(0)'); A('s_barrier')
        A(f's_cmp_eq_u32 s{sW}, 0'); A('s_cbranch_scc0 L_c1')
        A(f'v_mov_b32 v{T(0)}, 1'); A(f'v_mov_b32 v{T(1)}, {OOB}'); A(f'v_cmp_eq_u32 vcc, 0, v{vL}'); A(f'v_cndmask_b32 v{T(1)}, v{T(1)}, 0, vcc')
        G.vmop(f'buffer_atomic_add v{T(0)}, v{T(1)}, s[{rDBG}:{rDBG+3}], 0 offen', 'atom', True)
        A('L_c1:')
        for w in range(4): A(f'ds_read_b64 v[{T(2*w+2)}:{T(2*w+3)}], v{vA3} offset:{L_QP + 512*w}')
        for u in range(self.pre, RING): unit_loads(u)
        A(f's_lshl_b32 s{sT}, s{sW}, 8'); A(f'v_lshlrev_b32 v{T(0)}, 2, v{vL}'); A(f'v_add_u32 v{T(0)}, s{sT}, v{T(0)}')
        A(f'v_lshrrev_b32 v{T(1)}, 3, v{vN}'); A(f'v_lshlrev_b32 v{T(1)}, 6, v{T(1)}'); A(f'v_lshl_add_u32 v{T(1)}, v{vG}, 4, v{T(1)}'); A(f'v_add_u32 v{T(1)}, s{sT}, v{T(1)}')
        A('s_waitcnt lgkmcnt(0)')
        A(f'v_pk_add_f32 v[{T(2)}:{T(3)}], v[{T(2)}:{T(3)}], v[{T(4)}:{T(5)}]'); A(f'v_pk_add_f32 v[{T(6)}:{T(7)}], v[{T(6)}:{T(7)}], v[{T(8)}:{T(9)}]')
        A(f'v_pk_add_f32 v[{T(2)}:{T(3)}], v[{T(2)}:{T(3)}], v[{T(6)}:{T(7)}]')
        A(f'v_cvt_pk_bf16_f32 v{T(2)}, v{T(2)}, v{T(3)}')
        A(f'ds_write_b32 v{T(0)}, v{T(2)} offset:{L_QB}')
        A('s_waitcnt lgkmcnt(0)')
        A(f'ds_read_b128 v[{vBQ}:{vBQ+3}], v{T(1)} offset:{L_QB}'); A(f'ds_read_b128 v[{vBQ+4}:{vBQ+7}], v{T(1)} offset:{L_QB+128}')
        A(f'v_mov_b32 v{vMX}, 0xff800000')
        for i in range(8): A(f'v_mov_b32 v{vO+i}, 0')
        A('s_waitcnt lgkmcnt(0)')
        G.stamp(1)
        if self.stop == 'q':
            return self.finish_debug([vBQ + i for i in range(8)])

        wo_loads = []
        for i in range(32):
            r = aW + 4 * i
            wo_loads.append((i // 4 * 4096, f'buffer_load_dwordx4 a[{r}:{r+3}], v{vWO}, s[{rWO}:{rWO+3}], s{sT} offen offset:{(i%4)*1024} {wnt}', f'wo{i}'))
        def emit_wo(k0, k1):
            for k in range(k0, k1):
                so, s, tag = wo_loads[k]
                if self.kw.get('wotiny'): so = 0
                if k == k0 or k % 4 == 0: A(f's_mov_b32 s{sT}, {so}')
                G.vmop(s, tag)
        def emit_role_loads(part):
            lab = f'L_rl{part}'
            if part < 16:
                A(f's_cmp_eq_u32 s{sRole}, 1'); A(f's_cbranch_scc0 {lab}')
                s_ = part // 4; e3 = part % 4
                A(f's_mov_b32 s{sT}, {(32*s_ + 8*e3)*3584}')
                for eh in (0, 1):
                    e = e3 + 4 * eh
                    G.vmop(f'buffer_load_ushort v{vR + 8*s_ + e}, v{vWOFF1}, s[{rW1}:{rW1+3}], s{sT} offen offset:{eh*3584} {wnt}', 'w1g', True)
                A(f'{lab}:')
            else:
                A(f's_cmp_eq_u32 s{sRole}, 1'); A(f's_cbranch_scc0 {lab}a')
                for ii in range(4):
                    G.vmop(f'buffer_load_dwordx4 v[{vW2+4*ii}:{vW2+4*ii+3}], v{vWOFF2}, s[{rW2}:{rW2+3}], 0 offen offset:{ii*1024} {wnt}', 'w2l', True)
                G.vmop(f'buffer_load_ushort v{vB1}, v{vB1OFF}, s[{rB1}:{rB1+3}], 0 offen', 'b1l', True)
                A(f'{lab}a:')
                A(f's_cmp_eq_u32 s{sRole}, 2'); A(f's_cbranch_scc0 {lab}b')
                G.vmop(f'buffer_load_ushort v{vXV}, v{vWOFF1}, s[{rX}:{rX+3}], 0 offen', 'xv', True)
                G.vmop(f'buffer_load_ushort v{vB2V}, v{vB1OFF}, s[{rB2}:{rB2+3}], 0 offen', 'b2l', True)
                A(f'{lab}b:')
        def kproc(t):
            D0 = vD + 8 * (t & 1); D1 = D0 + 4
            sA, sB_ = T(0), T(1)
            A(f'v_add_f32_dpp v{sA}, v{D0+1}, v{D0} row_ror:8 row_mask:0xf bank_mask:0x3')
            A(f'v_add_f32_dpp v{sB_}, v{D0+3}, v{D0+2} row_ror:8 row_mask:0xf bank_mask:0x3')
            A(f'v_add_f32_dpp v{sA}, v{D1}, v{D1+1} row_ror:8 row_mask:0xf bank_mask:0xc')
            A(f'v_add_f32_dpp v{sB_}, v{D1+2}, v{D1+3} row_ror:8 row_mask:0xf bank_mask:0xc')
            A(f'v_cvt_pk_bf16_f32 v{T(2)}, v{sA}, v{sB_}')
            A(f'v_max3_f32 v{vMX}, v{vMX}, v{sA}, v{sB_}')
            A(f'v_lshlrev_b32 v{T(3)}, 16, v{T(2)}'); A(f'v_and_b32 v{T(4)}, 0xffff0000, v{T(2)}')
            A(f'v_mul_f32 v{T(3)}, {SCALE}, v{T(3)}'); A(f'v_mul_f32 v{T(4)}, {SCALE}, v{T(4)}')
            A(f'v_cvt_pk_bf16_f32 v{vS+t}, v{T(3)}, v{T(4)}')
        for t in range(32):
            u = t
            D0 = vD + 8 * (t & 1); D1 = D0 + 4
            r = (u % RING) * 16
            G.vmwait(f'u{u}')
            A(f'v_mfma_f32_16x16x32_bf16 v[{D0}:{D0+3}], a[{r}:{r+3}], v[{vBQ}:{vBQ+3}], 0')
            A(f'v_mfma_f32_16x16x32_bf16 v[{D1}:{D1+3}], a[{r+4}:{r+7}], v[{vBQ}:{vBQ+3}], 0')
            A(f'v_mfma_f32_16x16x32_bf16 v[{D0}:{D0+3}], a[{r+8}:{r+11}], v[{vBQ+4}:{vBQ+7}], v[{D0}:{D0+3}]')
            A(f'v_mfma_f32_16x16x32_bf16 v[{D1}:{D1+3}], a[{r+12}:{r+15}], v[{vBQ+4}:{vBQ+7}], v[{D1}:{D1+3}]')
            unit_loads(u + RING)
            if 2 <= t < 18 and not self.nowo: emit_wo(2 * (t - 2), 2 * (t - 2) + 2)
            if t in (7, 15, 23): G.stamp(16 + t // 8)
            if t == 27:
                A(f'v_mov_b32 v{T(5)}, 0')
                G.vmop(f'buffer_load_dword v{vCNT}, v{T(5)}, s[{rDBG}:{rDBG+3}], 0 offen sc1', 'cnt')
            if t > 0: kproc(t - 1)
        kproc(31)
        G.stamp(2)
        self.wave_allreduce('max', vMX, T(0))
        G.rbf(vM, vMX); A(f'v_mul_f32 v{vM}, {SCALE}, v{vM}'); G.rbf(vM)
        A(f'v_mul_f32 v{vNM}, {LOG2E}, v{vM}'); A(f'v_sub_f32 v{vNM}, 0, v{vNM}')
        A(f's_mov_b32 s{sT2}, {LOG2E}')
        A(f'v_mov_b32 v{vLS}, 0')
        for t in range(32):
            a, b = T(2 * (t & 1)), T(2 * (t & 1) + 1)
            A(f'v_lshlrev_b32 v{a}, 16, v{vS+t}'); A(f'v_and_b32 v{b}, 0xffff0000, v{vS+t}')
            A(f'v_fma_f32 v{a}, v{a}, s{sT2}, v{vNM}'); A(f'v_fma_f32 v{b}, v{b}, s{sT2}, v{vNM}')
            A(f'v_exp_f32 v{a}, v{a}'); A(f'v_exp_f32 v{b}, v{b}')
            A(f'v_add_f32 v{vLS}, v{vLS}, v{a}'); A(f'v_cvt_pk_bf16_f32 v{vS+t}, v{a}, v{b}'); A(f'v_add_f32 v{vLS}, v{vLS}, v{b}')
        self.wave_allreduce('add', vLS, T(0))
        A(f'v_mul_f32 v{vLS}, 0.125, v{vLS}') if False else A(f'v_mul_f32 v{vLS}, 0x3e000000, v{vLS}')
        A(f'v_mov_b32 v{T(0)}, v{vM}'); A(f'v_mov_b32 v{T(1)}, v{vLS}')
        G.vmop(f'buffer_store_dwordx2 v[{T(0)}:{T(1)}], v{vMLp}, s[{rWS}:{rWS+3}], 0 offen sc1', 'mlst')
        G.vmwait('cnt')
        A(f's_mov_b32 s{sSpin}, {self.spin}')
        A('L_cnt:')
        A(f'v_readfirstlane_b32 s{sT}, v{vCNT}')
        A(f's_cmp_ge_u32 s{sT}, 256'); A('s_cbranch_scc1 L_cnt_ok')
        A(f's_sub_u32 s{sSpin}, s{sSpin}, 1'); A('s_cbranch_scc1 L_cnt_ok')
        A(f'v_mov_b32 v{T(5)}, 0')
        A(f'buffer_load_dword v{vCNT}, v{T(5)}, s[{rDBG}:{rDBG+3}], 0 offen sc1'); A('s_waitcnt vmcnt(0)')
        A('s_branch L_cnt')
        A('L_cnt_ok:')
        G.stamp(3)
        dl = self.kw.get('delay')
        if dl:
            which, n = dl
            A(f's_cmp_lt_u32 s{sBH}, 8'); A('s_cbranch_scc%d L_nodelay' % (0 if which == 'slow' else 1))
            for _ in range(n): A('s_sleep 64')
            A('L_nodelay:')
        def vprep(t):
            for ab in range(2):
                bs = vB + 8 * (t & 1) + 4 * ab
                for jj in range(4):
                    A(f'v_perm_b32 v{bs+jj}, v{vS+t}, v{vS+t}, v{vSEL+4*ab+jj}')
        def ml_compute():
            A(f'v_mov_b32 v{T(10)}, v{vML0}')
            for r_ in (1, 2, 4, 8): A(f'v_max_f32_dpp v{T(10)}, v{T(10)}, v{T(10)} row_ror:{r_} row_mask:0xf bank_mask:0xf')
            A(f'v_sub_f32 v{T(11)}, v{vML0}, v{T(10)}'); A(f'v_mul_f32 v{T(11)}, {LOG2E}, v{T(11)}'); A(f'v_exp_f32 v{T(11)}, v{T(11)}')
            A(f'v_mul_f32 v{T(11)}, v{T(11)}, v{vML1}')
            for r_ in (1, 2, 4, 8): A(f'v_add_f32_dpp v{T(11)}, v{T(11)}, v{T(11)} row_ror:{r_} row_mask:0xf bank_mask:0xf')
            A(f'v_sub_f32 v{T(10)}, v{vM}, v{T(10)}'); A(f'v_mul_f32 v{T(10)}, {LOG2E}, v{T(10)}'); A(f'v_exp_f32 v{T(10)}, v{T(10)}')
            A(f'v_rcp_f32 v{T(12)}, v{T(11)}'); A(f'v_mul_f32 v{vF}, v{T(10)}, v{T(12)}')
            A(f'v_cmp_u_f32 vcc, v{T(11)}, v{T(11)}')
        vprep(0)
        for t in range(32):
            u = 32 + t
            r = (u % RING) * 16
            G.vmwait(f'u{u}')
            bs = vB + 8 * (t & 1)
            A(f'v_mfma_f32_16x16x32_bf16 v[{vO}:{vO+3}], a[{r}:{r+3}], v[{bs}:{bs+3}], v[{vO}:{vO+3}]')
            A(f'v_mfma_f32_16x16x32_bf16 v[{vO+4}:{vO+7}], a[{r+4}:{r+7}], v[{bs}:{bs+3}], v[{vO+4}:{vO+7}]')
            A(f'v_mfma_f32_16x16x32_bf16 v[{vO}:{vO+3}], a[{r+8}:{r+11}], v[{bs+4}:{bs+7}], v[{vO}:{vO+3}]')
            A(f'v_mfma_f32_16x16x32_bf16 v[{vO+4}:{vO+7}], a[{r+12}:{r+15}], v[{bs+4}:{bs+7}], v[{vO+4}:{vO+7}]')
            if u + RING < 64: unit_loads(u + RING)
            if t < 17 and not self.norole: emit_role_loads(t)
            if t in (7, 15, 23): G.stamp(20 + t // 8)
            if t == 27:
                A(f's_cmp_eq_u32 s{sRole}, 1'); A('s_cbranch_scc0 L_pk1')
                for s_ in range(4):
                    for jj in range(4):
                        A(f'v_perm_b32 v{vW1+4*s_+jj}, v{vR+8*s_+2*jj+1}, v{vR+8*s_+2*jj}, s{sPK}')
                A('L_pk1:')
            if t == 17:
                G.vmop(f'buffer_load_dwordx2 v[{vML0}:{vML1}], v{vMLq}, s[{rWS}:{rWS+3}], 0 offen sc1', 'mlq')
            if t == 25:
                G.vmwait('mlq')
                A(f's_mov_b32 s{sSpin}, {self.spin}')
                A('L_ml:')
                ml_compute()
                A('s_cbranch_vccz L_ml_ok')
                A(f's_sub_u32 s{sSpin}, s{sSpin}, 1'); A('s_cbranch_scc1 L_ml_ok')
                A(f'buffer_load_dwordx2 v[{vML0}:{vML1}], v{vMLq}, s[{rWS}:{rWS+3}], 0 offen sc1'); A('s_waitcnt vmcnt(0)')
                A('s_branch L_ml')
                A('L_ml_ok:')
            if t < 31: vprep(t + 1)
        G.stamp(4)
        for i in range(4): A(f'v_add_f32_dpp v{T(i)}, v{vO+4+i}, v{vO+i} row_ror:8 row_mask:0xf bank_mask:0xf')
        for i in range(4): A(f'v_mul_f32 v{T(i)}, v{vF}, v{T(i)}')
        for i in range(4): A(f'ds_write_b32 v{vOPA}, v{T(i)} offset:{L_OP + 32*i}')
        A(f's_lshl_b32 s{sT}, s{sW}, 9'); A(f'v_lshlrev_b32 v{T(10)}, 2, v{vL}'); A(f'v_add_u32 v{T(10)}, s{sT}, v{T(10)}')
        A(f'v_lshrrev_b32 v{T(11)}, 3, v{vN}'); A(f'v_lshlrev_b32 v{T(11)}, 8, v{T(11)}'); A(f'v_lshl_add_u32 v{T(11)}, v{vG}, 6, v{T(11)}'); A(f'v_add_u32 v{T(11)}, s{sT}, v{T(11)}')
        A('s_waitcnt lgkmcnt(0)'); A('s_barrier')
        for w in range(4): A(f'ds_read_b64 v[{T(2*w+2)}:{T(2*w+3)}], v{vA3} offset:{L_OP + 512*w}')
        A('s_waitcnt lgkmcnt(0)')
        A(f'v_pk_add_f32 v[{T(2)}:{T(3)}], v[{T(2)}:{T(3)}], v[{T(4)}:{T(5)}]'); A(f'v_pk_add_f32 v[{T(6)}:{T(7)}], v[{T(6)}:{T(7)}], v[{T(8)}:{T(9)}]')
        A(f'v_pk_add_f32 v[{T(2)}:{T(3)}], v[{T(2)}:{T(3)}], v[{T(6)}:{T(7)}]')
        A(f'v_cvt_pk_bf16_f32 v{T(4)}, v{T(2)}, v{T(3)}')
        A(f'v_lshlrev_b32 v{T(5)}, 16, v{T(4)}'); A(f'v_and_b32 v{T(6)}, 0xffff0000, v{T(4)}')
        A(f'v_sub_f32 v{T(5)}, v{T(2)}, v{T(5)}'); A(f'v_sub_f32 v{T(6)}, v{T(3)}, v{T(6)}')
        A(f'ds_write_b32 v{T(10)}, v{T(4)} offset:{L_OH}')
        A(f'v_cvt_pk_bf16_f32 v{T(5)}, v{T(5)}, v{T(6)}')
        A(f'ds_write_b32 v{T(10)}, v{T(5)} offset:{L_OH+256}')
        A('s_waitcnt lgkmcnt(0)')
        for k in range(4): A(f'ds_read_b128 v[{vXP+4*k}:{vXP+4*k+3}], v{T(11)} offset:{L_OH+16*k}')
        A('s_waitcnt lgkmcnt(0)')
        delta_steps(32, vDQ, None)
        for i in range(4): A(f'v_add_f32_dpp v{T(i)}, v{vDQ+i}, v{vDQ+i} row_ror:8 row_mask:0xf bank_mask:0xf')
        G.vmop(f'buffer_store_dwordx4 v[{T(0)}:{T(3)}], v{vC1}, s[{rWS}:{rWS+3}], 0 offen sc1', 'c1st')
        G.stamp(5)
        A(f's_cmp_eq_u32 s{sRole}, 1'); A('s_cbranch_scc1 L_m1')
        A(f's_cmp_eq_u32 s{sRole}, 2'); A('s_cbranch_scc0 L_fin')
        A(f's_cmp_eq_u32 s{sW}, 0'); A('s_cbranch_scc0 L_fin')
        def gather_reduce(nl, voff, lab):
            A(f's_mov_b32 s{sSpin}, {self.spin}')
            A(f'{lab}:')
            for k in range(nl):
                if k % 4 == 0: A(f's_mov_b32 s{sT}, {(k//4)*4096}')
                A(f'buffer_load_dwordx4 v[{vR+4*k}:{vR+4*k+3}], v{voff}, s[{rWS}:{rWS+3}], s{sT} offen offset:{(k%4)*1024} sc1')
            k = 1
            A(f's_waitcnt vmcnt({nl-2})')
            for c in (0, 2): A(f'v_pk_add_f32 v[{T(c)}:{T(c+1)}], v[{vR+c}:{vR+c+1}], v[{vR+4+c}:{vR+4+c+1}]')
            for k in range(2, nl):
                A(f's_waitcnt vmcnt({nl-1-k})')
                for c in (0, 2): A(f'v_pk_add_f32 v[{T(c)}:{T(c+1)}], v[{T(c)}:{T(c+1)}], v[{vR+4*k+c}:{vR+4*k+c+1}]')
            A(f'v_cmp_u_f32 vcc, v{T(0)}, v{T(1)}'); A(f'v_cmp_u_f32 s[{sM}:{sM+1}], v{T(2)}, v{T(3)}')
            A(f's_or_b64 vcc, vcc, s[{sM}:{sM+1}]')
            A(f's_cbranch_vccz {lab}_ok')
            A(f's_sub_u32 s{sSpin}, s{sSpin}, 1'); A(f's_cbranch_scc0 {lab}')
            A(f'{lab}_ok:')
            A(f'v_permlane32_swap_b32 v{T(0)}, v{T(2)}'); A(f'v_permlane32_swap_b32 v{T(1)}, v{T(3)}')
            A(f'v_add_f32 v{T(0)}, v{T(0)}, v{T(2)}'); A(f'v_add_f32 v{T(1)}, v{T(1)}, v{T(3)}')
            A(f'v_permlane16_swap_b32 v{T(0)}, v{T(1)}'); A(f'v_add_f32 v{T(0)}, v{T(0)}, v{T(1)}')
            A(f'v_add_f32_dpp v{T(0)}, v{T(0)}, v{T(0)} row_ror:4 row_mask:0xf bank_mask:0xf')
            A(f'v_add_f32_dpp v{T(0)}, v{T(0)}, v{T(0)} row_ror:8 row_mask:0xf bank_mask:0xf')
        A(f'v_lshlrev_b32 v{vXV}, 16, v{vXV}'); A(f'v_lshlrev_b32 v{vB2V}, 16, v{vB2V}')
        gather_reduce(8, vHOFF, 'L_g1')
        G.stamp(6)
        G.rbf(T(0)); A(f'v_add_f32 v{T(0)}, v{vXV}, v{T(0)}'); G.rbf(vHV, T(0))
        A(f'buffer_store_dword v{vHV}, v{vRS}, s[{rWS}:{rWS+3}], 0 offen sc1')
        G.stamp(7)
        gather_reduce(7, vWOFF2, 'L_g2')
        G.stamp(8)
        G.rbf(T(0)); A(f'v_add_f32 v{T(0)}, v{vB2V}, v{T(0)}'); G.rbf(T(0)); A(f'v_add_f32 v{T(0)}, v{vHV}, v{T(0)}')
        A(f'v_cvt_pk_bf16_f32 v{T(0)}, v{T(0)}, v{T(0)}')
        A(f'buffer_store_short v{T(0)}, v{vOUTA}, s[{rOUT}:{rOUT+3}], 0 offen')
        A('s_branch L_fin')
        A('L_m1:')
        A(f's_lshl_b32 s{sT}, s{sW}, 9'); A(f'v_lshrrev_b32 v{T(0)}, 5, v{vL}'); A(f'v_lshlrev_b32 v{T(0)}, 8, v{T(0)}'); A(f'v_and_b32 v{T(1)}, 31, v{vL}')
        A(f'v_lshl_add_u32 v{T(0)}, v{T(1)}, 3, v{T(0)}'); A(f'v_add_u32 v{vA1}, s{sT}, v{T(0)}')
        A(f'v_and_b32 v{T(0)}, 1, v{vN}'); A(f'v_lshlrev_b32 v{T(0)}, 8, v{T(0)}'); A(f'v_lshl_add_u32 v{T(0)}, v{vG}, 4, v{T(0)}'); A(f'v_add_u32 v{vA2}, s{sT}, v{T(0)}')
        A(f's_lshl_b32 s{sT}, s{sW}, 7'); A(f'v_lshlrev_b32 v{T(0)}, 2, v{vN}'); A(f'v_add_u32 v{vA3}, s{sT}, v{T(0)}')
        A(f'v_lshrrev_b32 v{T(0)}, 3, v{vN}'); A(f'v_lshlrev_b32 v{T(0)}, 6, v{T(0)}'); A(f'v_and_b32 v{T(1)}, 3, v{vN}'); A(f'v_lshl_add_u32 v{T(1)}, v{vG}, 2, v{T(1)}')
        A(f'v_lshl_add_u32 v{vA4}, v{T(1)}, 2, v{T(0)}')
        A(f'v_lshlrev_b32 v{vB1}, 16, v{vB1}')
        A(f's_mov_b32 s{sSpin}, {self.spin}')
        H = [vR + i for i in range(16)]
        A('L_g3:')
        for kk in range(4):
            A(f's_add_u32 s{sT}, s{sW}, {kk}'); A(f's_and_b32 s{sT}, s{sT}, 3'); A(f's_lshl_b32 s{sT}, s{sT}, 9')
            A(f'buffer_load_dwordx4 v[{vR+4*kk}:{vR+4*kk+3}], v{vHOFF}, s[{rWS}:{rWS+3}], s{sT} offen sc1')
        A('s_waitcnt vmcnt(0)')
        A(f'v_pk_add_f32 v[{T(0)}:{T(1)}], v[{H[0]}:{H[1]}], v[{H[2]}:{H[3]}]')
        for k in range(2, 8): A(f'v_pk_add_f32 v[{T(0)}:{T(1)}], v[{T(0)}:{T(1)}], v[{H[2*k]}:{H[2*k+1]}]')
        A(f'v_add_f32 v{T(0)}, v{T(0)}, v{T(1)}')
        A(f'v_cmp_u_f32 vcc, v{T(0)}, v{T(0)}')
        A('s_cbranch_vccz L_g3_ok')
        A(f's_sub_u32 s{sSpin}, s{sSpin}, 1'); A('s_cbranch_scc0 L_g3')
        A('L_g3_ok:')
        G.stamp(6)
        self.half_allreduce('add', T(0), T(1))
        A(f'v_mul_f32 v{T(0)}, 0x3b000000, v{T(0)}')
        A(f'v_sub_f32 v{T(2)}, v{H[0]}, v{T(0)}'); A(f'v_mul_f32 v{T(3)}, v{T(2)}, v{T(2)}')
        A(f'v_sub_f32 v{T(4)}, v{H[1]}, v{T(0)}'); A(f'v_mul_f32 v{T(5)}, v{T(4)}, v{T(4)}')
        for k in range(2, 16, 2):
            A(f'v_sub_f32 v{T(2)}, v{H[k]}, v{T(0)}'); A(f'v_sub_f32 v{T(4)}, v{H[k+1]}, v{T(0)}')
            A(f'v_fmac_f32 v{T(3)}, v{T(2)}, v{T(2)}'); A(f'v_fmac_f32 v{T(5)}, v{T(4)}, v{T(4)}')
        A(f'v_add_f32 v{T(3)}, v{T(3)}, v{T(5)}')
        self.half_allreduce('add', T(3), T(1))
        self.ln_finish(T(0), T(3), T(8), T(9), 1.0 / 512)
        Y = H[0:4]
        self.ln_apply(Y, T(8), T(9))
        A(f'v_cvt_pk_bf16_f32 v{T(4)}, v{Y[0]}, v{Y[1]}'); A(f'v_cvt_pk_bf16_f32 v{T(5)}, v{Y[2]}, v{Y[3]}')
        A(f'ds_write_b64 v{vA1}, v[{T(4)}:{T(5)}] offset:{L_YB}')
        A('s_waitcnt lgkmcnt(0)')
        for s_ in range(4): A(f'ds_read_b128 v[{vXP+4*s_}:{vXP+4*s_+3}], v{vA2} offset:{L_YB+64*s_}')
        for s_ in range(4):
            A(f's_waitcnt lgkmcnt({3-s_})')
            c = '0' if s_ == 0 else f'v[{vDQ}:{vDQ+3}]'
            A(f'v_mfma_f32_16x16x32_bf16 v[{vDQ}:{vDQ+3}], v[{vXP+4*s_}:{vXP+4*s_+3}], v[{vW1+4*s_}:{vW1+4*s_+3}], {c}')
        A(f'ds_write_b32 v{vA3}, v{vDQ} offset:{L_TP}'); A(f'ds_write_b32 v{vA3}, v{vDQ+1} offset:{L_TP+64}')
        A('s_waitcnt lgkmcnt(0)'); A('s_barrier')
        for w in range(4): A(f'ds_read_b32 v{T(w)}, v{vA4} offset:{L_TP+128*w}')
        A('s_waitcnt lgkmcnt(0)')
        A(f'v_add_f32 v{T(0)}, v{T(0)}, v{T(1)}'); A(f'v_add_f32 v{T(2)}, v{T(2)}, v{T(3)}'); A(f'v_add_f32 v{T(0)}, v{T(0)}, v{T(2)}')
        G.rbf(T(0)); A(f'v_add_f32 v{T(0)}, v{vB1}, v{T(0)}'); G.rbf(T(0))
        import struct, math
        f2u = lambda f: struct.unpack('<I', struct.pack('<f', f))[0]
        K0 = -2 * math.log2(math.e) * math.sqrt(2 / math.pi); K1 = K0 * 0.044715
        A(f'v_mul_f32 v{T(1)}, v{T(0)}, v{T(0)}'); A(f'v_mov_b32 v{T(2)}, {hex(f2u(K0))}'); A(f'v_fmac_f32 v{T(2)}, {hex(f2u(K1))}, v{T(1)}')
        A(f'v_mul_f32 v{T(1)}, v{T(0)}, v{T(2)}'); A(f'v_exp_f32 v{T(1)}, v{T(1)}'); A(f'v_add_f32 v{T(1)}, 1.0, v{T(1)}'); A(f'v_rcp_f32 v{T(1)}, v{T(1)}')
        A(f'v_mul_f32 v{T(0)}, v{T(0)}, v{T(1)}'); A(f'v_cvt_pk_bf16_f32 v{vGA}, v{T(0)}, v{T(0)}')
        for ii in range(4):
            bs = vB + 4 * ii
            for jj in range(4):
                A(f'v_and_b32_dpp v{bs+jj}, v{vGA}, v{vMASK+jj} quad_perm:[{ii},{ii},{ii},{ii}] row_mask:0xf bank_mask:0xf')
        for ii in range(4):
            bs = vB + 4 * ii
            c = '0' if ii == 0 else f'v[{vDQ}:{vDQ+3}]'
            A(f'v_mfma_f32_16x16x32_bf16 v[{vDQ}:{vDQ+3}], v[{vW2+4*ii}:{vW2+4*ii+3}], v[{bs}:{bs+3}], {c}')
        A(f'buffer_store_dwordx4 v[{vDQ}:{vDQ+3}], v{vRS}, s[{rWS}:{rWS+3}], 0 offen sc1')
        G.stamp(7)
        A('L_fin:')
        if self.diag:
            A(f's_lshl_b32 s{sT}, s2, 2'); A(f's_add_u32 s{sT}, s{sT}, s{sW}'); A(f's_lshl_b32 s{sT}, s{sT}, 7'); A(f's_add_u32 s{sT}, s{sT}, {WS_DIAG}')
            A('s_memrealtime s[96:97]'); A('s_getreg_b32 s98, hwreg(HW_REG_XCC_ID)'); A('s_waitcnt lgkmcnt(0)')
            A('v_writelane_b32 v251, s96, 14'); A('v_writelane_b32 v251, s98, 15')
            A(f'v_lshlrev_b32 v{T(0)}, 2, v{vL}'); A(f'v_add_u32 v{T(0)}, s{sT}, v{T(0)}')
            A(f'v_mov_b32 v{T(1)}, {OOB}'); A(f'v_cmp_gt_u32 vcc, 32, v{vL}'); A(f'v_cndmask_b32 v{T(0)}, v{T(1)}, v{T(0)}, vcc')
            A(f'buffer_store_dword v251, v{T(0)}, s[{rWS}:{rWS+3}], 0 offen')
            if self.kw.get('st3'):
                A(f's_lshl_b32 s{sT}, s2, 2'); A(f's_add_u32 s{sT}, s{sT}, s{sW}'); A(f's_lshl_b32 s{sT}, s{sT}, 8'); A(f's_add_u32 s{sT}, s{sT}, {WS_DIAG + 0x20000}')
                A(f'v_lshlrev_b32 v{T(0)}, 2, v{vL}'); A(f'v_add_u32 v{T(0)}, s{sT}, v{T(0)}')
                A(f'buffer_store_dword v252, v{T(0)}, s[{rWS}:{rWS+3}], 0 offen')
        A('L_end:')
        A('s_endpgm')
        return self.wrap()

    def ln_finish(self, mean, ss, om, orstd, inv_n):
        A = self.A
        import struct
        f2u = lambda f: struct.unpack('<I', struct.pack('<f', f))[0]
        A(f'v_mul_f32 v{ss}, {hex(f2u(inv_n))}, v{ss}'); self.rbf(ss)
        A(f'v_add_f32 v{ss}, {hex(f2u(1e-5))}, v{ss}'); self.rbf(ss)
        A(f'v_sqrt_f32 v{ss}, v{ss}'); self.rbf(ss)
        A(f'v_rcp_f32 v{orstd}, v{ss}')
        self.rbf(om, mean)
    def ln_stats(self, X, om, orstd, t0, t1, inv_n, red):
        A = self.A
        import struct
        f2u = lambda f: struct.unpack('<I', struct.pack('<f', f))[0]
        A(f'v_add_f32 v{t0}, v{X[0]}, v{X[1]}')
        for x in X[2:]: A(f'v_add_f32 v{t0}, v{t0}, v{x}')
        red('add', t0, t1)
        A(f'v_mul_f32 v{t0}, {hex(f2u(inv_n))}, v{t0}')
        A(f'v_sub_f32 v{t1}, v{X[0]}, v{t0}'); A(f'v_mul_f32 v{orstd}, v{t1}, v{t1}')
        for x in X[1:]:
            A(f'v_sub_f32 v{t1}, v{x}, v{t0}'); A(f'v_fmac_f32 v{orstd}, v{t1}, v{t1}')
        red('add', orstd, t1)
        A(f'v_mov_b32 v{t1}, v{orstd}')
        self.ln_finish(t0, t1, om, orstd, inv_n)
    def ln_apply(self, X, m, rstd):
        A = self.A
        for k in range(0, len(X), 2):
            A(f'v_sub_f32 v{X[k]}, v{X[k]}, v{m}'); A(f'v_sub_f32 v{X[k+1]}, v{X[k+1]}, v{m}')
            A(f'v_cvt_pk_bf16_f32 v{X[k+1]}, v{X[k]}, v{X[k+1]}')
            A(f'v_lshlrev_b32 v{X[k]}, 16, v{X[k+1]}'); A(f'v_and_b32 v{X[k+1]}, 0xffff0000, v{X[k+1]}')
            A(f'v_mul_f32 v{X[k]}, v{X[k]}, v{rstd}'); A(f'v_mul_f32 v{X[k+1]}, v{X[k+1]}, v{rstd}')

    def finish_debug(self, regs):
        raise NotImplementedError

    def wrap(self):
        body = hz.fix(self.L)
        H = []
        H.append(f'; @launch grid=(256,1,1) block=(256,1,1) lds={LDS_SIZE}')
        H.append('.amdgcn_target "amdgcn-amd-amdhsa--gfx950"')
        H.append('.text'); H.append(f'.globl {KN}'); H.append('.p2align 8'); H.append(f'.type {KN},@function'); H.append(f'{KN}:')
        H += body
        H.append('.section .rodata,"a"'); H.append('.p2align 6'); H.append(f'.amdhsa_kernel {KN}')
        H.append('  .amdhsa_next_free_vgpr 512'); H.append('  .amdhsa_next_free_sgpr 102'); H.append('  .amdhsa_accum_offset 256')
        H.append('  .amdhsa_group_segment_fixed_size 0'); H.append('  .amdhsa_kernarg_size 104'); H.append('  .amdhsa_user_sgpr_count 2')
        H.append('  .amdhsa_user_sgpr_kernarg_segment_ptr 1'); H.append('  .amdhsa_system_sgpr_workgroup_id_x 1')
        H.append('.end_amdhsa_kernel')
        return '\n'.join(H) + '\n'

if __name__ == '__main__':
    import ast
    kw = eval('dict(%s)' % (sys.argv[2] if len(sys.argv) > 2 else ''))
    open(sys.argv[1], 'w').write(Gen(**kw).gen())
```

```python
import sys
import hz
KN = 'sequential_preLN__mha_block_cached__mixer_channel_mlp__decode_kernel'

WS_ML = 0x0
WS_H  = 0x2000
WS_C1 = 0x10000
WS_C2 = 0x90000
WS_SIZE = 0x100000
WS_DIAG = 0x100000
OOB = 0x7ff00000

L_XN = 0
L_QP = 4096
L_QB = 6144
L_OP = 7168
L_OH = 9216
L_YB = 11264
L_TP = 13312
L_DUMMY = 13824
LDS_SIZE = 16384

SCALE = 0x3DB504F3
LOG2E = 0x3FB8AA3B

class Gen:
    def __init__(self, diag=False, nt='nt', wnt='', spin=1 << 15, ring=8, pre=6, stop=None, nowo=False, nowq=False, norole=False, **kw):
        self.L = []
        self.vm = []
        self.done = -1
        self.diag = diag; self.nt = nt; self.wnt = wnt; self.spin = spin
        self.ring = ring; self.pre = pre; self.stop = stop
        self.nstamp = 0; self.n3 = 0
        self.nowo = nowo; self.nowq = nowq; self.norole = norole; self.kw = kw
    def A(self, s):
        if self.kw.get('nomfma') and s.startswith('v_mfma'): return
        self.L.append('  ' + s if not s.endswith(':') else s)
    def vmop(self, s, tag, optional=False):
        self.A(s); self.vm.append((tag, optional))
        if self.kw.get('st3') and self.n3 < 64 and not optional:
            self.A('s_memrealtime s[96:97]'); self.A('s_waitcnt lgkmcnt(0)'); self.A('v_writelane_b32 v252, s96, %d' % self.n3); self.n3 += 1
        out = len(self.vm) - 1 - self.done
        assert out <= 63, ('too many outstanding', out, tag)
    def vmwait(self, tag):
        idx = max(i for i, (t, o) in enumerate(self.vm) if t == tag)
        n = sum(1 for (t, o) in self.vm[idx + 1:] if not o)
        assert n <= 63
        self.A('s_waitcnt vmcnt(%d)' % n)
        self.done = max(self.done, idx)
    def vmdrain(self):
        self.A('s_waitcnt vmcnt(0)'); self.done = len(self.vm) - 1
    def stamp(self, k):
        if self.diag:
            self.A('s_memrealtime s[96:97]'); self.A('s_waitcnt lgkmcnt(0)')
            self.A('v_mov_b32 v250, s96'); self.A('v_writelane_b32 v251, s96, %d' % k)

    def srd(self, r, lo, hi, size, off=None):
        A = self.A
        if off is None:
            A(f's_mov_b32 s{r}, s{lo}'); A(f's_and_b32 s{r+1}, s{hi}, 0xffff')
        else:
            A(f's_add_u32 s{r}, s{lo}, {off}'); A(f's_addc_u32 s{r+1}, s{hi}, 0'); A(f's_and_b32 s{r+1}, s{r+1}, 0xffff')
        A(f's_mov_b32 s{r+2}, {size}'); A(f's_mov_b32 s{r+3}, 0x20000')

    def wave_allreduce(self, op, v, t):
        A = self.A
        for r in (1, 2, 4, 8):
            A(f'v_{op}_f32_dpp v{v}, v{v}, v{v} row_ror:{r} row_mask:0xf bank_mask:0xf')
        A(f'v_mov_b32 v{t}, v{v}'); A(f'v_permlane16_swap_b32 v{v}, v{t}'); A(f'v_{op}_f32 v{v}, v{v}, v{t}')
        A(f'v_mov_b32 v{t}, v{v}'); A(f'v_permlane32_swap_b32 v{v}, v{t}'); A(f'v_{op}_f32 v{v}, v{v}, v{t}')
    def half_allreduce(self, op, v, t):
        A = self.A
        for r in (1, 2, 4, 8):
            A(f'v_{op}_f32_dpp v{v}, v{v}, v{v} row_ror:{r} row_mask:0xf bank_mask:0xf')
        A(f'v_mov_b32 v{t}, v{v}'); A(f'v_permlane16_swap_b32 v{v}, v{t}'); A(f'v_{op}_f32 v{v}, v{v}, v{t}')
    def rbf(self, v, src=None):
        A = self.A
        s = v if src is None else src
        A(f'v_cvt_pk_bf16_f32 v{v}, v{s}, v{s}'); A(f'v_and_b32 v{v}, 0xffff0000, v{v}')

    def gen(self):
        A = self.A; G = self
        RING = self.ring; nt = self.nt; wnt = self.wnt
        sW = 3
        pX, pK, pV, pWQ, pWO, pW1, pB1, pW2, pB2, pOUT, pDBG, pWS = 4, 6, 8, 10, 12, 16, 18, 20, 22, 24, 26, 28
        rK, rV, rWQ, rWO, rWS, rDBG, rX, rW1, rW2, rB1, rB2, rOUT = 32, 36, 40, 44, 48, 52, 56, 60, 64, 68, 72, 76
        sOff, sT, sH, sB, sS, sBH, sRole, sSpin, sT2, sU = 80, 81, 82, 83, 84, 85, 86, 87, 88, 89
        sM = 90
        sPK = 92
        sAt = 93
        vL, vN, vG = 1, 2, 3
        vK, vV, vWQ, vWO, vC1, vMLp, vMLq, vRS = 4, 5, 6, 7, 8, 9, 10, 11
        vSEL = 12
        vMASK = 20
        vBQ = 24
        vS = 32
        vD = 64
        vO = 80
        vB = 88
        vXP = 104
        vDQ = 120
        vT = 124
        vMX, vLS, vM, vNM, vF, vML0, vML1, vCNT = 140, 141, 142, 143, 208, 210, 211, 212
        vW1 = 144
        vW2 = 160
        vR = 176
        vB1, vXV, vB2V, vHV, vOPA, vSENT, vOUTA = 213, 214, 215, 216, 217, 220, 218
        vA1, vA2, vA3, vA4 = 224, 225, 226, 227
        vXR = 228
        vWOFF1, vWOFF2, vB1OFF, vHOFF, vGA = 232, 233, 234, 235, 236
        vONE, vATO = 237, 238
        aW = 128
        T = lambda i: vT + i

        A('s_cmp_ge_u32 s2, 256'); A('s_cbranch_scc1 L_end')
        if self.kw.get('wgx'): A('s_xor_b32 s2, s2, %d' % self.kw['wgx'])
        if self.kw.get('hperm'):
            pc = sum(v << (4 * i) for i, v in enumerate(self.kw['hperm']))
            A('s_and_b32 s3, s2, 7'); A('s_lshl_b32 s3, s3, 2'); A('s_lshr_b32 s3, %d, s3' % pc); A('s_and_b32 s3, s3, 7')
            A('s_andn2_b32 s2, s2, 7'); A('s_or_b32 s2, s2, s3')
        A(f's_load_dwordx16 s[4:19], s[0:1], 0'); A('s_load_dwordx8 s[20:27], s[0:1], 64'); A('s_load_dwordx2 s[28:29], s[0:1], 96')
        if self.diag:
            A('v_mov_b32 v251, 0')
            G.stamp(0)
        A(f'v_and_b32 v{vL}, 63, v0'); A(f'v_lshrrev_b32 v{T(0)}, 6, v0'); A(f'v_and_b32 v{vN}, 15, v0')
        A(f'v_readfirstlane_b32 s{sW}, v{T(0)}')
        A(f'v_lshrrev_b32 v{vG}, 4, v{vL}')
        A(f's_and_b32 s{sH}, s2, 31'); A(f's_lshr_b32 s{sB}, s2, 5'); A(f's_and_b32 s{sB}, s{sB}, 1'); A(f's_lshr_b32 s{sS}, s2, 6'); A(f's_and_b32 s{sBH}, s2, 63')
        A(f's_lshl_b32 s{sT}, s{sW}, 12')
        A(f'v_lshrrev_b32 v{T(0)}, 1, v{vN}'); A(f'v_lshlrev_b32 v{T(0)}, 8, v{T(0)}')
        A(f'v_and_b32 v{T(1)}, 1, v{vN}'); A(f'v_lshl_add_u32 v{T(0)}, v{T(1)}, 6, v{T(0)}')
        A(f'v_lshl_add_u32 v{T(0)}, v{vG}, 4, v{T(0)}'); A(f'v_add_u32 v{vK}, s{sT}, v{T(0)}')
        A(f'v_lshlrev_b32 v{T(0)}, 9, v{vG}'); A(f'v_lshl_add_u32 v{T(0)}, v{vN}, 4, v{T(0)}'); A(f'v_add_u32 v{vV}, s{sT}, v{T(0)}')
        A(f's_lshl_b32 s{sT}, s{sW}, 20'); A(f'v_lshlrev_b32 v{T(0)}, 18, v{vG}'); A(f'v_lshl_add_u32 v{T(0)}, v{vN}, 4, v{T(0)}'); A(f'v_add_u32 v{vWQ}, s{sT}, v{T(0)}')
        A(f's_lshl_b32 s{sT}, s{sB}, 10'); A(f'v_lshlrev_b32 v{T(2)}, 4, v{vL}'); A(f'v_add_u32 v{T(2)}, s{sT}, v{T(2)}')
        A(f's_lshl_b32 s{sT}, s{sB}, 5'); A(f's_lshl_b32 s{sT2}, s{sW}, 3'); A(f's_add_u32 s{sT}, s{sT}, s{sT2}')
        A(f's_lshl_b32 s{sT}, s{sT}, 13')
        A(f's_lshl_b32 s{sT2}, s{sH}, 2'); A(f's_add_u32 s{sT2}, s{sT2}, s{sS}'); A(f's_lshl_b32 s{sT2}, s{sT2}, 6')
        A(f's_add_u32 s{sT}, s{sT}, s{sT2}'); A(f's_add_u32 s{sT}, s{sT}, {WS_C1}')
        A(f'v_lshlrev_b32 v{T(0)}, 1, v{vG}'); A(f'v_lshrrev_b32 v{T(1)}, 2, v{vN}'); A(f'v_add_u32 v{T(0)}, v{T(0)}, v{T(1)}')
        A(f'v_lshlrev_b32 v{T(0)}, 13, v{T(0)}'); A(f'v_and_b32 v{T(1)}, 3, v{vN}'); A(f'v_lshl_add_u32 v{T(0)}, v{T(1)}, 4, v{T(0)}')
        A(f'v_add_u32 v{T(0)}, s{sT}, v{T(0)}')
        A(f'v_mov_b32 v{T(1)}, {OOB}'); A(f'v_cmp_gt_u32 vcc, 8, v{vN}')
        A(f'v_cndmask_b32 v{vC1}, v{T(1)}, v{T(0)}, vcc')
        A(f's_lshl_b32 s{sT}, s{sBH}, 7'); A(f's_lshl_b32 s{sT2}, s{sS}, 2'); A(f's_add_u32 s{sT2}, s{sT2}, s{sW}'); A(f's_lshl_b32 s{sT2}, s{sT2}, 3')
        A(f's_add_u32 s{sT2}, s{sT2}, s{sT}'); A(f'v_mov_b32 v{T(0)}, s{sT2}'); A(f'v_mov_b32 v{T(1)}, {OOB}')
        A(f'v_cmp_eq_u32 vcc, 0, v{vL}'); A(f'v_cndmask_b32 v{vMLp}, v{T(1)}, v{T(0)}, vcc')
        A(f'v_lshlrev_b32 v{T(0)}, 3, v{vN}'); A(f'v_add_u32 v{vMLq}, s{sT}, v{T(0)}')
        rot = self.kw.get('rot')
        if rot:
            A(f's_mul_i32 s99, s2, {rot}'); A(f's_lshr_b32 s{sT}, s2, 5'); A(f's_add_u32 s99, s99, s{sT}'); A('s_and_b32 s99, s99, 31'); A('s_lshl_b32 s99, s99, 14')
        A(f's_mov_b32 s{sRole}, 0')
        A(f's_and_b32 s{sT}, s2, 7'); A(f's_mul_i32 s{sT}, s{sT}, 14'); A(f's_lshr_b32 s{sT2}, s2, 3'); A(f's_add_u32 s{sU}, s{sT}, s{sT2}')
        A(f's_cmp_lt_u32 s2, 112'); A(f's_cselect_b32 s{sRole}, 1, 0')
        A(f's_sub_u32 s{sT}, s2, 128'); A(f's_cmp_lt_u32 s{sT}, 64'); A(f's_cselect_b32 s{sRole}, 2, s{sRole}'); A(f's_cselect_b32 s{sU}, s{sT}, s{sU}')
        for r_ in (vRS, vWOFF1, vWOFF2, vB1OFF, vHOFF, vOUTA): A(f'v_mov_b32 v{r_}, {OOB}')
        A(f's_cmp_eq_u32 s{sRole}, 1'); A('s_cbranch_scc0 L_r1')
        A(f'v_lshrrev_b32 v{T(0)}, 3, v{vN}'); A(f'v_lshlrev_b32 v{T(0)}, 5, v{T(0)}')
        A(f'v_lshl_add_u32 v{T(0)}, v{vG}, 1, v{T(0)}'); A(f'v_bfe_u32 v{T(1)}, v{vN}, 2, 1'); A(f'v_add_u32 v{T(0)}, v{T(0)}, v{T(1)}')
        A(f's_lshl_b32 s{sT}, s{sW}, 3'); A(f'v_add_u32 v{T(0)}, s{sT}, v{T(0)}')
        A(f'v_mul_u32_u24 v{T(0)}, {112*64}, v{T(0)}'); A(f'v_and_b32 v{T(1)}, 3, v{vN}'); A(f'v_lshl_add_u32 v{T(0)}, v{T(1)}, 4, v{T(0)}')
        A(f's_lshl_b32 s{sT}, s{sU}, 6'); A(f's_add_u32 s{sT}, s{sT}, {WS_C2}'); A(f'v_add_u32 v{vRS}, s{sT}, v{T(0)}')
        A(f'v_lshrrev_b32 v{T(0)}, 1, v{vG}'); A(f'v_lshlrev_b32 v{T(0)}, 2, v{T(0)}'); A(f'v_and_b32 v{T(1)}, 1, v{vG}'); A(f'v_lshl_add_u32 v{T(0)}, v{T(1)}, 1, v{T(0)}')
        A(f's_lshl_b32 s{sT}, s{sW}, 7'); A(f'v_add_u32 v{T(0)}, s{sT}, v{T(0)}'); A(f'v_mul_u32_u24 v{T(0)}, 3584, v{T(0)}')
        A(f's_lshl_b32 s{sT}, s{sU}, 5'); A(f'v_lshl_add_u32 v{T(0)}, v{vN}, 1, v{T(0)}'); A(f'v_add_u32 v{vWOFF1}, s{sT}, v{T(0)}')
        A(f's_lshl_b32 s{sT}, s{sU}, 14'); A(f's_lshl_b32 s{sT2}, s{sW}, 8'); A(f's_add_u32 s{sT}, s{sT}, s{sT2}')
        A(f'v_lshlrev_b32 v{T(0)}, 12, v{vG}'); A(f'v_lshl_add_u32 v{T(0)}, v{vN}, 4, v{T(0)}'); A(f'v_add_u32 v{vWOFF2}, s{sT}, v{T(0)}')
        A(f's_lshl_b32 s{sT}, s{sU}, 5'); A(f'v_and_b32 v{T(0)}, 3, v{vN}'); A(f'v_lshl_add_u32 v{T(0)}, v{vG}, 2, v{T(0)}'); A(f'v_lshlrev_b32 v{T(0)}, 1, v{T(0)}'); A(f'v_add_u32 v{vB1OFF}, s{sT}, v{T(0)}')
        A(f'v_lshrrev_b32 v{T(0)}, 5, v{vL}'); A(f'v_lshlrev_b32 v{T(0)}, 11, v{T(0)}'); A(f'v_and_b32 v{T(1)}, 31, v{vL}'); A(f'v_lshl_add_u32 v{T(0)}, v{T(1)}, 4, v{T(0)}')
        A(f'v_add_u32 v{vHOFF}, {WS_H}, v{T(0)}')
        A('s_branch L_r2')
        A('L_r1:')
        A(f's_cmp_eq_u32 s{sRole}, 2'); A('s_cbranch_scc0 L_r2')
        A(f's_cmp_eq_u32 s{sW}, 0'); A('s_cbranch_scc0 L_r2')
        A(f's_lshl_b32 s{sT}, s{sU}, 6'); A(f's_add_u32 s{sT}, s{sT}, {WS_H}')
        A(f'v_lshlrev_b32 v{T(0)}, 4, v{vN}'); A(f'v_lshl_add_u32 v{T(0)}, v{vG}, 2, v{T(0)}'); A(f'v_add_u32 v{T(0)}, s{sT}, v{T(0)}')
        A(f'v_mov_b32 v{T(1)}, {OOB}'); A(f'v_cmp_gt_u32 vcc, 4, v{vN}'); A(f'v_cndmask_b32 v{vRS}, v{T(1)}, v{T(0)}, vcc')
        A(f's_and_b32 s{sT}, s{sU}, 31'); A(f's_lshr_b32 s{sT2}, s{sT}, 1'); A(f's_lshl_b32 s{sT2}, s{sT2}, 5')
        A(f's_and_b32 s{sT}, s{sT}, 1'); A(f's_lshl_b32 s{sT}, s{sT}, 2'); A(f's_add_u32 s{sT}, s{sT}, s{sT2}')
        A(f'v_and_b32 v{T(0)}, 3, v{vN}'); A(f'v_lshl_add_u32 v{T(0)}, v{vG}, 3, v{T(0)}'); A(f'v_add_u32 v{T(0)}, s{sT}, v{T(0)}')
        A(f'v_lshlrev_b32 v{vB1OFF}, 1, v{T(0)}')
        A(f's_lshr_b32 s{sT}, s{sU}, 5'); A(f's_lshl_b32 s{sT}, s{sT}, 10'); A(f'v_add_u32 v{vWOFF1}, s{sT}, v{vB1OFF}')
        A(f'v_mov_b32 v{T(1)}, {OOB}'); A(f'v_cmp_gt_u32 vcc, 4, v{vN}'); A(f'v_cndmask_b32 v{vOUTA}, v{T(1)}, v{vWOFF1}, vcc')
        A(f's_lshl_b32 s{sT}, s{sU}, 13'); A(f's_add_u32 s{sT}, s{sT}, {WS_C1}'); A(f'v_lshlrev_b32 v{T(0)}, 4, v{vL}'); A(f'v_add_u32 v{vHOFF}, s{sT}, v{T(0)}')
        A(f's_mul_i32 s{sT}, s{sU}, 7168'); A(f's_add_u32 s{sT}, s{sT}, {WS_C2}'); A(f'v_add_u32 v{vWOFF2}, s{sT}, v{T(0)}')
        A('L_r2:')
        for i in range(4): A(f'v_mov_b32 v{vSENT+i}, -1')
        A('s_waitcnt lgkmcnt(0)')
        if self.kw.get('st2'): G.stamp(24)
        A(f's_lshl_b32 s{sT}, s{sBH}, 21'); A(f's_lshl_b32 s{sT2}, s{sS}, 19'); A(f's_add_u32 s{sT}, s{sT}, s{sT2}')
        G.srd(rX, pX, pX + 1, 2048)
        G.srd(rK, pK, pK + 1, 0x80000, f's{sT}')
        G.vmop(f'buffer_load_dwordx4 v[{vXR}:{vXR+3}], v{T(2)}, s[{rX}:{rX+3}], 0 offen', 'x')
        if self.kw.get('xwait'): G.vmwait('x')
        koffs = [0, 2048, 128, 2176]
        voffs = [0, 2048, 256, 2304]
        def unit_loads(u):
            isK = u < 32; t = u % 32
            if self.kw.get('rot'):
                A(f's_add_u32 s{sOff}, s99, {t*16384}'); A(f's_and_b32 s{sOff}, s{sOff}, {31*16384}')
            else:
                A(f's_mov_b32 s{sOff}, {t*16384}')
            for q in range(4):
                r = ((u % RING) * 4 + q) * 4
                if isK: G.vmop(f'buffer_load_dwordx4 a[{r}:{r+3}], v{vK}, s[{rK}:{rK+3}], s{sOff} offen offset:{koffs[q]} {nt}', f'u{u}')
                else:   G.vmop(f'buffer_load_dwordx4 a[{r}:{r+3}], v{vV}, s[{rV}:{rV+3}], s{sOff} offen offset:{voffs[q]} {nt}', f'u{u}')
        unit_loads(0)
        if self.kw.get('st2'): G.stamp(25)
        G.srd(rV, pV, pV + 1, 0x80000, f's{sT}')
        G.srd(rWS, pWS, pWS + 1, WS_SIZE + (0x100000 if self.diag else 0))
        A(f's_lshl_b32 s{sT}, s{sH}, 8')
        if self.kw.get('wqsame'): A(f's_mov_b32 s{sT}, 0')
        if self.kw.get('wqx'): A(f's_lshr_b32 s{sT}, s2, 3'); A(f's_lshl_b32 s{sT}, s{sT}, 8')
        if self.kw.get('wqx4'): A(f's_lshr_b32 s{sT}, s2, 2'); A(f's_and_b32 s{sT}, s{sT}, 31'); A(f's_lshl_b32 s{sT}, s{sT}, 8')
        G.srd(rWQ, pWQ, pWQ + 1, 0, f's{sT}'); A(f's_sub_u32 s{rWQ+2}, {512*8192}, s{sT}')
        if self.kw.get('noinit'):
            A(f'v_mov_b32 v{vC1}, {OOB}'); A(f'v_mov_b32 v{vMLp}, {OOB}'); A(f'v_mov_b32 v{vRS}, {OOB}'); A(f'v_mov_b32 v{vHOFF}, {OOB}'); A(f'v_mov_b32 v{vWOFF2}, {OOB}'); A(f'v_mov_b32 v{vMLq}, {OOB}')
        G.vmop(f'buffer_store_dwordx4 v[{vSENT}:{vSENT+3}], v{vC1}, s[{rWS}:{rWS+3}], 0 offen sc1', 'init')
        G.vmop(f'buffer_store_dwordx2 v[{vSENT}:{vSENT+1}], v{vMLp}, s[{rWS}:{rWS+3}], 0 offen sc1', 'init')
        A(f's_cmp_eq_u32 s{sRole}, 1'); A('s_cbranch_scc0 L_i1')
        G.vmop(f'buffer_store_dwordx4 v[{vSENT}:{vSENT+3}], v{vRS}, s[{rWS}:{rWS+3}], 0 offen sc1', 'init', True)
        A('L_i1:')
        A(f's_cmp_eq_u32 s{sRole}, 2'); A('s_cbranch_scc0 L_i2')
        G.vmop(f'buffer_store_dword v{vSENT}, v{vRS}, s[{rWS}:{rWS+3}], 0 offen sc1', 'init', True)
        A('L_i2:')
        if self.kw.get('st2'): G.stamp(26)
        def wq_load(i):
            if self.kw.get('nowq0'): return
            if self.nowq and i >= 4: return
            A(f's_mov_b32 s{sT}, {i*8192}')
            r = aW + 4 * i
            G.vmop(f'buffer_load_dwordx4 a[{r}:{r+3}], v{vWQ}, s[{rWQ}:{rWQ+3}], s{sT} offen {wnt}', f'wq{i}')
            if self.kw.get('st2') and i == 15: G.stamp(27)
            if self.kw.get('st2') and i == 31: G.stamp(28)
        il = self.kw.get('il', 0)
        done_u = 1
        for i in range(32):
            wq_load(i)
            if il and i % 4 == 3 and done_u < 1 + il and i < 31:
                unit_loads(done_u); done_u += 1
        for u in range(done_u, self.pre): unit_loads(u)
        G.stamp(9)
        A(f's_lshl_b32 s{sT}, s{sH}, 17')
        if self.kw.get('wosame'): A(f's_mov_b32 s{sT}, 0')
        if self.kw.get('wox'): A(f's_lshr_b32 s{sT}, s2, 3'); A(f's_lshl_b32 s{sT}, s{sT}, 17')
        if self.kw.get('wox4'): A(f's_lshr_b32 s{sT}, s2, 2'); A(f's_and_b32 s{sT}, s{sT}, 31'); A(f's_lshl_b32 s{sT}, s{sT}, 17')
        if self.kw.get('woxcd'): A(f's_and_b32 s{sT}, s{sH}, 7'); A(f's_lshl_b32 s{sT}, s{sT}, 17')
        G.srd(rWO, pWO, pWO + 1, 131072, f's{sT}')
        G.srd(rDBG, pDBG, pDBG + 1, 256)
        G.srd(rW1, pW1, pW1 + 1, 512 * 3584)
        G.srd(rW2, pW2, pW2 + 1, 1792 * 1024)
        G.srd(rB1, pB1, pB1 + 1, 3584)
        G.srd(rB2, pB2, pB2 + 1, 1024)
        G.srd(rOUT, pOUT, pOUT + 1, 2048)
        A(f's_mov_b32 s{sPK}, 0x05040100')
        A(f's_lshl_b32 s{sT}, s{sW}, 8'); A(f'v_lshlrev_b32 v{T(0)}, 15, v{vG}'); A(f'v_lshl_add_u32 v{T(0)}, v{vN}, 4, v{T(0)}'); A(f'v_add_u32 v{vWO}, s{sT}, v{T(0)}')
        A(f's_lshr_b32 s{sAt}, s2, 4'); A(f's_and_b32 s{sAt}, s{sAt}, 15'); A(f's_cmp_eq_u32 s{sW}, 0'); A(f's_cselect_b32 s{sAt}, s{sAt}, 99')
        A(f'v_mov_b32 v{vONE}, 1'); A(f'v_mov_b32 v{vATO}, {OOB}'); A(f'v_cmp_eq_u32 vcc, 0, v{vL}'); A(f'v_cndmask_b32 v{vATO}, v{vATO}, 0, vcc')
        A(f'v_and_b32 v{T(0)}, 1, v{vN}'); A(f'v_cmp_eq_u32 vcc, 1, v{T(0)}')
        A(f'v_mov_b32 v{T(1)}, 0x0c0c0100'); A(f'v_mov_b32 v{T(2)}, 0x01000c0c'); A(f'v_cndmask_b32 v{T(3)}, v{T(1)}, v{T(2)}, vcc')
        A(f'v_mov_b32 v{T(1)}, 0x0c0c0302'); A(f'v_mov_b32 v{T(2)}, 0x03020c0c'); A(f'v_cndmask_b32 v{T(4)}, v{T(1)}, v{T(2)}, vcc')
        A(f'v_mov_b32 v{T(1)}, 0x0000ffff'); A(f'v_mov_b32 v{T(2)}, 0xffff0000'); A(f'v_cndmask_b32 v{T(5)}, v{T(1)}, v{T(2)}, vcc')
        A(f'v_bfe_u32 v{T(0)}, v{vN}, 1, 2'); A(f'v_mov_b32 v{T(6)}, 0x0c0c0c0c')
        for jj in range(4):
            A(f'v_cmp_eq_u32 vcc, {jj}, v{T(0)}')
            A(f'v_cndmask_b32 v{vSEL+jj}, v{T(6)}, v{T(3)}, vcc'); A(f'v_cndmask_b32 v{vSEL+4+jj}, v{T(6)}, v{T(4)}, vcc')
            A(f'v_cndmask_b32 v{vMASK+jj}, 0, v{T(5)}, vcc')
        A(f's_lshl_b32 s{sT}, s{sW}, 10'); A(f'v_lshlrev_b32 v{T(0)}, 4, v{vL}'); A(f'v_add_u32 v{vA1}, s{sT}, v{T(0)}')
        A(f's_mul_i32 s{sT}, s{sW}, 1280'); A(f'v_lshlrev_b32 v{T(0)}, 6, v{vG}'); A(f'v_add_u32 v{vA2}, s{sT}, v{T(0)}')
        noq = self.kw.get('noq')
        if noq: A('s_branch L_noq')
        if self.kw.get('st2'): G.stamp(29)
        G.vmwait('x')
        if self.kw.get('st2'): G.stamp(30)
        X = [T(i) for i in range(8)]
        for k in range(4):
            A(f'v_lshlrev_b32 v{X[2*k]}, 16, v{vXR+k}'); A(f'v_and_b32 v{X[2*k+1]}, 0xffff0000, v{vXR+k}')
        self.ln_stats(X, T(8), T(9), T(10), T(11), 1.0 / 512, self.wave_allreduce)
        self.ln_apply(X, T(8), T(9))
        for k in range(4): A(f'v_cvt_pk_bf16_f32 v{vXR+k}, v{X[2*k]}, v{X[2*k+1]}')
        A(f'ds_write_b128 v{vA1}, v[{vXR}:{vXR+3}] offset:{L_XN}')
        A('s_waitcnt lgkmcnt(0)')
        for k in range(4): A(f'ds_read_b128 v[{vXP+4*k}:{vXP+4*k+3}], v{vA2} offset:{L_XN+16*k}')
        A(f's_lshl_b32 s{sT}, s{sW}, 9'); A(f'v_and_b32 v{T(0)}, 7, v{vN}'); A(f'v_lshl_add_u32 v{T(0)}, v{vG}, 5, v{T(0)}'); A(f'v_lshlrev_b32 v{T(0)}, 2, v{T(0)}')
        A(f'v_add_u32 v{vA1}, s{sT}, v{T(0)}')
        A(f'v_mov_b32 v{T(1)}, {L_DUMMY - L_OP}'); A(f'v_cmp_gt_u32 vcc, 8, v{vN}'); A(f'v_cndmask_b32 v{vOPA}, v{T(1)}, v{vA1}, vcc')
        A(f'v_lshlrev_b32 v{vA3}, 3, v{vL}')
        A('s_waitcnt lgkmcnt(0)')
        if self.kw.get('st2'): G.stamp(31)
        def delta_steps(nsteps, acc, tagf, first_zero=True):
            for i in range(nsteps):
                bset = vB + 4 * (i & 1)
                for jj in range(4):
                    A(f'v_perm_b32 v{bset+jj}, v{vXP+(i>>1)}, v{vXP+(i>>1)}, v{vSEL+4*(i&1)+jj}')
                if tagf is not None and i % 4 == 0: G.vmwait(tagf(i + 3))
                r = aW + 4 * i
                c = '0' if i == 0 else f'v[{acc}:{acc+3}]'
                A(f'v_mfma_f32_16x16x32_bf16 v[{acc}:{acc+3}], a[{r}:{r+3}], v[{bset}:{bset+3}], {c}')
        delta_steps(32, vDQ, lambda i: f'wq{min(i, 3) if self.nowq else i}')
        for i in range(4): A(f'ds_write_b32 v{vA1}, v{vDQ+i} offset:{L_QP + 32*i}')
        A('s_waitcnt lgkmcnt(0)'); A('s_barrier')
        A(f's_cmp_eq_u32 s{sW}, 0'); A('s_cbranch_scc0 L_c1')
        A(f'v_mov_b32 v{T(0)}, 1'); A(f'v_mov_b32 v{T(1)}, {OOB}'); A(f'v_cmp_eq_u32 vcc, 0, v{vL}'); A(f'v_cndmask_b32 v{T(1)}, v{T(1)}, 0, vcc')
        if not self.kw.get('noatom') and not self.kw.get('atsp'): G.vmop(f'buffer_atomic_add v{T(0)}, v{T(1)}, s[{rDBG}:{rDBG+3}], 0 offen', 'atom', True)
        A('L_c1:')
        for w in range(4): A(f'ds_read_b64 v[{T(2*w+2)}:{T(2*w+3)}], v{vA3} offset:{L_QP + 512*w}')
        if noq:
            A('L_noq:')
            A(f's_cmp_eq_u32 s{sW}, 0'); A('s_cbranch_scc0 L_c1b')
            A(f'v_mov_b32 v{T(0)}, 1'); A(f'v_mov_b32 v{T(1)}, {OOB}'); A(f'v_cmp_eq_u32 vcc, 0, v{vL}'); A(f'v_cndmask_b32 v{T(1)}, v{T(1)}, 0, vcc')
            if not self.kw.get('noatom'): A(f'buffer_atomic_add v{T(0)}, v{T(1)}, s[{rDBG}:{rDBG+3}], 0 offen')
            A('L_c1b:')
        for u in range(self.pre, RING): unit_loads(u)
        A(f's_lshl_b32 s{sT}, s{sW}, 8'); A(f'v_lshlrev_b32 v{T(0)}, 2, v{vL}'); A(f'v_add_u32 v{T(0)}, s{sT}, v{T(0)}')
        A(f'v_lshrrev_b32 v{T(1)}, 3, v{vN}'); A(f'v_lshlrev_b32 v{T(1)}, 6, v{T(1)}'); A(f'v_lshl_add_u32 v{T(1)}, v{vG}, 4, v{T(1)}'); A(f'v_add_u32 v{T(1)}, s{sT}, v{T(1)}')
        A('s_waitcnt lgkmcnt(0)')
        A(f'v_pk_add_f32 v[{T(2)}:{T(3)}], v[{T(2)}:{T(3)}], v[{T(4)}:{T(5)}]'); A(f'v_pk_add_f32 v[{T(6)}:{T(7)}], v[{T(6)}:{T(7)}], v[{T(8)}:{T(9)}]')
        A(f'v_pk_add_f32 v[{T(2)}:{T(3)}], v[{T(2)}:{T(3)}], v[{T(6)}:{T(7)}]')
        A(f'v_cvt_pk_bf16_f32 v{T(2)}, v{T(2)}, v{T(3)}')
        A(f'ds_write_b32 v{T(0)}, v{T(2)} offset:{L_QB}')
        A('s_waitcnt lgkmcnt(0)')
        A(f'ds_read_b128 v[{vBQ}:{vBQ+3}], v{T(1)} offset:{L_QB}'); A(f'ds_read_b128 v[{vBQ+4}:{vBQ+7}], v{T(1)} offset:{L_QB+128}')
        A(f'v_mov_b32 v{vMX}, 0xff800000')
        for i in range(8): A(f'v_mov_b32 v{vO+i}, 0')
        A('s_waitcnt lgkmcnt(0)')
        G.stamp(1)
        if self.stop == 'q':
            return self.finish_debug([vBQ + i for i in range(8)])

        wo_loads = []
        for i in range(32):
            r = aW + 4 * i
            wo_loads.append((i // 4 * 4096, f'buffer_load_dwordx4 a[{r}:{r+3}], v{vWO}, s[{rWO}:{rWO+3}], s{sT} offen offset:{(i%4)*1024} {wnt}', f'wo{i}'))
        def emit_wo(k0, k1):
            for k in range(k0, k1):
                so, s, tag = wo_loads[k]
                if self.kw.get('wotiny'): so = 0
                if k == k0 or k % 4 == 0: A(f's_mov_b32 s{sT}, {so}')
                G.vmop(s, tag)
        def emit_role_loads(part):
            lab = f'L_rl{part}'
            if part < 16:
                A(f's_cmp_eq_u32 s{sRole}, 1'); A(f's_cbranch_scc0 {lab}')
                s_ = part // 4; e3 = part % 4
                A(f's_mov_b32 s{sT}, {(32*s_ + 8*e3)*3584}')
                for eh in (0, 1):
                    e = e3 + 4 * eh
                    G.vmop(f'buffer_load_ushort v{vR + 8*s_ + e}, v{vWOFF1}, s[{rW1}:{rW1+3}], s{sT} offen offset:{eh*3584} {wnt}', 'w1g', True)
                A(f'{lab}:')
            else:
                A(f's_cmp_eq_u32 s{sRole}, 1'); A(f's_cbranch_scc0 {lab}a')
                for ii in range(4):
                    G.vmop(f'buffer_load_dwordx4 v[{vW2+4*ii}:{vW2+4*ii+3}], v{vWOFF2}, s[{rW2}:{rW2+3}], 0 offen offset:{ii*1024} {wnt}', 'w2l', True)
                G.vmop(f'buffer_load_ushort v{vB1}, v{vB1OFF}, s[{rB1}:{rB1+3}], 0 offen', 'b1l', True)
                A(f'{lab}a:')
                A(f's_cmp_eq_u32 s{sRole}, 2'); A(f's_cbranch_scc0 {lab}b')
                G.vmop(f'buffer_load_ushort v{vXV}, v{vWOFF1}, s[{rX}:{rX+3}], 0 offen', 'xv', True)
                G.vmop(f'buffer_load_ushort v{vB2V}, v{vB1OFF}, s[{rB2}:{rB2+3}], 0 offen', 'b2l', True)
                A(f'{lab}b:')
        def kproc(t):
            if self.kw.get('novalu'): return
            D0 = vD + 8 * (t & 1); D1 = D0 + 4
            sA, sB_ = T(0), T(1)
            A(f'v_add_f32_dpp v{sA}, v{D0+1}, v{D0} row_ror:8 row_mask:0xf bank_mask:0x3')
            A(f'v_add_f32_dpp v{sB_}, v{D0+3}, v{D0+2} row_ror:8 row_mask:0xf bank_mask:0x3')
            A(f'v_add_f32_dpp v{sA}, v{D1}, v{D1+1} row_ror:8 row_mask:0xf bank_mask:0xc')
            A(f'v_add_f32_dpp v{sB_}, v{D1+2}, v{D1+3} row_ror:8 row_mask:0xf bank_mask:0xc')
            A(f'v_cvt_pk_bf16_f32 v{T(2)}, v{sA}, v{sB_}')
            A(f'v_max3_f32 v{vMX}, v{vMX}, v{sA}, v{sB_}')
            A(f'v_lshlrev_b32 v{T(3)}, 16, v{T(2)}'); A(f'v_and_b32 v{T(4)}, 0xffff0000, v{T(2)}')
            A(f'v_mul_f32 v{T(3)}, {SCALE}, v{T(3)}'); A(f'v_mul_f32 v{T(4)}, {SCALE}, v{T(4)}')
            A(f'v_cvt_pk_bf16_f32 v{vS+t}, v{T(3)}, v{T(4)}')
        for t in range(32):
            u = t
            D0 = vD + 8 * (t & 1); D1 = D0 + 4
            r = (u % RING) * 16
            G.vmwait(f'u{u}')
            A(f'v_mfma_f32_16x16x32_bf16 v[{D0}:{D0+3}], a[{r}:{r+3}], v[{vBQ}:{vBQ+3}], 0')
            A(f'v_mfma_f32_16x16x32_bf16 v[{D1}:{D1+3}], a[{r+4}:{r+7}], v[{vBQ}:{vBQ+3}], 0')
            A(f'v_mfma_f32_16x16x32_bf16 v[{D0}:{D0+3}], a[{r+8}:{r+11}], v[{vBQ+4}:{vBQ+7}], v[{D0}:{D0+3}]')
            A(f'v_mfma_f32_16x16x32_bf16 v[{D1}:{D1+3}], a[{r+12}:{r+15}], v[{vBQ+4}:{vBQ+7}], v[{D1}:{D1+3}]')
            unit_loads(u + RING)
            if self.kw.get('atsp') and t < 16:
                A(f's_cmp_eq_u32 s{sAt}, {t}'); A(f's_cbranch_scc0 L_at{t}')
                G.vmop(f'buffer_atomic_add v{vONE}, v{vATO}, s[{rDBG}:{rDBG+3}], 0 offen', 'atom', True)
                A(f'L_at{t}:')
            if 2 <= t < 18 and not self.nowo: emit_wo(2 * (t - 2), 2 * (t - 2) + 2)
            if t in (7, 15, 23): G.stamp(16 + t // 8)
            if t == 27 and not self.kw.get('nocnt'):
                A(f'v_mov_b32 v{T(5)}, 0')
                G.vmop(f'buffer_load_dword v{vCNT}, v{T(5)}, s[{rDBG}:{rDBG+3}], 0 offen sc1', 'cnt')
            if t > 0: kproc(t - 1)
        kproc(31)
        G.stamp(2)
        self.wave_allreduce('max', vMX, T(0))
        G.rbf(vM, vMX); A(f'v_mul_f32 v{vM}, {SCALE}, v{vM}'); G.rbf(vM)
        A(f'v_mul_f32 v{vNM}, {LOG2E}, v{vM}'); A(f'v_sub_f32 v{vNM}, 0, v{vNM}')
        A(f's_mov_b32 s{sT2}, {LOG2E}')
        A(f'v_mov_b32 v{vLS}, 0')
        for t in range(0 if self.kw.get('notrans') else 32):
            a, b = T(2 * (t & 1)), T(2 * (t & 1) + 1)
            A(f'v_lshlrev_b32 v{a}, 16, v{vS+t}'); A(f'v_and_b32 v{b}, 0xffff0000, v{vS+t}')
            A(f'v_fma_f32 v{a}, v{a}, s{sT2}, v{vNM}'); A(f'v_fma_f32 v{b}, v{b}, s{sT2}, v{vNM}')
            A(f'v_exp_f32 v{a}, v{a}'); A(f'v_exp_f32 v{b}, v{b}')
            A(f'v_add_f32 v{vLS}, v{vLS}, v{a}'); A(f'v_cvt_pk_bf16_f32 v{vS+t}, v{a}, v{b}'); A(f'v_add_f32 v{vLS}, v{vLS}, v{b}')
        self.wave_allreduce('add', vLS, T(0))
        A(f'v_mul_f32 v{vLS}, 0.125, v{vLS}') if False else A(f'v_mul_f32 v{vLS}, 0x3e000000, v{vLS}')
        A(f'v_mov_b32 v{T(0)}, v{vM}'); A(f'v_mov_b32 v{T(1)}, v{vLS}')
        if not self.kw.get('nocnt'):
            G.vmop(f'buffer_store_dwordx2 v[{T(0)}:{T(1)}], v{vMLp}, s[{rWS}:{rWS+3}], 0 offen sc1', 'mlst')
            G.vmwait('cnt')
        else: A('s_branch L_cnt_ok')
        A(f's_mov_b32 s{sSpin}, {self.spin}')
        A('L_cnt:')
        A(f'v_readfirstlane_b32 s{sT}, v{vCNT}')
        A(f's_cmp_ge_u32 s{sT}, 256'); A('s_cbranch_scc1 L_cnt_ok')
        A(f's_sub_u32 s{sSpin}, s{sSpin}, 1'); A('s_cbranch_scc1 L_cnt_ok')
        A(f'v_mov_b32 v{T(5)}, 0')
        A(f'buffer_load_dword v{vCNT}, v{T(5)}, s[{rDBG}:{rDBG+3}], 0 offen sc1'); A('s_waitcnt vmcnt(0)')
        A('s_branch L_cnt')
        A('L_cnt_ok:')
        G.stamp(3)
        dl = self.kw.get('delay')
        if dl:
            which, n = dl
            A(f's_cmp_lt_u32 s{sBH}, 8'); A('s_cbranch_scc%d L_nodelay' % (0 if which == 'slow' else 1))
            for _ in range(n): A('s_sleep 64')
            A('L_nodelay:')
        def vprep(t):
            if self.kw.get('novalu'): return
            for ab in range(2):
                bs = vB + 8 * (t & 1) + 4 * ab
                for jj in range(4):
                    A(f'v_perm_b32 v{bs+jj}, v{vS+t}, v{vS+t}, v{vSEL+4*ab+jj}')
        def ml_compute():
            A(f'v_mov_b32 v{T(10)}, v{vML0}')
            for r_ in (1, 2, 4, 8): A(f'v_max_f32_dpp v{T(10)}, v{T(10)}, v{T(10)} row_ror:{r_} row_mask:0xf bank_mask:0xf')
            A(f'v_sub_f32 v{T(11)}, v{vML0}, v{T(10)}'); A(f'v_mul_f32 v{T(11)}, {LOG2E}, v{T(11)}'); A(f'v_exp_f32 v{T(11)}, v{T(11)}')
            A(f'v_mul_f32 v{T(11)}, v{T(11)}, v{vML1}')
            for r_ in (1, 2, 4, 8): A(f'v_add_f32_dpp v{T(11)}, v{T(11)}, v{T(11)} row_ror:{r_} row_mask:0xf bank_mask:0xf')
            A(f'v_sub_f32 v{T(10)}, v{vM}, v{T(10)}'); A(f'v_mul_f32 v{T(10)}, {LOG2E}, v{T(10)}'); A(f'v_exp_f32 v{T(10)}, v{T(10)}')
            A(f'v_rcp_f32 v{T(12)}, v{T(11)}'); A(f'v_mul_f32 v{vF}, v{T(10)}, v{T(12)}')
            A(f'v_cmp_u_f32 vcc, v{T(11)}, v{T(11)}')
        vprep(0)
        for t in range(32):
            u = 32 + t
            r = (u % RING) * 16
            G.vmwait(f'u{u}')
            bs = vB + 8 * (t & 1)
            A(f'v_mfma_f32_16x16x32_bf16 v[{vO}:{vO+3}], a[{r}:{r+3}], v[{bs}:{bs+3}], v[{vO}:{vO+3}]')
            A(f'v_mfma_f32_16x16x32_bf16 v[{vO+4}:{vO+7}], a[{r+4}:{r+7}], v[{bs}:{bs+3}], v[{vO+4}:{vO+7}]')
            A(f'v_mfma_f32_16x16x32_bf16 v[{vO}:{vO+3}], a[{r+8}:{r+11}], v[{bs+4}:{bs+7}], v[{vO}:{vO+3}]')
            A(f'v_mfma_f32_16x16x32_bf16 v[{vO+4}:{vO+7}], a[{r+12}:{r+15}], v[{bs+4}:{bs+7}], v[{vO+4}:{vO+7}]')
            if u + RING < 64: unit_loads(u + RING)
            if t < 17 and not self.norole: emit_role_loads(t)
            if t in (7, 15, 23): G.stamp(20 + t // 8)
            if t == 27:
                A(f's_cmp_eq_u32 s{sRole}, 1'); A('s_cbranch_scc0 L_pk1')
                for s_ in range(4):
                    for jj in range(4):
                        A(f'v_perm_b32 v{vW1+4*s_+jj}, v{vR+8*s_+2*jj+1}, v{vR+8*s_+2*jj}, s{sPK}')
                A('L_pk1:')
            if t == 17 and not self.kw.get('nocnt'):
                G.vmop(f'buffer_load_dwordx2 v[{vML0}:{vML1}], v{vMLq}, s[{rWS}:{rWS+3}], 0 offen sc1', 'mlq')
            if t == 25 and not self.kw.get('nocnt'):
                G.vmwait('mlq')
                A(f's_mov_b32 s{sSpin}, {self.spin}')
                A('L_ml:')
                ml_compute()
                A('s_cbranch_vccz L_ml_ok')
                A(f's_sub_u32 s{sSpin}, s{sSpin}, 1'); A('s_cbranch_scc1 L_ml_ok')
                A(f'buffer_load_dwordx2 v[{vML0}:{vML1}], v{vMLq}, s[{rWS}:{rWS+3}], 0 offen sc1'); A('s_waitcnt vmcnt(0)')
                A('s_branch L_ml')
                A('L_ml_ok:')
            if t < 31: vprep(t + 1)
        G.stamp(4)
        if self.kw.get('quit'): A('s_branch L_fin')
        for i in range(4): A(f'v_add_f32_dpp v{T(i)}, v{vO+4+i}, v{vO+i} row_ror:8 row_mask:0xf bank_mask:0xf')
        for i in range(4): A(f'v_mul_f32 v{T(i)}, v{vF}, v{T(i)}')
        for i in range(4): A(f'ds_write_b32 v{vOPA}, v{T(i)} offset:{L_OP + 32*i}')
        A(f's_lshl_b32 s{sT}, s{sW}, 9'); A(f'v_lshlrev_b32 v{T(10)}, 2, v{vL}'); A(f'v_add_u32 v{T(10)}, s{sT}, v{T(10)}')
        A(f'v_lshrrev_b32 v{T(11)}, 3, v{vN}'); A(f'v_lshlrev_b32 v{T(11)}, 8, v{T(11)}'); A(f'v_lshl_add_u32 v{T(11)}, v{vG}, 6, v{T(11)}'); A(f'v_add_u32 v{T(11)}, s{sT}, v{T(11)}')
        A('s_waitcnt lgkmcnt(0)'); A('s_barrier')
        for w in range(4): A(f'ds_read_b64 v[{T(2*w+2)}:{T(2*w+3)}], v{vA3} offset:{L_OP + 512*w}')
        A('s_waitcnt lgkmcnt(0)')
        A(f'v_pk_add_f32 v[{T(2)}:{T(3)}], v[{T(2)}:{T(3)}], v[{T(4)}:{T(5)}]'); A(f'v_pk_add_f32 v[{T(6)}:{T(7)}], v[{T(6)}:{T(7)}], v[{T(8)}:{T(9)}]')
        A(f'v_pk_add_f32 v[{T(2)}:{T(3)}], v[{T(2)}:{T(3)}], v[{T(6)}:{T(7)}]')
        A(f'v_cvt_pk_bf16_f32 v{T(4)}, v{T(2)}, v{T(3)}')
        A(f'v_lshlrev_b32 v{T(5)}, 16, v{T(4)}'); A(f'v_and_b32 v{T(6)}, 0xffff0000, v{T(4)}')
        A(f'v_sub_f32 v{T(5)}, v{T(2)}, v{T(5)}'); A(f'v_sub_f32 v{T(6)}, v{T(3)}, v{T(6)}')
        A(f'ds_write_b32 v{T(10)}, v{T(4)} offset:{L_OH}')
        A(f'v_cvt_pk_bf16_f32 v{T(5)}, v{T(5)}, v{T(6)}')
        A(f'ds_write_b32 v{T(10)}, v{T(5)} offset:{L_OH+256}')
        A('s_waitcnt lgkmcnt(0)')
        for k in range(4): A(f'ds_read_b128 v[{vXP+4*k}:{vXP+4*k+3}], v{T(11)} offset:{L_OH+16*k}')
        A('s_waitcnt lgkmcnt(0)')
        delta_steps(32, vDQ, None)
        for i in range(4): A(f'v_add_f32_dpp v{T(i)}, v{vDQ+i}, v{vDQ+i} row_ror:8 row_mask:0xf bank_mask:0xf')
        G.vmop(f'buffer_store_dwordx4 v[{T(0)}:{T(3)}], v{vC1}, s[{rWS}:{rWS+3}], 0 offen sc1', 'c1st')
        G.stamp(5)
        A(f's_cmp_eq_u32 s{sRole}, 1'); A('s_cbranch_scc1 L_m1')
        A(f's_cmp_eq_u32 s{sRole}, 2'); A('s_cbranch_scc0 L_fin')
        A(f's_cmp_eq_u32 s{sW}, 0'); A('s_cbranch_scc0 L_fin')
        def gather_reduce(nl, voff, lab):
            A(f's_mov_b32 s{sSpin}, {self.spin}')
            A(f'{lab}:')
            for k in range(nl):
                if k % 4 == 0: A(f's_mov_b32 s{sT}, {(k//4)*4096}')
                A(f'buffer_load_dwordx4 v[{vR+4*k}:{vR+4*k+3}], v{voff}, s[{rWS}:{rWS+3}], s{sT} offen offset:{(k%4)*1024} sc1')
            k = 1
            A(f's_waitcnt vmcnt({nl-2})')
            for c in (0, 2): A(f'v_pk_add_f32 v[{T(c)}:{T(c+1)}], v[{vR+c}:{vR+c+1}], v[{vR+4+c}:{vR+4+c+1}]')
            for k in range(2, nl):
                A(f's_waitcnt vmcnt({nl-1-k})')
                for c in (0, 2): A(f'v_pk_add_f32 v[{T(c)}:{T(c+1)}], v[{T(c)}:{T(c+1)}], v[{vR+4*k+c}:{vR+4*k+c+1}]')
            A(f'v_cmp_u_f32 vcc, v{T(0)}, v{T(1)}'); A(f'v_cmp_u_f32 s[{sM}:{sM+1}], v{T(2)}, v{T(3)}')
            A(f's_or_b64 vcc, vcc, s[{sM}:{sM+1}]')
            A(f's_cbranch_vccz {lab}_ok')
            A(f's_sub_u32 s{sSpin}, s{sSpin}, 1'); A(f's_cbranch_scc0 {lab}')
            A(f'{lab}_ok:')
            A(f'v_permlane32_swap_b32 v{T(0)}, v{T(2)}'); A(f'v_permlane32_swap_b32 v{T(1)}, v{T(3)}')
            A(f'v_add_f32 v{T(0)}, v{T(0)}, v{T(2)}'); A(f'v_add_f32 v{T(1)}, v{T(1)}, v{T(3)}')
            A(f'v_permlane16_swap_b32 v{T(0)}, v{T(1)}'); A(f'v_add_f32 v{T(0)}, v{T(0)}, v{T(1)}')
            A(f'v_add_f32_dpp v{T(0)}, v{T(0)}, v{T(0)} row_ror:4 row_mask:0xf bank_mask:0xf')
            A(f'v_add_f32_dpp v{T(0)}, v{T(0)}, v{T(0)} row_ror:8 row_mask:0xf bank_mask:0xf')
        A(f'v_lshlrev_b32 v{vXV}, 16, v{vXV}'); A(f'v_lshlrev_b32 v{vB2V}, 16, v{vB2V}')
        gather_reduce(8, vHOFF, 'L_g1')
        G.stamp(6)
        G.rbf(T(0)); A(f'v_add_f32 v{T(0)}, v{vXV}, v{T(0)}'); G.rbf(vHV, T(0))
        A(f'buffer_store_dword v{vHV}, v{vRS}, s[{rWS}:{rWS+3}], 0 offen sc1')
        G.stamp(7)
        gather_reduce(7, vWOFF2, 'L_g2')
        G.stamp(8)
        G.rbf(T(0)); A(f'v_add_f32 v{T(0)}, v{vB2V}, v{T(0)}'); G.rbf(T(0)); A(f'v_add_f32 v{T(0)}, v{vHV}, v{T(0)}')
        A(f'v_cvt_pk_bf16_f32 v{T(0)}, v{T(0)}, v{T(0)}')
        A(f'buffer_store_short v{T(0)}, v{vOUTA}, s[{rOUT}:{rOUT+3}], 0 offen')
        A('s_branch L_fin')
        A('L_m1:')
        A(f's_lshl_b32 s{sT}, s{sW}, 9'); A(f'v_lshrrev_b32 v{T(0)}, 5, v{vL}'); A(f'v_lshlrev_b32 v{T(0)}, 8, v{T(0)}'); A(f'v_and_b32 v{T(1)}, 31, v{vL}')
        A(f'v_lshl_add_u32 v{T(0)}, v{T(1)}, 3, v{T(0)}'); A(f'v_add_u32 v{vA1}, s{sT}, v{T(0)}')
        A(f'v_and_b32 v{T(0)}, 1, v{vN}'); A(f'v_lshlrev_b32 v{T(0)}, 8, v{T(0)}'); A(f'v_lshl_add_u32 v{T(0)}, v{vG}, 4, v{T(0)}'); A(f'v_add_u32 v{vA2}, s{sT}, v{T(0)}')
        A(f's_lshl_b32 s{sT}, s{sW}, 7'); A(f'v_lshlrev_b32 v{T(0)}, 2, v{vN}'); A(f'v_add_u32 v{vA3}, s{sT}, v{T(0)}')
        A(f'v_lshrrev_b32 v{T(0)}, 3, v{vN}'); A(f'v_lshlrev_b32 v{T(0)}, 6, v{T(0)}'); A(f'v_and_b32 v{T(1)}, 3, v{vN}'); A(f'v_lshl_add_u32 v{T(1)}, v{vG}, 2, v{T(1)}')
        A(f'v_lshl_add_u32 v{vA4}, v{T(1)}, 2, v{T(0)}')
        A(f'v_lshlrev_b32 v{vB1}, 16, v{vB1}')
        A(f's_mov_b32 s{sSpin}, {self.spin}')
        H = [vR + i for i in range(16)]
        A('L_g3:')
        for kk in range(4):
            A(f's_add_u32 s{sT}, s{sW}, {kk}'); A(f's_and_b32 s{sT}, s{sT}, 3'); A(f's_lshl_b32 s{sT}, s{sT}, 9')
            A(f'buffer_load_dwordx4 v[{vR+4*kk}:{vR+4*kk+3}], v{vHOFF}, s[{rWS}:{rWS+3}], s{sT} offen sc1')
        A('s_waitcnt vmcnt(0)')
        A(f'v_pk_add_f32 v[{T(0)}:{T(1)}], v[{H[0]}:{H[1]}], v[{H[2]}:{H[3]}]')
        for k in range(2, 8): A(f'v_pk_add_f32 v[{T(0)}:{T(1)}], v[{T(0)}:{T(1)}], v[{H[2*k]}:{H[2*k+1]}]')
        A(f'v_add_f32 v{T(0)}, v{T(0)}, v{T(1)}')
        A(f'v_cmp_u_f32 vcc, v{T(0)}, v{T(0)}')
        A('s_cbranch_vccz L_g3_ok')
        A(f's_sub_u32 s{sSpin}, s{sSpin}, 1'); A('s_cbranch_scc0 L_g3')
        A('L_g3_ok:')
        G.stamp(6)
        self.half_allreduce('add', T(0), T(1))
        A(f'v_mul_f32 v{T(0)}, 0x3b000000, v{T(0)}')
        A(f'v_sub_f32 v{T(2)}, v{H[0]}, v{T(0)}'); A(f'v_mul_f32 v{T(3)}, v{T(2)}, v{T(2)}')
        A(f'v_sub_f32 v{T(4)}, v{H[1]}, v{T(0)}'); A(f'v_mul_f32 v{T(5)}, v{T(4)}, v{T(4)}')
        for k in range(2, 16, 2):
            A(f'v_sub_f32 v{T(2)}, v{H[k]}, v{T(0)}'); A(f'v_sub_f32 v{T(4)}, v{H[k+1]}, v{T(0)}')
            A(f'v_fmac_f32 v{T(3)}, v{T(2)}, v{T(2)}'); A(f'v_fmac_f32 v{T(5)}, v{T(4)}, v{T(4)}')
        A(f'v_add_f32 v{T(3)}, v{T(3)}, v{T(5)}')
        self.half_allreduce('add', T(3), T(1))
        self.ln_finish(T(0), T(3), T(8), T(9), 1.0 / 512)
        Y = H[0:4]
        self.ln_apply(Y, T(8), T(9))
        A(f'v_cvt_pk_bf16_f32 v{T(4)}, v{Y[0]}, v{Y[1]}'); A(f'v_cvt_pk_bf16_f32 v{T(5)}, v{Y[2]}, v{Y[3]}')
        A(f'ds_write_b64 v{vA1}, v[{T(4)}:{T(5)}] offset:{L_YB}')
        A('s_waitcnt lgkmcnt(0)')
        for s_ in range(4): A(f'ds_read_b128 v[{vXP+4*s_}:{vXP+4*s_+3}], v{vA2} offset:{L_YB+64*s_}')
        for s_ in range(4):
            A(f's_waitcnt lgkmcnt({3-s_})')
            c = '0' if s_ == 0 else f'v[{vDQ}:{vDQ+3}]'
            A(f'v_mfma_f32_16x16x32_bf16 v[{vDQ}:{vDQ+3}], v[{vXP+4*s_}:{vXP+4*s_+3}], v[{vW1+4*s_}:{vW1+4*s_+3}], {c}')
        A(f'ds_write_b32 v{vA3}, v{vDQ} offset:{L_TP}'); A(f'ds_write_b32 v{vA3}, v{vDQ+1} offset:{L_TP+64}')
        A('s_waitcnt lgkmcnt(0)'); A('s_barrier')
        for w in range(4): A(f'ds_read_b32 v{T(w)}, v{vA4} offset:{L_TP+128*w}')
        A('s_waitcnt lgkmcnt(0)')
        A(f'v_add_f32 v{T(0)}, v{T(0)}, v{T(1)}'); A(f'v_add_f32 v{T(2)}, v{T(2)}, v{T(3)}'); A(f'v_add_f32 v{T(0)}, v{T(0)}, v{T(2)}')
        G.rbf(T(0)); A(f'v_add_f32 v{T(0)}, v{vB1}, v{T(0)}'); G.rbf(T(0))
        import struct, math
        f2u = lambda f: struct.unpack('<I', struct.pack('<f', f))[0]
        K0 = -2 * math.log2(math.e) * math.sqrt(2 / math.pi); K1 = K0 * 0.044715
        A(f'v_mul_f32 v{T(1)}, v{T(0)}, v{T(0)}'); A(f'v_mov_b32 v{T(2)}, {hex(f2u(K0))}'); A(f'v_fmac_f32 v{T(2)}, {hex(f2u(K1))}, v{T(1)}')
        A(f'v_mul_f32 v{T(1)}, v{T(0)}, v{T(2)}'); A(f'v_exp_f32 v{T(1)}, v{T(1)}'); A(f'v_add_f32 v{T(1)}, 1.0, v{T(1)}'); A(f'v_rcp_f32 v{T(1)}, v{T(1)}')
        A(f'v_mul_f32 v{T(0)}, v{T(0)}, v{T(1)}'); A(f'v_cvt_pk_bf16_f32 v{vGA}, v{T(0)}, v{T(0)}')
        for ii in range(4):
            bs = vB + 4 * ii
            for jj in range(4):
                A(f'v_and_b32_dpp v{bs+jj}, v{vGA}, v{vMASK+jj} quad_perm:[{ii},{ii},{ii},{ii}] row_mask:0xf bank_mask:0xf')
        for ii in range(4):
            bs = vB + 4 * ii
            c = '0' if ii == 0 else f'v[{vDQ}:{vDQ+3}]'
            A(f'v_mfma_f32_16x16x32_bf16 v[{vDQ}:{vDQ+3}], v[{vW2+4*ii}:{vW2+4*ii+3}], v[{bs}:{bs+3}], {c}')
        A(f'buffer_store_dwordx4 v[{vDQ}:{vDQ+3}], v{vRS}, s[{rWS}:{rWS+3}], 0 offen sc1')
        G.stamp(7)
        A('L_fin:')
        if self.diag:
            A(f's_lshl_b32 s{sT}, s2, 2'); A(f's_add_u32 s{sT}, s{sT}, s{sW}'); A(f's_lshl_b32 s{sT}, s{sT}, 7'); A(f's_add_u32 s{sT}, s{sT}, {WS_DIAG}')
            A('s_memrealtime s[96:97]'); A('s_getreg_b32 s98, hwreg(HW_REG_XCC_ID)'); A('s_waitcnt lgkmcnt(0)')
            A('v_writelane_b32 v251, s96, 14'); A('v_writelane_b32 v251, s98, 15')
            A(f'v_lshlrev_b32 v{T(0)}, 2, v{vL}'); A(f'v_add_u32 v{T(0)}, s{sT}, v{T(0)}')
            A(f'v_mov_b32 v{T(1)}, {OOB}'); A(f'v_cmp_gt_u32 vcc, 32, v{vL}'); A(f'v_cndmask_b32 v{T(0)}, v{T(1)}, v{T(0)}, vcc')
            A(f'buffer_store_dword v251, v{T(0)}, s[{rWS}:{rWS+3}], 0 offen')
            if self.kw.get('st3'):
                A(f's_lshl_b32 s{sT}, s2, 2'); A(f's_add_u32 s{sT}, s{sT}, s{sW}'); A(f's_lshl_b32 s{sT}, s{sT}, 8'); A(f's_add_u32 s{sT}, s{sT}, {WS_DIAG + 0x20000}')
                A(f'v_lshlrev_b32 v{T(0)}, 2, v{vL}'); A(f'v_add_u32 v{T(0)}, s{sT}, v{T(0)}')
                A(f'buffer_store_dword v252, v{T(0)}, s[{rWS}:{rWS+3}], 0 offen')
        A('L_end:')
        A('s_endpgm')
        return self.wrap()

    def ln_finish(self, mean, ss, om, orstd, inv_n):
        A = self.A
        import struct
        f2u = lambda f: struct.unpack('<I', struct.pack('<f', f))[0]
        A(f'v_mul_f32 v{ss}, {hex(f2u(inv_n))}, v{ss}'); self.rbf(ss)
        A(f'v_add_f32 v{ss}, {hex(f2u(1e-5))}, v{ss}'); self.rbf(ss)
        A(f'v_sqrt_f32 v{ss}, v{ss}'); self.rbf(ss)
        A(f'v_rcp_f32 v{orstd}, v{ss}')
        self.rbf(om, mean)
    def ln_stats(self, X, om, orstd, t0, t1, inv_n, red):
        A = self.A
        import struct
        f2u = lambda f: struct.unpack('<I', struct.pack('<f', f))[0]
        A(f'v_add_f32 v{t0}, v{X[0]}, v{X[1]}')
        for x in X[2:]: A(f'v_add_f32 v{t0}, v{t0}, v{x}')
        red('add', t0, t1)
        A(f'v_mul_f32 v{t0}, {hex(f2u(inv_n))}, v{t0}')
        A(f'v_sub_f32 v{t1}, v{X[0]}, v{t0}'); A(f'v_mul_f32 v{orstd}, v{t1}, v{t1}')
        for x in X[1:]:
            A(f'v_sub_f32 v{t1}, v{x}, v{t0}'); A(f'v_fmac_f32 v{orstd}, v{t1}, v{t1}')
        red('add', orstd, t1)
        A(f'v_mov_b32 v{t1}, v{orstd}')
        self.ln_finish(t0, t1, om, orstd, inv_n)
    def ln_apply(self, X, m, rstd):
        A = self.A
        for k in range(0, len(X), 2):
            A(f'v_sub_f32 v{X[k]}, v{X[k]}, v{m}'); A(f'v_sub_f32 v{X[k+1]}, v{X[k+1]}, v{m}')
            A(f'v_cvt_pk_bf16_f32 v{X[k+1]}, v{X[k]}, v{X[k+1]}')
            A(f'v_lshlrev_b32 v{X[k]}, 16, v{X[k+1]}'); A(f'v_and_b32 v{X[k+1]}, 0xffff0000, v{X[k+1]}')
            A(f'v_mul_f32 v{X[k]}, v{X[k]}, v{rstd}'); A(f'v_mul_f32 v{X[k+1]}, v{X[k+1]}, v{rstd}')

    def finish_debug(self, regs):
        raise NotImplementedError

    def wrap(self):
        body = hz.fix(self.L)
        H = []
        H.append(f'; @launch grid=(256,1,1) block=(256,1,1) lds={LDS_SIZE}')
        H.append('.amdgcn_target "amdgcn-amd-amdhsa--gfx950"')
        H.append('.text'); H.append(f'.globl {KN}'); H.append('.p2align 8'); H.append(f'.type {KN},@function'); H.append(f'{KN}:')
        H += body
        H.append('.section .rodata,"a"'); H.append('.p2align 6'); H.append(f'.amdhsa_kernel {KN}')
        H.append('  .amdhsa_next_free_vgpr 512'); H.append('  .amdhsa_next_free_sgpr 102'); H.append('  .amdhsa_accum_offset 256')
        H.append('  .amdhsa_group_segment_fixed_size 0'); H.append('  .amdhsa_kernarg_size 104'); H.append('  .amdhsa_user_sgpr_count 2')
        H.append('  .amdhsa_user_sgpr_kernarg_segment_ptr 1'); H.append('  .amdhsa_system_sgpr_workgroup_id_x 1')
        H.append('.end_amdhsa_kernel')
        return '\n'.join(H) + '\n'

if __name__ == '__main__':
    import ast
    kw = eval('dict(%s)' % (sys.argv[2] if len(sys.argv) > 2 else ''))
    open(sys.argv[1], 'w').write(Gen(**kw).gen())
```

```python
import sys
import hz
KN = 'sequential_preLN__mha_block_cached__mixer_channel_mlp__decode_kernel'

WS_ML = 0x0
WS_H  = 0x2000
WS_PROG = 0x4000
WS_C1 = 0x10000
WS_C2 = 0x90000
WS_SIZE = 0x100000
WS_DIAG = 0x100000
OOB = 0x7ff00000

L_XN = 0
L_QP = 4096
L_QB = 6144
L_OP = 7168
L_OH = 9216
L_YB = 11264
L_TP = 13312
L_DUMMY = 13824
L_LIM = 15360
L_DUM2 = 15616
LDS_SIZE = 16384

SCALE = 0x3DB504F3
LOG2E = 0x3FB8AA3B

class Gen:
    def __init__(self, diag=False, nt='nt', wnt='', spin=1 << 15, ring=8, pre=6, stop=None, nowo=False, nowq=False, norole=False, **kw):
        self.L = []
        self.vm = []
        self.done = -1
        self.diag = diag; self.nt = nt; self.wnt = wnt; self.spin = spin
        self.ring = ring; self.pre = pre; self.stop = stop
        self.nstamp = 0; self.n3 = 0; self.lidx = {}
        self.nowo = nowo; self.nowq = nowq; self.norole = norole; self.kw = kw
    def A(self, s):
        if self.kw.get('nomfma') and s.startswith('v_mfma'): return
        self.L.append('  ' + s if not s.endswith(':') else s)
    def vmop(self, s, tag, optional=False):
        self.A(s); self.vm.append((tag, optional))
        if self.kw.get('st3') and self.n3 < 64 and not optional:
            self.A('s_memrealtime s[96:97]'); self.A('s_waitcnt lgkmcnt(0)'); self.A('v_writelane_b32 v252, s96, %d' % self.n3); self.n3 += 1
        out = len(self.vm) - 1 - self.done
        assert out <= 63, ('too many outstanding', out, tag)
    def vmwait(self, tag):
        idx = max(i for i, (t, o) in enumerate(self.vm) if t == tag)
        n = sum(1 for (t, o) in self.vm[idx + 1:] if not o)
        assert n <= 63
        self.A('s_waitcnt vmcnt(%d)' % n)
        self.done = max(self.done, idx)
    def vmwait_idx(self, idx):
        n = sum(1 for (t, o) in self.vm[idx + 1:] if not o)
        assert n <= 63
        self.A('s_waitcnt vmcnt(%d)' % n)
        self.done = max(self.done, idx)
    def vmdrain(self):
        self.A('s_waitcnt vmcnt(0)'); self.done = len(self.vm) - 1
    def stamp(self, k):
        if self.diag:
            self.A('s_memrealtime s[96:97]'); self.A('s_waitcnt lgkmcnt(0)')
            self.A('v_mov_b32 v250, s96'); self.A('v_writelane_b32 v251, s96, %d' % k)

    def srd(self, r, lo, hi, size, off=None):
        A = self.A
        if off is None:
            A(f's_mov_b32 s{r}, s{lo}'); A(f's_and_b32 s{r+1}, s{hi}, 0xffff')
        else:
            A(f's_add_u32 s{r}, s{lo}, {off}'); A(f's_addc_u32 s{r+1}, s{hi}, 0'); A(f's_and_b32 s{r+1}, s{r+1}, 0xffff')
        A(f's_mov_b32 s{r+2}, {size}'); A(f's_mov_b32 s{r+3}, 0x20000')

    def wave_allreduce(self, op, v, t):
        A = self.A
        for r in (1, 2, 4, 8):
            A(f'v_{op}_f32_dpp v{v}, v{v}, v{v} row_ror:{r} row_mask:0xf bank_mask:0xf')
        A(f'v_mov_b32 v{t}, v{v}'); A(f'v_permlane16_swap_b32 v{v}, v{t}'); A(f'v_{op}_f32 v{v}, v{v}, v{t}')
        A(f'v_mov_b32 v{t}, v{v}'); A(f'v_permlane32_swap_b32 v{v}, v{t}'); A(f'v_{op}_f32 v{v}, v{v}, v{t}')
    def half_allreduce(self, op, v, t):
        A = self.A
        for r in (1, 2, 4, 8):
            A(f'v_{op}_f32_dpp v{v}, v{v}, v{v} row_ror:{r} row_mask:0xf bank_mask:0xf')
        A(f'v_mov_b32 v{t}, v{v}'); A(f'v_permlane16_swap_b32 v{v}, v{t}'); A(f'v_{op}_f32 v{v}, v{v}, v{t}')
    def rbf(self, v, src=None):
        A = self.A
        s = v if src is None else src
        A(f'v_cvt_pk_bf16_f32 v{v}, v{s}, v{s}'); A(f'v_and_b32 v{v}, 0xffff0000, v{v}')

    def gen(self):
        A = self.A; G = self
        RING = self.ring; nt = self.nt; wnt = self.wnt
        sW = 3
        pX, pK, pV, pWQ, pWO, pW1, pB1, pW2, pB2, pOUT, pDBG, pWS = 4, 6, 8, 10, 12, 16, 18, 20, 22, 24, 26, 28
        rK, rV, rWQ, rWO, rWS, rDBG, rX, rW1, rW2, rB1, rB2, rOUT = 32, 36, 40, 44, 48, 52, 56, 60, 64, 68, 72, 76
        sOff, sT, sH, sB, sS, sBH, sRole, sSpin, sT2, sU = 80, 81, 82, 83, 84, 85, 86, 87, 88, 89
        sM = 90
        sPK = 92
        sAt = 93
        vL, vN, vG = 1, 2, 3
        vK, vV, vWQ, vWO, vC1, vMLp, vMLq, vRS = 4, 5, 6, 7, 8, 9, 10, 11
        vSEL = 12
        vMASK = 20
        vBQ = 24
        vS = 32
        vD = 64
        vO = 80
        vB = 88
        vXP = 104
        vDQ = 120
        vT = 124
        vMX, vLS, vM, vNM, vF, vML0, vML1, vCNT = 140, 141, 142, 143, 208, 210, 211, 212
        vW1 = 144
        vW2 = 160
        vR = 176
        vB1, vXV, vB2V, vHV, vOPA, vSENT, vOUTA = 213, 214, 215, 216, 217, 220, 218
        vA1, vA2, vA3, vA4 = 224, 225, 226, 227
        vXR = 228
        vWOFF1, vWOFF2, vB1OFF, vHOFF, vGA = 232, 233, 234, 235, 236
        vONE, vATO = 237, 238
        vXOFF, vB2OFF, vC2OFF = 239, 240, 241
        vPROG = (242, 209); vPUBO, vPRO, vLIMW, vLIMR, vLIM, vPV, vPT, vPT2, vWIN = 243, 244, 245, 246, 247, 248, 249, 219, 253
        vSNAP, vEFF = 254, 255
        sLim, sSp2 = 94, 95
        THR = self.kw.get('thr'); CHK = self.kw.get('chk', 2); NREP = self.kw.get('nrep', 32)
        aW = 128
        T = lambda i: vT + i

        A('s_cmp_ge_u32 s2, 256'); A('s_cbranch_scc1 L_end')
        if self.kw.get('wgx'): A('s_xor_b32 s2, s2, %d' % self.kw['wgx'])
        if self.kw.get('hperm'):
            pc = sum(v << (4 * i) for i, v in enumerate(self.kw['hperm']))
            A('s_and_b32 s3, s2, 7'); A('s_lshl_b32 s3, s3, 2'); A('s_lshr_b32 s3, %d, s3' % pc); A('s_and_b32 s3, s3, 7')
            A('s_andn2_b32 s2, s2, 7'); A('s_or_b32 s2, s2, s3')
        A(f's_load_dwordx16 s[4:19], s[0:1], 0'); A('s_load_dwordx8 s[20:27], s[0:1], 64'); A('s_load_dwordx2 s[28:29], s[0:1], 96')
        if self.diag:
            A('v_mov_b32 v251, 0')
            G.stamp(0)
        A(f'v_and_b32 v{vL}, 63, v0'); A(f'v_lshrrev_b32 v{T(0)}, 6, v0'); A(f'v_and_b32 v{vN}, 15, v0')
        A(f'v_readfirstlane_b32 s{sW}, v{T(0)}')
        A(f'v_lshrrev_b32 v{vG}, 4, v{vL}')
        A(f's_and_b32 s{sH}, s2, 31'); A(f's_lshr_b32 s{sB}, s2, 5'); A(f's_and_b32 s{sB}, s{sB}, 1'); A(f's_lshr_b32 s{sS}, s2, 6'); A(f's_and_b32 s{sBH}, s2, 63')
        A(f's_lshl_b32 s{sT}, s{sW}, 12')
        A(f'v_lshrrev_b32 v{T(0)}, 1, v{vN}'); A(f'v_lshlrev_b32 v{T(0)}, 8, v{T(0)}')
        A(f'v_and_b32 v{T(1)}, 1, v{vN}'); A(f'v_lshl_add_u32 v{T(0)}, v{T(1)}, 6, v{T(0)}')
        A(f'v_lshl_add_u32 v{T(0)}, v{vG}, 4, v{T(0)}'); A(f'v_add_u32 v{vK}, s{sT}, v{T(0)}')
        A(f'v_lshlrev_b32 v{T(0)}, 9, v{vG}'); A(f'v_lshl_add_u32 v{T(0)}, v{vN}, 4, v{T(0)}'); A(f'v_add_u32 v{vV}, s{sT}, v{T(0)}')
        A(f's_lshl_b32 s{sT}, s{sW}, 20'); A(f'v_lshlrev_b32 v{T(0)}, 18, v{vG}'); A(f'v_lshl_add_u32 v{T(0)}, v{vN}, 4, v{T(0)}'); A(f'v_add_u32 v{vWQ}, s{sT}, v{T(0)}')
        A(f's_lshl_b32 s{sT}, s{sB}, 10'); A(f'v_lshlrev_b32 v{T(2)}, 4, v{vL}'); A(f'v_add_u32 v{T(2)}, s{sT}, v{T(2)}')
        A(f's_lshl_b32 s{sT}, s{sB}, 5'); A(f's_lshl_b32 s{sT2}, s{sW}, 3'); A(f's_add_u32 s{sT}, s{sT}, s{sT2}')
        A(f's_lshl_b32 s{sT}, s{sT}, 13')
        A(f's_lshl_b32 s{sT2}, s{sH}, 2'); A(f's_add_u32 s{sT2}, s{sT2}, s{sS}'); A(f's_lshl_b32 s{sT2}, s{sT2}, 6')
        A(f's_add_u32 s{sT}, s{sT}, s{sT2}'); A(f's_add_u32 s{sT}, s{sT}, {WS_C1}')
        A(f'v_lshlrev_b32 v{T(0)}, 1, v{vG}'); A(f'v_lshrrev_b32 v{T(1)}, 2, v{vN}'); A(f'v_add_u32 v{T(0)}, v{T(0)}, v{T(1)}')
        A(f'v_lshlrev_b32 v{T(0)}, 13, v{T(0)}'); A(f'v_and_b32 v{T(1)}, 3, v{vN}'); A(f'v_lshl_add_u32 v{T(0)}, v{T(1)}, 4, v{T(0)}')
        A(f'v_add_u32 v{T(0)}, s{sT}, v{T(0)}')
        A(f'v_mov_b32 v{T(1)}, {OOB}'); A(f'v_cmp_gt_u32 vcc, 8, v{vN}')
        A(f'v_cndmask_b32 v{vC1}, v{T(1)}, v{T(0)}, vcc')
        A(f's_lshl_b32 s{sT}, s{sBH}, 7'); A(f's_lshl_b32 s{sT2}, s{sS}, 2'); A(f's_add_u32 s{sT2}, s{sT2}, s{sW}'); A(f's_lshl_b32 s{sT2}, s{sT2}, 3')
        A(f's_add_u32 s{sT2}, s{sT2}, s{sT}'); A(f'v_mov_b32 v{T(0)}, s{sT2}'); A(f'v_mov_b32 v{T(1)}, {OOB}')
        A(f'v_cmp_eq_u32 vcc, 0, v{vL}'); A(f'v_cndmask_b32 v{vMLp}, v{T(1)}, v{T(0)}, vcc')
        A(f'v_lshlrev_b32 v{T(0)}, 3, v{vN}'); A(f'v_add_u32 v{vMLq}, s{sT}, v{T(0)}')
        rot = self.kw.get('rot')
        if rot:
            A(f's_mul_i32 s99, s2, {rot}'); A(f's_lshr_b32 s{sT}, s2, 5'); A(f's_add_u32 s99, s99, s{sT}'); A('s_and_b32 s99, s99, 31'); A('s_lshl_b32 s99, s99, 14')
        A(f's_mov_b32 s{sRole}, 0')
        A(f's_and_b32 s{sT}, s2, 7'); A(f's_mul_i32 s{sT}, s{sT}, 14'); A(f's_lshr_b32 s{sT2}, s2, 3'); A(f's_add_u32 s{sU}, s{sT}, s{sT2}')
        A(f's_cmp_lt_u32 s2, 112'); A(f's_cselect_b32 s{sRole}, 1, 0')
        A(f's_sub_u32 s{sT}, s2, 128'); A(f's_cmp_lt_u32 s{sT}, 64'); A(f's_cselect_b32 s{sRole}, 2, s{sRole}'); A(f's_cselect_b32 s{sU}, s{sT}, s{sU}')
        for r_ in (vRS, vWOFF1, vWOFF2, vB1OFF, vHOFF, vOUTA, vXOFF, vB2OFF, vC2OFF): A(f'v_mov_b32 v{r_}, {OOB}')
        A(f's_cmp_eq_u32 s{sRole}, 1'); A('s_cbranch_scc0 L_r1')
        A(f'v_lshrrev_b32 v{T(0)}, 3, v{vN}'); A(f'v_lshlrev_b32 v{T(0)}, 5, v{T(0)}')
        A(f'v_lshl_add_u32 v{T(0)}, v{vG}, 1, v{T(0)}'); A(f'v_bfe_u32 v{T(1)}, v{vN}, 2, 1'); A(f'v_add_u32 v{T(0)}, v{T(0)}, v{T(1)}')
        A(f's_lshl_b32 s{sT}, s{sW}, 3'); A(f'v_add_u32 v{T(0)}, s{sT}, v{T(0)}')
        A(f'v_mul_u32_u24 v{T(0)}, {112*64}, v{T(0)}'); A(f'v_and_b32 v{T(1)}, 3, v{vN}'); A(f'v_lshl_add_u32 v{T(0)}, v{T(1)}, 4, v{T(0)}')
        A(f's_lshl_b32 s{sT}, s{sU}, 6'); A(f's_add_u32 s{sT}, s{sT}, {WS_C2}'); A(f'v_add_u32 v{vRS}, s{sT}, v{T(0)}')
        A(f'v_lshrrev_b32 v{T(0)}, 1, v{vG}'); A(f'v_lshlrev_b32 v{T(0)}, 2, v{T(0)}'); A(f'v_and_b32 v{T(1)}, 1, v{vG}'); A(f'v_lshl_add_u32 v{T(0)}, v{T(1)}, 1, v{T(0)}')
        A(f's_lshl_b32 s{sT}, s{sW}, 7'); A(f'v_add_u32 v{T(0)}, s{sT}, v{T(0)}'); A(f'v_mul_u32_u24 v{T(0)}, 3584, v{T(0)}')
        A(f's_lshl_b32 s{sT}, s{sU}, 5'); A(f'v_lshl_add_u32 v{T(0)}, v{vN}, 1, v{T(0)}'); A(f'v_add_u32 v{vWOFF1}, s{sT}, v{T(0)}')
        A(f's_lshl_b32 s{sT}, s{sU}, 14'); A(f's_lshl_b32 s{sT2}, s{sW}, 8'); A(f's_add_u32 s{sT}, s{sT}, s{sT2}')
        A(f'v_lshlrev_b32 v{T(0)}, 12, v{vG}'); A(f'v_lshl_add_u32 v{T(0)}, v{vN}, 4, v{T(0)}'); A(f'v_add_u32 v{vWOFF2}, s{sT}, v{T(0)}')
        A(f's_lshl_b32 s{sT}, s{sU}, 5'); A(f'v_and_b32 v{T(0)}, 3, v{vN}'); A(f'v_lshl_add_u32 v{T(0)}, v{vG}, 2, v{T(0)}'); A(f'v_lshlrev_b32 v{T(0)}, 1, v{T(0)}'); A(f'v_add_u32 v{vB1OFF}, s{sT}, v{T(0)}')
        A(f'v_lshrrev_b32 v{T(0)}, 5, v{vL}'); A(f'v_lshlrev_b32 v{T(0)}, 11, v{T(0)}'); A(f'v_and_b32 v{T(1)}, 31, v{vL}'); A(f'v_lshl_add_u32 v{T(0)}, v{T(1)}, 4, v{T(0)}')
        A(f'v_add_u32 v{vHOFF}, {WS_H}, v{T(0)}')
        A('s_branch L_r2')
        A('L_r1:')
        A(f's_cmp_eq_u32 s{sRole}, 2'); A('s_cbranch_scc0 L_r2')
        A(f's_cmp_eq_u32 s{sW}, 0'); A('s_cbranch_scc0 L_r2')
        A(f's_lshl_b32 s{sT}, s{sU}, 6'); A(f's_add_u32 s{sT}, s{sT}, {WS_H}')
        A(f'v_lshlrev_b32 v{T(0)}, 4, v{vN}'); A(f'v_lshl_add_u32 v{T(0)}, v{vG}, 2, v{T(0)}'); A(f'v_add_u32 v{T(0)}, s{sT}, v{T(0)}')
        A(f'v_mov_b32 v{T(1)}, {OOB}'); A(f'v_cmp_gt_u32 vcc, 4, v{vN}'); A(f'v_cndmask_b32 v{vRS}, v{T(1)}, v{T(0)}, vcc')
        A(f's_and_b32 s{sT}, s{sU}, 31'); A(f's_lshr_b32 s{sT2}, s{sT}, 1'); A(f's_lshl_b32 s{sT2}, s{sT2}, 5')
        A(f's_and_b32 s{sT}, s{sT}, 1'); A(f's_lshl_b32 s{sT}, s{sT}, 2'); A(f's_add_u32 s{sT}, s{sT}, s{sT2}')
        A(f'v_and_b32 v{T(0)}, 3, v{vN}'); A(f'v_lshl_add_u32 v{T(0)}, v{vG}, 3, v{T(0)}'); A(f'v_add_u32 v{T(0)}, s{sT}, v{T(0)}')
        A(f'v_lshlrev_b32 v{vB2OFF}, 1, v{T(0)}')
        A(f's_lshr_b32 s{sT}, s{sU}, 5'); A(f's_lshl_b32 s{sT}, s{sT}, 10'); A(f'v_add_u32 v{vXOFF}, s{sT}, v{vB2OFF}')
        A(f'v_mov_b32 v{T(1)}, {OOB}'); A(f'v_cmp_gt_u32 vcc, 4, v{vN}'); A(f'v_cndmask_b32 v{vOUTA}, v{T(1)}, v{vXOFF}, vcc')
        A(f's_lshl_b32 s{sT}, s{sU}, 13'); A(f's_add_u32 s{sT}, s{sT}, {WS_C1}'); A(f'v_lshlrev_b32 v{T(0)}, 4, v{vL}'); A(f'v_add_u32 v{vHOFF}, s{sT}, v{T(0)}')
        A(f's_mul_i32 s{sT}, s{sU}, 7168'); A(f's_add_u32 s{sT}, s{sT}, {WS_C2}'); A(f'v_add_u32 v{vC2OFF}, s{sT}, v{T(0)}')
        A('L_r2:')
        for i in range(4): A(f'v_mov_b32 v{vSENT+i}, -1')
        A('s_waitcnt lgkmcnt(0)')
        if self.kw.get('st2'): G.stamp(24)
        A(f's_lshl_b32 s{sT}, s{sBH}, 21'); A(f's_lshl_b32 s{sT2}, s{sS}, 19'); A(f's_add_u32 s{sT}, s{sT}, s{sT2}')
        G.srd(rX, pX, pX + 1, 2048)
        G.srd(rK, pK, pK + 1, 0x80000, f's{sT}')
        G.vmop(f'buffer_load_dwordx4 v[{vXR}:{vXR+3}], v{T(2)}, s[{rX}:{rX+3}], 0 offen', 'x')
        if self.kw.get('xwait'): G.vmwait('x')
        koffs = [0, 2048, 128, 2176]
        voffs = [0, 2048, 256, 2304]
        last_soff = [None]
        def load_one(u, q, setoff=True):
            isK = u < 32; t = u % 32
            if setoff:
                if self.kw.get('rot'):
                    A(f's_add_u32 s{sOff}, s99, {t*16384}'); A(f's_and_b32 s{sOff}, s{sOff}, {31*16384}')
                else:
                    A(f's_mov_b32 s{sOff}, {t*16384}')
            r = ((u % RING) * 4 + q) * 4
            if isK: G.vmop(f'buffer_load_dwordx4 a[{r}:{r+3}], v{vK}, s[{rK}:{rK+3}], s{sOff} offen offset:{koffs[q]} {nt}', f'u{u}')
            else:   G.vmop(f'buffer_load_dwordx4 a[{r}:{r+3}], v{vV}, s[{rV}:{rV+3}], s{sOff} offen offset:{voffs[q]} {nt}', f'u{u}')
            G.lidx[4 * u + q] = len(G.vm) - 1
        def unit_loads(u):
            for q in range(4): load_one(u, q, q == 0)
        unit_loads(0)
        if self.kw.get('st2'): G.stamp(25)
        G.srd(rV, pV, pV + 1, 0x80000, f's{sT}')
        G.srd(rWS, pWS, pWS + 1, WS_SIZE + (0x100000 if self.diag else 0))
        A(f's_lshl_b32 s{sT}, s{sH}, 8')
        if self.kw.get('wqsame'): A(f's_mov_b32 s{sT}, 0')
        if self.kw.get('wqx'): A(f's_lshr_b32 s{sT}, s2, 3'); A(f's_lshl_b32 s{sT}, s{sT}, 8')
        if self.kw.get('wqx4'): A(f's_lshr_b32 s{sT}, s2, 2'); A(f's_and_b32 s{sT}, s{sT}, 31'); A(f's_lshl_b32 s{sT}, s{sT}, 8')
        G.srd(rWQ, pWQ, pWQ + 1, 0, f's{sT}'); A(f's_sub_u32 s{rWQ+2}, {512*8192}, s{sT}')
        if self.kw.get('noinit'):
            A(f'v_mov_b32 v{vC1}, {OOB}'); A(f'v_mov_b32 v{vMLp}, {OOB}'); A(f'v_mov_b32 v{vRS}, {OOB}'); A(f'v_mov_b32 v{vHOFF}, {OOB}'); A(f'v_mov_b32 v{vC2OFF}, {OOB}'); A(f'v_mov_b32 v{vMLq}, {OOB}')
        G.vmop(f'buffer_store_dwordx4 v[{vSENT}:{vSENT+3}], v{vC1}, s[{rWS}:{rWS+3}], 0 offen sc1', 'init')
        G.vmop(f'buffer_store_dwordx2 v[{vSENT}:{vSENT+1}], v{vMLp}, s[{rWS}:{rWS+3}], 0 offen sc1', 'init')
        A(f's_cmp_eq_u32 s{sRole}, 1'); A('s_cbranch_scc0 L_i1')
        G.vmop(f'buffer_store_dwordx4 v[{vSENT}:{vSENT+3}], v{vRS}, s[{rWS}:{rWS+3}], 0 offen sc1', 'init', True)
        A('L_i1:')
        A(f's_cmp_eq_u32 s{sRole}, 2'); A('s_cbranch_scc0 L_i2')
        G.vmop(f'buffer_store_dword v{vSENT}, v{vRS}, s[{rWS}:{rWS+3}], 0 offen sc1', 'init', True)
        A('L_i2:')
        if self.kw.get('st2'): G.stamp(26)
        def wq_load(i):
            if self.kw.get('nowq0'): return
            if self.nowq and i >= 4: return
            A(f's_mov_b32 s{sT}, {i*8192}')
            r = aW + 4 * i
            G.vmop(f'buffer_load_dwordx4 a[{r}:{r+3}], v{vWQ}, s[{rWQ}:{rWQ+3}], s{sT} offen {wnt}', f'wq{i}')
            if self.kw.get('st2') and i == 15: G.stamp(27)
            if self.kw.get('st2') and i == 31: G.stamp(28)
        il = self.kw.get('il', 0)
        done_u = 1
        for i in range(32):
            wq_load(i)
            if il and i % 4 == 3 and done_u < 1 + il and i < 31:
                unit_loads(done_u); done_u += 1
        for u in range(done_u, self.pre): unit_loads(u)
        G.stamp(9)
        A(f's_lshl_b32 s{sT}, s{sH}, 17')
        if self.kw.get('wosame'): A(f's_mov_b32 s{sT}, 0')
        if self.kw.get('wox'): A(f's_lshr_b32 s{sT}, s2, 3'); A(f's_lshl_b32 s{sT}, s{sT}, 17')
        if self.kw.get('wox4'): A(f's_lshr_b32 s{sT}, s2, 2'); A(f's_and_b32 s{sT}, s{sT}, 31'); A(f's_lshl_b32 s{sT}, s{sT}, 17')
        if self.kw.get('woxcd'): A(f's_and_b32 s{sT}, s{sH}, 7'); A(f's_lshl_b32 s{sT}, s{sT}, 17')
        G.srd(rWO, pWO, pWO + 1, 131072, f's{sT}')
        G.srd(rDBG, pDBG, pDBG + 1, 256)
        G.srd(rW1, pW1, pW1 + 1, 512 * 3584)
        G.srd(rW2, pW2, pW2 + 1, 1792 * 1024)
        G.srd(rB1, pB1, pB1 + 1, 3584)
        G.srd(rB2, pB2, pB2 + 1, 1024)
        G.srd(rOUT, pOUT, pOUT + 1, 2048)
        A(f's_mov_b32 s{sPK}, 0x05040100')
        A(f's_lshl_b32 s{sT}, s{sW}, 8'); A(f'v_lshlrev_b32 v{T(0)}, 15, v{vG}'); A(f'v_lshl_add_u32 v{T(0)}, v{vN}, 4, v{T(0)}'); A(f'v_add_u32 v{vWO}, s{sT}, v{T(0)}')
        A(f's_lshr_b32 s{sAt}, s2, 4'); A(f's_and_b32 s{sAt}, s{sAt}, 15'); A(f's_cmp_eq_u32 s{sW}, 0'); A(f's_cselect_b32 s{sAt}, s{sAt}, 99')
        A(f'v_mov_b32 v{vONE}, 1'); A(f'v_mov_b32 v{vATO}, {OOB}'); A(f'v_cmp_eq_u32 vcc, 0, v{vL}'); A(f'v_cndmask_b32 v{vATO}, v{vATO}, 0, vcc')
        A(f'v_and_b32 v{T(0)}, 1, v{vN}'); A(f'v_cmp_eq_u32 vcc, 1, v{T(0)}')
        A(f'v_mov_b32 v{T(1)}, 0x0c0c0100'); A(f'v_mov_b32 v{T(2)}, 0x01000c0c'); A(f'v_cndmask_b32 v{T(3)}, v{T(1)}, v{T(2)}, vcc')
        A(f'v_mov_b32 v{T(1)}, 0x0c0c0302'); A(f'v_mov_b32 v{T(2)}, 0x03020c0c'); A(f'v_cndmask_b32 v{T(4)}, v{T(1)}, v{T(2)}, vcc')
        A(f'v_mov_b32 v{T(1)}, 0x0000ffff'); A(f'v_mov_b32 v{T(2)}, 0xffff0000'); A(f'v_cndmask_b32 v{T(5)}, v{T(1)}, v{T(2)}, vcc')
        A(f'v_bfe_u32 v{T(0)}, v{vN}, 1, 2'); A(f'v_mov_b32 v{T(6)}, 0x0c0c0c0c')
        for jj in range(4):
            A(f'v_cmp_eq_u32 vcc, {jj}, v{T(0)}')
            A(f'v_cndmask_b32 v{vSEL+jj}, v{T(6)}, v{T(3)}, vcc'); A(f'v_cndmask_b32 v{vSEL+4+jj}, v{T(6)}, v{T(4)}, vcc')
            A(f'v_cndmask_b32 v{vMASK+jj}, 0, v{T(5)}, vcc')
        A(f's_lshl_b32 s{sT}, s{sW}, 10'); A(f'v_lshlrev_b32 v{T(0)}, 4, v{vL}'); A(f'v_add_u32 v{vA1}, s{sT}, v{T(0)}')
        A(f's_mul_i32 s{sT}, s{sW}, 1280'); A(f'v_lshlrev_b32 v{T(0)}, 6, v{vG}'); A(f'v_add_u32 v{vA2}, s{sT}, v{T(0)}')
        if THR:
            PSTR = self.kw.get('pstr', 4)
            GSTR = self.kw.get('gstr', 256 if PSTR == 4 else 8 * PSTR)
            A(f's_and_b32 s{sT}, s2, 3'); A(f's_lshl_b32 s{sT}, s{sT}, 3'); A(f's_lshr_b32 s{sT2}, s2, 3'); A(f's_sub_u32 s{sT2}, s{sT2}, s{sT}'); A(f's_and_b32 s{sT2}, s{sT2}, 31')
            A(f's_mul_i32 s{sT2}, s{sT2}, {GSTR}'); A(f's_add_u32 s{sT2}, s{sT2}, {WS_PROG}')
            A(f'v_mov_b32 v{vPT}, {OOB}'); A(f'v_and_b32 v{vPRO}, 7, v{vL}'); A(f'v_mul_u32_u24 v{vPRO}, {PSTR}, v{vPRO}'); A(f'v_add_u32 v{vPRO}, s{sT2}, v{vPRO}')
            A(f's_and_b32 s{sT}, s2, 7'); A(f's_mul_i32 s{sT}, s{sT}, {PSTR}'); A(f's_add_u32 s{sT}, s{sT}, s{sT2}')
            A(f'v_mov_b32 v{vPUBO}, s{sT}'); A(f'v_cmp_eq_u32 vcc, 0, v{vL}'); A(f'v_cndmask_b32 v{vPUBO}, v{vPT}, v{vPUBO}, vcc')
            A(f'v_lshlrev_b32 v{vLIMW}, 2, v{vL}'); A(f'v_add_u32 v{vLIMW}, {L_DUM2}, v{vLIMW}')
            A(f'v_mov_b32 v{vLIMR}, {L_LIM}'); A(f'v_mov_b32 v{vWIN}, {THR}')
            A(f's_cmp_eq_u32 s{sW}, 0'); A('s_cbranch_scc1 L_thw0')
            A(f'v_mov_b32 v{vPUBO}, {OOB}'); A(f'v_mov_b32 v{vPRO}, {OOB}'); A('s_branch L_thw1')
            A('L_thw0:')
            A(f'v_cndmask_b32 v{vLIMW}, v{vLIMW}, v{vLIMR}, vcc')
            A('L_thw1:')
            A(f'ds_write_b32 v{vLIMW}, v{vWIN}'); A(f'v_mov_b32 v{vLIM}, {THR}'); A(f'v_mov_b32 v{vEFF}, 0')
            for r_ in vPROG: A(f'v_mov_b32 v{r_}, 0')
        noq = self.kw.get('noq')
        if noq: A('s_branch L_noq')
        if self.kw.get('st2'): G.stamp(29)
        G.vmwait('x')
        if self.kw.get('st2'): G.stamp(30)
        if THR:
            G.vmop(f'buffer_load_dword v{vSNAP}, v{vPRO}, s[{rWS}:{rWS+3}], 0 offen sc1', 'snap')
        X = [T(i) for i in range(8)]
        for k in range(4):
            A(f'v_lshlrev_b32 v{X[2*k]}, 16, v{vXR+k}'); A(f'v_and_b32 v{X[2*k+1]}, 0xffff0000, v{vXR+k}')
        self.ln_stats(X, T(8), T(9), T(10), T(11), 1.0 / 512, self.wave_allreduce)
        self.ln_apply(X, T(8), T(9))
        for k in range(4): A(f'v_cvt_pk_bf16_f32 v{vXR+k}, v{X[2*k]}, v{X[2*k+1]}')
        A(f'ds_write_b128 v{vA1}, v[{vXR}:{vXR+3}] offset:{L_XN}')
        A('s_waitcnt lgkmcnt(0)')
        for k in range(4): A(f'ds_read_b128 v[{vXP+4*k}:{vXP+4*k+3}], v{vA2} offset:{L_XN+16*k}')
        A(f's_lshl_b32 s{sT}, s{sW}, 9'); A(f'v_and_b32 v{T(0)}, 7, v{vN}'); A(f'v_lshl_add_u32 v{T(0)}, v{vG}, 5, v{T(0)}'); A(f'v_lshlrev_b32 v{T(0)}, 2, v{T(0)}')
        A(f'v_add_u32 v{vA1}, s{sT}, v{T(0)}')
        A(f'v_mov_b32 v{T(1)}, {L_DUMMY - L_OP}'); A(f'v_cmp_gt_u32 vcc, 8, v{vN}'); A(f'v_cndmask_b32 v{vOPA}, v{T(1)}, v{vA1}, vcc')
        A(f'v_lshlrev_b32 v{vA3}, 3, v{vL}')
        A('s_waitcnt lgkmcnt(0)')
        if self.kw.get('st2'): G.stamp(31)
        def delta_steps(nsteps, acc, tagf, first_zero=True):
            for i in range(nsteps):
                bset = vB + 4 * (i & 1)
                for jj in range(4):
                    A(f'v_perm_b32 v{bset+jj}, v{vXP+(i>>1)}, v{vXP+(i>>1)}, v{vSEL+4*(i&1)+jj}')
                if tagf is not None and i % 4 == 0: G.vmwait(tagf(i + 3))
                r = aW + 4 * i
                c = '0' if i == 0 else f'v[{acc}:{acc+3}]'
                A(f'v_mfma_f32_16x16x32_bf16 v[{acc}:{acc+3}], a[{r}:{r+3}], v[{bset}:{bset+3}], {c}')
        delta_steps(32, vDQ, lambda i: f'wq{min(i, 3) if self.nowq else i}')
        for i in range(4): A(f'ds_write_b32 v{vA1}, v{vDQ+i} offset:{L_QP + 32*i}')
        A('s_waitcnt lgkmcnt(0)'); A('s_barrier')
        A(f's_cmp_eq_u32 s{sW}, 0'); A('s_cbranch_scc0 L_c1')
        A(f'v_mov_b32 v{T(0)}, 1'); A(f'v_mov_b32 v{T(1)}, {OOB}'); A(f'v_cmp_eq_u32 vcc, 0, v{vL}'); A(f'v_cndmask_b32 v{T(1)}, v{T(1)}, 0, vcc')
        if not self.kw.get('noatom') and not self.kw.get('atsp'): G.vmop(f'buffer_atomic_add v{T(0)}, v{T(1)}, s[{rDBG}:{rDBG+3}], 0 offen', 'atom', True)
        A('L_c1:')
        for w in range(4): A(f'ds_read_b64 v[{T(2*w+2)}:{T(2*w+3)}], v{vA3} offset:{L_QP + 512*w}')
        if noq:
            A('L_noq:')
            A(f's_cmp_eq_u32 s{sW}, 0'); A('s_cbranch_scc0 L_c1b')
            A(f'v_mov_b32 v{T(0)}, 1'); A(f'v_mov_b32 v{T(1)}, {OOB}'); A(f'v_cmp_eq_u32 vcc, 0, v{vL}'); A(f'v_cndmask_b32 v{T(1)}, v{T(1)}, 0, vcc')
            if not self.kw.get('noatom'): A(f'buffer_atomic_add v{T(0)}, v{T(1)}, s[{rDBG}:{rDBG+3}], 0 offen')
            A('L_c1b:')
        LOOK = self.kw.get('look', RING); LOOKV = self.kw.get('lookv', LOOK)
        nxt = [self.pre]
        def issue_upto(u_hi):
            while nxt[0] <= min(u_hi, 63):
                unit_loads(nxt[0]); nxt[0] += 1
        issue_upto(LOOK - 1)
        SL = self.kw.get('slide'); SLV = self.kw.get('slidev', SL)
        nxl = [4 * nxt[0]]
        import math
        def lagof(m):
            f = SL if m < 128 else SLV
            eb = self.kw.get('eb')
            if eb and m >= 128 + 4 * eb[0]: f = eb[1]
            kb = self.kw.get('kb')
            if kb and m < 128 and m >= 4 * kb[0]: f = kb[1]
            if isinstance(f, int) or float(f).is_integer(): return int(f)
            g = int(m // f)
            return int(math.floor((g + 1) * f) - math.floor(g * f))
        def slide_issue(j, boost=0):
            while nxl[0] <= 255 and (nxl[0] - lagof(nxl[0]) <= j or nxl[0] <= j + boost):
                m = nxl[0]; u_, q_ = m // 4, m % 4
                load_one(u_, q_, u_ != slide_issue.cur); slide_issue.cur = u_
                nxl[0] += 1
        slide_issue.cur = None
        prog_k = [0]
        def prog_reduce(src):
            A(f'v_cmp_ne_u32 vcc, v{src}, v{vSNAP}'); A(f'v_cndmask_b32 v{vPT}, 0, v{src}, vcc'); A(f'v_max_u32 v{vEFF}, v{vEFF}, v{vPT}')
            A(f'v_min_u32_dpp v{vPT}, v{vEFF}, v{vEFF} row_ror:1 row_mask:0xf bank_mask:0xf')
            for r_ in (2, 4): A(f'v_min_u32_dpp v{vPT}, v{vPT}, v{vPT} row_ror:{r_} row_mask:0xf bank_mask:0xf')
            A(f'v_add_u32 v{vPT}, v{vWIN}, v{vPT}')
            A(f'ds_write_b32 v{vLIMW}, v{vPT}')
        def throttled_issue(g, u_hi):
            u_hi = min(u_hi, 63)
            if not THR: issue_upto(u_hi); return
            need_gate = u_hi >= nxt[0] and u_hi > THR
            if need_gate:
                lab = f'L_th{g}'
                A('s_waitcnt lgkmcnt(0)'); A(f'v_readfirstlane_b32 s{sLim}, v{vLIM}')
                A(f's_cmp_ge_u32 s{sLim}, {u_hi}'); A(f's_cbranch_scc1 {lab}_ok')
                A(f's_mov_b32 s{sSp2}, 4096')
                A(f'{lab}:')
                A(f's_cmp_eq_u32 s{sW}, 0'); A(f's_cbranch_scc0 {lab}_w')
                A(f'buffer_load_dword v{vPV}, v{vPRO}, s[{rWS}:{rWS+3}], 0 offen sc1'); A('s_waitcnt vmcnt(0)')
                prog_reduce(vPV)
                A(f'{lab}_w:')
                A(f'ds_read_b32 v{vLIM}, v{vLIMR}'); A('s_waitcnt lgkmcnt(0)'); A(f'v_readfirstlane_b32 s{sLim}, v{vLIM}')
                A(f's_cmp_ge_u32 s{sLim}, {u_hi}'); A(f's_cbranch_scc1 {lab}_ok')
                A(f's_sub_u32 s{sSp2}, s{sSp2}, 1'); A(f's_cbranch_scc0 {lab}')
                A(f'v_mov_b32 v{vWIN}, 0x100000')
                A(f'{lab}_ok:')
            more = nxt[0] <= 63 or True
            last_gate = 63 - 1
            do_chk = (g % CHK == 0) and nxt[0] < 63
            if do_chk:
                k = prog_k[0]
                G.vmop(f'buffer_load_dword v{vPROG[k & 1]}, v{vPRO}, s[{rWS}:{rWS+3}], 0 offen sc1', f'prog{k}')
            if g % self.kw.get('pubn', 1) == 0 and g < 63 - 2:
                A(f'v_mov_b32 v{vPV}, {g + 1}')
                G.vmop(f'buffer_store_dword v{vPV}, v{vPUBO}, s[{rWS}:{rWS+3}], 0 offen sc1', 'pub')
            issue_upto(u_hi)
            if do_chk:
                k = prog_k[0]
                if k > 0:
                    G.vmwait(f'prog{k-1}')
                    prog_reduce(vPROG[(k - 1) & 1])
                prog_k[0] += 1
            if nxt[0] <= 63: A(f'ds_read_b32 v{vLIM}, v{vLIMR}')
        A(f's_lshl_b32 s{sT}, s{sW}, 8'); A(f'v_lshlrev_b32 v{T(0)}, 2, v{vL}'); A(f'v_add_u32 v{T(0)}, s{sT}, v{T(0)}')
        A(f'v_lshrrev_b32 v{T(1)}, 3, v{vN}'); A(f'v_lshlrev_b32 v{T(1)}, 6, v{T(1)}'); A(f'v_lshl_add_u32 v{T(1)}, v{vG}, 4, v{T(1)}'); A(f'v_add_u32 v{T(1)}, s{sT}, v{T(1)}')
        A('s_waitcnt lgkmcnt(0)')
        A(f'v_pk_add_f32 v[{T(2)}:{T(3)}], v[{T(2)}:{T(3)}], v[{T(4)}:{T(5)}]'); A(f'v_pk_add_f32 v[{T(6)}:{T(7)}], v[{T(6)}:{T(7)}], v[{T(8)}:{T(9)}]')
        A(f'v_pk_add_f32 v[{T(2)}:{T(3)}], v[{T(2)}:{T(3)}], v[{T(6)}:{T(7)}]')
        A(f'v_cvt_pk_bf16_f32 v{T(2)}, v{T(2)}, v{T(3)}')
        A(f'ds_write_b32 v{T(0)}, v{T(2)} offset:{L_QB}')
        A('s_waitcnt lgkmcnt(0)')
        A(f'ds_read_b128 v[{vBQ}:{vBQ+3}], v{T(1)} offset:{L_QB}'); A(f'ds_read_b128 v[{vBQ+4}:{vBQ+7}], v{T(1)} offset:{L_QB+128}')
        A(f'v_mov_b32 v{vMX}, 0xff800000')
        for i in range(8): A(f'v_mov_b32 v{vO+i}, 0')
        A('s_waitcnt lgkmcnt(0)')
        G.stamp(1)
        if self.stop == 'q':
            return self.finish_debug([vBQ + i for i in range(8)])

        wo_loads = []
        for i in range(32):
            r = aW + 4 * i
            wo_loads.append((i // 4 * 4096, f'buffer_load_dwordx4 a[{r}:{r+3}], v{vWO}, s[{rWO}:{rWO+3}], s{sT} offen offset:{(i%4)*1024} {wnt}', f'wo{i}'))
        def emit_wo(k0, k1):
            for k in range(k0, k1):
                so, s, tag = wo_loads[k]
                if self.kw.get('wotiny'): so = 0
                if k == k0 or k % 4 == 0: A(f's_mov_b32 s{sT}, {so}')
                G.vmop(s, tag)
        EX = self.kw.get('exact', False)
        def emit_role_loads(part):
            lab = f'L_rl{part}'
            if part < 16:
                if not EX: A(f's_cmp_eq_u32 s{sRole}, 1'); A(f's_cbranch_scc0 {lab}')
                s_ = part // 4; e3 = part % 4
                A(f's_mov_b32 s{sT}, {(32*s_ + 8*e3)*3584}')
                for eh in (0, 1):
                    e = e3 + 4 * eh
                    G.vmop(f'buffer_load_ushort v{vR + 8*s_ + e}, v{vWOFF1}, s[{rW1}:{rW1+3}], s{sT} offen offset:{eh*3584} {wnt}', 'w1g', not EX)
                if not EX: A(f'{lab}:')
            else:
                if not EX: A(f's_cmp_eq_u32 s{sRole}, 1'); A(f's_cbranch_scc0 {lab}a')
                for ii in range(4):
                    G.vmop(f'buffer_load_dwordx4 v[{vW2+4*ii}:{vW2+4*ii+3}], v{vWOFF2}, s[{rW2}:{rW2+3}], 0 offen offset:{ii*1024} {wnt}', 'w2l', not EX)
                G.vmop(f'buffer_load_ushort v{vB1}, v{vB1OFF}, s[{rB1}:{rB1+3}], 0 offen', 'b1l', not EX)
                if not EX:
                    A(f'{lab}a:')
                    A(f's_cmp_eq_u32 s{sRole}, 2'); A(f's_cbranch_scc0 {lab}b')
                G.vmop(f'buffer_load_ushort v{vXV}, v{vXOFF}, s[{rX}:{rX+3}], 0 offen', 'xv', not EX)
                G.vmop(f'buffer_load_ushort v{vB2V}, v{vB2OFF}, s[{rB2}:{rB2+3}], 0 offen', 'b2l', not EX)
                if not EX: A(f'{lab}b:')
        def kproc(t):
            if self.kw.get('novalu'): return
            D0 = vD + 8 * (t & 1); D1 = D0 + 4
            sA, sB_ = T(0), T(1)
            A(f'v_add_f32_dpp v{sA}, v{D0+1}, v{D0} row_ror:8 row_mask:0xf bank_mask:0x3')
            A(f'v_add_f32_dpp v{sB_}, v{D0+3}, v{D0+2} row_ror:8 row_mask:0xf bank_mask:0x3')
            A(f'v_add_f32_dpp v{sA}, v{D1}, v{D1+1} row_ror:8 row_mask:0xf bank_mask:0xc')
            A(f'v_add_f32_dpp v{sB_}, v{D1+2}, v{D1+3} row_ror:8 row_mask:0xf bank_mask:0xc')
            A(f'v_cvt_pk_bf16_f32 v{T(2)}, v{sA}, v{sB_}')
            A(f'v_max3_f32 v{vMX}, v{vMX}, v{sA}, v{sB_}')
            A(f'v_lshlrev_b32 v{T(3)}, 16, v{T(2)}'); A(f'v_and_b32 v{T(4)}, 0xffff0000, v{T(2)}')
            A(f'v_mul_f32 v{T(3)}, {SCALE}, v{T(3)}'); A(f'v_mul_f32 v{T(4)}, {SCALE}, v{T(4)}')
            A(f'v_cvt_pk_bf16_f32 v{vS+t}, v{T(3)}, v{T(4)}')
        for t in range(32):
            u = t
            D0 = vD + 8 * (t & 1); D1 = D0 + 4
            r = (u % RING) * 16
            mf = [f'v_mfma_f32_16x16x32_bf16 v[{D0}:{D0+3}], a[{r}:{r+3}], v[{vBQ}:{vBQ+3}], 0',
                  f'v_mfma_f32_16x16x32_bf16 v[{D1}:{D1+3}], a[{r+4}:{r+7}], v[{vBQ}:{vBQ+3}], 0',
                  f'v_mfma_f32_16x16x32_bf16 v[{D0}:{D0+3}], a[{r+8}:{r+11}], v[{vBQ+4}:{vBQ+7}], v[{D0}:{D0+3}]',
                  f'v_mfma_f32_16x16x32_bf16 v[{D1}:{D1+3}], a[{r+12}:{r+15}], v[{vBQ+4}:{vBQ+7}], v[{D1}:{D1+3}]']
            if SL:
                for q in range(4):
                    j = 4 * u + q
                    G.vmwait_idx(G.lidx[j])
                    slide_issue(j, self.kw.get('sboost', 0) if (t == 31 and q == 3) else 0)
                    A(mf[q])
            else:
                G.vmwait(f'u{u}')
                for m_ in mf: A(m_)
                throttled_issue(u, u + (self.kw.get('boost', LOOK) if t >= 32 - self.kw.get('boostn', 1) else LOOK))
            if self.kw.get('atsp') and t < 16:
                A(f's_cmp_eq_u32 s{sAt}, {t}'); A(f's_cbranch_scc0 L_at{t}')
                G.vmop(f'buffer_atomic_add v{vONE}, v{vATO}, s[{rDBG}:{rDBG+3}], 0 offen', 'atom', True)
                A(f'L_at{t}:')
            if 2 <= t < 18 and not self.nowo: emit_wo(2 * (t - 2), 2 * (t - 2) + 2)
            if t in (7, 15, 23): G.stamp(16 + t // 8)
            if t == 27 and not self.kw.get('nocnt'):
                A(f'v_mov_b32 v{T(5)}, 0')
                G.vmop(f'buffer_load_dword v{vCNT}, v{T(5)}, s[{rDBG}:{rDBG+3}], 0 offen sc1', 'cnt')
            if t > 0: kproc(t - 1)
        kproc(31)
        G.stamp(2)
        self.wave_allreduce('max', vMX, T(0))
        G.rbf(vM, vMX); A(f'v_mul_f32 v{vM}, {SCALE}, v{vM}'); G.rbf(vM)
        A(f'v_mul_f32 v{vNM}, {LOG2E}, v{vM}'); A(f'v_sub_f32 v{vNM}, 0, v{vNM}')
        A(f's_mov_b32 s{sT2}, {LOG2E}')
        A(f'v_mov_b32 v{vLS}, 0')
        for t in range(0 if self.kw.get('notrans') else 32):
            a, b = T(2 * (t & 1)), T(2 * (t & 1) + 1)
            A(f'v_lshlrev_b32 v{a}, 16, v{vS+t}'); A(f'v_and_b32 v{b}, 0xffff0000, v{vS+t}')
            A(f'v_fma_f32 v{a}, v{a}, s{sT2}, v{vNM}'); A(f'v_fma_f32 v{b}, v{b}, s{sT2}, v{vNM}')
            A(f'v_exp_f32 v{a}, v{a}'); A(f'v_exp_f32 v{b}, v{b}')
            A(f'v_add_f32 v{vLS}, v{vLS}, v{a}'); A(f'v_cvt_pk_bf16_f32 v{vS+t}, v{a}, v{b}'); A(f'v_add_f32 v{vLS}, v{vLS}, v{b}')
        self.wave_allreduce('add', vLS, T(0))
        A(f'v_mul_f32 v{vLS}, 0.125, v{vLS}') if False else A(f'v_mul_f32 v{vLS}, 0x3e000000, v{vLS}')
        A(f'v_mov_b32 v{T(0)}, v{vM}'); A(f'v_mov_b32 v{T(1)}, v{vLS}')
        if not self.kw.get('nocnt'):
            G.vmop(f'buffer_store_dwordx2 v[{T(0)}:{T(1)}], v{vMLp}, s[{rWS}:{rWS+3}], 0 offen sc1', 'mlst')
            G.vmwait('cnt')
        else: A('s_branch L_cnt_ok')
        A(f's_mov_b32 s{sSpin}, {self.spin}')
        A('L_cnt:')
        A(f'v_readfirstlane_b32 s{sT}, v{vCNT}')
        A(f's_cmp_ge_u32 s{sT}, 256'); A('s_cbranch_scc1 L_cnt_ok')
        A(f's_sub_u32 s{sSpin}, s{sSpin}, 1'); A('s_cbranch_scc1 L_cnt_ok')
        A(f'v_mov_b32 v{T(5)}, 0')
        A(f'buffer_load_dword v{vCNT}, v{T(5)}, s[{rDBG}:{rDBG+3}], 0 offen sc1'); A('s_waitcnt vmcnt(0)')
        A('s_branch L_cnt')
        A('L_cnt_ok:')
        G.stamp(3)
        dl = self.kw.get('delay')
        if dl:
            which, n = dl
            A(f's_cmp_lt_u32 s{sBH}, 8'); A('s_cbranch_scc%d L_nodelay' % (0 if which == 'slow' else 1))
            for _ in range(n): A('s_sleep 64')
            A('L_nodelay:')
        def vprep(t):
            if self.kw.get('novalu'): return
            for ab in range(2):
                bs = vB + 8 * (t & 1) + 4 * ab
                for jj in range(4):
                    A(f'v_perm_b32 v{bs+jj}, v{vS+t}, v{vS+t}, v{vSEL+4*ab+jj}')
        def ml_compute():
            A(f'v_mov_b32 v{T(10)}, v{vML0}')
            for r_ in (1, 2, 4, 8): A(f'v_max_f32_dpp v{T(10)}, v{T(10)}, v{T(10)} row_ror:{r_} row_mask:0xf bank_mask:0xf')
            A(f'v_sub_f32 v{T(11)}, v{vML0}, v{T(10)}'); A(f'v_mul_f32 v{T(11)}, {LOG2E}, v{T(11)}'); A(f'v_exp_f32 v{T(11)}, v{T(11)}')
            A(f'v_mul_f32 v{T(11)}, v{T(11)}, v{vML1}')
            for r_ in (1, 2, 4, 8): A(f'v_add_f32_dpp v{T(11)}, v{T(11)}, v{T(11)} row_ror:{r_} row_mask:0xf bank_mask:0xf')
            A(f'v_sub_f32 v{T(10)}, v{vM}, v{T(10)}'); A(f'v_mul_f32 v{T(10)}, {LOG2E}, v{T(10)}'); A(f'v_exp_f32 v{T(10)}, v{T(10)}')
            A(f'v_rcp_f32 v{T(12)}, v{T(11)}'); A(f'v_mul_f32 v{vF}, v{T(10)}, v{T(12)}')
            A(f'v_cmp_u_f32 vcc, v{T(11)}, v{T(11)}')
        vprep(0)
        for t in range(32):
            u = 32 + t
            r = (u % RING) * 16
            bs = vB + 8 * (t & 1)
            mf = [f'v_mfma_f32_16x16x32_bf16 v[{vO}:{vO+3}], a[{r}:{r+3}], v[{bs}:{bs+3}], v[{vO}:{vO+3}]',
                  f'v_mfma_f32_16x16x32_bf16 v[{vO+4}:{vO+7}], a[{r+4}:{r+7}], v[{bs}:{bs+3}], v[{vO+4}:{vO+7}]',
                  f'v_mfma_f32_16x16x32_bf16 v[{vO}:{vO+3}], a[{r+8}:{r+11}], v[{bs+4}:{bs+7}], v[{vO}:{vO+3}]',
                  f'v_mfma_f32_16x16x32_bf16 v[{vO+4}:{vO+7}], a[{r+12}:{r+15}], v[{bs+4}:{bs+7}], v[{vO+4}:{vO+7}]']
            if SL:
                for q in range(4):
                    j = 4 * u + q
                    G.vmwait_idx(G.lidx[j])
                    slide_issue(j)
                    A(mf[q])
            else:
                G.vmwait(f'u{u}')
                for m_ in mf: A(m_)
                throttled_issue(u, u + LOOKV)
            if t < 17 and not self.norole: emit_role_loads(t)
            if t in (7, 15, 23): G.stamp(20 + t // 8)
            if t == 27:
                A(f's_cmp_eq_u32 s{sRole}, 1'); A('s_cbranch_scc0 L_pk1')
                for s_ in range(4):
                    for jj in range(4):
                        A(f'v_perm_b32 v{vW1+4*s_+jj}, v{vR+8*s_+2*jj+1}, v{vR+8*s_+2*jj}, s{sPK}')
                A('L_pk1:')
            if t == 17 and not self.kw.get('nocnt'):
                G.vmop(f'buffer_load_dwordx2 v[{vML0}:{vML1}], v{vMLq}, s[{rWS}:{rWS+3}], 0 offen sc1', 'mlq')
            if t == 25 and not self.kw.get('nocnt'):
                G.vmwait('mlq')
                A(f's_mov_b32 s{sSpin}, {self.spin}')
                A('L_ml:')
                ml_compute()
                A('s_cbranch_vccz L_ml_ok')
                A(f's_sub_u32 s{sSpin}, s{sSpin}, 1'); A('s_cbranch_scc1 L_ml_ok')
                A(f'buffer_load_dwordx2 v[{vML0}:{vML1}], v{vMLq}, s[{rWS}:{rWS+3}], 0 offen sc1'); A('s_waitcnt vmcnt(0)')
                A('s_branch L_ml')
                A('L_ml_ok:')
            if t < 31: vprep(t + 1)
        G.stamp(4)
        if self.kw.get('quit'): A('s_branch L_fin')
        for i in range(4): A(f'v_add_f32_dpp v{T(i)}, v{vO+4+i}, v{vO+i} row_ror:8 row_mask:0xf bank_mask:0xf')
        for i in range(4): A(f'v_mul_f32 v{T(i)}, v{vF}, v{T(i)}')
        for i in range(4): A(f'ds_write_b32 v{vOPA}, v{T(i)} offset:{L_OP + 32*i}')
        A(f's_lshl_b32 s{sT}, s{sW}, 9'); A(f'v_lshlrev_b32 v{T(10)}, 2, v{vL}'); A(f'v_add_u32 v{T(10)}, s{sT}, v{T(10)}')
        A(f'v_lshrrev_b32 v{T(11)}, 3, v{vN}'); A(f'v_lshlrev_b32 v{T(11)}, 8, v{T(11)}'); A(f'v_lshl_add_u32 v{T(11)}, v{vG}, 6, v{T(11)}'); A(f'v_add_u32 v{T(11)}, s{sT}, v{T(11)}')
        A('s_waitcnt lgkmcnt(0)'); A('s_barrier')
        for w in range(4): A(f'ds_read_b64 v[{T(2*w+2)}:{T(2*w+3)}], v{vA3} offset:{L_OP + 512*w}')
        A('s_waitcnt lgkmcnt(0)')
        A(f'v_pk_add_f32 v[{T(2)}:{T(3)}], v[{T(2)}:{T(3)}], v[{T(4)}:{T(5)}]'); A(f'v_pk_add_f32 v[{T(6)}:{T(7)}], v[{T(6)}:{T(7)}], v[{T(8)}:{T(9)}]')
        A(f'v_pk_add_f32 v[{T(2)}:{T(3)}], v[{T(2)}:{T(3)}], v[{T(6)}:{T(7)}]')
        A(f'v_cvt_pk_bf16_f32 v{T(4)}, v{T(2)}, v{T(3)}')
        A(f'v_lshlrev_b32 v{T(5)}, 16, v{T(4)}'); A(f'v_and_b32 v{T(6)}, 0xffff0000, v{T(4)}')
        A(f'v_sub_f32 v{T(5)}, v{T(2)}, v{T(5)}'); A(f'v_sub_f32 v{T(6)}, v{T(3)}, v{T(6)}')
        A(f'ds_write_b32 v{T(10)}, v{T(4)} offset:{L_OH}')
        A(f'v_cvt_pk_bf16_f32 v{T(5)}, v{T(5)}, v{T(6)}')
        A(f'ds_write_b32 v{T(10)}, v{T(5)} offset:{L_OH+256}')
        A('s_waitcnt lgkmcnt(0)')
        for k in range(4): A(f'ds_read_b128 v[{vXP+4*k}:{vXP+4*k+3}], v{T(11)} offset:{L_OH+16*k}')
        A('s_waitcnt lgkmcnt(0)')
        delta_steps(32, vDQ, None)
        for i in range(4): A(f'v_add_f32_dpp v{T(i)}, v{vDQ+i}, v{vDQ+i} row_ror:8 row_mask:0xf bank_mask:0xf')
        G.vmop(f'buffer_store_dwordx4 v[{T(0)}:{T(3)}], v{vC1}, s[{rWS}:{rWS+3}], 0 offen sc1', 'c1st')
        G.stamp(5)
        A(f's_cmp_eq_u32 s{sRole}, 1'); A('s_cbranch_scc1 L_m1')
        A(f's_cmp_eq_u32 s{sRole}, 2'); A('s_cbranch_scc0 L_fin')
        A(f's_cmp_eq_u32 s{sW}, 0'); A('s_cbranch_scc0 L_fin')
        def gather_reduce(nl, voff, lab):
            A(f's_mov_b32 s{sSpin}, {self.spin}')
            A(f'{lab}:')
            for k in range(nl):
                if k % 4 == 0: A(f's_mov_b32 s{sT}, {(k//4)*4096}')
                A(f'buffer_load_dwordx4 v[{vR+4*k}:{vR+4*k+3}], v{voff}, s[{rWS}:{rWS+3}], s{sT} offen offset:{(k%4)*1024} sc1')
            k = 1
            A(f's_waitcnt vmcnt({nl-2})')
            for c in (0, 2): A(f'v_pk_add_f32 v[{T(c)}:{T(c+1)}], v[{vR+c}:{vR+c+1}], v[{vR+4+c}:{vR+4+c+1}]')
            for k in range(2, nl):
                A(f's_waitcnt vmcnt({nl-1-k})')
                for c in (0, 2): A(f'v_pk_add_f32 v[{T(c)}:{T(c+1)}], v[{T(c)}:{T(c+1)}], v[{vR+4*k+c}:{vR+4*k+c+1}]')
            A(f'v_cmp_u_f32 vcc, v{T(0)}, v{T(1)}'); A(f'v_cmp_u_f32 s[{sM}:{sM+1}], v{T(2)}, v{T(3)}')
            A(f's_or_b64 vcc, vcc, s[{sM}:{sM+1}]')
            A(f's_cbranch_vccz {lab}_ok')
            A(f's_sub_u32 s{sSpin}, s{sSpin}, 1'); A(f's_cbranch_scc0 {lab}')
            A(f'{lab}_ok:')
            A(f'v_permlane32_swap_b32 v{T(0)}, v{T(2)}'); A(f'v_permlane32_swap_b32 v{T(1)}, v{T(3)}')
            A(f'v_add_f32 v{T(0)}, v{T(0)}, v{T(2)}'); A(f'v_add_f32 v{T(1)}, v{T(1)}, v{T(3)}')
            A(f'v_permlane16_swap_b32 v{T(0)}, v{T(1)}'); A(f'v_add_f32 v{T(0)}, v{T(0)}, v{T(1)}')
            A(f'v_add_f32_dpp v{T(0)}, v{T(0)}, v{T(0)} row_ror:4 row_mask:0xf bank_mask:0xf')
            A(f'v_add_f32_dpp v{T(0)}, v{T(0)}, v{T(0)} row_ror:8 row_mask:0xf bank_mask:0xf')
        A(f'v_lshlrev_b32 v{vXV}, 16, v{vXV}'); A(f'v_lshlrev_b32 v{vB2V}, 16, v{vB2V}')
        gather_reduce(8, vHOFF, 'L_g1')
        G.stamp(6)
        G.rbf(T(0)); A(f'v_add_f32 v{T(0)}, v{vXV}, v{T(0)}'); G.rbf(vHV, T(0))
        A(f'buffer_store_dword v{vHV}, v{vRS}, s[{rWS}:{rWS+3}], 0 offen sc1')
        G.stamp(7)
        gather_reduce(7, vC2OFF, 'L_g2')
        G.stamp(8)
        G.rbf(T(0)); A(f'v_add_f32 v{T(0)}, v{vB2V}, v{T(0)}'); G.rbf(T(0)); A(f'v_add_f32 v{T(0)}, v{vHV}, v{T(0)}')
        A(f'v_cvt_pk_bf16_f32 v{T(0)}, v{T(0)}, v{T(0)}')
        A(f'buffer_store_short v{T(0)}, v{vOUTA}, s[{rOUT}:{rOUT+3}], 0 offen')
        A('s_branch L_fin')
        A('L_m1:')
        A(f's_lshl_b32 s{sT}, s{sW}, 9'); A(f'v_lshrrev_b32 v{T(0)}, 5, v{vL}'); A(f'v_lshlrev_b32 v{T(0)}, 8, v{T(0)}'); A(f'v_and_b32 v{T(1)}, 31, v{vL}')
        A(f'v_lshl_add_u32 v{T(0)}, v{T(1)}, 3, v{T(0)}'); A(f'v_add_u32 v{vA1}, s{sT}, v{T(0)}')
        A(f'v_and_b32 v{T(0)}, 1, v{vN}'); A(f'v_lshlrev_b32 v{T(0)}, 8, v{T(0)}'); A(f'v_lshl_add_u32 v{T(0)}, v{vG}, 4, v{T(0)}'); A(f'v_add_u32 v{vA2}, s{sT}, v{T(0)}')
        A(f's_lshl_b32 s{sT}, s{sW}, 7'); A(f'v_lshlrev_b32 v{T(0)}, 2, v{vN}'); A(f'v_add_u32 v{vA3}, s{sT}, v{T(0)}')
        A(f'v_lshrrev_b32 v{T(0)}, 3, v{vN}'); A(f'v_lshlrev_b32 v{T(0)}, 6, v{T(0)}'); A(f'v_and_b32 v{T(1)}, 3, v{vN}'); A(f'v_lshl_add_u32 v{T(1)}, v{vG}, 2, v{T(1)}')
        A(f'v_lshl_add_u32 v{vA4}, v{T(1)}, 2, v{T(0)}')
        A(f'v_lshlrev_b32 v{vB1}, 16, v{vB1}')
        A(f's_mov_b32 s{sSpin}, {self.spin}')
        H = [vR + i for i in range(16)]
        A('L_g3:')
        for kk in range(4):
            A(f's_add_u32 s{sT}, s{sW}, {kk}'); A(f's_and_b32 s{sT}, s{sT}, 3'); A(f's_lshl_b32 s{sT}, s{sT}, 9')
            A(f'buffer_load_dwordx4 v[{vR+4*kk}:{vR+4*kk+3}], v{vHOFF}, s[{rWS}:{rWS+3}], s{sT} offen sc1')
        A('s_waitcnt vmcnt(0)')
        A(f'v_pk_add_f32 v[{T(0)}:{T(1)}], v[{H[0]}:{H[1]}], v[{H[2]}:{H[3]}]')
        for k in range(2, 8): A(f'v_pk_add_f32 v[{T(0)}:{T(1)}], v[{T(0)}:{T(1)}], v[{H[2*k]}:{H[2*k+1]}]')
        A(f'v_add_f32 v{T(0)}, v{T(0)}, v{T(1)}')
        A(f'v_cmp_u_f32 vcc, v{T(0)}, v{T(0)}')
        A('s_cbranch_vccz L_g3_ok')
        A(f's_sub_u32 s{sSpin}, s{sSpin}, 1'); A('s_cbranch_scc0 L_g3')
        A('L_g3_ok:')
        G.stamp(6)
        self.half_allreduce('add', T(0), T(1))
        A(f'v_mul_f32 v{T(0)}, 0x3b000000, v{T(0)}')
        A(f'v_sub_f32 v{T(2)}, v{H[0]}, v{T(0)}'); A(f'v_mul_f32 v{T(3)}, v{T(2)}, v{T(2)}')
        A(f'v_sub_f32 v{T(4)}, v{H[1]}, v{T(0)}'); A(f'v_mul_f32 v{T(5)}, v{T(4)}, v{T(4)}')
        for k in range(2, 16, 2):
            A(f'v_sub_f32 v{T(2)}, v{H[k]}, v{T(0)}'); A(f'v_sub_f32 v{T(4)}, v{H[k+1]}, v{T(0)}')
            A(f'v_fmac_f32 v{T(3)}, v{T(2)}, v{T(2)}'); A(f'v_fmac_f32 v{T(5)}, v{T(4)}, v{T(4)}')
        A(f'v_add_f32 v{T(3)}, v{T(3)}, v{T(5)}')
        self.half_allreduce('add', T(3), T(1))
        self.ln_finish(T(0), T(3), T(8), T(9), 1.0 / 512)
        Y = H[0:4]
        self.ln_apply(Y, T(8), T(9))
        A(f'v_cvt_pk_bf16_f32 v{T(4)}, v{Y[0]}, v{Y[1]}'); A(f'v_cvt_pk_bf16_f32 v{T(5)}, v{Y[2]}, v{Y[3]}')
        A(f'ds_write_b64 v{vA1}, v[{T(4)}:{T(5)}] offset:{L_YB}')
        A('s_waitcnt lgkmcnt(0)')
        for s_ in range(4): A(f'ds_read_b128 v[{vXP+4*s_}:{vXP+4*s_+3}], v{vA2} offset:{L_YB+64*s_}')
        for s_ in range(4):
            A(f's_waitcnt lgkmcnt({3-s_})')
            c = '0' if s_ == 0 else f'v[{vDQ}:{vDQ+3}]'
            A(f'v_mfma_f32_16x16x32_bf16 v[{vDQ}:{vDQ+3}], v[{vXP+4*s_}:{vXP+4*s_+3}], v[{vW1+4*s_}:{vW1+4*s_+3}], {c}')
        A(f'ds_write_b32 v{vA3}, v{vDQ} offset:{L_TP}'); A(f'ds_write_b32 v{vA3}, v{vDQ+1} offset:{L_TP+64}')
        A('s_waitcnt lgkmcnt(0)'); A('s_barrier')
        for w in range(4): A(f'ds_read_b32 v{T(w)}, v{vA4} offset:{L_TP+128*w}')
        A('s_waitcnt lgkmcnt(0)')
        A(f'v_add_f32 v{T(0)}, v{T(0)}, v{T(1)}'); A(f'v_add_f32 v{T(2)}, v{T(2)}, v{T(3)}'); A(f'v_add_f32 v{T(0)}, v{T(0)}, v{T(2)}')
        G.rbf(T(0)); A(f'v_add_f32 v{T(0)}, v{vB1}, v{T(0)}'); G.rbf(T(0))
        import struct, math
        f2u = lambda f: struct.unpack('<I', struct.pack('<f', f))[0]
        K0 = -2 * math.log2(math.e) * math.sqrt(2 / math.pi); K1 = K0 * 0.044715
        A(f'v_mul_f32 v{T(1)}, v{T(0)}, v{T(0)}'); A(f'v_mov_b32 v{T(2)}, {hex(f2u(K0))}'); A(f'v_fmac_f32 v{T(2)}, {hex(f2u(K1))}, v{T(1)}')
        A(f'v_mul_f32 v{T(1)}, v{T(0)}, v{T(2)}'); A(f'v_exp_f32 v{T(1)}, v{T(1)}'); A(f'v_add_f32 v{T(1)}, 1.0, v{T(1)}'); A(f'v_rcp_f32 v{T(1)}, v{T(1)}')
        A(f'v_mul_f32 v{T(0)}, v{T(0)}, v{T(1)}'); A(f'v_cvt_pk_bf16_f32 v{vGA}, v{T(0)}, v{T(0)}')
        for ii in range(4):
            bs = vB + 4 * ii
            for jj in range(4):
                A(f'v_and_b32_dpp v{bs+jj}, v{vGA}, v{vMASK+jj} quad_perm:[{ii},{ii},{ii},{ii}] row_mask:0xf bank_mask:0xf')
        for ii in range(4):
            bs = vB + 4 * ii
            c = '0' if ii == 0 else f'v[{vDQ}:{vDQ+3}]'
            A(f'v_mfma_f32_16x16x32_bf16 v[{vDQ}:{vDQ+3}], v[{vW2+4*ii}:{vW2+4*ii+3}], v[{bs}:{bs+3}], {c}')
        A(f'buffer_store_dwordx4 v[{vDQ}:{vDQ+3}], v{vRS}, s[{rWS}:{rWS+3}], 0 offen sc1')
        G.stamp(7)
        A('L_fin:')
        if self.diag:
            A(f's_lshl_b32 s{sT}, s2, 2'); A(f's_add_u32 s{sT}, s{sT}, s{sW}'); A(f's_lshl_b32 s{sT}, s{sT}, 7'); A(f's_add_u32 s{sT}, s{sT}, {WS_DIAG}')
            A('s_memrealtime s[96:97]'); A('s_getreg_b32 s98, hwreg(HW_REG_XCC_ID)'); A('s_waitcnt lgkmcnt(0)')
            A('v_writelane_b32 v251, s96, 14'); A('v_writelane_b32 v251, s98, 15')
            A(f'v_lshlrev_b32 v{T(0)}, 2, v{vL}'); A(f'v_add_u32 v{T(0)}, s{sT}, v{T(0)}')
            A(f'v_mov_b32 v{T(1)}, {OOB}'); A(f'v_cmp_gt_u32 vcc, 32, v{vL}'); A(f'v_cndmask_b32 v{T(0)}, v{T(1)}, v{T(0)}, vcc')
            A(f'buffer_store_dword v251, v{T(0)}, s[{rWS}:{rWS+3}], 0 offen')
            if self.kw.get('st3'):
                A(f's_lshl_b32 s{sT}, s2, 2'); A(f's_add_u32 s{sT}, s{sT}, s{sW}'); A(f's_lshl_b32 s{sT}, s{sT}, 8'); A(f's_add_u32 s{sT}, s{sT}, {WS_DIAG + 0x20000}')
                A(f'v_lshlrev_b32 v{T(0)}, 2, v{vL}'); A(f'v_add_u32 v{T(0)}, s{sT}, v{T(0)}')
                A(f'buffer_store_dword v252, v{T(0)}, s[{rWS}:{rWS+3}], 0 offen')
        A('L_end:')
        A('s_endpgm')
        return self.wrap()

    def ln_finish(self, mean, ss, om, orstd, inv_n):
        A = self.A
        import struct
        f2u = lambda f: struct.unpack('<I', struct.pack('<f', f))[0]
        A(f'v_mul_f32 v{ss}, {hex(f2u(inv_n))}, v{ss}'); self.rbf(ss)
        A(f'v_add_f32 v{ss}, {hex(f2u(1e-5))}, v{ss}'); self.rbf(ss)
        A(f'v_sqrt_f32 v{ss}, v{ss}'); self.rbf(ss)
        A(f'v_rcp_f32 v{orstd}, v{ss}')
        self.rbf(om, mean)
    def ln_stats(self, X, om, orstd, t0, t1, inv_n, red):
        A = self.A
        import struct
        f2u = lambda f: struct.unpack('<I', struct.pack('<f', f))[0]
        A(f'v_add_f32 v{t0}, v{X[0]}, v{X[1]}')
        for x in X[2:]: A(f'v_add_f32 v{t0}, v{t0}, v{x}')
        red('add', t0, t1)
        A(f'v_mul_f32 v{t0}, {hex(f2u(inv_n))}, v{t0}')
        A(f'v_sub_f32 v{t1}, v{X[0]}, v{t0}'); A(f'v_mul_f32 v{orstd}, v{t1}, v{t1}')
        for x in X[1:]:
            A(f'v_sub_f32 v{t1}, v{x}, v{t0}'); A(f'v_fmac_f32 v{orstd}, v{t1}, v{t1}')
        red('add', orstd, t1)
        A(f'v_mov_b32 v{t1}, v{orstd}')
        self.ln_finish(t0, t1, om, orstd, inv_n)
    def ln_apply(self, X, m, rstd):
        A = self.A
        for k in range(0, len(X), 2):
            A(f'v_sub_f32 v{X[k]}, v{X[k]}, v{m}'); A(f'v_sub_f32 v{X[k+1]}, v{X[k+1]}, v{m}')
            A(f'v_cvt_pk_bf16_f32 v{X[k+1]}, v{X[k]}, v{X[k+1]}')
            A(f'v_lshlrev_b32 v{X[k]}, 16, v{X[k+1]}'); A(f'v_and_b32 v{X[k+1]}, 0xffff0000, v{X[k+1]}')
            A(f'v_mul_f32 v{X[k]}, v{X[k]}, v{rstd}'); A(f'v_mul_f32 v{X[k+1]}, v{X[k+1]}, v{rstd}')

    def finish_debug(self, regs):
        raise NotImplementedError

    def wrap(self):
        body = hz.fix(self.L)
        H = []
        H.append(f'; @launch grid=(256,1,1) block=(256,1,1) lds={LDS_SIZE}')
        H.append('.amdgcn_target "amdgcn-amd-amdhsa--gfx950"')
        H.append('.text'); H.append(f'.globl {KN}'); H.append('.p2align 8'); H.append(f'.type {KN},@function'); H.append(f'{KN}:')
        H += body
        H.append('.section .rodata,"a"'); H.append('.p2align 6'); H.append(f'.amdhsa_kernel {KN}')
        H.append('  .amdhsa_next_free_vgpr 512'); H.append('  .amdhsa_next_free_sgpr 102'); H.append('  .amdhsa_accum_offset 256')
        H.append('  .amdhsa_group_segment_fixed_size 0'); H.append('  .amdhsa_kernarg_size 104'); H.append('  .amdhsa_user_sgpr_count 2')
        H.append('  .amdhsa_user_sgpr_kernarg_segment_ptr 1'); H.append('  .amdhsa_system_sgpr_workgroup_id_x 1')
        H.append('.end_amdhsa_kernel')
        return '\n'.join(H) + '\n'

if __name__ == '__main__':
    import ast
    kw = eval('dict(%s)' % (sys.argv[2] if len(sys.argv) > 2 else ''))
    open(sys.argv[1], 'w').write(Gen(**kw).gen())
```

```python
import sys
import hz
KN = 'sequential_preLN__mha_block_cached__mixer_channel_mlp__decode_kernel'

WS_ML = 0x0
WS_H  = 0x2000
WS_PROG = 0x4000
WS_C1 = 0x10000
WS_C2 = 0x90000
WS_SIZE = 0x100000
WS_DIAG = 0x100000
OOB = 0x7ff00000

L_XN = 0
L_QP = 4096
L_QB = 6144
L_OP = 7168
L_OH = 9216
L_YB = 11264
L_TP = 13312
L_DUMMY = 13824
L_LIM = 15360
L_DUM2 = 15616
LDS_SIZE = 16384

SCALE = 0x3DB504F3
LOG2E = 0x3FB8AA3B

class Gen:
    def __init__(self, diag=False, nt='nt', wnt='', spin=1 << 15, ring=8, pre=6, stop=None, nowo=False, nowq=False, norole=False, **kw):
        self.L = []
        self.vm = []
        self.done = -1
        self.diag = diag; self.nt = nt; self.wnt = wnt; self.spin = spin
        self.ring = ring; self.pre = pre; self.stop = stop
        self.nstamp = 0; self.n3 = 0; self.lidx = {}
        self.nowo = nowo; self.nowq = nowq; self.norole = norole; self.kw = kw
    def A(self, s):
        if self.kw.get('nomfma') and s.startswith('v_mfma'): return
        self.L.append('  ' + s if not s.endswith(':') else s)
    def vmop(self, s, tag, optional=False):
        self.A(s); self.vm.append((tag, optional))
        if self.kw.get('st3') and self.n3 < 64 and not optional:
            self.A('s_memrealtime s[96:97]'); self.A('s_waitcnt lgkmcnt(0)'); self.A('v_writelane_b32 v252, s96, %d' % self.n3); self.n3 += 1
        out = len(self.vm) - 1 - self.done
        assert out <= 63, ('too many outstanding', out, tag)
    def vmwait(self, tag):
        idx = max(i for i, (t, o) in enumerate(self.vm) if t == tag)
        n = sum(1 for (t, o) in self.vm[idx + 1:] if not o)
        assert n <= 63
        self.A('s_waitcnt vmcnt(%d)' % n)
        self.done = max(self.done, idx)
    def vmwait_idx(self, idx):
        if idx <= self.done: return
        n = sum(1 for (t, o) in self.vm[idx + 1:] if not o)
        assert n <= 63
        self.A('s_waitcnt vmcnt(%d)' % n)
        self.done = max(self.done, idx)
    def vmdrain(self):
        self.A('s_waitcnt vmcnt(0)'); self.done = len(self.vm) - 1
    def stamp(self, k):
        if self.diag:
            self.A('s_memrealtime s[96:97]'); self.A('s_waitcnt lgkmcnt(0)')
            self.A('v_mov_b32 v250, s96'); self.A('v_writelane_b32 v251, s96, %d' % k)

    def srd(self, r, lo, hi, size, off=None):
        A = self.A
        if off is None:
            A(f's_mov_b32 s{r}, s{lo}'); A(f's_and_b32 s{r+1}, s{hi}, 0xffff')
        else:
            A(f's_add_u32 s{r}, s{lo}, {off}'); A(f's_addc_u32 s{r+1}, s{hi}, 0'); A(f's_and_b32 s{r+1}, s{r+1}, 0xffff')
        A(f's_mov_b32 s{r+2}, {size}'); A(f's_mov_b32 s{r+3}, 0x20000')

    def wave_allreduce(self, op, v, t):
        A = self.A
        for r in (1, 2, 4, 8):
            A(f'v_{op}_f32_dpp v{v}, v{v}, v{v} row_ror:{r} row_mask:0xf bank_mask:0xf')
        A(f'v_mov_b32 v{t}, v{v}'); A(f'v_permlane16_swap_b32 v{v}, v{t}'); A(f'v_{op}_f32 v{v}, v{v}, v{t}')
        A(f'v_mov_b32 v{t}, v{v}'); A(f'v_permlane32_swap_b32 v{v}, v{t}'); A(f'v_{op}_f32 v{v}, v{v}, v{t}')
    def half_allreduce(self, op, v, t):
        A = self.A
        for r in (1, 2, 4, 8):
            A(f'v_{op}_f32_dpp v{v}, v{v}, v{v} row_ror:{r} row_mask:0xf bank_mask:0xf')
        A(f'v_mov_b32 v{t}, v{v}'); A(f'v_permlane16_swap_b32 v{v}, v{t}'); A(f'v_{op}_f32 v{v}, v{v}, v{t}')
    def rbf(self, v, src=None):
        A = self.A
        s = v if src is None else src
        A(f'v_cvt_pk_bf16_f32 v{v}, v{s}, v{s}'); A(f'v_and_b32 v{v}, 0xffff0000, v{v}')

    def gen(self):
        A = self.A; G = self
        RING = self.ring; nt = self.nt; wnt = self.wnt
        sW = 3
        pX, pK, pV, pWQ, pWO, pW1, pB1, pW2, pB2, pOUT, pDBG, pWS = 4, 6, 8, 10, 12, 16, 18, 20, 22, 24, 26, 28
        rK, rV, rWQ, rWO, rWS, rDBG, rX, rW1, rW2, rB1, rB2, rOUT = 32, 36, 40, 44, 48, 52, 56, 60, 64, 68, 72, 76
        sOff, sT, sH, sB, sS, sBH, sRole, sSpin, sT2, sU = 80, 81, 82, 83, 84, 85, 86, 87, 88, 89
        sM = 90
        sPK = 92
        sAt = 93
        vL, vN, vG = 1, 2, 3
        vK, vV, vWQ, vWO, vC1, vMLp, vMLq, vRS = 4, 5, 6, 7, 8, 9, 10, 11
        vSEL = 12
        vMASK = 20
        vBQ = 24
        vS = 32
        vD = 64
        vO = 80
        vB = 88
        vXP = 104
        vDQ = 120
        vT = 124
        vMX, vLS, vM, vNM, vF, vML0, vML1, vCNT = 140, 141, 142, 143, 208, 210, 211, 212
        vW1 = 144
        vW2 = 160
        vR = 176
        vB1, vXV, vB2V, vHV, vOPA, vSENT, vOUTA = 213, 214, 215, 216, 217, 220, 218
        vA1, vA2, vA3, vA4 = 224, 225, 226, 227
        vXR = 228
        vWOFF1, vWOFF2, vB1OFF, vHOFF, vGA = 232, 233, 234, 235, 236
        vONE, vATO = 237, 238
        vXOFF, vB2OFF, vC2OFF = 239, 240, 241
        vPROG = (242, 209); vPUBO, vPRO, vLIMW, vLIMR, vLIM, vPV, vPT, vPT2, vWIN = 243, 244, 245, 246, 247, 248, 249, 219, 253
        vSNAP, vEFF = 254, 255
        sLim, sSp2 = 94, 95
        THR = self.kw.get('thr'); CHK = self.kw.get('chk', 2); NREP = self.kw.get('nrep', 32)
        aW = 128
        T = lambda i: vT + i

        A('s_cmp_ge_u32 s2, 256'); A('s_cbranch_scc1 L_end')
        if self.kw.get('wgx'): A('s_xor_b32 s2, s2, %d' % self.kw['wgx'])
        if self.kw.get('hperm'):
            pc = sum(v << (4 * i) for i, v in enumerate(self.kw['hperm']))
            A('s_and_b32 s3, s2, 7'); A('s_lshl_b32 s3, s3, 2'); A('s_lshr_b32 s3, %d, s3' % pc); A('s_and_b32 s3, s3, 7')
            A('s_andn2_b32 s2, s2, 7'); A('s_or_b32 s2, s2, s3')
        A(f's_load_dwordx16 s[4:19], s[0:1], 0'); A('s_load_dwordx8 s[20:27], s[0:1], 64'); A('s_load_dwordx2 s[28:29], s[0:1], 96')
        if self.diag:
            A('v_mov_b32 v251, 0')
            G.stamp(0)
        A(f'v_and_b32 v{vL}, 63, v0'); A(f'v_lshrrev_b32 v{T(0)}, 6, v0'); A(f'v_and_b32 v{vN}, 15, v0')
        A(f'v_readfirstlane_b32 s{sW}, v{T(0)}')
        A(f'v_lshrrev_b32 v{vG}, 4, v{vL}')
        A(f's_and_b32 s{sH}, s2, 31'); A(f's_lshr_b32 s{sB}, s2, 5'); A(f's_and_b32 s{sB}, s{sB}, 1'); A(f's_lshr_b32 s{sS}, s2, 6'); A(f's_and_b32 s{sBH}, s2, 63')
        if self.kw.get('hmap') == 'c4':
            A(f's_and_b32 s{sT}, s2, 7'); A(f's_lshl_b32 s{sT}, s{sT}, 2'); A(f's_bfe_u32 s{sH}, s2, 0x20003'); A(f's_or_b32 s{sH}, s{sH}, s{sT}')
            A(f's_lshl_b32 s{sT}, s{sB}, 5'); A(f's_or_b32 s{sBH}, s{sH}, s{sT}')
        if self.kw.get('only') is not None:
            kind, val = self.kw['only']
            if kind == 'cls': A(f's_and_b32 s{sT}, s{sH}, 3'); A(f's_cmp_eq_u32 s{sT}, {val}'); A('s_cbranch_scc0 L_end')
            if kind == 'lt': A(f's_cmp_lt_u32 s2, {val}'); A('s_cbranch_scc0 L_end')
        A(f's_lshl_b32 s{sT}, s{sW}, 12')
        A(f'v_lshrrev_b32 v{T(0)}, 1, v{vN}'); A(f'v_lshlrev_b32 v{T(0)}, 8, v{T(0)}')
        A(f'v_and_b32 v{T(1)}, 1, v{vN}'); A(f'v_lshl_add_u32 v{T(0)}, v{T(1)}, 6, v{T(0)}')
        A(f'v_lshl_add_u32 v{T(0)}, v{vG}, 4, v{T(0)}'); A(f'v_add_u32 v{vK}, s{sT}, v{T(0)}')
        A(f'v_lshlrev_b32 v{T(0)}, 9, v{vG}'); A(f'v_lshl_add_u32 v{T(0)}, v{vN}, 4, v{T(0)}'); A(f'v_add_u32 v{vV}, s{sT}, v{T(0)}')
        A(f's_lshl_b32 s{sT}, s{sW}, 20'); A(f'v_lshlrev_b32 v{T(0)}, 18, v{vG}'); A(f'v_lshl_add_u32 v{T(0)}, v{vN}, 4, v{T(0)}'); A(f'v_add_u32 v{vWQ}, s{sT}, v{T(0)}')
        A(f's_lshl_b32 s{sT}, s{sB}, 10'); A(f'v_lshlrev_b32 v{T(2)}, 4, v{vL}'); A(f'v_add_u32 v{T(2)}, s{sT}, v{T(2)}')
        A(f's_lshl_b32 s{sT}, s{sB}, 5'); A(f's_lshl_b32 s{sT2}, s{sW}, 3'); A(f's_add_u32 s{sT}, s{sT}, s{sT2}')
        A(f's_lshl_b32 s{sT}, s{sT}, 13')
        A(f's_lshl_b32 s{sT2}, s{sH}, 2'); A(f's_add_u32 s{sT2}, s{sT2}, s{sS}'); A(f's_lshl_b32 s{sT2}, s{sT2}, 6')
        A(f's_add_u32 s{sT}, s{sT}, s{sT2}'); A(f's_add_u32 s{sT}, s{sT}, {WS_C1}')
        A(f'v_lshlrev_b32 v{T(0)}, 1, v{vG}'); A(f'v_lshrrev_b32 v{T(1)}, 2, v{vN}'); A(f'v_add_u32 v{T(0)}, v{T(0)}, v{T(1)}')
        A(f'v_lshlrev_b32 v{T(0)}, 13, v{T(0)}'); A(f'v_and_b32 v{T(1)}, 3, v{vN}'); A(f'v_lshl_add_u32 v{T(0)}, v{T(1)}, 4, v{T(0)}')
        A(f'v_add_u32 v{T(0)}, s{sT}, v{T(0)}')
        A(f'v_mov_b32 v{T(1)}, {OOB}'); A(f'v_cmp_gt_u32 vcc, 8, v{vN}')
        A(f'v_cndmask_b32 v{vC1}, v{T(1)}, v{T(0)}, vcc')
        A(f's_lshl_b32 s{sT}, s{sBH}, 7'); A(f's_lshl_b32 s{sT2}, s{sS}, 2'); A(f's_add_u32 s{sT2}, s{sT2}, s{sW}'); A(f's_lshl_b32 s{sT2}, s{sT2}, 3')
        A(f's_add_u32 s{sT2}, s{sT2}, s{sT}'); A(f'v_mov_b32 v{T(0)}, s{sT2}'); A(f'v_mov_b32 v{T(1)}, {OOB}')
        A(f'v_cmp_eq_u32 vcc, 0, v{vL}'); A(f'v_cndmask_b32 v{vMLp}, v{T(1)}, v{T(0)}, vcc')
        A(f'v_lshlrev_b32 v{T(0)}, 3, v{vN}'); A(f'v_add_u32 v{vMLq}, s{sT}, v{T(0)}')
        kp, vp = self.kw.get('kpat'), self.kw.get('vpat')
        if kp == 'v' or vp == 'k' or kp == 'lin' or vp == 'lin':
            A(f's_lshl_b32 s{sT}, s{sW}, 12')
            if kp == 'v' and vp is None: A(f'v_mov_b32 v{vK}, v{vV}')
            if vp == 'k' and kp is None: A(f'v_mov_b32 v{vV}, v{vK}')
            if kp == 'lin': A(f'v_lshlrev_b32 v{T(0)}, 4, v{vL}'); A(f'v_add_u32 v{vK}, s{sT}, v{T(0)}')
            if vp == 'lin': A(f'v_lshlrev_b32 v{T(0)}, 4, v{vL}'); A(f'v_add_u32 v{vV}, s{sT}, v{T(0)}')
        rot = self.kw.get('rot')
        if rot:
            A(f's_mul_i32 s99, s2, {rot}'); A(f's_lshr_b32 s{sT}, s2, 5'); A(f's_add_u32 s99, s99, s{sT}'); A('s_and_b32 s99, s99, 31'); A('s_lshl_b32 s99, s99, 14')
        A(f's_mov_b32 s{sRole}, 0')
        A(f's_and_b32 s{sT}, s2, 7'); A(f's_mul_i32 s{sT}, s{sT}, 14'); A(f's_lshr_b32 s{sT2}, s2, 3'); A(f's_add_u32 s{sU}, s{sT}, s{sT2}')
        A(f's_cmp_lt_u32 s2, 112'); A(f's_cselect_b32 s{sRole}, 1, 0')
        A(f's_sub_u32 s{sT}, s2, 128'); A(f's_cmp_lt_u32 s{sT}, 64'); A(f's_cselect_b32 s{sRole}, 2, s{sRole}'); A(f's_cselect_b32 s{sU}, s{sT}, s{sU}')
        for r_ in (vRS, vWOFF1, vWOFF2, vB1OFF, vHOFF, vOUTA, vXOFF, vB2OFF, vC2OFF): A(f'v_mov_b32 v{r_}, {OOB}')
        A(f's_cmp_eq_u32 s{sRole}, 1'); A('s_cbranch_scc0 L_r1')
        A(f'v_lshrrev_b32 v{T(0)}, 3, v{vN}'); A(f'v_lshlrev_b32 v{T(0)}, 5, v{T(0)}')
        A(f'v_lshl_add_u32 v{T(0)}, v{vG}, 1, v{T(0)}'); A(f'v_bfe_u32 v{T(1)}, v{vN}, 2, 1'); A(f'v_add_u32 v{T(0)}, v{T(0)}, v{T(1)}')
        A(f's_lshl_b32 s{sT}, s{sW}, 3'); A(f'v_add_u32 v{T(0)}, s{sT}, v{T(0)}')
        A(f'v_mul_u32_u24 v{T(0)}, {112*64}, v{T(0)}'); A(f'v_and_b32 v{T(1)}, 3, v{vN}'); A(f'v_lshl_add_u32 v{T(0)}, v{T(1)}, 4, v{T(0)}')
        A(f's_lshl_b32 s{sT}, s{sU}, 6'); A(f's_add_u32 s{sT}, s{sT}, {WS_C2}'); A(f'v_add_u32 v{vRS}, s{sT}, v{T(0)}')
        A(f'v_lshrrev_b32 v{T(0)}, 1, v{vG}'); A(f'v_lshlrev_b32 v{T(0)}, 2, v{T(0)}'); A(f'v_and_b32 v{T(1)}, 1, v{vG}'); A(f'v_lshl_add_u32 v{T(0)}, v{T(1)}, 1, v{T(0)}')
        A(f's_lshl_b32 s{sT}, s{sW}, 7'); A(f'v_add_u32 v{T(0)}, s{sT}, v{T(0)}'); A(f'v_mul_u32_u24 v{T(0)}, 3584, v{T(0)}')
        A(f's_lshl_b32 s{sT}, s{sU}, 5'); A(f'v_lshl_add_u32 v{T(0)}, v{vN}, 1, v{T(0)}'); A(f'v_add_u32 v{vWOFF1}, s{sT}, v{T(0)}')
        A(f's_lshl_b32 s{sT}, s{sU}, 14'); A(f's_lshl_b32 s{sT2}, s{sW}, 8'); A(f's_add_u32 s{sT}, s{sT}, s{sT2}')
        A(f'v_lshlrev_b32 v{T(0)}, 12, v{vG}'); A(f'v_lshl_add_u32 v{T(0)}, v{vN}, 4, v{T(0)}'); A(f'v_add_u32 v{vWOFF2}, s{sT}, v{T(0)}')
        A(f's_lshl_b32 s{sT}, s{sU}, 5'); A(f'v_and_b32 v{T(0)}, 3, v{vN}'); A(f'v_lshl_add_u32 v{T(0)}, v{vG}, 2, v{T(0)}'); A(f'v_lshlrev_b32 v{T(0)}, 1, v{T(0)}'); A(f'v_add_u32 v{vB1OFF}, s{sT}, v{T(0)}')
        A(f'v_lshrrev_b32 v{T(0)}, 5, v{vL}'); A(f'v_lshlrev_b32 v{T(0)}, 11, v{T(0)}'); A(f'v_and_b32 v{T(1)}, 31, v{vL}'); A(f'v_lshl_add_u32 v{T(0)}, v{T(1)}, 4, v{T(0)}')
        A(f'v_add_u32 v{vHOFF}, {WS_H}, v{T(0)}')
        A('s_branch L_r2')
        A('L_r1:')
        A(f's_cmp_eq_u32 s{sRole}, 2'); A('s_cbranch_scc0 L_r2')
        A(f's_cmp_eq_u32 s{sW}, 0'); A('s_cbranch_scc0 L_r2')
        A(f's_lshl_b32 s{sT}, s{sU}, 6'); A(f's_add_u32 s{sT}, s{sT}, {WS_H}')
        A(f'v_lshlrev_b32 v{T(0)}, 4, v{vN}'); A(f'v_lshl_add_u32 v{T(0)}, v{vG}, 2, v{T(0)}'); A(f'v_add_u32 v{T(0)}, s{sT}, v{T(0)}')
        A(f'v_mov_b32 v{T(1)}, {OOB}'); A(f'v_cmp_gt_u32 vcc, 4, v{vN}'); A(f'v_cndmask_b32 v{vRS}, v{T(1)}, v{T(0)}, vcc')
        A(f's_and_b32 s{sT}, s{sU}, 31'); A(f's_lshr_b32 s{sT2}, s{sT}, 1'); A(f's_lshl_b32 s{sT2}, s{sT2}, 5')
        A(f's_and_b32 s{sT}, s{sT}, 1'); A(f's_lshl_b32 s{sT}, s{sT}, 2'); A(f's_add_u32 s{sT}, s{sT}, s{sT2}')
        A(f'v_and_b32 v{T(0)}, 3, v{vN}'); A(f'v_lshl_add_u32 v{T(0)}, v{vG}, 3, v{T(0)}'); A(f'v_add_u32 v{T(0)}, s{sT}, v{T(0)}')
        A(f'v_lshlrev_b32 v{vB2OFF}, 1, v{T(0)}')
        A(f's_lshr_b32 s{sT}, s{sU}, 5'); A(f's_lshl_b32 s{sT}, s{sT}, 10'); A(f'v_add_u32 v{vXOFF}, s{sT}, v{vB2OFF}')
        A(f'v_mov_b32 v{T(1)}, {OOB}'); A(f'v_cmp_gt_u32 vcc, 4, v{vN}'); A(f'v_cndmask_b32 v{vOUTA}, v{T(1)}, v{vXOFF}, vcc')
        A(f's_lshl_b32 s{sT}, s{sU}, 13'); A(f's_add_u32 s{sT}, s{sT}, {WS_C1}'); A(f'v_lshlrev_b32 v{T(0)}, 4, v{vL}'); A(f'v_add_u32 v{vHOFF}, s{sT}, v{T(0)}')
        A(f's_mul_i32 s{sT}, s{sU}, 7168'); A(f's_add_u32 s{sT}, s{sT}, {WS_C2}'); A(f'v_add_u32 v{vC2OFF}, s{sT}, v{T(0)}')
        A('L_r2:')
        for i in range(4): A(f'v_mov_b32 v{vSENT+i}, -1')
        A('s_waitcnt lgkmcnt(0)')
        if self.kw.get('st2'): G.stamp(24)
        A(f's_lshl_b32 s{sT}, s{sBH}, 21'); A(f's_lshl_b32 s{sT2}, s{sS}, 19'); A(f's_add_u32 s{sT}, s{sT}, s{sT2}')
        if self.kw.get('krot'): A(f's_add_u32 s{sT}, s{sT}, {self.kw["krot"] << 21}'); A(f's_and_b32 s{sT}, s{sT}, {(64 << 21) - 1}')
        G.srd(rX, pX, pX + 1, 2048)
        G.srd(rK, pK, pK + 1, 0x80000, f's{sT}')
        G.vmop(f'buffer_load_dwordx4 v[{vXR}:{vXR+3}], v{T(2)}, s[{rX}:{rX+3}], 0 offen', 'x')
        if self.kw.get('xwait'): G.vmwait('x')
        koffs = [0, 2048, 128, 2176]
        voffs = [0, 2048, 256, 2304]
        if kp == 'v': koffs = list(voffs)
        if vp == 'k': voffs = list(koffs)
        if kp == 'lin': koffs = [0, 1024, 2048, 3072]
        if vp == 'lin': voffs = [0, 1024, 2048, 3072]
        if kp == 'adj': koffs = [0, 128, 2048, 2176]
        if vp == 'adj': voffs = [0, 256, 2048, 2304]
        last_soff = [None]
        def load_one(u, q, setoff=True):
            isK = u < 32; t = u % 32
            if setoff:
                if self.kw.get('rot'):
                    A(f's_add_u32 s{sOff}, s99, {t*16384}'); A(f's_and_b32 s{sOff}, s{sOff}, {31*16384}')
                else:
                    A(f's_mov_b32 s{sOff}, {t*16384}')
            r = ((u % RING) * 4 + q) * 4
            if isK: G.vmop(f'buffer_load_dwordx4 a[{r}:{r+3}], v{vK}, s[{rK}:{rK+3}], s{sOff} offen offset:{koffs[q]} {nt}', f'u{u}')
            else:   G.vmop(f'buffer_load_dwordx4 a[{r}:{r+3}], v{vV}, s[{rV}:{rV+3}], s{sOff} offen offset:{voffs[q]} {nt}', f'u{u}')
            G.lidx[4 * u + q] = len(G.vm) - 1
        def unit_loads(u):
            for q in range(4): load_one(u, q, q == 0)
        PRO = self.kw.get('pro')
        kcur = [None]; kiss = [0]
        def issue_k():
            m = kiss[0]; u_, q_ = m // 4, m % 4
            load_one(u_, q_, u_ != kcur[0]); kcur[0] = u_; kiss[0] += 1
        if PRO:
            for _ in range(PRO[0]): issue_k()
        elif self.pre > 0: unit_loads(0)
        if self.kw.get('st2'): G.stamp(25)
        G.srd(rV, pV, pV + 1, 0x80000, f's{sT}')
        G.srd(rWS, pWS, pWS + 1, WS_SIZE + (0x100000 if self.diag else 0))
        A(f's_lshl_b32 s{sT}, s{sH}, 8')
        if self.kw.get('wqsame'): A(f's_mov_b32 s{sT}, 0')
        if self.kw.get('wqrot'): A(f's_add_u32 s{sT}, s{sH}, {self.kw["wqrot"]}'); A(f's_and_b32 s{sT}, s{sT}, 31'); A(f's_lshl_b32 s{sT}, s{sT}, 8')
        if self.kw.get('wqx'): A(f's_lshr_b32 s{sT}, s2, 3'); A(f's_lshl_b32 s{sT}, s{sT}, 8')
        if self.kw.get('wqx4'): A(f's_lshr_b32 s{sT}, s2, 2'); A(f's_and_b32 s{sT}, s{sT}, 31'); A(f's_lshl_b32 s{sT}, s{sT}, 8')
        if self.kw.get('wqbase'):
            pb = {'K': pK, 'V': pV, 'O': pWO}[self.kw['wqbase']]
            G.srd(rWQ, pb, pb + 1, 0, f's{sT}'); A(f's_sub_u32 s{rWQ+2}, {512*8192}, s{sT}')
        else:
            G.srd(rWQ, pWQ, pWQ + 1, 0, f's{sT}'); A(f's_sub_u32 s{rWQ+2}, {512*8192}, s{sT}')
        if self.kw.get('noinit'):
            A(f'v_mov_b32 v{vC1}, {OOB}'); A(f'v_mov_b32 v{vMLp}, {OOB}'); A(f'v_mov_b32 v{vRS}, {OOB}'); A(f'v_mov_b32 v{vHOFF}, {OOB}'); A(f'v_mov_b32 v{vC2OFF}, {OOB}'); A(f'v_mov_b32 v{vMLq}, {OOB}')
        G.vmop(f'buffer_store_dwordx4 v[{vSENT}:{vSENT+3}], v{vC1}, s[{rWS}:{rWS+3}], 0 offen sc1', 'init')
        G.vmop(f'buffer_store_dwordx2 v[{vSENT}:{vSENT+1}], v{vMLp}, s[{rWS}:{rWS+3}], 0 offen sc1', 'init')
        A(f's_cmp_eq_u32 s{sRole}, 1'); A('s_cbranch_scc0 L_i1')
        G.vmop(f'buffer_store_dwordx4 v[{vSENT}:{vSENT+3}], v{vRS}, s[{rWS}:{rWS+3}], 0 offen sc1', 'init', True)
        A('L_i1:')
        A(f's_cmp_eq_u32 s{sRole}, 2'); A('s_cbranch_scc0 L_i2')
        G.vmop(f'buffer_store_dword v{vSENT}, v{vRS}, s[{rWS}:{rWS+3}], 0 offen sc1', 'init', True)
        A('L_i2:')
        if self.kw.get('st2'): G.stamp(26)
        def wq_load(i):
            if self.kw.get('nowq0'): return
            if self.nowq and i >= 4: return
            A(f's_mov_b32 s{sT}, {i*8192}')
            r = aW + 4 * i
            G.vmop(f'buffer_load_dwordx4 a[{r}:{r+3}], v{vWQ}, s[{rWQ}:{rWQ+3}], s{sT} offen {wnt}', f'wq{i}')
            if self.kw.get('st2') and i == 15: G.stamp(27)
            if self.kw.get('st2') and i == 31: G.stamp(28)
        il = self.kw.get('il', 0)
        done_u = 1 if self.pre > 0 else 0
        if PRO:
            k0_, pa, pb_, Wp = PRO[:4]
            ktot = PRO[4] if len(PRO) > 4 else 28
            S = []
            for i in range(32):
                S.append(('wq', i))
                if i % pa == pa - 1 and i < 31: S += [('k', None)] * pb_
            S += [('k', None)] * 32
            sp = [0]
            def pro_next():
                while sp[0] < len(S):
                    kind, i = S[sp[0]]; sp[0] += 1
                    if kind == 'wq':
                        A(f's_mov_b32 s{sLim}, {i*8192}')
                        r = aW + 4 * i
                        G.vmop(f'buffer_load_dwordx4 a[{r}:{r+3}], v{vWQ}, s[{rWQ}:{rWQ+3}], s{sLim} offen {wnt}', f'wq{i}')
                        if self.kw.get('st2') and i == 15: G.stamp(27)
                        if self.kw.get('st2') and i == 31: G.stamp(28)
                        return True
                    if kiss[0] < ktot:
                        issue_k(); return True
                return False
            for _ in range(PRO[5] if len(PRO) > 5 else Wp - k0_ - 1): pro_next()
        else:
            for i in range(32):
                wq_load(i)
                if il and i % 4 == 3 and done_u < 1 + il and i < 31:
                    unit_loads(done_u); done_u += 1
            for u in range(done_u, self.pre): unit_loads(u)
        G.stamp(9)
        A(f's_lshl_b32 s{sT}, s{sH}, 17')
        if self.kw.get('wosame'): A(f's_mov_b32 s{sT}, 0')
        if self.kw.get('wox'): A(f's_lshr_b32 s{sT}, s2, 3'); A(f's_lshl_b32 s{sT}, s{sT}, 17')
        if self.kw.get('wox4'): A(f's_lshr_b32 s{sT}, s2, 2'); A(f's_and_b32 s{sT}, s{sT}, 31'); A(f's_lshl_b32 s{sT}, s{sT}, 17')
        if self.kw.get('woxcd'): A(f's_and_b32 s{sT}, s{sH}, 7'); A(f's_lshl_b32 s{sT}, s{sT}, 17')
        G.srd(rWO, pWO, pWO + 1, 131072, f's{sT}')
        G.srd(rDBG, pDBG, pDBG + 1, 256)
        G.srd(rW1, pW1, pW1 + 1, 512 * 3584)
        G.srd(rW2, pW2, pW2 + 1, 1792 * 1024)
        G.srd(rB1, pB1, pB1 + 1, 3584)
        G.srd(rB2, pB2, pB2 + 1, 1024)
        G.srd(rOUT, pOUT, pOUT + 1, 2048)
        A(f's_mov_b32 s{sPK}, 0x05040100')
        A(f's_lshl_b32 s{sT}, s{sW}, 8'); A(f'v_lshlrev_b32 v{T(0)}, 15, v{vG}'); A(f'v_lshl_add_u32 v{T(0)}, v{vN}, 4, v{T(0)}'); A(f'v_add_u32 v{vWO}, s{sT}, v{T(0)}')
        A(f's_lshr_b32 s{sAt}, s2, 4'); A(f's_and_b32 s{sAt}, s{sAt}, 15'); A(f's_cmp_eq_u32 s{sW}, 0'); A(f's_cselect_b32 s{sAt}, s{sAt}, 99')
        A(f'v_mov_b32 v{vONE}, 1'); A(f'v_mov_b32 v{vATO}, {OOB}'); A(f'v_cmp_eq_u32 vcc, 0, v{vL}'); A(f'v_cndmask_b32 v{vATO}, v{vATO}, 0, vcc')
        A(f'v_and_b32 v{T(0)}, 1, v{vN}'); A(f'v_cmp_eq_u32 vcc, 1, v{T(0)}')
        A(f'v_mov_b32 v{T(1)}, 0x0c0c0100'); A(f'v_mov_b32 v{T(2)}, 0x01000c0c'); A(f'v_cndmask_b32 v{T(3)}, v{T(1)}, v{T(2)}, vcc')
        A(f'v_mov_b32 v{T(1)}, 0x0c0c0302'); A(f'v_mov_b32 v{T(2)}, 0x03020c0c'); A(f'v_cndmask_b32 v{T(4)}, v{T(1)}, v{T(2)}, vcc')
        A(f'v_mov_b32 v{T(1)}, 0x0000ffff'); A(f'v_mov_b32 v{T(2)}, 0xffff0000'); A(f'v_cndmask_b32 v{T(5)}, v{T(1)}, v{T(2)}, vcc')
        A(f'v_bfe_u32 v{T(0)}, v{vN}, 1, 2'); A(f'v_mov_b32 v{T(6)}, 0x0c0c0c0c')
        for jj in range(4):
            A(f'v_cmp_eq_u32 vcc, {jj}, v{T(0)}')
            A(f'v_cndmask_b32 v{vSEL+jj}, v{T(6)}, v{T(3)}, vcc'); A(f'v_cndmask_b32 v{vSEL+4+jj}, v{T(6)}, v{T(4)}, vcc')
            A(f'v_cndmask_b32 v{vMASK+jj}, 0, v{T(5)}, vcc')
        A(f's_lshl_b32 s{sT}, s{sW}, 10'); A(f'v_lshlrev_b32 v{T(0)}, 4, v{vL}'); A(f'v_add_u32 v{vA1}, s{sT}, v{T(0)}')
        A(f's_mul_i32 s{sT}, s{sW}, 1280'); A(f'v_lshlrev_b32 v{T(0)}, 6, v{vG}'); A(f'v_add_u32 v{vA2}, s{sT}, v{T(0)}')
        if THR:
            PSTR = self.kw.get('pstr', 4)
            GSTR = self.kw.get('gstr', 256 if PSTR == 4 else 8 * PSTR)
            A(f's_and_b32 s{sT}, s2, 3'); A(f's_lshl_b32 s{sT}, s{sT}, 3'); A(f's_lshr_b32 s{sT2}, s2, 3'); A(f's_sub_u32 s{sT2}, s{sT2}, s{sT}'); A(f's_and_b32 s{sT2}, s{sT2}, 31')
            A(f's_mul_i32 s{sT2}, s{sT2}, {GSTR}'); A(f's_add_u32 s{sT2}, s{sT2}, {WS_PROG}')
            A(f'v_mov_b32 v{vPT}, {OOB}'); A(f'v_and_b32 v{vPRO}, 7, v{vL}'); A(f'v_mul_u32_u24 v{vPRO}, {PSTR}, v{vPRO}'); A(f'v_add_u32 v{vPRO}, s{sT2}, v{vPRO}')
            A(f's_and_b32 s{sT}, s2, 7'); A(f's_mul_i32 s{sT}, s{sT}, {PSTR}'); A(f's_add_u32 s{sT}, s{sT}, s{sT2}')
            A(f'v_mov_b32 v{vPUBO}, s{sT}'); A(f'v_cmp_eq_u32 vcc, 0, v{vL}'); A(f'v_cndmask_b32 v{vPUBO}, v{vPT}, v{vPUBO}, vcc')
            A(f'v_lshlrev_b32 v{vLIMW}, 2, v{vL}'); A(f'v_add_u32 v{vLIMW}, {L_DUM2}, v{vLIMW}')
            A(f'v_mov_b32 v{vLIMR}, {L_LIM}'); A(f'v_mov_b32 v{vWIN}, {THR}')
            A(f's_cmp_eq_u32 s{sW}, 0'); A('s_cbranch_scc1 L_thw0')
            A(f'v_mov_b32 v{vPUBO}, {OOB}'); A(f'v_mov_b32 v{vPRO}, {OOB}'); A('s_branch L_thw1')
            A('L_thw0:')
            A(f'v_cndmask_b32 v{vLIMW}, v{vLIMW}, v{vLIMR}, vcc')
            A('L_thw1:')
            A(f'ds_write_b32 v{vLIMW}, v{vWIN}'); A(f'v_mov_b32 v{vLIM}, {THR}'); A(f'v_mov_b32 v{vEFF}, 0')
            for r_ in vPROG: A(f'v_mov_b32 v{r_}, 0')
        noq = self.kw.get('noq')
        if noq: A('s_branch L_noq')
        if self.kw.get('st2'): G.stamp(29)
        G.vmwait('x')
        if self.kw.get('st2'): G.stamp(30)
        if THR:
            G.vmop(f'buffer_load_dword v{vSNAP}, v{vPRO}, s[{rWS}:{rWS+3}], 0 offen sc1', 'snap')
        X = [T(i) for i in range(8)]
        for k in range(4):
            A(f'v_lshlrev_b32 v{X[2*k]}, 16, v{vXR+k}'); A(f'v_and_b32 v{X[2*k+1]}, 0xffff0000, v{vXR+k}')
        self.ln_stats(X, T(8), T(9), T(10), T(11), 1.0 / 512, self.wave_allreduce)
        self.ln_apply(X, T(8), T(9))
        for k in range(4): A(f'v_cvt_pk_bf16_f32 v{vXR+k}, v{X[2*k]}, v{X[2*k+1]}')
        A(f'ds_write_b128 v{vA1}, v[{vXR}:{vXR+3}] offset:{L_XN}')
        A('s_waitcnt lgkmcnt(0)')
        for k in range(4): A(f'ds_read_b128 v[{vXP+4*k}:{vXP+4*k+3}], v{vA2} offset:{L_XN+16*k}')
        A(f's_lshl_b32 s{sT}, s{sW}, 9'); A(f'v_and_b32 v{T(0)}, 7, v{vN}'); A(f'v_lshl_add_u32 v{T(0)}, v{vG}, 5, v{T(0)}'); A(f'v_lshlrev_b32 v{T(0)}, 2, v{T(0)}')
        A(f'v_add_u32 v{vA1}, s{sT}, v{T(0)}')
        A(f'v_mov_b32 v{T(1)}, {L_DUMMY - L_OP}'); A(f'v_cmp_gt_u32 vcc, 8, v{vN}'); A(f'v_cndmask_b32 v{vOPA}, v{T(1)}, v{vA1}, vcc')
        A(f'v_lshlrev_b32 v{vA3}, 3, v{vL}')
        A('s_waitcnt lgkmcnt(0)')
        if self.kw.get('st2'): G.stamp(31)
        def delta_steps(nsteps, acc, tagf, first_zero=True):
            for i in range(nsteps):
                bset = vB + 4 * (i & 1)
                for jj in range(4):
                    A(f'v_perm_b32 v{bset+jj}, v{vXP+(i>>1)}, v{vXP+(i>>1)}, v{vSEL+4*(i&1)+jj}')
                if tagf is not None and i % 4 == 0: G.vmwait(tagf(i + 3))
                r = aW + 4 * i
                c = '0' if i == 0 else f'v[{acc}:{acc+3}]'
                A(f'v_mfma_f32_16x16x32_bf16 v[{acc}:{acc+3}], a[{r}:{r+3}], v[{bset}:{bset+3}], {c}')
        if PRO:
            for i in range(32):
                bset = vB + 4 * (i & 1)
                for jj in range(4):
                    A(f'v_perm_b32 v{bset+jj}, v{vXP+(i>>1)}, v{vXP+(i>>1)}, v{vSEL+4*(i&1)+jj}')
                idx = max(k for k, (t_, o_) in enumerate(G.vm) if t_ == f'wq{i}')
                G.vmwait_idx(idx)
                while len(G.vm) - 1 - idx < Wp and pro_next(): pass
                r = aW + 4 * i
                c = '0' if i == 0 else f'v[{vDQ}:{vDQ+3}]'
                A(f'v_mfma_f32_16x16x32_bf16 v[{vDQ}:{vDQ+3}], a[{r}:{r+3}], v[{bset}:{bset+3}], {c}')
            for _ in range(self.kw.get('kq', 0)): issue_k()
        else:
            delta_steps(32, vDQ, lambda i: f'wq{min(i, 3) if self.nowq else i}')
        for i in range(4): A(f'ds_write_b32 v{vA1}, v{vDQ+i} offset:{L_QP + 32*i}')
        A('s_waitcnt lgkmcnt(0)'); A('s_barrier')
        A(f's_cmp_eq_u32 s{sW}, 0'); A('s_cbranch_scc0 L_c1')
        A(f'v_mov_b32 v{T(0)}, 1'); A(f'v_mov_b32 v{T(1)}, {OOB}'); A(f'v_cmp_eq_u32 vcc, 0, v{vL}'); A(f'v_cndmask_b32 v{T(1)}, v{T(1)}, 0, vcc')
        if not self.kw.get('noatom') and not self.kw.get('atsp'): G.vmop(f'buffer_atomic_add v{T(0)}, v{T(1)}, s[{rDBG}:{rDBG+3}], 0 offen', 'atom', True)
        A('L_c1:')
        for w in range(4): A(f'ds_read_b64 v[{T(2*w+2)}:{T(2*w+3)}], v{vA3} offset:{L_QP + 512*w}')
        if noq:
            A('L_noq:')
            A(f's_cmp_eq_u32 s{sW}, 0'); A('s_cbranch_scc0 L_c1b')
            A(f'v_mov_b32 v{T(0)}, 1'); A(f'v_mov_b32 v{T(1)}, {OOB}'); A(f'v_cmp_eq_u32 vcc, 0, v{vL}'); A(f'v_cndmask_b32 v{T(1)}, v{T(1)}, 0, vcc')
            if not self.kw.get('noatom'): A(f'buffer_atomic_add v{T(0)}, v{T(1)}, s[{rDBG}:{rDBG+3}], 0 offen')
            A('L_c1b:')
        LOOK = self.kw.get('look', RING); LOOKV = self.kw.get('lookv', LOOK)
        nxt = [self.pre]
        def issue_upto(u_hi):
            while nxt[0] <= min(u_hi, 63):
                unit_loads(nxt[0]); nxt[0] += 1
        if PRO:
            while kiss[0] < self.kw.get('topup', 0): issue_k()
        else: issue_upto(LOOK - 1)
        SL = self.kw.get('slide'); SLV = self.kw.get('slidev', SL)
        nxl = [kiss[0] if PRO else 4 * nxt[0]]
        m0_ = nxl[0]
        import math
        def lagof(m):
            f = SL if m < 128 else SLV
            eb = self.kw.get('eb')
            if eb and m >= 128 + 4 * eb[0]: f = eb[1]
            kb = self.kw.get('kb')
            if kb and m < 128 and m >= 4 * kb[0]: f = kb[1]
            rp = self.kw.get('ramp')
            if rp and m < 128:
                f = max(f, min(31, int(rp[0] - rp[1] * (m - m0_))))
            if isinstance(f, int) or float(f).is_integer(): return int(f)
            g = int(m // f)
            return int(math.floor((g + 1) * f) - math.floor(g * f))
        def slide_issue(j, boost=0):
            while nxl[0] <= 255 and (nxl[0] - lagof(nxl[0]) <= j or nxl[0] <= j + boost):
                m = nxl[0]; u_, q_ = m // 4, m % 4
                load_one(u_, q_, u_ != slide_issue.cur); slide_issue.cur = u_
                nxl[0] += 1
        slide_issue.cur = None
        prog_k = [0]
        def prog_reduce(src):
            A(f'v_cmp_ne_u32 vcc, v{src}, v{vSNAP}'); A(f'v_cndmask_b32 v{vPT}, 0, v{src}, vcc'); A(f'v_max_u32 v{vEFF}, v{vEFF}, v{vPT}')
            A(f'v_min_u32_dpp v{vPT}, v{vEFF}, v{vEFF} row_ror:1 row_mask:0xf bank_mask:0xf')
            for r_ in (2, 4): A(f'v_min_u32_dpp v{vPT}, v{vPT}, v{vPT} row_ror:{r_} row_mask:0xf bank_mask:0xf')
            A(f'v_add_u32 v{vPT}, v{vWIN}, v{vPT}')
            A(f'ds_write_b32 v{vLIMW}, v{vPT}')
        def throttled_issue(g, u_hi):
            u_hi = min(u_hi, 63)
            if not THR: issue_upto(u_hi); return
            need_gate = u_hi >= nxt[0] and u_hi > THR
            if need_gate:
                lab = f'L_th{g}'
                A('s_waitcnt lgkmcnt(0)'); A(f'v_readfirstlane_b32 s{sLim}, v{vLIM}')
                A(f's_cmp_ge_u32 s{sLim}, {u_hi}'); A(f's_cbranch_scc1 {lab}_ok')
                A(f's_mov_b32 s{sSp2}, 4096')
                A(f'{lab}:')
                A(f's_cmp_eq_u32 s{sW}, 0'); A(f's_cbranch_scc0 {lab}_w')
                A(f'buffer_load_dword v{vPV}, v{vPRO}, s[{rWS}:{rWS+3}], 0 offen sc1'); A('s_waitcnt vmcnt(0)')
                prog_reduce(vPV)
                A(f'{lab}_w:')
                A(f'ds_read_b32 v{vLIM}, v{vLIMR}'); A('s_waitcnt lgkmcnt(0)'); A(f'v_readfirstlane_b32 s{sLim}, v{vLIM}')
                A(f's_cmp_ge_u32 s{sLim}, {u_hi}'); A(f's_cbranch_scc1 {lab}_ok')
                A(f's_sub_u32 s{sSp2}, s{sSp2}, 1'); A(f's_cbranch_scc0 {lab}')
                A(f'v_mov_b32 v{vWIN}, 0x100000')
                A(f'{lab}_ok:')
            more = nxt[0] <= 63 or True
            last_gate = 63 - 1
            do_chk = (g % CHK == 0) and nxt[0] < 63
            if do_chk:
                k = prog_k[0]
                G.vmop(f'buffer_load_dword v{vPROG[k & 1]}, v{vPRO}, s[{rWS}:{rWS+3}], 0 offen sc1', f'prog{k}')
            if g % self.kw.get('pubn', 1) == 0 and g < 63 - 2:
                A(f'v_mov_b32 v{vPV}, {g + 1}')
                G.vmop(f'buffer_store_dword v{vPV}, v{vPUBO}, s[{rWS}:{rWS+3}], 0 offen sc1', 'pub')
            issue_upto(u_hi)
            if do_chk:
                k = prog_k[0]
                if k > 0:
                    G.vmwait(f'prog{k-1}')
                    prog_reduce(vPROG[(k - 1) & 1])
                prog_k[0] += 1
            if nxt[0] <= 63: A(f'ds_read_b32 v{vLIM}, v{vLIMR}')
        A(f's_lshl_b32 s{sT}, s{sW}, 8'); A(f'v_lshlrev_b32 v{T(0)}, 2, v{vL}'); A(f'v_add_u32 v{T(0)}, s{sT}, v{T(0)}')
        A(f'v_lshrrev_b32 v{T(1)}, 3, v{vN}'); A(f'v_lshlrev_b32 v{T(1)}, 6, v{T(1)}'); A(f'v_lshl_add_u32 v{T(1)}, v{vG}, 4, v{T(1)}'); A(f'v_add_u32 v{T(1)}, s{sT}, v{T(1)}')
        A('s_waitcnt lgkmcnt(0)')
        A(f'v_pk_add_f32 v[{T(2)}:{T(3)}], v[{T(2)}:{T(3)}], v[{T(4)}:{T(5)}]'); A(f'v_pk_add_f32 v[{T(6)}:{T(7)}], v[{T(6)}:{T(7)}], v[{T(8)}:{T(9)}]')
        A(f'v_pk_add_f32 v[{T(2)}:{T(3)}], v[{T(2)}:{T(3)}], v[{T(6)}:{T(7)}]')
        A(f'v_cvt_pk_bf16_f32 v{T(2)}, v{T(2)}, v{T(3)}')
        A(f'ds_write_b32 v{T(0)}, v{T(2)} offset:{L_QB}')
        A('s_waitcnt lgkmcnt(0)')
        A(f'ds_read_b128 v[{vBQ}:{vBQ+3}], v{T(1)} offset:{L_QB}'); A(f'ds_read_b128 v[{vBQ+4}:{vBQ+7}], v{T(1)} offset:{L_QB+128}')
        A(f'v_mov_b32 v{vMX}, 0xff800000')
        for i in range(8): A(f'v_mov_b32 v{vO+i}, 0')
        A('s_waitcnt lgkmcnt(0)')
        G.stamp(1)
        if self.kw.get('qonly'): A('s_branch L_fin')
        if self.stop == 'q':
            return self.finish_debug([vBQ + i for i in range(8)])

        wo_loads = []
        for i in range(32):
            r = aW + 4 * i
            wo_loads.append((i // 4 * 4096, f'buffer_load_dwordx4 a[{r}:{r+3}], v{vWO}, s[{rWO}:{rWO+3}], s{sT} offen offset:{(i%4)*1024} {wnt}', f'wo{i}'))
        def emit_wo(k0, k1):
            for k in range(k0, k1):
                so, s, tag = wo_loads[k]
                if self.kw.get('wotiny'): so = 0
                if k == k0 or k % 4 == 0: A(f's_mov_b32 s{sT}, {so}')
                G.vmop(s, tag)
        EX = self.kw.get('exact', False)
        def emit_role_loads(part):
            lab = f'L_rl{part}'
            if part < 16:
                if not EX: A(f's_cmp_eq_u32 s{sRole}, 1'); A(f's_cbranch_scc0 {lab}')
                s_ = part // 4; e3 = part % 4
                A(f's_mov_b32 s{sT}, {(32*s_ + 8*e3)*3584}')
                for eh in (0, 1):
                    e = e3 + 4 * eh
                    G.vmop(f'buffer_load_ushort v{vR + 8*s_ + e}, v{vWOFF1}, s[{rW1}:{rW1+3}], s{sT} offen offset:{eh*3584} {wnt}', 'w1g', not EX)
                if not EX: A(f'{lab}:')
            else:
                if not EX: A(f's_cmp_eq_u32 s{sRole}, 1'); A(f's_cbranch_scc0 {lab}a')
                for ii in range(4):
                    G.vmop(f'buffer_load_dwordx4 v[{vW2+4*ii}:{vW2+4*ii+3}], v{vWOFF2}, s[{rW2}:{rW2+3}], 0 offen offset:{ii*1024} {wnt}', 'w2l', not EX)
                G.vmop(f'buffer_load_ushort v{vB1}, v{vB1OFF}, s[{rB1}:{rB1+3}], 0 offen', 'b1l', not EX)
                if not EX:
                    A(f'{lab}a:')
                    A(f's_cmp_eq_u32 s{sRole}, 2'); A(f's_cbranch_scc0 {lab}b')
                G.vmop(f'buffer_load_ushort v{vXV}, v{vXOFF}, s[{rX}:{rX+3}], 0 offen', 'xv', not EX)
                G.vmop(f'buffer_load_ushort v{vB2V}, v{vB2OFF}, s[{rB2}:{rB2+3}], 0 offen', 'b2l', not EX)
                if not EX: A(f'{lab}b:')
        def kproc(t):
            if self.kw.get('novalu'): return
            D0 = vD + 8 * (t & 1); D1 = D0 + 4
            sA, sB_ = T(0), T(1)
            A(f'v_add_f32_dpp v{sA}, v{D0+1}, v{D0} row_ror:8 row_mask:0xf bank_mask:0x3')
            A(f'v_add_f32_dpp v{sB_}, v{D0+3}, v{D0+2} row_ror:8 row_mask:0xf bank_mask:0x3')
            A(f'v_add_f32_dpp v{sA}, v{D1}, v{D1+1} row_ror:8 row_mask:0xf bank_mask:0xc')
            A(f'v_add_f32_dpp v{sB_}, v{D1+2}, v{D1+3} row_ror:8 row_mask:0xf bank_mask:0xc')
            A(f'v_cvt_pk_bf16_f32 v{T(2)}, v{sA}, v{sB_}')
            A(f'v_max3_f32 v{vMX}, v{vMX}, v{sA}, v{sB_}')
            A(f'v_lshlrev_b32 v{T(3)}, 16, v{T(2)}'); A(f'v_and_b32 v{T(4)}, 0xffff0000, v{T(2)}')
            A(f'v_mul_f32 v{T(3)}, {SCALE}, v{T(3)}'); A(f'v_mul_f32 v{T(4)}, {SCALE}, v{T(4)}')
            A(f'v_cvt_pk_bf16_f32 v{vS+t}, v{T(3)}, v{T(4)}')
        if SL: slide_issue(-1)
        for t in range(32):
            u = t
            D0 = vD + 8 * (t & 1); D1 = D0 + 4
            r = (u % RING) * 16
            mf = [f'v_mfma_f32_16x16x32_bf16 v[{D0}:{D0+3}], a[{r}:{r+3}], v[{vBQ}:{vBQ+3}], 0',
                  f'v_mfma_f32_16x16x32_bf16 v[{D1}:{D1+3}], a[{r+4}:{r+7}], v[{vBQ}:{vBQ+3}], 0',
                  f'v_mfma_f32_16x16x32_bf16 v[{D0}:{D0+3}], a[{r+8}:{r+11}], v[{vBQ+4}:{vBQ+7}], v[{D0}:{D0+3}]',
                  f'v_mfma_f32_16x16x32_bf16 v[{D1}:{D1+3}], a[{r+12}:{r+15}], v[{vBQ+4}:{vBQ+7}], v[{D1}:{D1+3}]']
            if SL:
                for q in range(4):
                    j = 4 * u + q
                    G.vmwait_idx(G.lidx[j])
                    slide_issue(j, self.kw.get('sboost', 0) if (t == 31 and q == 3) else 0)
                    A(mf[q])
            else:
                G.vmwait(f'u{u}')
                for m_ in mf: A(m_)
                throttled_issue(u, u + (self.kw.get('boost', LOOK) if t >= 32 - self.kw.get('boostn', 1) else LOOK))
            if self.kw.get('atsp') and t < 16:
                A(f's_cmp_eq_u32 s{sAt}, {t}'); A(f's_cbranch_scc0 L_at{t}')
                G.vmop(f'buffer_atomic_add v{vONE}, v{vATO}, s[{rDBG}:{rDBG+3}], 0 offen', 'atom', True)
                A(f'L_at{t}:')
            if 2 <= t < 18 and not self.nowo: emit_wo(2 * (t - 2), 2 * (t - 2) + 2)
            if t in (7, 15, 23): G.stamp(16 + t // 8)
            if t == 27 and not self.kw.get('nocnt'):
                A(f'v_mov_b32 v{T(5)}, 0')
                G.vmop(f'buffer_load_dword v{vCNT}, v{T(5)}, s[{rDBG}:{rDBG+3}], 0 offen sc1', 'cnt')
            if t > 0: kproc(t - 1)
        kproc(31)
        G.stamp(2)
        self.wave_allreduce('max', vMX, T(0))
        G.rbf(vM, vMX); A(f'v_mul_f32 v{vM}, {SCALE}, v{vM}'); G.rbf(vM)
        A(f'v_mul_f32 v{vNM}, {LOG2E}, v{vM}'); A(f'v_sub_f32 v{vNM}, 0, v{vNM}')
        A(f's_mov_b32 s{sT2}, {LOG2E}')
        A(f'v_mov_b32 v{vLS}, 0')
        for t in range(0 if self.kw.get('notrans') else 32):
            a, b = T(2 * (t & 1)), T(2 * (t & 1) + 1)
            A(f'v_lshlrev_b32 v{a}, 16, v{vS+t}'); A(f'v_and_b32 v{b}, 0xffff0000, v{vS+t}')
            A(f'v_fma_f32 v{a}, v{a}, s{sT2}, v{vNM}'); A(f'v_fma_f32 v{b}, v{b}, s{sT2}, v{vNM}')
            A(f'v_exp_f32 v{a}, v{a}'); A(f'v_exp_f32 v{b}, v{b}')
            A(f'v_add_f32 v{vLS}, v{vLS}, v{a}'); A(f'v_cvt_pk_bf16_f32 v{vS+t}, v{a}, v{b}'); A(f'v_add_f32 v{vLS}, v{vLS}, v{b}')
        self.wave_allreduce('add', vLS, T(0))
        A(f'v_mul_f32 v{vLS}, 0.125, v{vLS}') if False else A(f'v_mul_f32 v{vLS}, 0x3e000000, v{vLS}')
        A(f'v_mov_b32 v{T(0)}, v{vM}'); A(f'v_mov_b32 v{T(1)}, v{vLS}')
        if not self.kw.get('nocnt'):
            G.vmop(f'buffer_store_dwordx2 v[{T(0)}:{T(1)}], v{vMLp}, s[{rWS}:{rWS+3}], 0 offen sc1', 'mlst')
            G.vmwait('cnt')
        else: A('s_branch L_cnt_ok')
        A(f's_mov_b32 s{sSpin}, {self.spin}')
        A('L_cnt:')
        A(f'v_readfirstlane_b32 s{sT}, v{vCNT}')
        A(f's_cmp_ge_u32 s{sT}, 256'); A('s_cbranch_scc1 L_cnt_ok')
        A(f's_sub_u32 s{sSpin}, s{sSpin}, 1'); A('s_cbranch_scc1 L_cnt_ok')
        A(f'v_mov_b32 v{T(5)}, 0')
        A(f'buffer_load_dword v{vCNT}, v{T(5)}, s[{rDBG}:{rDBG+3}], 0 offen sc1'); A('s_waitcnt vmcnt(0)')
        A('s_branch L_cnt')
        A('L_cnt_ok:')
        G.stamp(3)
        dl = self.kw.get('delay')
        if dl:
            which, n = dl
            A(f's_cmp_lt_u32 s{sBH}, 8'); A('s_cbranch_scc%d L_nodelay' % (0 if which == 'slow' else 1))
            for _ in range(n): A('s_sleep 64')
            A('L_nodelay:')
        def vprep(t):
            if self.kw.get('novalu'): return
            for ab in range(2):
                bs = vB + 8 * (t & 1) + 4 * ab
                for jj in range(4):
                    A(f'v_perm_b32 v{bs+jj}, v{vS+t}, v{vS+t}, v{vSEL+4*ab+jj}')
        def ml_compute():
            A(f'v_mov_b32 v{T(10)}, v{vML0}')
            for r_ in (1, 2, 4, 8): A(f'v_max_f32_dpp v{T(10)}, v{T(10)}, v{T(10)} row_ror:{r_} row_mask:0xf bank_mask:0xf')
            A(f'v_sub_f32 v{T(11)}, v{vML0}, v{T(10)}'); A(f'v_mul_f32 v{T(11)}, {LOG2E}, v{T(11)}'); A(f'v_exp_f32 v{T(11)}, v{T(11)}')
            A(f'v_mul_f32 v{T(11)}, v{T(11)}, v{vML1}')
            for r_ in (1, 2, 4, 8): A(f'v_add_f32_dpp v{T(11)}, v{T(11)}, v{T(11)} row_ror:{r_} row_mask:0xf bank_mask:0xf')
            A(f'v_sub_f32 v{T(10)}, v{vM}, v{T(10)}'); A(f'v_mul_f32 v{T(10)}, {LOG2E}, v{T(10)}'); A(f'v_exp_f32 v{T(10)}, v{T(10)}')
            A(f'v_rcp_f32 v{T(12)}, v{T(11)}'); A(f'v_mul_f32 v{vF}, v{T(10)}, v{T(12)}')
            A(f'v_cmp_u_f32 vcc, v{T(11)}, v{T(11)}')
        vprep(0)
        for t in range(32):
            u = 32 + t
            r = (u % RING) * 16
            bs = vB + 8 * (t & 1)
            mf = [f'v_mfma_f32_16x16x32_bf16 v[{vO}:{vO+3}], a[{r}:{r+3}], v[{bs}:{bs+3}], v[{vO}:{vO+3}]',
                  f'v_mfma_f32_16x16x32_bf16 v[{vO+4}:{vO+7}], a[{r+4}:{r+7}], v[{bs}:{bs+3}], v[{vO+4}:{vO+7}]',
                  f'v_mfma_f32_16x16x32_bf16 v[{vO}:{vO+3}], a[{r+8}:{r+11}], v[{bs+4}:{bs+7}], v[{vO}:{vO+3}]',
                  f'v_mfma_f32_16x16x32_bf16 v[{vO+4}:{vO+7}], a[{r+12}:{r+15}], v[{bs+4}:{bs+7}], v[{vO+4}:{vO+7}]']
            if SL:
                for q in range(4):
                    j = 4 * u + q
                    G.vmwait_idx(G.lidx[j])
                    slide_issue(j)
                    A(mf[q])
            else:
                G.vmwait(f'u{u}')
                for m_ in mf: A(m_)
                throttled_issue(u, u + LOOKV)
            if t < 17 and not self.norole: emit_role_loads(t)
            if t in (7, 15, 23): G.stamp(20 + t // 8)
            if t == 27:
                A(f's_cmp_eq_u32 s{sRole}, 1'); A('s_cbranch_scc0 L_pk1')
                for s_ in range(4):
                    for jj in range(4):
                        A(f'v_perm_b32 v{vW1+4*s_+jj}, v{vR+8*s_+2*jj+1}, v{vR+8*s_+2*jj}, s{sPK}')
                A('L_pk1:')
            if t == 17 and not self.kw.get('nocnt'):
                G.vmop(f'buffer_load_dwordx2 v[{vML0}:{vML1}], v{vMLq}, s[{rWS}:{rWS+3}], 0 offen sc1', 'mlq')
            if t == 25 and not self.kw.get('nocnt'):
                G.vmwait('mlq')
                A(f's_mov_b32 s{sSpin}, {self.spin}')
                A('L_ml:')
                ml_compute()
                A('s_cbranch_vccz L_ml_ok')
                A(f's_sub_u32 s{sSpin}, s{sSpin}, 1'); A('s_cbranch_scc1 L_ml_ok')
                A(f'buffer_load_dwordx2 v[{vML0}:{vML1}], v{vMLq}, s[{rWS}:{rWS+3}], 0 offen sc1'); A('s_waitcnt vmcnt(0)')
                A('s_branch L_ml')
                A('L_ml_ok:')
            if t < 31: vprep(t + 1)
        G.stamp(4)
        if self.kw.get('quit'): A('s_branch L_fin')
        for i in range(4): A(f'v_add_f32_dpp v{T(i)}, v{vO+4+i}, v{vO+i} row_ror:8 row_mask:0xf bank_mask:0xf')
        for i in range(4): A(f'v_mul_f32 v{T(i)}, v{vF}, v{T(i)}')
        for i in range(4): A(f'ds_write_b32 v{vOPA}, v{T(i)} offset:{L_OP + 32*i}')
        A(f's_lshl_b32 s{sT}, s{sW}, 9'); A(f'v_lshlrev_b32 v{T(10)}, 2, v{vL}'); A(f'v_add_u32 v{T(10)}, s{sT}, v{T(10)}')
        A(f'v_lshrrev_b32 v{T(11)}, 3, v{vN}'); A(f'v_lshlrev_b32 v{T(11)}, 8, v{T(11)}'); A(f'v_lshl_add_u32 v{T(11)}, v{vG}, 6, v{T(11)}'); A(f'v_add_u32 v{T(11)}, s{sT}, v{T(11)}')
        A('s_waitcnt lgkmcnt(0)'); A('s_barrier')
        for w in range(4): A(f'ds_read_b64 v[{T(2*w+2)}:{T(2*w+3)}], v{vA3} offset:{L_OP + 512*w}')
        A('s_waitcnt lgkmcnt(0)')
        A(f'v_pk_add_f32 v[{T(2)}:{T(3)}], v[{T(2)}:{T(3)}], v[{T(4)}:{T(5)}]'); A(f'v_pk_add_f32 v[{T(6)}:{T(7)}], v[{T(6)}:{T(7)}], v[{T(8)}:{T(9)}]')
        A(f'v_pk_add_f32 v[{T(2)}:{T(3)}], v[{T(2)}:{T(3)}], v[{T(6)}:{T(7)}]')
        A(f'v_cvt_pk_bf16_f32 v{T(4)}, v{T(2)}, v{T(3)}')
        A(f'v_lshlrev_b32 v{T(5)}, 16, v{T(4)}'); A(f'v_and_b32 v{T(6)}, 0xffff0000, v{T(4)}')
        A(f'v_sub_f32 v{T(5)}, v{T(2)}, v{T(5)}'); A(f'v_sub_f32 v{T(6)}, v{T(3)}, v{T(6)}')
        A(f'ds_write_b32 v{T(10)}, v{T(4)} offset:{L_OH}')
        A(f'v_cvt_pk_bf16_f32 v{T(5)}, v{T(5)}, v{T(6)}')
        A(f'ds_write_b32 v{T(10)}, v{T(5)} offset:{L_OH+256}')
        A('s_waitcnt lgkmcnt(0)')
        for k in range(4): A(f'ds_read_b128 v[{vXP+4*k}:{vXP+4*k+3}], v{T(11)} offset:{L_OH+16*k}')
        A('s_waitcnt lgkmcnt(0)')
        delta_steps(32, vDQ, None)
        for i in range(4): A(f'v_add_f32_dpp v{T(i)}, v{vDQ+i}, v{vDQ+i} row_ror:8 row_mask:0xf bank_mask:0xf')
        G.vmop(f'buffer_store_dwordx4 v[{T(0)}:{T(3)}], v{vC1}, s[{rWS}:{rWS+3}], 0 offen sc1', 'c1st')
        G.stamp(5)
        A(f's_cmp_eq_u32 s{sRole}, 1'); A('s_cbranch_scc1 L_m1')
        A(f's_cmp_eq_u32 s{sRole}, 2'); A('s_cbranch_scc0 L_fin')
        A(f's_cmp_eq_u32 s{sW}, 0'); A('s_cbranch_scc0 L_fin')
        def gather_reduce(nl, voff, lab):
            A(f's_mov_b32 s{sSpin}, {self.spin}')
            A(f'{lab}:')
            for k in range(nl):
                if k % 4 == 0: A(f's_mov_b32 s{sT}, {(k//4)*4096}')
                A(f'buffer_load_dwordx4 v[{vR+4*k}:{vR+4*k+3}], v{voff}, s[{rWS}:{rWS+3}], s{sT} offen offset:{(k%4)*1024} sc1')
            k = 1
            A(f's_waitcnt vmcnt({nl-2})')
            for c in (0, 2): A(f'v_pk_add_f32 v[{T(c)}:{T(c+1)}], v[{vR+c}:{vR+c+1}], v[{vR+4+c}:{vR+4+c+1}]')
            for k in range(2, nl):
                A(f's_waitcnt vmcnt({nl-1-k})')
                for c in (0, 2): A(f'v_pk_add_f32 v[{T(c)}:{T(c+1)}], v[{T(c)}:{T(c+1)}], v[{vR+4*k+c}:{vR+4*k+c+1}]')
            A(f'v_cmp_u_f32 vcc, v{T(0)}, v{T(1)}'); A(f'v_cmp_u_f32 s[{sM}:{sM+1}], v{T(2)}, v{T(3)}')
            A(f's_or_b64 vcc, vcc, s[{sM}:{sM+1}]')
            A(f's_cbranch_vccz {lab}_ok')
            A(f's_sub_u32 s{sSpin}, s{sSpin}, 1'); A(f's_cbranch_scc0 {lab}')
            A(f'{lab}_ok:')
            A(f'v_permlane32_swap_b32 v{T(0)}, v{T(2)}'); A(f'v_permlane32_swap_b32 v{T(1)}, v{T(3)}')
            A(f'v_add_f32 v{T(0)}, v{T(0)}, v{T(2)}'); A(f'v_add_f32 v{T(1)}, v{T(1)}, v{T(3)}')
            A(f'v_permlane16_swap_b32 v{T(0)}, v{T(1)}'); A(f'v_add_f32 v{T(0)}, v{T(0)}, v{T(1)}')
            A(f'v_add_f32_dpp v{T(0)}, v{T(0)}, v{T(0)} row_ror:4 row_mask:0xf bank_mask:0xf')
            A(f'v_add_f32_dpp v{T(0)}, v{T(0)}, v{T(0)} row_ror:8 row_mask:0xf bank_mask:0xf')
        A(f'v_lshlrev_b32 v{vXV}, 16, v{vXV}'); A(f'v_lshlrev_b32 v{vB2V}, 16, v{vB2V}')
        gather_reduce(8, vHOFF, 'L_g1')
        G.stamp(6)
        G.rbf(T(0)); A(f'v_add_f32 v{T(0)}, v{vXV}, v{T(0)}'); G.rbf(vHV, T(0))
        A(f'buffer_store_dword v{vHV}, v{vRS}, s[{rWS}:{rWS+3}], 0 offen sc1')
        G.stamp(7)
        gather_reduce(7, vC2OFF, 'L_g2')
        G.stamp(8)
        G.rbf(T(0)); A(f'v_add_f32 v{T(0)}, v{vB2V}, v{T(0)}'); G.rbf(T(0)); A(f'v_add_f32 v{T(0)}, v{vHV}, v{T(0)}')
        A(f'v_cvt_pk_bf16_f32 v{T(0)}, v{T(0)}, v{T(0)}')
        A(f'buffer_store_short v{T(0)}, v{vOUTA}, s[{rOUT}:{rOUT+3}], 0 offen')
        A('s_branch L_fin')
        A('L_m1:')
        A(f's_lshl_b32 s{sT}, s{sW}, 9'); A(f'v_lshrrev_b32 v{T(0)}, 5, v{vL}'); A(f'v_lshlrev_b32 v{T(0)}, 8, v{T(0)}'); A(f'v_and_b32 v{T(1)}, 31, v{vL}')
        A(f'v_lshl_add_u32 v{T(0)}, v{T(1)}, 3, v{T(0)}'); A(f'v_add_u32 v{vA1}, s{sT}, v{T(0)}')
        A(f'v_and_b32 v{T(0)}, 1, v{vN}'); A(f'v_lshlrev_b32 v{T(0)}, 8, v{T(0)}'); A(f'v_lshl_add_u32 v{T(0)}, v{vG}, 4, v{T(0)}'); A(f'v_add_u32 v{vA2}, s{sT}, v{T(0)}')
        A(f's_lshl_b32 s{sT}, s{sW}, 7'); A(f'v_lshlrev_b32 v{T(0)}, 2, v{vN}'); A(f'v_add_u32 v{vA3}, s{sT}, v{T(0)}')
        A(f'v_lshrrev_b32 v{T(0)}, 3, v{vN}'); A(f'v_lshlrev_b32 v{T(0)}, 6, v{T(0)}'); A(f'v_and_b32 v{T(1)}, 3, v{vN}'); A(f'v_lshl_add_u32 v{T(1)}, v{vG}, 2, v{T(1)}')
        A(f'v_lshl_add_u32 v{vA4}, v{T(1)}, 2, v{T(0)}')
        A(f'v_lshlrev_b32 v{vB1}, 16, v{vB1}')
        A(f's_mov_b32 s{sSpin}, {self.spin}')
        H = [vR + i for i in range(16)]
        A('L_g3:')
        for kk in range(4):
            A(f's_add_u32 s{sT}, s{sW}, {kk}'); A(f's_and_b32 s{sT}, s{sT}, 3'); A(f's_lshl_b32 s{sT}, s{sT}, 9')
            A(f'buffer_load_dwordx4 v[{vR+4*kk}:{vR+4*kk+3}], v{vHOFF}, s[{rWS}:{rWS+3}], s{sT} offen sc1')
        A('s_waitcnt vmcnt(0)')
        A(f'v_pk_add_f32 v[{T(0)}:{T(1)}], v[{H[0]}:{H[1]}], v[{H[2]}:{H[3]}]')
        for k in range(2, 8): A(f'v_pk_add_f32 v[{T(0)}:{T(1)}], v[{T(0)}:{T(1)}], v[{H[2*k]}:{H[2*k+1]}]')
        A(f'v_add_f32 v{T(0)}, v{T(0)}, v{T(1)}')
        A(f'v_cmp_u_f32 vcc, v{T(0)}, v{T(0)}')
        A('s_cbranch_vccz L_g3_ok')
        A(f's_sub_u32 s{sSpin}, s{sSpin}, 1'); A('s_cbranch_scc0 L_g3')
        A('L_g3_ok:')
        G.stamp(6)
        self.half_allreduce('add', T(0), T(1))
        A(f'v_mul_f32 v{T(0)}, 0x3b000000, v{T(0)}')
        A(f'v_sub_f32 v{T(2)}, v{H[0]}, v{T(0)}'); A(f'v_mul_f32 v{T(3)}, v{T(2)}, v{T(2)}')
        A(f'v_sub_f32 v{T(4)}, v{H[1]}, v{T(0)}'); A(f'v_mul_f32 v{T(5)}, v{T(4)}, v{T(4)}')
        for k in range(2, 16, 2):
            A(f'v_sub_f32 v{T(2)}, v{H[k]}, v{T(0)}'); A(f'v_sub_f32 v{T(4)}, v{H[k+1]}, v{T(0)}')
            A(f'v_fmac_f32 v{T(3)}, v{T(2)}, v{T(2)}'); A(f'v_fmac_f32 v{T(5)}, v{T(4)}, v{T(4)}')
        A(f'v_add_f32 v{T(3)}, v{T(3)}, v{T(5)}')
        self.half_allreduce('add', T(3), T(1))
        self.ln_finish(T(0), T(3), T(8), T(9), 1.0 / 512)
        Y = H[0:4]
        self.ln_apply(Y, T(8), T(9))
        A(f'v_cvt_pk_bf16_f32 v{T(4)}, v{Y[0]}, v{Y[1]}'); A(f'v_cvt_pk_bf16_f32 v{T(5)}, v{Y[2]}, v{Y[3]}')
        A(f'ds_write_b64 v{vA1}, v[{T(4)}:{T(5)}] offset:{L_YB}')
        A('s_waitcnt lgkmcnt(0)')
        for s_ in range(4): A(f'ds_read_b128 v[{vXP+4*s_}:{vXP+4*s_+3}], v{vA2} offset:{L_YB+64*s_}')
        for s_ in range(4):
            A(f's_waitcnt lgkmcnt({3-s_})')
            c = '0' if s_ == 0 else f'v[{vDQ}:{vDQ+3}]'
            A(f'v_mfma_f32_16x16x32_bf16 v[{vDQ}:{vDQ+3}], v[{vXP+4*s_}:{vXP+4*s_+3}], v[{vW1+4*s_}:{vW1+4*s_+3}], {c}')
        A(f'ds_write_b32 v{vA3}, v{vDQ} offset:{L_TP}'); A(f'ds_write_b32 v{vA3}, v{vDQ+1} offset:{L_TP+64}')
        A('s_waitcnt lgkmcnt(0)'); A('s_barrier')
        for w in range(4): A(f'ds_read_b32 v{T(w)}, v{vA4} offset:{L_TP+128*w}')
        A('s_waitcnt lgkmcnt(0)')
        A(f'v_add_f32 v{T(0)}, v{T(0)}, v{T(1)}'); A(f'v_add_f32 v{T(2)}, v{T(2)}, v{T(3)}'); A(f'v_add_f32 v{T(0)}, v{T(0)}, v{T(2)}')
        G.rbf(T(0)); A(f'v_add_f32 v{T(0)}, v{vB1}, v{T(0)}'); G.rbf(T(0))
        import struct, math
        f2u = lambda f: struct.unpack('<I', struct.pack('<f', f))[0]
        K0 = -2 * math.log2(math.e) * math.sqrt(2 / math.pi); K1 = K0 * 0.044715
        A(f'v_mul_f32 v{T(1)}, v{T(0)}, v{T(0)}'); A(f'v_mov_b32 v{T(2)}, {hex(f2u(K0))}'); A(f'v_fmac_f32 v{T(2)}, {hex(f2u(K1))}, v{T(1)}')
        A(f'v_mul_f32 v{T(1)}, v{T(0)}, v{T(2)}'); A(f'v_exp_f32 v{T(1)}, v{T(1)}'); A(f'v_add_f32 v{T(1)}, 1.0, v{T(1)}'); A(f'v_rcp_f32 v{T(1)}, v{T(1)}')
        A(f'v_mul_f32 v{T(0)}, v{T(0)}, v{T(1)}'); A(f'v_cvt_pk_bf16_f32 v{vGA}, v{T(0)}, v{T(0)}')
        for ii in range(4):
            bs = vB + 4 * ii
            for jj in range(4):
                A(f'v_and_b32_dpp v{bs+jj}, v{vGA}, v{vMASK+jj} quad_perm:[{ii},{ii},{ii},{ii}] row_mask:0xf bank_mask:0xf')
        for ii in range(4):
            bs = vB + 4 * ii
            c = '0' if ii == 0 else f'v[{vDQ}:{vDQ+3}]'
            A(f'v_mfma_f32_16x16x32_bf16 v[{vDQ}:{vDQ+3}], v[{vW2+4*ii}:{vW2+4*ii+3}], v[{bs}:{bs+3}], {c}')
        A(f'buffer_store_dwordx4 v[{vDQ}:{vDQ+3}], v{vRS}, s[{rWS}:{rWS+3}], 0 offen sc1')
        G.stamp(7)
        A('L_fin:')
        if self.diag:
            A(f's_lshl_b32 s{sT}, s2, 2'); A(f's_add_u32 s{sT}, s{sT}, s{sW}'); A(f's_lshl_b32 s{sT}, s{sT}, 7'); A(f's_add_u32 s{sT}, s{sT}, {WS_DIAG}')
            A('s_memrealtime s[96:97]'); A('s_getreg_b32 s98, hwreg(HW_REG_XCC_ID)'); A('s_waitcnt lgkmcnt(0)')
            A('v_writelane_b32 v251, s96, 14'); A('v_writelane_b32 v251, s98, 15')
            A(f'v_lshlrev_b32 v{T(0)}, 2, v{vL}'); A(f'v_add_u32 v{T(0)}, s{sT}, v{T(0)}')
            A(f'v_mov_b32 v{T(1)}, {OOB}'); A(f'v_cmp_gt_u32 vcc, 32, v{vL}'); A(f'v_cndmask_b32 v{T(0)}, v{T(1)}, v{T(0)}, vcc')
            A(f'buffer_store_dword v251, v{T(0)}, s[{rWS}:{rWS+3}], 0 offen')
            if self.kw.get('st3'):
                A(f's_lshl_b32 s{sT}, s2, 2'); A(f's_add_u32 s{sT}, s{sT}, s{sW}'); A(f's_lshl_b32 s{sT}, s{sT}, 8'); A(f's_add_u32 s{sT}, s{sT}, {WS_DIAG + 0x20000}')
                A(f'v_lshlrev_b32 v{T(0)}, 2, v{vL}'); A(f'v_add_u32 v{T(0)}, s{sT}, v{T(0)}')
                A(f'buffer_store_dword v252, v{T(0)}, s[{rWS}:{rWS+3}], 0 offen')
        A('L_end:')
        A('s_endpgm')
        return self.wrap()

    def ln_finish(self, mean, ss, om, orstd, inv_n):
        A = self.A
        import struct
        f2u = lambda f: struct.unpack('<I', struct.pack('<f', f))[0]
        A(f'v_mul_f32 v{ss}, {hex(f2u(inv_n))}, v{ss}'); self.rbf(ss)
        A(f'v_add_f32 v{ss}, {hex(f2u(1e-5))}, v{ss}'); self.rbf(ss)
        A(f'v_sqrt_f32 v{ss}, v{ss}'); self.rbf(ss)
        A(f'v_rcp_f32 v{orstd}, v{ss}')
        self.rbf(om, mean)
    def ln_stats(self, X, om, orstd, t0, t1, inv_n, red):
        A = self.A
        import struct
        f2u = lambda f: struct.unpack('<I', struct.pack('<f', f))[0]
        A(f'v_add_f32 v{t0}, v{X[0]}, v{X[1]}')
        for x in X[2:]: A(f'v_add_f32 v{t0}, v{t0}, v{x}')
        red('add', t0, t1)
        A(f'v_mul_f32 v{t0}, {hex(f2u(inv_n))}, v{t0}')
        A(f'v_sub_f32 v{t1}, v{X[0]}, v{t0}'); A(f'v_mul_f32 v{orstd}, v{t1}, v{t1}')
        for x in X[1:]:
            A(f'v_sub_f32 v{t1}, v{x}, v{t0}'); A(f'v_fmac_f32 v{orstd}, v{t1}, v{t1}')
        red('add', orstd, t1)
        A(f'v_mov_b32 v{t1}, v{orstd}')
        self.ln_finish(t0, t1, om, orstd, inv_n)
    def ln_apply(self, X, m, rstd):
        A = self.A
        for k in range(0, len(X), 2):
            A(f'v_sub_f32 v{X[k]}, v{X[k]}, v{m}'); A(f'v_sub_f32 v{X[k+1]}, v{X[k+1]}, v{m}')
            A(f'v_cvt_pk_bf16_f32 v{X[k+1]}, v{X[k]}, v{X[k+1]}')
            A(f'v_lshlrev_b32 v{X[k]}, 16, v{X[k+1]}'); A(f'v_and_b32 v{X[k+1]}, 0xffff0000, v{X[k+1]}')
            A(f'v_mul_f32 v{X[k]}, v{X[k]}, v{rstd}'); A(f'v_mul_f32 v{X[k+1]}, v{X[k+1]}, v{rstd}')

    def finish_debug(self, regs):
        raise NotImplementedError

    def wrap(self):
        body = hz.fix(self.L)
        H = []
        H.append(f'; @launch grid=(256,1,1) block=(256,1,1) lds={LDS_SIZE}')
        H.append('.amdgcn_target "amdgcn-amd-amdhsa--gfx950"')
        H.append('.text'); H.append(f'.globl {KN}'); H.append('.p2align 8'); H.append(f'.type {KN},@function'); H.append(f'{KN}:')
        H += body
        H.append('.section .rodata,"a"'); H.append('.p2align 6'); H.append(f'.amdhsa_kernel {KN}')
        H.append('  .amdhsa_next_free_vgpr 512'); H.append('  .amdhsa_next_free_sgpr 102'); H.append('  .amdhsa_accum_offset 256')
        H.append('  .amdhsa_group_segment_fixed_size 0'); H.append('  .amdhsa_kernarg_size 104'); H.append('  .amdhsa_user_sgpr_count 2')
        H.append('  .amdhsa_user_sgpr_kernarg_segment_ptr 1'); H.append('  .amdhsa_system_sgpr_workgroup_id_x 1')
        H.append('.end_amdhsa_kernel')
        return '\n'.join(H) + '\n'

if __name__ == '__main__':
    import ast
    kw = eval('dict(%s)' % (sys.argv[2] if len(sys.argv) > 2 else ''))
    open(sys.argv[1], 'w').write(Gen(**kw).gen())
```

```python
import sys
import hz
KN = 'sequential_preLN__mha_block_cached__mixer_channel_mlp__decode_kernel'

WS_ML = 0x0
WS_H  = 0x2000
WS_PROG = 0x4000
WS_C1 = 0x10000
WS_C2 = 0x90000
WS_SIZE = 0x100000
WS_DIAG = 0x100000
WS_QX = 0x140000
QX_STR = 0x4400
L_XN2 = 7168
OOB = 0x7ff00000

L_XN = 0
L_QP = 4096
L_QB = 6144
L_OP = 7168
L_OH = 9216
L_YB = 11264
L_TP = 13312
L_DUMMY = 13824
L_LIM = 15360
L_DUM2 = 15616
LDS_SIZE = 16384

SCALE = 0x3DB504F3
LOG2E = 0x3FB8AA3B

class Gen:
    def __init__(self, diag=False, nt='nt', wnt='', spin=1 << 15, ring=8, pre=6, stop=None, nowo=False, nowq=False, norole=False, **kw):
        self.L = []
        self.vm = []
        self.done = -1
        self.diag = diag; self.nt = nt; self.wnt = wnt; self.spin = spin
        self.ring = ring; self.pre = pre; self.stop = stop
        self.nstamp = 0; self.n3 = 0; self.lidx = {}
        self.nowo = nowo; self.nowq = nowq; self.norole = norole; self.kw = kw
    def A(self, s):
        if self.kw.get('nomfma') and s.startswith('v_mfma'): return
        self.L.append('  ' + s if not s.endswith(':') else s)
    def vmop(self, s, tag, optional=False):
        self.A(s); self.vm.append((tag, optional))
        if self.kw.get('st3') and self.n3 < 64 and not optional:
            self.A('s_memrealtime s[96:97]'); self.A('s_waitcnt lgkmcnt(0)'); self.A('v_writelane_b32 v252, s96, %d' % self.n3); self.n3 += 1
        out = len(self.vm) - 1 - self.done
        assert out <= 63, ('too many outstanding', out, tag)
    def vmwait(self, tag):
        idx = max(i for i, (t, o) in enumerate(self.vm) if t == tag)
        n = sum(1 for (t, o) in self.vm[idx + 1:] if not o)
        assert n <= 63
        self.A('s_waitcnt vmcnt(%d)' % n)
        self.done = max(self.done, idx)
    def vmwait_idx(self, idx):
        if idx <= self.done: return
        n = sum(1 for (t, o) in self.vm[idx + 1:] if not o)
        assert n <= 63
        self.A('s_waitcnt vmcnt(%d)' % n)
        self.done = max(self.done, idx)
    def vmdrain(self):
        self.A('s_waitcnt vmcnt(0)'); self.done = len(self.vm) - 1
    def stamp(self, k):
        if self.diag:
            self.A('s_memrealtime s[96:97]'); self.A('s_waitcnt lgkmcnt(0)')
            self.A('v_mov_b32 v250, s96'); self.A('v_writelane_b32 v251, s96, %d' % k)

    def srd(self, r, lo, hi, size, off=None):
        A = self.A
        if off is None:
            A(f's_mov_b32 s{r}, s{lo}'); A(f's_and_b32 s{r+1}, s{hi}, 0xffff')
        else:
            A(f's_add_u32 s{r}, s{lo}, {off}'); A(f's_addc_u32 s{r+1}, s{hi}, 0'); A(f's_and_b32 s{r+1}, s{r+1}, 0xffff')
        A(f's_mov_b32 s{r+2}, {size}'); A(f's_mov_b32 s{r+3}, 0x20000')

    def wave_allreduce(self, op, v, t):
        A = self.A
        for r in (1, 2, 4, 8):
            A(f'v_{op}_f32_dpp v{v}, v{v}, v{v} row_ror:{r} row_mask:0xf bank_mask:0xf')
        A(f'v_mov_b32 v{t}, v{v}'); A(f'v_permlane16_swap_b32 v{v}, v{t}'); A(f'v_{op}_f32 v{v}, v{v}, v{t}')
        A(f'v_mov_b32 v{t}, v{v}'); A(f'v_permlane32_swap_b32 v{v}, v{t}'); A(f'v_{op}_f32 v{v}, v{v}, v{t}')
    def half_allreduce(self, op, v, t):
        A = self.A
        for r in (1, 2, 4, 8):
            A(f'v_{op}_f32_dpp v{v}, v{v}, v{v} row_ror:{r} row_mask:0xf bank_mask:0xf')
        A(f'v_mov_b32 v{t}, v{v}'); A(f'v_permlane16_swap_b32 v{v}, v{t}'); A(f'v_{op}_f32 v{v}, v{v}, v{t}')
    def rbf(self, v, src=None):
        A = self.A
        s = v if src is None else src
        A(f'v_cvt_pk_bf16_f32 v{v}, v{s}, v{s}'); A(f'v_and_b32 v{v}, 0xffff0000, v{v}')

    def gen(self):
        A = self.A; G = self
        RING = self.ring; nt = self.nt; wnt = self.wnt
        sW = 3
        pX, pK, pV, pWQ, pWO, pW1, pB1, pW2, pB2, pOUT, pDBG, pWS = 4, 6, 8, 10, 12, 16, 18, 20, 22, 24, 26, 28
        rK, rV, rWQ, rWO, rWS, rDBG, rX, rW1, rW2, rB1, rB2, rOUT = 32, 36, 40, 44, 48, 52, 56, 60, 64, 68, 72, 76
        sOff, sT, sH, sB, sS, sBH, sRole, sSpin, sT2, sU = 80, 81, 82, 83, 84, 85, 86, 87, 88, 89
        sM = 90
        sPK = 92
        sAt = 93
        vL, vN, vG = 1, 2, 3
        vK, vV, vWQ, vWO, vC1, vMLp, vMLq, vRS = 4, 5, 6, 7, 8, 9, 10, 11
        vSEL = 12
        vMASK = 20
        vBQ = 24
        vS = 32
        vD = 64
        vO = 80
        vB = 88
        vXP = 104
        vDQ = 120
        vT = 124
        vMX, vLS, vM, vNM, vF, vML0, vML1, vCNT = 140, 141, 142, 143, 208, 210, 211, 212
        vW1 = 144
        vW2 = 160
        vR = 176
        vB1, vXV, vB2V, vHV, vOPA, vSENT, vOUTA = 213, 214, 215, 216, 217, 220, 218
        vA1, vA2, vA3, vA4 = 224, 225, 226, 227
        vXR = 228
        vWOFF1, vWOFF2, vB1OFF, vHOFF, vGA = 232, 233, 234, 235, 236
        vONE, vATO = 237, 238
        vXOFF, vB2OFF, vC2OFF = 239, 240, 241
        vPROG = (242, 209); vPUBO, vPRO, vLIMW, vLIMR, vLIM, vPV, vPT, vPT2, vWIN = 243, 244, 245, 246, 247, 248, 249, 219, 253
        vSNAP, vEFF = 254, 255
        sLim, sSp2 = 94, 95
        THR = self.kw.get('thr'); CHK = self.kw.get('chk', 2); NREP = self.kw.get('nrep', 32)
        aW = 128
        T = lambda i: vT + i

        A('s_cmp_ge_u32 s2, 256'); A('s_cbranch_scc1 L_end')
        if self.kw.get('wgx'): A('s_xor_b32 s2, s2, %d' % self.kw['wgx'])
        if self.kw.get('hperm'):
            pc = sum(v << (4 * i) for i, v in enumerate(self.kw['hperm']))
            A('s_and_b32 s3, s2, 7'); A('s_lshl_b32 s3, s3, 2'); A('s_lshr_b32 s3, %d, s3' % pc); A('s_and_b32 s3, s3, 7')
            A('s_andn2_b32 s2, s2, 7'); A('s_or_b32 s2, s2, s3')
        A(f's_load_dwordx16 s[4:19], s[0:1], 0'); A('s_load_dwordx8 s[20:27], s[0:1], 64'); A('s_load_dwordx2 s[28:29], s[0:1], 96')
        if self.diag:
            A('v_mov_b32 v251, 0')
            G.stamp(0)
        A(f'v_and_b32 v{vL}, 63, v0'); A(f'v_lshrrev_b32 v{T(0)}, 6, v0'); A(f'v_and_b32 v{vN}, 15, v0')
        A(f'v_readfirstlane_b32 s{sW}, v{T(0)}')
        A(f'v_lshrrev_b32 v{vG}, 4, v{vL}')
        A(f's_and_b32 s{sH}, s2, 31'); A(f's_lshr_b32 s{sB}, s2, 5'); A(f's_and_b32 s{sB}, s{sB}, 1'); A(f's_lshr_b32 s{sS}, s2, 6'); A(f's_and_b32 s{sBH}, s2, 63')
        if self.kw.get('hmap') == 'c4':
            A(f's_and_b32 s{sT}, s2, 7'); A(f's_lshl_b32 s{sT}, s{sT}, 2'); A(f's_bfe_u32 s{sH}, s2, 0x20003'); A(f's_or_b32 s{sH}, s{sH}, s{sT}')
            A(f's_lshl_b32 s{sT}, s{sB}, 5'); A(f's_or_b32 s{sBH}, s{sH}, s{sT}')
        if self.kw.get('only') is not None:
            kind, val = self.kw['only']
            if kind == 'cls': A(f's_and_b32 s{sT}, s{sH}, 3'); A(f's_cmp_eq_u32 s{sT}, {val}'); A('s_cbranch_scc0 L_end')
            if kind == 'lt': A(f's_cmp_lt_u32 s2, {val}'); A('s_cbranch_scc0 L_end')
        A(f's_lshl_b32 s{sT}, s{sW}, 12')
        A(f'v_lshrrev_b32 v{T(0)}, 1, v{vN}'); A(f'v_lshlrev_b32 v{T(0)}, 8, v{T(0)}')
        A(f'v_and_b32 v{T(1)}, 1, v{vN}'); A(f'v_lshl_add_u32 v{T(0)}, v{T(1)}, 6, v{T(0)}')
        A(f'v_lshl_add_u32 v{T(0)}, v{vG}, 4, v{T(0)}'); A(f'v_add_u32 v{vK}, s{sT}, v{T(0)}')
        A(f'v_lshlrev_b32 v{T(0)}, 9, v{vG}'); A(f'v_lshl_add_u32 v{T(0)}, v{vN}, 4, v{T(0)}'); A(f'v_add_u32 v{vV}, s{sT}, v{T(0)}')
        A(f's_lshl_b32 s{sT}, s{sW}, 20'); A(f'v_lshlrev_b32 v{T(0)}, 18, v{vG}'); A(f'v_lshl_add_u32 v{T(0)}, v{vN}, 4, v{T(0)}'); A(f'v_add_u32 v{vWQ}, s{sT}, v{T(0)}')
        QX = self.kw.get('qx')
        vTG, vEW, vQE, vQS, vQL = 144, 146, 148, 149, 150
        sQ, sJ = 98, 99
        if QX:
            A(f's_lshr_b32 s{sJ}, s2, 5')
            A(f's_lshl_b32 s{sT}, s{sW}, 17'); A(f'v_lshlrev_b32 v{T(0)}, 15, v{vG}'); A(f'v_lshl_add_u32 v{T(0)}, v{vN}, 4, v{T(0)}'); A(f'v_add_u32 v{vWQ}, s{sT}, v{T(0)}')
            A(f's_mul_i32 s{sT}, s{sH}, {QX_STR}'); A(f's_add_u32 s{sT}, s{sT}, {WS_QX}'); A(f'v_mov_b32 v{vQE}, s{sT}')
            A(f's_lshl_b32 s{sT2}, s{sJ}, 11'); A(f's_add_u32 s{sT2}, s{sT2}, s{sT}'); A(f's_add_u32 s{sT2}, s{sT2}, 1024')
            A(f's_lshl_b32 s{sQ}, s{sW}, 9'); A(f's_add_u32 s{sT2}, s{sT2}, s{sQ}')
            A(f'v_lshlrev_b32 v{T(0)}, 4, v{vL}'); A(f'v_add_u32 v{T(1)}, s{sT2}, v{T(0)}'); A(f'v_mov_b32 v{T(3)}, {OOB}')
            A(f'v_cmp_gt_u32 vcc, 32, v{vL}'); A(f'v_cndmask_b32 v{vQS}, v{T(3)}, v{T(1)}, vcc')
            A(f's_lshl_b32 s{sT2}, s{sW}, 12'); A(f's_add_u32 s{sT2}, s{sT2}, s{sT}'); A(f's_lshl_b32 s{sQ}, s{sB}, 10'); A(f's_add_u32 s{sT2}, s{sT2}, s{sQ}')
            A(f's_add_u32 s{sT2}, s{sT2}, 1024'); A(f'v_add_u32 v{vQL}, s{sT2}, v{T(0)}')
            A(f's_mov_b32 s{sQ}, 0')
        A(f's_lshl_b32 s{sT}, s{sB}, 10'); A(f'v_lshlrev_b32 v{T(2)}, 4, v{vL}'); A(f'v_add_u32 v{T(2)}, s{sT}, v{T(2)}')
        if QX:
            A(f'v_lshrrev_b32 v{T(2)}, 5, v{vL}'); A(f'v_lshlrev_b32 v{T(2)}, 10, v{T(2)}'); A(f'v_and_b32 v{T(3)}, 31, v{vL}'); A(f'v_lshl_add_u32 v{T(2)}, v{T(3)}, 5, v{T(2)}')
        A(f's_lshl_b32 s{sT}, s{sB}, 5'); A(f's_lshl_b32 s{sT2}, s{sW}, 3'); A(f's_add_u32 s{sT}, s{sT}, s{sT2}')
        A(f's_lshl_b32 s{sT}, s{sT}, 13')
        A(f's_lshl_b32 s{sT2}, s{sH}, 2'); A(f's_add_u32 s{sT2}, s{sT2}, s{sS}'); A(f's_lshl_b32 s{sT2}, s{sT2}, 6')
        A(f's_add_u32 s{sT}, s{sT}, s{sT2}'); A(f's_add_u32 s{sT}, s{sT}, {WS_C1}')
        A(f'v_lshlrev_b32 v{T(0)}, 1, v{vG}'); A(f'v_lshrrev_b32 v{T(1)}, 2, v{vN}'); A(f'v_add_u32 v{T(0)}, v{T(0)}, v{T(1)}')
        A(f'v_lshlrev_b32 v{T(0)}, 13, v{T(0)}'); A(f'v_and_b32 v{T(1)}, 3, v{vN}'); A(f'v_lshl_add_u32 v{T(0)}, v{T(1)}, 4, v{T(0)}')
        A(f'v_add_u32 v{T(0)}, s{sT}, v{T(0)}')
        A(f'v_mov_b32 v{T(1)}, {OOB}'); A(f'v_cmp_gt_u32 vcc, 8, v{vN}')
        A(f'v_cndmask_b32 v{vC1}, v{T(1)}, v{T(0)}, vcc')
        A(f's_lshl_b32 s{sT}, s{sBH}, 7'); A(f's_lshl_b32 s{sT2}, s{sS}, 2'); A(f's_add_u32 s{sT2}, s{sT2}, s{sW}'); A(f's_lshl_b32 s{sT2}, s{sT2}, 3')
        A(f's_add_u32 s{sT2}, s{sT2}, s{sT}'); A(f'v_mov_b32 v{T(0)}, s{sT2}'); A(f'v_mov_b32 v{T(1)}, {OOB}')
        A(f'v_cmp_eq_u32 vcc, 0, v{vL}'); A(f'v_cndmask_b32 v{vMLp}, v{T(1)}, v{T(0)}, vcc')
        A(f'v_lshlrev_b32 v{T(0)}, 3, v{vN}'); A(f'v_add_u32 v{vMLq}, s{sT}, v{T(0)}')
        kp, vp = self.kw.get('kpat'), self.kw.get('vpat')
        if kp == 'v' or vp == 'k' or kp == 'lin' or vp == 'lin':
            A(f's_lshl_b32 s{sT}, s{sW}, 12')
            if kp == 'v' and vp is None: A(f'v_mov_b32 v{vK}, v{vV}')
            if vp == 'k' and kp is None: A(f'v_mov_b32 v{vV}, v{vK}')
            if kp == 'lin': A(f'v_lshlrev_b32 v{T(0)}, 4, v{vL}'); A(f'v_add_u32 v{vK}, s{sT}, v{T(0)}')
            if vp == 'lin': A(f'v_lshlrev_b32 v{T(0)}, 4, v{vL}'); A(f'v_add_u32 v{vV}, s{sT}, v{T(0)}')
        rot = self.kw.get('rot')
        if rot:
            A(f's_mul_i32 s99, s2, {rot}'); A(f's_lshr_b32 s{sT}, s2, 5'); A(f's_add_u32 s99, s99, s{sT}'); A('s_and_b32 s99, s99, 31'); A('s_lshl_b32 s99, s99, 14')
        A(f's_mov_b32 s{sRole}, 0')
        A(f's_and_b32 s{sT}, s2, 7'); A(f's_mul_i32 s{sT}, s{sT}, 14'); A(f's_lshr_b32 s{sT2}, s2, 3'); A(f's_add_u32 s{sU}, s{sT}, s{sT2}')
        A(f's_cmp_lt_u32 s2, 112'); A(f's_cselect_b32 s{sRole}, 1, 0')
        A(f's_sub_u32 s{sT}, s2, 128'); A(f's_cmp_lt_u32 s{sT}, 64'); A(f's_cselect_b32 s{sRole}, 2, s{sRole}'); A(f's_cselect_b32 s{sU}, s{sT}, s{sU}')
        for r_ in (vRS, vWOFF1, vWOFF2, vB1OFF, vHOFF, vOUTA, vXOFF, vB2OFF, vC2OFF): A(f'v_mov_b32 v{r_}, {OOB}')
        A(f's_cmp_eq_u32 s{sRole}, 1'); A('s_cbranch_scc0 L_r1')
        A(f'v_lshrrev_b32 v{T(0)}, 3, v{vN}'); A(f'v_lshlrev_b32 v{T(0)}, 5, v{T(0)}')
        A(f'v_lshl_add_u32 v{T(0)}, v{vG}, 1, v{T(0)}'); A(f'v_bfe_u32 v{T(1)}, v{vN}, 2, 1'); A(f'v_add_u32 v{T(0)}, v{T(0)}, v{T(1)}')
        A(f's_lshl_b32 s{sT}, s{sW}, 3'); A(f'v_add_u32 v{T(0)}, s{sT}, v{T(0)}')
        A(f'v_mul_u32_u24 v{T(0)}, {112*64}, v{T(0)}'); A(f'v_and_b32 v{T(1)}, 3, v{vN}'); A(f'v_lshl_add_u32 v{T(0)}, v{T(1)}, 4, v{T(0)}')
        A(f's_lshl_b32 s{sT}, s{sU}, 6'); A(f's_add_u32 s{sT}, s{sT}, {WS_C2}'); A(f'v_add_u32 v{vRS}, s{sT}, v{T(0)}')
        A(f'v_lshrrev_b32 v{T(0)}, 1, v{vG}'); A(f'v_lshlrev_b32 v{T(0)}, 2, v{T(0)}'); A(f'v_and_b32 v{T(1)}, 1, v{vG}'); A(f'v_lshl_add_u32 v{T(0)}, v{T(1)}, 1, v{T(0)}')
        A(f's_lshl_b32 s{sT}, s{sW}, 7'); A(f'v_add_u32 v{T(0)}, s{sT}, v{T(0)}'); A(f'v_mul_u32_u24 v{T(0)}, 3584, v{T(0)}')
        A(f's_lshl_b32 s{sT}, s{sU}, 5'); A(f'v_lshl_add_u32 v{T(0)}, v{vN}, 1, v{T(0)}'); A(f'v_add_u32 v{vWOFF1}, s{sT}, v{T(0)}')
        A(f's_lshl_b32 s{sT}, s{sU}, 14'); A(f's_lshl_b32 s{sT2}, s{sW}, 8'); A(f's_add_u32 s{sT}, s{sT}, s{sT2}')
        A(f'v_lshlrev_b32 v{T(0)}, 12, v{vG}'); A(f'v_lshl_add_u32 v{T(0)}, v{vN}, 4, v{T(0)}'); A(f'v_add_u32 v{vWOFF2}, s{sT}, v{T(0)}')
        A(f's_lshl_b32 s{sT}, s{sU}, 5'); A(f'v_and_b32 v{T(0)}, 3, v{vN}'); A(f'v_lshl_add_u32 v{T(0)}, v{vG}, 2, v{T(0)}'); A(f'v_lshlrev_b32 v{T(0)}, 1, v{T(0)}'); A(f'v_add_u32 v{vB1OFF}, s{sT}, v{T(0)}')
        A(f'v_lshrrev_b32 v{T(0)}, 5, v{vL}'); A(f'v_lshlrev_b32 v{T(0)}, 11, v{T(0)}'); A(f'v_and_b32 v{T(1)}, 31, v{vL}'); A(f'v_lshl_add_u32 v{T(0)}, v{T(1)}, 4, v{T(0)}')
        A(f'v_add_u32 v{vHOFF}, {WS_H}, v{T(0)}')
        A('s_branch L_r2')
        A('L_r1:')
        A(f's_cmp_eq_u32 s{sRole}, 2'); A('s_cbranch_scc0 L_r2')
        A(f's_cmp_eq_u32 s{sW}, 0'); A('s_cbranch_scc0 L_r2')
        A(f's_lshl_b32 s{sT}, s{sU}, 6'); A(f's_add_u32 s{sT}, s{sT}, {WS_H}')
        A(f'v_lshlrev_b32 v{T(0)}, 4, v{vN}'); A(f'v_lshl_add_u32 v{T(0)}, v{vG}, 2, v{T(0)}'); A(f'v_add_u32 v{T(0)}, s{sT}, v{T(0)}')
        A(f'v_mov_b32 v{T(1)}, {OOB}'); A(f'v_cmp_gt_u32 vcc, 4, v{vN}'); A(f'v_cndmask_b32 v{vRS}, v{T(1)}, v{T(0)}, vcc')
        A(f's_and_b32 s{sT}, s{sU}, 31'); A(f's_lshr_b32 s{sT2}, s{sT}, 1'); A(f's_lshl_b32 s{sT2}, s{sT2}, 5')
        A(f's_and_b32 s{sT}, s{sT}, 1'); A(f's_lshl_b32 s{sT}, s{sT}, 2'); A(f's_add_u32 s{sT}, s{sT}, s{sT2}')
        A(f'v_and_b32 v{T(0)}, 3, v{vN}'); A(f'v_lshl_add_u32 v{T(0)}, v{vG}, 3, v{T(0)}'); A(f'v_add_u32 v{T(0)}, s{sT}, v{T(0)}')
        A(f'v_lshlrev_b32 v{vB2OFF}, 1, v{T(0)}')
        A(f's_lshr_b32 s{sT}, s{sU}, 5'); A(f's_lshl_b32 s{sT}, s{sT}, 10'); A(f'v_add_u32 v{vXOFF}, s{sT}, v{vB2OFF}')
        A(f'v_mov_b32 v{T(1)}, {OOB}'); A(f'v_cmp_gt_u32 vcc, 4, v{vN}'); A(f'v_cndmask_b32 v{vOUTA}, v{T(1)}, v{vXOFF}, vcc')
        A(f's_lshl_b32 s{sT}, s{sU}, 13'); A(f's_add_u32 s{sT}, s{sT}, {WS_C1}'); A(f'v_lshlrev_b32 v{T(0)}, 4, v{vL}'); A(f'v_add_u32 v{vHOFF}, s{sT}, v{T(0)}')
        A(f's_mul_i32 s{sT}, s{sU}, 7168'); A(f's_add_u32 s{sT}, s{sT}, {WS_C2}'); A(f'v_add_u32 v{vC2OFF}, s{sT}, v{T(0)}')
        A('L_r2:')
        for i in range(4): A(f'v_mov_b32 v{vSENT+i}, -1')
        A('s_waitcnt lgkmcnt(0)')
        if self.kw.get('st2'): G.stamp(24)
        A(f's_lshl_b32 s{sT}, s{sBH}, 21'); A(f's_lshl_b32 s{sT2}, s{sS}, 19'); A(f's_add_u32 s{sT}, s{sT}, s{sT2}')
        if self.kw.get('krot'): A(f's_add_u32 s{sT}, s{sT}, {self.kw["krot"] << 21}'); A(f's_and_b32 s{sT}, s{sT}, {(64 << 21) - 1}')
        G.srd(rX, pX, pX + 1, 2048)
        vQX, vQR, vQP = vR, vR + 16, vR + 24
        WSZ = (WS_QX + 32 * QX_STR) if QX else WS_SIZE + (0x100000 if self.diag else 0)
        if QX and QX.get('skip'):
            G.srd(rWS, pWS, pWS + 1, WSZ)
        elif QX:
            G.vmop(f'buffer_load_dwordx4 v[{vQR}:{vQR+3}], v{T(2)}, s[{rX}:{rX+3}], 0 offen', 'x')
            G.vmop(f'buffer_load_dwordx4 v[{vQR+4}:{vQR+7}], v{T(2)}, s[{rX}:{rX+3}], 0 offen offset:16', 'x')
            A(f's_lshl_b32 s{sT2}, s{sH}, 8')
            G.srd(rWQ, pWQ, pWQ + 1, 0, f's{sT2}'); A(f's_sub_u32 s{rWQ+2}, {512*8192}, s{sT2}')
            A(f's_lshl_b32 s{sT2}, s{sJ}, 19')
            for i in range(4):
                G.vmop(f'buffer_load_dwordx4 a[{aW+4*i}:{aW+4*i+3}], v{vWQ}, s[{rWQ}:{rWQ+3}], s{sT2} offen', f'wq{i}')
                if i < 3: A(f's_add_u32 s{sT2}, s{sT2}, 8192')
            G.srd(rWS, pWS, pWS + 1, WSZ)
            G.vmop(f'buffer_load_dwordx2 v[{vEW}:{vEW+1}], v{vQE}, s[{rWS}:{rWS+3}], 0 offen sc1', 'E')
        G.srd(rK, pK, pK + 1, 0x80000, f's{sT}')
        if not QX: G.vmop(f'buffer_load_dwordx4 v[{vXR}:{vXR+3}], v{T(2)}, s[{rX}:{rX+3}], 0 offen', 'x')
        if self.kw.get('xwait'): G.vmwait('x')
        koffs = [0, 2048, 128, 2176]
        voffs = [0, 2048, 256, 2304]
        if kp == 'v': koffs = list(voffs)
        if vp == 'k': voffs = list(koffs)
        if kp == 'lin': koffs = [0, 1024, 2048, 3072]
        if vp == 'lin': voffs = [0, 1024, 2048, 3072]
        if kp == 'adj': koffs = [0, 128, 2048, 2176]
        if vp == 'adj': voffs = [0, 256, 2048, 2304]
        last_soff = [None]
        def load_one(u, q, setoff=True):
            isK = u < 32; t = u % 32
            if setoff:
                if self.kw.get('rot'):
                    A(f's_add_u32 s{sOff}, s99, {t*16384}'); A(f's_and_b32 s{sOff}, s{sOff}, {31*16384}')
                else:
                    A(f's_mov_b32 s{sOff}, {t*16384}')
            r = ((u % RING) * 4 + q) * 4
            if isK: G.vmop(f'buffer_load_dwordx4 a[{r}:{r+3}], v{vK}, s[{rK}:{rK+3}], s{sOff} offen offset:{koffs[q]} {nt}', f'u{u}')
            else:   G.vmop(f'buffer_load_dwordx4 a[{r}:{r+3}], v{vV}, s[{rV}:{rV+3}], s{sOff} offen offset:{voffs[q]} {nt}', f'u{u}')
            G.lidx[4 * u + q] = len(G.vm) - 1
        def unit_loads(u):
            for q in range(4): load_one(u, q, q == 0)
        PRO = self.kw.get('pro')
        kcur = [None]; kiss = [0]
        def issue_k():
            m = kiss[0]; u_, q_ = m // 4, m % 4
            load_one(u_, q_, u_ != kcur[0]); kcur[0] = u_; kiss[0] += 1
        if QX:
            for _ in range(QX['k0']): issue_k()
        elif PRO:
            for _ in range(PRO[0]): issue_k()
        elif self.pre > 0: unit_loads(0)
        if self.kw.get('st2'): G.stamp(25)
        G.srd(rV, pV, pV + 1, 0x80000, f's{sT}')
        if not QX: G.srd(rWS, pWS, pWS + 1, WSZ)
        A(f's_lshl_b32 s{sT}, s{sH}, 8')
        if self.kw.get('wqsame'): A(f's_mov_b32 s{sT}, 0')
        if self.kw.get('wqrot'): A(f's_add_u32 s{sT}, s{sH}, {self.kw["wqrot"]}'); A(f's_and_b32 s{sT}, s{sT}, 31'); A(f's_lshl_b32 s{sT}, s{sT}, 8')
        if self.kw.get('wqx'): A(f's_lshr_b32 s{sT}, s2, 3'); A(f's_lshl_b32 s{sT}, s{sT}, 8')
        if self.kw.get('wqx4'): A(f's_lshr_b32 s{sT}, s2, 2'); A(f's_and_b32 s{sT}, s{sT}, 31'); A(f's_lshl_b32 s{sT}, s{sT}, 8')
        if QX: pass
        elif self.kw.get('wqbase'):
            pb = {'K': pK, 'V': pV, 'O': pWO}[self.kw['wqbase']]
            G.srd(rWQ, pb, pb + 1, 0, f's{sT}'); A(f's_sub_u32 s{rWQ+2}, {512*8192}, s{sT}')
        else:
            G.srd(rWQ, pWQ, pWQ + 1, 0, f's{sT}'); A(f's_sub_u32 s{rWQ+2}, {512*8192}, s{sT}')
        if self.kw.get('noinit'):
            A(f'v_mov_b32 v{vC1}, {OOB}'); A(f'v_mov_b32 v{vMLp}, {OOB}'); A(f'v_mov_b32 v{vRS}, {OOB}'); A(f'v_mov_b32 v{vHOFF}, {OOB}'); A(f'v_mov_b32 v{vC2OFF}, {OOB}'); A(f'v_mov_b32 v{vMLq}, {OOB}')
        G.vmop(f'buffer_store_dwordx4 v[{vSENT}:{vSENT+3}], v{vC1}, s[{rWS}:{rWS+3}], 0 offen sc1', 'init')
        G.vmop(f'buffer_store_dwordx2 v[{vSENT}:{vSENT+1}], v{vMLp}, s[{rWS}:{rWS+3}], 0 offen sc1', 'init')
        A(f's_cmp_eq_u32 s{sRole}, 1'); A('s_cbranch_scc0 L_i1')
        G.vmop(f'buffer_store_dwordx4 v[{vSENT}:{vSENT+3}], v{vRS}, s[{rWS}:{rWS+3}], 0 offen sc1', 'init', True)
        A('L_i1:')
        A(f's_cmp_eq_u32 s{sRole}, 2'); A('s_cbranch_scc0 L_i2')
        G.vmop(f'buffer_store_dword v{vSENT}, v{vRS}, s[{rWS}:{rWS+3}], 0 offen sc1', 'init', True)
        A('L_i2:')
        if self.kw.get('st2'): G.stamp(26)
        def wq_load(i):
            if self.kw.get('nowq0'): return
            if self.nowq and i >= 4: return
            A(f's_mov_b32 s{sT}, {i*8192}')
            r = aW + 4 * i
            G.vmop(f'buffer_load_dwordx4 a[{r}:{r+3}], v{vWQ}, s[{rWQ}:{rWQ+3}], s{sT} offen {wnt}', f'wq{i}')
            if self.kw.get('st2') and i == 15: G.stamp(27)
            if self.kw.get('st2') and i == 31: G.stamp(28)
        il = self.kw.get('il', 0)
        done_u = 1 if self.pre > 0 else 0
        if QX:
            for _ in range(QX.get('n1', 0)): issue_k()
        elif PRO:
            k0_, pa, pb_, Wp = PRO[:4]
            ktot = PRO[4] if len(PRO) > 4 else 28
            S = []
            for i in range(32):
                S.append(('wq', i))
                if i % pa == pa - 1 and i < 31: S += [('k', None)] * pb_
            S += [('k', None)] * 32
            sp = [0]
            def pro_next():
                while sp[0] < len(S):
                    kind, i = S[sp[0]]; sp[0] += 1
                    if kind == 'wq':
                        A(f's_mov_b32 s{sLim}, {i*8192}')
                        r = aW + 4 * i
                        G.vmop(f'buffer_load_dwordx4 a[{r}:{r+3}], v{vWQ}, s[{rWQ}:{rWQ+3}], s{sLim} offen {wnt}', f'wq{i}')
                        if self.kw.get('st2') and i == 15: G.stamp(27)
                        if self.kw.get('st2') and i == 31: G.stamp(28)
                        return True
                    if kiss[0] < ktot:
                        issue_k(); return True
                return False
            for _ in range(PRO[5] if len(PRO) > 5 else Wp - k0_ - 1): pro_next()
        else:
            for i in range(32):
                wq_load(i)
                if il and i % 4 == 3 and done_u < 1 + il and i < 31:
                    unit_loads(done_u); done_u += 1
            for u in range(done_u, self.pre): unit_loads(u)
        G.stamp(9)
        A(f's_lshl_b32 s{sT}, s{sH}, 17')
        if self.kw.get('wosame'): A(f's_mov_b32 s{sT}, 0')
        if self.kw.get('wox'): A(f's_lshr_b32 s{sT}, s2, 3'); A(f's_lshl_b32 s{sT}, s{sT}, 17')
        if self.kw.get('wox4'): A(f's_lshr_b32 s{sT}, s2, 2'); A(f's_and_b32 s{sT}, s{sT}, 31'); A(f's_lshl_b32 s{sT}, s{sT}, 17')
        if self.kw.get('woxcd'): A(f's_and_b32 s{sT}, s{sH}, 7'); A(f's_lshl_b32 s{sT}, s{sT}, 17')
        G.srd(rWO, pWO, pWO + 1, 131072, f's{sT}')
        G.srd(rDBG, pDBG, pDBG + 1, 256)
        G.srd(rW1, pW1, pW1 + 1, 512 * 3584)
        G.srd(rW2, pW2, pW2 + 1, 1792 * 1024)
        G.srd(rB1, pB1, pB1 + 1, 3584)
        G.srd(rB2, pB2, pB2 + 1, 1024)
        G.srd(rOUT, pOUT, pOUT + 1, 2048)
        A(f's_mov_b32 s{sPK}, 0x05040100')
        A(f's_lshl_b32 s{sT}, s{sW}, 8'); A(f'v_lshlrev_b32 v{T(0)}, 15, v{vG}'); A(f'v_lshl_add_u32 v{T(0)}, v{vN}, 4, v{T(0)}'); A(f'v_add_u32 v{vWO}, s{sT}, v{T(0)}')
        A(f's_lshr_b32 s{sAt}, s2, 4'); A(f's_and_b32 s{sAt}, s{sAt}, 15'); A(f's_cmp_eq_u32 s{sW}, 0'); A(f's_cselect_b32 s{sAt}, s{sAt}, 99')
        A(f'v_mov_b32 v{vONE}, 1'); A(f'v_mov_b32 v{vATO}, {OOB}'); A(f'v_cmp_eq_u32 vcc, 0, v{vL}'); A(f'v_cndmask_b32 v{vATO}, v{vATO}, 0, vcc')
        A(f'v_and_b32 v{T(0)}, 1, v{vN}'); A(f'v_cmp_eq_u32 vcc, 1, v{T(0)}')
        A(f'v_mov_b32 v{T(1)}, 0x0c0c0100'); A(f'v_mov_b32 v{T(2)}, 0x01000c0c'); A(f'v_cndmask_b32 v{T(3)}, v{T(1)}, v{T(2)}, vcc')
        A(f'v_mov_b32 v{T(1)}, 0x0c0c0302'); A(f'v_mov_b32 v{T(2)}, 0x03020c0c'); A(f'v_cndmask_b32 v{T(4)}, v{T(1)}, v{T(2)}, vcc')
        A(f'v_mov_b32 v{T(1)}, 0x0000ffff'); A(f'v_mov_b32 v{T(2)}, 0xffff0000'); A(f'v_cndmask_b32 v{T(5)}, v{T(1)}, v{T(2)}, vcc')
        A(f'v_bfe_u32 v{T(0)}, v{vN}, 1, 2'); A(f'v_mov_b32 v{T(6)}, 0x0c0c0c0c')
        for jj in range(4):
            A(f'v_cmp_eq_u32 vcc, {jj}, v{T(0)}')
            A(f'v_cndmask_b32 v{vSEL+jj}, v{T(6)}, v{T(3)}, vcc'); A(f'v_cndmask_b32 v{vSEL+4+jj}, v{T(6)}, v{T(4)}, vcc')
            A(f'v_cndmask_b32 v{vMASK+jj}, 0, v{T(5)}, vcc')
        if QX:
            A(f's_lshl_b32 s{sT}, s{sW}, 11'); A(f'v_lshlrev_b32 v{T(0)}, 5, v{vL}'); A(f'v_add_u32 v{vA1}, s{sT}, v{T(0)}')
            A(f's_lshl_b32 s{sT2}, s{sJ}, 2'); A(f's_add_u32 s{sT2}, s{sT2}, s{sW}'); A(f's_lshl_b32 s{sT2}, s{sT2}, 5'); A(f's_add_u32 s{sT}, s{sT}, s{sT2}')
            A(f'v_lshrrev_b32 v{T(0)}, 3, v{vN}'); A(f'v_lshlrev_b32 v{T(0)}, 10, v{T(0)}'); A(f'v_lshl_add_u32 v{T(0)}, v{vG}, 3, v{T(0)}'); A(f'v_add_u32 v{vA2}, s{sT}, v{T(0)}')
        else:
            A(f's_lshl_b32 s{sT}, s{sW}, 10'); A(f'v_lshlrev_b32 v{T(0)}, 4, v{vL}'); A(f'v_add_u32 v{vA1}, s{sT}, v{T(0)}')
            A(f's_mul_i32 s{sT}, s{sW}, 1280'); A(f'v_lshlrev_b32 v{T(0)}, 6, v{vG}'); A(f'v_add_u32 v{vA2}, s{sT}, v{T(0)}')
        if THR:
            PSTR = self.kw.get('pstr', 4)
            GSTR = self.kw.get('gstr', 256 if PSTR == 4 else 8 * PSTR)
            A(f's_and_b32 s{sT}, s2, 3'); A(f's_lshl_b32 s{sT}, s{sT}, 3'); A(f's_lshr_b32 s{sT2}, s2, 3'); A(f's_sub_u32 s{sT2}, s{sT2}, s{sT}'); A(f's_and_b32 s{sT2}, s{sT2}, 31')
            A(f's_mul_i32 s{sT2}, s{sT2}, {GSTR}'); A(f's_add_u32 s{sT2}, s{sT2}, {WS_PROG}')
            A(f'v_mov_b32 v{vPT}, {OOB}'); A(f'v_and_b32 v{vPRO}, 7, v{vL}'); A(f'v_mul_u32_u24 v{vPRO}, {PSTR}, v{vPRO}'); A(f'v_add_u32 v{vPRO}, s{sT2}, v{vPRO}')
            A(f's_and_b32 s{sT}, s2, 7'); A(f's_mul_i32 s{sT}, s{sT}, {PSTR}'); A(f's_add_u32 s{sT}, s{sT}, s{sT2}')
            A(f'v_mov_b32 v{vPUBO}, s{sT}'); A(f'v_cmp_eq_u32 vcc, 0, v{vL}'); A(f'v_cndmask_b32 v{vPUBO}, v{vPT}, v{vPUBO}, vcc')
            A(f'v_lshlrev_b32 v{vLIMW}, 2, v{vL}'); A(f'v_add_u32 v{vLIMW}, {L_DUM2}, v{vLIMW}')
            A(f'v_mov_b32 v{vLIMR}, {L_LIM}'); A(f'v_mov_b32 v{vWIN}, {THR}')
            A(f's_cmp_eq_u32 s{sW}, 0'); A('s_cbranch_scc1 L_thw0')
            A(f'v_mov_b32 v{vPUBO}, {OOB}'); A(f'v_mov_b32 v{vPRO}, {OOB}'); A('s_branch L_thw1')
            A('L_thw0:')
            A(f'v_cndmask_b32 v{vLIMW}, v{vLIMW}, v{vLIMR}, vcc')
            A('L_thw1:')
            A(f'ds_write_b32 v{vLIMW}, v{vWIN}'); A(f'v_mov_b32 v{vLIM}, {THR}'); A(f'v_mov_b32 v{vEFF}, 0')
            for r_ in vPROG: A(f'v_mov_b32 v{r_}, 0')
        noq = self.kw.get('noq')
        if noq: A('s_branch L_noq')
        if QX and QX.get('skip'):
            L_keep = list(self.L); vm_keep = list(self.vm); done_keep = self.done; kiss_keep = kiss[0]; kcur_keep = kcur[0]; lidx_keep = dict(self.lidx)
            self.vm += [('x', False), ('wq0', False), ('wq1', False), ('wq2', False), ('wq3', False), ('E', False)]
        if self.kw.get('st2'): G.stamp(29)
        G.vmwait('x')
        if self.kw.get('st2'): G.stamp(30)
        if THR:
            G.vmop(f'buffer_load_dword v{vSNAP}, v{vPRO}, s[{rWS}:{rWS+3}], 0 offen sc1', 'snap')
        if QX:
            for _ in range(QX.get('n2', 0)): issue_k()
            X = [vQX + i for i in range(16)]
            for k in range(8):
                A(f'v_lshlrev_b32 v{X[2*k]}, 16, v{vQR+k}'); A(f'v_and_b32 v{X[2*k+1]}, 0xffff0000, v{vQR+k}')
            self.ln_stats(X, T(8), T(9), T(10), T(11), 1.0 / 512, self.half_allreduce)
            self.ln_apply(X, T(8), T(9))
            for k in range(8): A(f'v_cvt_pk_bf16_f32 v{vQR+k}, v{X[2*k]}, v{X[2*k+1]}')
            A(f'ds_write_b128 v{vA1}, v[{vQR}:{vQR+3}] offset:{L_XN2}'); A(f'ds_write_b128 v{vA1}, v[{vQR+4}:{vQR+7}] offset:{L_XN2+16}')
            for _ in range(QX.get('n3', 0)): issue_k()
            A('s_waitcnt lgkmcnt(0)')
            A(f'ds_read_b64 v[{vXP}:{vXP+1}], v{vA2} offset:{L_XN2}')
        else:
            X = [T(i) for i in range(8)]
            for k in range(4):
                A(f'v_lshlrev_b32 v{X[2*k]}, 16, v{vXR+k}'); A(f'v_and_b32 v{X[2*k+1]}, 0xffff0000, v{vXR+k}')
            self.ln_stats(X, T(8), T(9), T(10), T(11), 1.0 / 512, self.wave_allreduce)
            self.ln_apply(X, T(8), T(9))
            for k in range(4): A(f'v_cvt_pk_bf16_f32 v{vXR+k}, v{X[2*k]}, v{X[2*k+1]}')
            A(f'ds_write_b128 v{vA1}, v[{vXR}:{vXR+3}] offset:{L_XN}')
            A('s_waitcnt lgkmcnt(0)')
            for k in range(4): A(f'ds_read_b128 v[{vXP+4*k}:{vXP+4*k+3}], v{vA2} offset:{L_XN+16*k}')
        A(f's_lshl_b32 s{sT}, s{sW}, 9'); A(f'v_and_b32 v{T(0)}, 7, v{vN}'); A(f'v_lshl_add_u32 v{T(0)}, v{vG}, 5, v{T(0)}'); A(f'v_lshlrev_b32 v{T(0)}, 2, v{T(0)}')
        A(f'v_add_u32 v{vA1}, s{sT}, v{T(0)}')
        A(f'v_mov_b32 v{T(1)}, {L_DUMMY - L_OP}'); A(f'v_cmp_gt_u32 vcc, 8, v{vN}'); A(f'v_cndmask_b32 v{vOPA}, v{T(1)}, v{vA1}, vcc')
        A(f'v_lshlrev_b32 v{vA3}, 3, v{vL}')
        A('s_waitcnt lgkmcnt(0)')
        if self.kw.get('st2'): G.stamp(31)
        def delta_steps(nsteps, acc, tagf, first_zero=True):
            for i in range(nsteps):
                bset = vB + 4 * (i & 1)
                for jj in range(4):
                    A(f'v_perm_b32 v{bset+jj}, v{vXP+(i>>1)}, v{vXP+(i>>1)}, v{vSEL+4*(i&1)+jj}')
                if tagf is not None and i % 4 == 0: G.vmwait(tagf(i + 3))
                r = aW + 4 * i
                c = '0' if i == 0 else f'v[{acc}:{acc+3}]'
                A(f'v_mfma_f32_16x16x32_bf16 v[{acc}:{acc+3}], a[{r}:{r+3}], v[{bset}:{bset+3}], {c}')
        if QX:
            for i in range(4):
                bset = vB + 4 * (i & 1)
                for jj in range(4):
                    A(f'v_perm_b32 v{bset+jj}, v{vXP+(i>>1)}, v{vXP+(i>>1)}, v{vSEL+4*(i&1)+jj}')
                G.vmwait(f'wq{i}')
                c = '0' if i == 0 else f'v[{vDQ}:{vDQ+3}]'
                A(f'v_mfma_f32_16x16x32_bf16 v[{vDQ}:{vDQ+3}], a[{aW+4*i}:{aW+4*i+3}], v[{bset}:{bset+3}], {c}')
            A(f's_lshl_b32 s{sT}, s{sW}, 10'); A(f'v_and_b32 v{T(0)}, 7, v{vN}'); A(f'v_lshl_add_u32 v{T(0)}, v{vG}, 5, v{T(0)}'); A(f'v_lshlrev_b32 v{T(0)}, 2, v{T(0)}')
            A(f'v_lshrrev_b32 v{T(1)}, 3, v{vN}'); A(f'v_lshl_add_u32 v{T(0)}, v{T(1)}, 9, v{T(0)}'); A(f'v_add_u32 v{T(0)}, s{sT}, v{T(0)}')
            A(f's_lshl_b32 s{sT}, s{sW}, 8'); A(f'v_add_u32 v{T(1)}, s{sT}, v{vA3}')
            for i in range(4): A(f'ds_write_b32 v{T(0)}, v{vDQ+i} offset:{L_XN + 32*i}')
            for _ in range(QX.get('n4', 0)): issue_k()
            A('s_waitcnt lgkmcnt(0)'); A('s_barrier')
            for w in range(4): A(f'ds_read_b64 v[{T(2*w+2)}:{T(2*w+3)}], v{T(1)} offset:{L_XN + 1024*w}')
            G.vmwait('E')
            A(f'v_add_u32 v{vTG}, 0x9e3779b9, v{vEW}'); A(f'v_add_u32 v{vTG+1}, 0x7f4a7c15, v{vEW+1}')
            A('s_waitcnt lgkmcnt(0)')
            A(f'v_pk_add_f32 v[{T(2)}:{T(3)}], v[{T(2)}:{T(3)}], v[{T(4)}:{T(5)}]'); A(f'v_pk_add_f32 v[{T(6)}:{T(7)}], v[{T(6)}:{T(7)}], v[{T(8)}:{T(9)}]')
            A(f'v_pk_add_f32 v[{T(2)}:{T(3)}], v[{T(2)}:{T(3)}], v[{T(6)}:{T(7)}]')
            A(f'v_mov_b32 v{T(4)}, v{vTG}'); A(f'v_mov_b32 v{T(5)}, v{vTG+1}')
            G.vmop(f'buffer_store_dwordx4 v[{T(2)}:{T(5)}], v{vQS}, s[{rWS}:{rWS+3}], 0 offen sc1', 'qst')
            G.stamp(10)
            for _ in range(QX.get('n4b', 0)): issue_k()
            Wq, Pq, polls = QX['W'], QX['P'], list(QX['polls'])
            def q_poll(lab, firm):
                if not firm: A(f's_cmp_eq_u32 s{sQ}, 1'); A(f's_cbranch_scc1 {lab}')
                G.vmop(f'buffer_load_dwordx4 v[{vQP}:{vQP+3}], v{vQL}, s[{rWS}:{rWS+3}], 0 offen sc1', 'qpoll', not firm)
                G.vmop(f'buffer_load_dwordx4 v[{vQP+4}:{vQP+7}], v{vQL}, s[{rWS}:{rWS+3}], 0 offen offset:2048 sc1', 'qpoll', not firm)
                if not firm: A(f'{lab}:')
                return len(G.vm) - 1
            def q_cmp():
                A(f'v_cmp_ne_u32 vcc, v{vTG}, v{vQP+2}'); A(f'v_cmp_ne_u32 s[{sM}:{sM+1}], v{vTG+1}, v{vQP+3}'); A(f's_or_b64 vcc, vcc, s[{sM}:{sM+1}]')
                A(f'v_cmp_ne_u32 s[{sM}:{sM+1}], v{vTG}, v{vQP+6}'); A(f's_or_b64 vcc, vcc, s[{sM}:{sM+1}]')
                A(f'v_cmp_ne_u32 s[{sM}:{sM+1}], v{vTG+1}, v{vQP+7}'); A(f's_or_b64 vcc, vcc, s[{sM}:{sM+1}]')
                if QX.get('fake'): A('s_mov_b64 vcc, 0')
            def q_check(lab, idx):
                A(f's_cmp_eq_u32 s{sQ}, 1'); A(f's_cbranch_scc1 {lab}')
                n = sum(1 for (t_, o_) in G.vm[idx + 1:] if not o_)
                A(f's_waitcnt vmcnt({n})')
                q_cmp()
                A(f's_cbranch_vccnz {lab}'); A(f's_mov_b32 s{sQ}, 1')
                A(f'{lab}:')
            pend = None; nq = 0
            while True:
                m = kiss[0]
                if pend is not None and (m >= pend[0] or m >= Pq):
                    q_check(f'L_qc{nq}', pend[1]); pend = None
                if polls and polls[0] <= m and pend is None:
                    polls.pop(0); nq += 1
                    pend = (m + QX.get('d', Wq), q_poll(f'L_qp{nq}', nq == 1))
                    continue
                if m >= Pq: break
                if m - Wq >= 0: G.vmwait_idx(G.lidx[m - Wq])
                issue_k()
            A(f's_cmp_eq_u32 s{sQ}, 1'); A('s_cbranch_scc1 L_qok')
            A(f's_mov_b32 s{sSpin}, {self.spin}')
            G.stamp(12)
            A('L_qspin:')
            A(f'buffer_load_dwordx4 v[{vQP}:{vQP+3}], v{vQL}, s[{rWS}:{rWS+3}], 0 offen sc1')
            A(f'buffer_load_dwordx4 v[{vQP+4}:{vQP+7}], v{vQL}, s[{rWS}:{rWS+3}], 0 offen offset:2048 sc1')
            A('s_waitcnt vmcnt(0)')
            q_cmp()
            A('s_cbranch_vccz L_qok')
            A(f's_sub_u32 s{sSpin}, s{sSpin}, 1'); A('s_cbranch_scc0 L_qspin')
            A('L_qok:')
            G.stamp(11)
            A(f'v_pk_add_f32 v[{vQP}:{vQP+1}], v[{vQP}:{vQP+1}], v[{vQP+4}:{vQP+5}]')
            A(f's_lshl_b32 s{sT}, s{sW}, 9'); A(f'v_add_u32 v{T(0)}, s{sT}, v{vA3}')
            A(f'ds_write_b64 v{T(0)}, v[{vQP}:{vQP+1}] offset:{L_QP}')
            for _ in range(QX.get('n5', 0)): issue_k()
        elif PRO:
            for i in range(32):
                bset = vB + 4 * (i & 1)
                for jj in range(4):
                    A(f'v_perm_b32 v{bset+jj}, v{vXP+(i>>1)}, v{vXP+(i>>1)}, v{vSEL+4*(i&1)+jj}')
                idx = max(k for k, (t_, o_) in enumerate(G.vm) if t_ == f'wq{i}')
                G.vmwait_idx(idx)
                while len(G.vm) - 1 - idx < Wp and pro_next(): pass
                r = aW + 4 * i
                c = '0' if i == 0 else f'v[{vDQ}:{vDQ+3}]'
                A(f'v_mfma_f32_16x16x32_bf16 v[{vDQ}:{vDQ+3}], a[{r}:{r+3}], v[{bset}:{bset+3}], {c}')
            for _ in range(self.kw.get('kq', 0)): issue_k()
        else:
            delta_steps(32, vDQ, lambda i: f'wq{min(i, 3) if self.nowq else i}')
        if not QX:
            for i in range(4): A(f'ds_write_b32 v{vA1}, v{vDQ+i} offset:{L_QP + 32*i}')
        A('s_waitcnt lgkmcnt(0)'); A('s_barrier')
        A(f's_cmp_eq_u32 s{sW}, 0'); A('s_cbranch_scc0 L_c1')
        A(f'v_mov_b32 v{T(0)}, 1'); A(f'v_mov_b32 v{T(1)}, {OOB}'); A(f'v_cmp_eq_u32 vcc, 0, v{vL}'); A(f'v_cndmask_b32 v{T(1)}, v{T(1)}, 0, vcc')
        if not self.kw.get('noatom') and not self.kw.get('atsp'): G.vmop(f'buffer_atomic_add v{T(0)}, v{T(1)}, s[{rDBG}:{rDBG+3}], 0 offen', 'atom', True)
        A('L_c1:')
        for w in range(4): A(f'ds_read_b64 v[{T(2*w+2)}:{T(2*w+3)}], v{vA3} offset:{L_QP + 512*w}')
        if noq:
            A('L_noq:')
            A(f's_cmp_eq_u32 s{sW}, 0'); A('s_cbranch_scc0 L_c1b')
            A(f'v_mov_b32 v{T(0)}, 1'); A(f'v_mov_b32 v{T(1)}, {OOB}'); A(f'v_cmp_eq_u32 vcc, 0, v{vL}'); A(f'v_cndmask_b32 v{T(1)}, v{T(1)}, 0, vcc')
            if not self.kw.get('noatom'): A(f'buffer_atomic_add v{T(0)}, v{T(1)}, s[{rDBG}:{rDBG+3}], 0 offen')
            A('L_c1b:')
        LOOK = self.kw.get('look', RING); LOOKV = self.kw.get('lookv', LOOK)
        nxt = [self.pre]
        def issue_upto(u_hi):
            while nxt[0] <= min(u_hi, 63):
                unit_loads(nxt[0]); nxt[0] += 1
        if PRO or QX:
            while kiss[0] < self.kw.get('topup', 0): issue_k()
        else: issue_upto(LOOK - 1)
        SL = self.kw.get('slide'); SLV = self.kw.get('slidev', SL)
        nxl = [kiss[0] if (PRO or QX) else 4 * nxt[0]]
        m0_ = nxl[0]
        import math
        def lagof(m):
            f = SL if m < 128 else SLV
            eb = self.kw.get('eb')
            if eb and m >= 128 + 4 * eb[0]: f = eb[1]
            kb = self.kw.get('kb')
            if kb and m < 128 and m >= 4 * kb[0]: f = kb[1]
            rp = self.kw.get('ramp')
            if rp and m < 128:
                f = max(f, min(31, int(rp[0] - rp[1] * (m - m0_))))
            if isinstance(f, int) or float(f).is_integer(): return int(f)
            g = int(m // f)
            return int(math.floor((g + 1) * f) - math.floor(g * f))
        def slide_issue(j, boost=0):
            while nxl[0] <= 255 and (nxl[0] - lagof(nxl[0]) <= j or nxl[0] <= j + boost):
                m = nxl[0]; u_, q_ = m // 4, m % 4
                ap = self.kw.get('apace')
                if ap and not boost and m < 128 and m - ap > j: G.vmwait_idx(G.lidx[m - ap])
                load_one(u_, q_, u_ != slide_issue.cur); slide_issue.cur = u_
                nxl[0] += 1
        slide_issue.cur = None
        prog_k = [0]
        def prog_reduce(src):
            A(f'v_cmp_ne_u32 vcc, v{src}, v{vSNAP}'); A(f'v_cndmask_b32 v{vPT}, 0, v{src}, vcc'); A(f'v_max_u32 v{vEFF}, v{vEFF}, v{vPT}')
            A(f'v_min_u32_dpp v{vPT}, v{vEFF}, v{vEFF} row_ror:1 row_mask:0xf bank_mask:0xf')
            for r_ in (2, 4): A(f'v_min_u32_dpp v{vPT}, v{vPT}, v{vPT} row_ror:{r_} row_mask:0xf bank_mask:0xf')
            A(f'v_add_u32 v{vPT}, v{vWIN}, v{vPT}')
            A(f'ds_write_b32 v{vLIMW}, v{vPT}')
        def throttled_issue(g, u_hi):
            u_hi = min(u_hi, 63)
            if not THR: issue_upto(u_hi); return
            need_gate = u_hi >= nxt[0] and u_hi > THR
            if need_gate:
                lab = f'L_th{g}'
                A('s_waitcnt lgkmcnt(0)'); A(f'v_readfirstlane_b32 s{sLim}, v{vLIM}')
                A(f's_cmp_ge_u32 s{sLim}, {u_hi}'); A(f's_cbranch_scc1 {lab}_ok')
                A(f's_mov_b32 s{sSp2}, 4096')
                A(f'{lab}:')
                A(f's_cmp_eq_u32 s{sW}, 0'); A(f's_cbranch_scc0 {lab}_w')
                A(f'buffer_load_dword v{vPV}, v{vPRO}, s[{rWS}:{rWS+3}], 0 offen sc1'); A('s_waitcnt vmcnt(0)')
                prog_reduce(vPV)
                A(f'{lab}_w:')
                A(f'ds_read_b32 v{vLIM}, v{vLIMR}'); A('s_waitcnt lgkmcnt(0)'); A(f'v_readfirstlane_b32 s{sLim}, v{vLIM}')
                A(f's_cmp_ge_u32 s{sLim}, {u_hi}'); A(f's_cbranch_scc1 {lab}_ok')
                A(f's_sub_u32 s{sSp2}, s{sSp2}, 1'); A(f's_cbranch_scc0 {lab}')
                A(f'v_mov_b32 v{vWIN}, 0x100000')
                A(f'{lab}_ok:')
            more = nxt[0] <= 63 or True
            last_gate = 63 - 1
            do_chk = (g % CHK == 0) and nxt[0] < 63
            if do_chk:
                k = prog_k[0]
                G.vmop(f'buffer_load_dword v{vPROG[k & 1]}, v{vPRO}, s[{rWS}:{rWS+3}], 0 offen sc1', f'prog{k}')
            if g % self.kw.get('pubn', 1) == 0 and g < 63 - 2:
                A(f'v_mov_b32 v{vPV}, {g + 1}')
                G.vmop(f'buffer_store_dword v{vPV}, v{vPUBO}, s[{rWS}:{rWS+3}], 0 offen sc1', 'pub')
            issue_upto(u_hi)
            if do_chk:
                k = prog_k[0]
                if k > 0:
                    G.vmwait(f'prog{k-1}')
                    prog_reduce(vPROG[(k - 1) & 1])
                prog_k[0] += 1
            if nxt[0] <= 63: A(f'ds_read_b32 v{vLIM}, v{vLIMR}')
        A(f's_lshl_b32 s{sT}, s{sW}, 8'); A(f'v_lshlrev_b32 v{T(0)}, 2, v{vL}'); A(f'v_add_u32 v{T(0)}, s{sT}, v{T(0)}')
        A(f'v_lshrrev_b32 v{T(1)}, 3, v{vN}'); A(f'v_lshlrev_b32 v{T(1)}, 6, v{T(1)}'); A(f'v_lshl_add_u32 v{T(1)}, v{vG}, 4, v{T(1)}'); A(f'v_add_u32 v{T(1)}, s{sT}, v{T(1)}')
        A('s_waitcnt lgkmcnt(0)')
        A(f'v_pk_add_f32 v[{T(2)}:{T(3)}], v[{T(2)}:{T(3)}], v[{T(4)}:{T(5)}]'); A(f'v_pk_add_f32 v[{T(6)}:{T(7)}], v[{T(6)}:{T(7)}], v[{T(8)}:{T(9)}]')
        A(f'v_pk_add_f32 v[{T(2)}:{T(3)}], v[{T(2)}:{T(3)}], v[{T(6)}:{T(7)}]')
        A(f'v_cvt_pk_bf16_f32 v{T(2)}, v{T(2)}, v{T(3)}')
        A(f'ds_write_b32 v{T(0)}, v{T(2)} offset:{L_QB}')
        A('s_waitcnt lgkmcnt(0)')
        A(f'ds_read_b128 v[{vBQ}:{vBQ+3}], v{T(1)} offset:{L_QB}'); A(f'ds_read_b128 v[{vBQ+4}:{vBQ+7}], v{T(1)} offset:{L_QB+128}')
        A(f'v_mov_b32 v{vMX}, 0xff800000')
        for i in range(8): A(f'v_mov_b32 v{vO+i}, 0')
        A('s_waitcnt lgkmcnt(0)')
        G.stamp(1)
        if QX and QX.get('skip'):
            self.L[:] = L_keep; self.vm[:] = vm_keep; self.done = done_keep; kiss[0] = kiss_keep; kcur[0] = kcur_keep; self.lidx = lidx_keep
            nxl[0] = kiss[0]; m0_ = nxl[0]
            for i in range(8): A(f'v_mov_b32 v{vBQ+i}, 0'); A(f'v_mov_b32 v{vO+i}, 0')
            A(f'v_mov_b32 v{vMX}, 0xff800000')
            A(f's_lshl_b32 s{sT}, s{sW}, 9'); A(f'v_and_b32 v{T(0)}, 7, v{vN}'); A(f'v_lshl_add_u32 v{T(0)}, v{vG}, 5, v{T(0)}'); A(f'v_lshlrev_b32 v{T(0)}, 2, v{T(0)}')
            A(f'v_add_u32 v{vA1}, s{sT}, v{T(0)}')
            A(f'v_mov_b32 v{T(1)}, {L_DUMMY - L_OP}'); A(f'v_cmp_gt_u32 vcc, 8, v{vN}'); A(f'v_cndmask_b32 v{vOPA}, v{T(1)}, v{vA1}, vcc')
            A(f'v_lshlrev_b32 v{vA3}, 3, v{vL}')
            A(f'v_mov_b32 v{vTG}, 0'); A(f'v_mov_b32 v{vTG+1}, 0')
            G.stamp(1)
        if self.kw.get('qonly'): A('s_branch L_fin')
        if self.stop == 'q':
            return self.finish_debug([vBQ + i for i in range(8)])

        wo_loads = []
        for i in range(32):
            r = aW + 4 * i
            wo_loads.append((i // 4 * 4096, f'buffer_load_dwordx4 a[{r}:{r+3}], v{vWO}, s[{rWO}:{rWO+3}], s{sT} offen offset:{(i%4)*1024} {wnt}', f'wo{i}'))
        def emit_wo(k0, k1):
            for k in range(k0, k1):
                so, s, tag = wo_loads[k]
                if self.kw.get('wotiny'): so = 0
                if k == k0 or k % 4 == 0: A(f's_mov_b32 s{sT}, {so}')
                G.vmop(s, tag)
        EX = self.kw.get('exact', False)
        def emit_role_loads(part):
            lab = f'L_rl{part}'
            if part < 16:
                if not EX: A(f's_cmp_eq_u32 s{sRole}, 1'); A(f's_cbranch_scc0 {lab}')
                s_ = part // 4; e3 = part % 4
                A(f's_mov_b32 s{sT}, {(32*s_ + 8*e3)*3584}')
                for eh in (0, 1):
                    e = e3 + 4 * eh
                    G.vmop(f'buffer_load_ushort v{vR + 8*s_ + e}, v{vWOFF1}, s[{rW1}:{rW1+3}], s{sT} offen offset:{eh*3584} {wnt}', 'w1g', not EX)
                if not EX: A(f'{lab}:')
            else:
                if not EX: A(f's_cmp_eq_u32 s{sRole}, 1'); A(f's_cbranch_scc0 {lab}a')
                for ii in range(4):
                    G.vmop(f'buffer_load_dwordx4 v[{vW2+4*ii}:{vW2+4*ii+3}], v{vWOFF2}, s[{rW2}:{rW2+3}], 0 offen offset:{ii*1024} {wnt}', 'w2l', not EX)
                G.vmop(f'buffer_load_ushort v{vB1}, v{vB1OFF}, s[{rB1}:{rB1+3}], 0 offen', 'b1l', not EX)
                if not EX:
                    A(f'{lab}a:')
                    A(f's_cmp_eq_u32 s{sRole}, 2'); A(f's_cbranch_scc0 {lab}b')
                G.vmop(f'buffer_load_ushort v{vXV}, v{vXOFF}, s[{rX}:{rX+3}], 0 offen', 'xv', not EX)
                G.vmop(f'buffer_load_ushort v{vB2V}, v{vB2OFF}, s[{rB2}:{rB2+3}], 0 offen', 'b2l', not EX)
                if not EX: A(f'{lab}b:')
        def kproc(t):
            if self.kw.get('novalu'): return
            D0 = vD + 8 * (t & 1); D1 = D0 + 4
            sA, sB_ = T(0), T(1)
            A(f'v_add_f32_dpp v{sA}, v{D0+1}, v{D0} row_ror:8 row_mask:0xf bank_mask:0x3')
            A(f'v_add_f32_dpp v{sB_}, v{D0+3}, v{D0+2} row_ror:8 row_mask:0xf bank_mask:0x3')
            A(f'v_add_f32_dpp v{sA}, v{D1}, v{D1+1} row_ror:8 row_mask:0xf bank_mask:0xc')
            A(f'v_add_f32_dpp v{sB_}, v{D1+2}, v{D1+3} row_ror:8 row_mask:0xf bank_mask:0xc')
            A(f'v_cvt_pk_bf16_f32 v{T(2)}, v{sA}, v{sB_}')
            A(f'v_max3_f32 v{vMX}, v{vMX}, v{sA}, v{sB_}')
            A(f'v_lshlrev_b32 v{T(3)}, 16, v{T(2)}'); A(f'v_and_b32 v{T(4)}, 0xffff0000, v{T(2)}')
            A(f'v_mul_f32 v{T(3)}, {SCALE}, v{T(3)}'); A(f'v_mul_f32 v{T(4)}, {SCALE}, v{T(4)}')
            A(f'v_cvt_pk_bf16_f32 v{vS+t}, v{T(3)}, v{T(4)}')
        if SL: slide_issue(-1)
        for t in range(32):
            u = t
            D0 = vD + 8 * (t & 1); D1 = D0 + 4
            r = (u % RING) * 16
            mf = [f'v_mfma_f32_16x16x32_bf16 v[{D0}:{D0+3}], a[{r}:{r+3}], v[{vBQ}:{vBQ+3}], 0',
                  f'v_mfma_f32_16x16x32_bf16 v[{D1}:{D1+3}], a[{r+4}:{r+7}], v[{vBQ}:{vBQ+3}], 0',
                  f'v_mfma_f32_16x16x32_bf16 v[{D0}:{D0+3}], a[{r+8}:{r+11}], v[{vBQ+4}:{vBQ+7}], v[{D0}:{D0+3}]',
                  f'v_mfma_f32_16x16x32_bf16 v[{D1}:{D1+3}], a[{r+12}:{r+15}], v[{vBQ+4}:{vBQ+7}], v[{D1}:{D1+3}]']
            if SL:
                for q in range(4):
                    j = 4 * u + q
                    G.vmwait_idx(G.lidx[j])
                    slide_issue(j, self.kw.get('sboost', 0) if (t == 31 and q == 3) else 0)
                    A(mf[q])
            else:
                G.vmwait(f'u{u}')
                for m_ in mf: A(m_)
                throttled_issue(u, u + (self.kw.get('boost', LOOK) if t >= 32 - self.kw.get('boostn', 1) else LOOK))
            if self.kw.get('atsp') and t < 16:
                A(f's_cmp_eq_u32 s{sAt}, {t}'); A(f's_cbranch_scc0 L_at{t}')
                G.vmop(f'buffer_atomic_add v{vONE}, v{vATO}, s[{rDBG}:{rDBG+3}], 0 offen', 'atom', True)
                A(f'L_at{t}:')
            wt0, wper = self.kw.get('wot', (2, 2))
            if not self.nowo and t >= wt0 and wper * (t - wt0) < 32: emit_wo(wper * (t - wt0), min(32, wper * (t - wt0 + 1)))
            if t in (7, 15, 23): G.stamp(16 + t // 8)
            if self.kw.get('st4'): A('s_memrealtime s[96:97]'); A('s_waitcnt lgkmcnt(0)'); A('v_writelane_b32 v252, s96, %d' % t)
            if t == 27 and not self.kw.get('nocnt'):
                A(f'v_mov_b32 v{T(5)}, 0')
                G.vmop(f'buffer_load_dword v{vCNT}, v{T(5)}, s[{rDBG}:{rDBG+3}], 0 offen sc1', 'cnt')
            if t > 0: kproc(t - 1)
        kproc(31)
        G.stamp(2)
        self.wave_allreduce('max', vMX, T(0))
        G.rbf(vM, vMX); A(f'v_mul_f32 v{vM}, {SCALE}, v{vM}'); G.rbf(vM)
        A(f'v_mul_f32 v{vNM}, {LOG2E}, v{vM}'); A(f'v_sub_f32 v{vNM}, 0, v{vNM}')
        A(f's_mov_b32 s{sT2}, {LOG2E}')
        A(f'v_mov_b32 v{vLS}, 0')
        for t in range(0 if self.kw.get('notrans') else 32):
            a, b = T(2 * (t & 1)), T(2 * (t & 1) + 1)
            A(f'v_lshlrev_b32 v{a}, 16, v{vS+t}'); A(f'v_and_b32 v{b}, 0xffff0000, v{vS+t}')
            A(f'v_fma_f32 v{a}, v{a}, s{sT2}, v{vNM}'); A(f'v_fma_f32 v{b}, v{b}, s{sT2}, v{vNM}')
            A(f'v_exp_f32 v{a}, v{a}'); A(f'v_exp_f32 v{b}, v{b}')
            A(f'v_add_f32 v{vLS}, v{vLS}, v{a}'); A(f'v_cvt_pk_bf16_f32 v{vS+t}, v{a}, v{b}'); A(f'v_add_f32 v{vLS}, v{vLS}, v{b}')
        self.wave_allreduce('add', vLS, T(0))
        A(f'v_mul_f32 v{vLS}, 0.125, v{vLS}') if False else A(f'v_mul_f32 v{vLS}, 0x3e000000, v{vLS}')
        A(f'v_mov_b32 v{T(0)}, v{vM}'); A(f'v_mov_b32 v{T(1)}, v{vLS}')
        if not self.kw.get('nocnt'):
            G.vmop(f'buffer_store_dwordx2 v[{T(0)}:{T(1)}], v{vMLp}, s[{rWS}:{rWS+3}], 0 offen sc1', 'mlst')
            G.vmwait('cnt')
        else: A('s_branch L_cnt_ok')
        A(f's_mov_b32 s{sSpin}, {self.spin}')
        A('L_cnt:')
        A(f'v_readfirstlane_b32 s{sT}, v{vCNT}')
        A(f's_cmp_ge_u32 s{sT}, 256'); A('s_cbranch_scc1 L_cnt_ok')
        A(f's_sub_u32 s{sSpin}, s{sSpin}, 1'); A('s_cbranch_scc1 L_cnt_ok')
        A(f'v_mov_b32 v{T(5)}, 0')
        A(f'buffer_load_dword v{vCNT}, v{T(5)}, s[{rDBG}:{rDBG+3}], 0 offen sc1'); A('s_waitcnt vmcnt(0)')
        A('s_branch L_cnt')
        A('L_cnt_ok:')
        if QX:
            A(f's_cmp_lt_u32 s2, 32'); A('s_cbranch_scc0 L_eup'); A(f's_cmp_eq_u32 s{sW}, 0'); A('s_cbranch_scc0 L_eup')
            A(f'v_mov_b32 v{T(0)}, {OOB}'); A(f'v_cmp_eq_u32 vcc, 0, v{vL}'); A(f'v_cndmask_b32 v{T(0)}, v{T(0)}, v{vQE}, vcc')
            G.vmop(f'buffer_store_dwordx2 v[{vTG}:{vTG+1}], v{T(0)}, s[{rWS}:{rWS+3}], 0 offen sc1', 'eup', True)
            A('L_eup:')
        G.stamp(3)
        dl = self.kw.get('delay')
        if dl:
            which, n = dl
            A(f's_cmp_lt_u32 s{sBH}, 8'); A('s_cbranch_scc%d L_nodelay' % (0 if which == 'slow' else 1))
            for _ in range(n): A('s_sleep 64')
            A('L_nodelay:')
        def vprep(t):
            if self.kw.get('novalu'): return
            for ab in range(2):
                bs = vB + 8 * (t & 1) + 4 * ab
                for jj in range(4):
                    A(f'v_perm_b32 v{bs+jj}, v{vS+t}, v{vS+t}, v{vSEL+4*ab+jj}')
        def ml_compute():
            A(f'v_mov_b32 v{T(10)}, v{vML0}')
            for r_ in (1, 2, 4, 8): A(f'v_max_f32_dpp v{T(10)}, v{T(10)}, v{T(10)} row_ror:{r_} row_mask:0xf bank_mask:0xf')
            A(f'v_sub_f32 v{T(11)}, v{vML0}, v{T(10)}'); A(f'v_mul_f32 v{T(11)}, {LOG2E}, v{T(11)}'); A(f'v_exp_f32 v{T(11)}, v{T(11)}')
            A(f'v_mul_f32 v{T(11)}, v{T(11)}, v{vML1}')
            for r_ in (1, 2, 4, 8): A(f'v_add_f32_dpp v{T(11)}, v{T(11)}, v{T(11)} row_ror:{r_} row_mask:0xf bank_mask:0xf')
            A(f'v_sub_f32 v{T(10)}, v{vM}, v{T(10)}'); A(f'v_mul_f32 v{T(10)}, {LOG2E}, v{T(10)}'); A(f'v_exp_f32 v{T(10)}, v{T(10)}')
            A(f'v_rcp_f32 v{T(12)}, v{T(11)}'); A(f'v_mul_f32 v{vF}, v{T(10)}, v{T(12)}')
            A(f'v_cmp_u_f32 vcc, v{T(11)}, v{T(11)}')
        vprep(0)
        for t in range(32):
            u = 32 + t
            r = (u % RING) * 16
            bs = vB + 8 * (t & 1)
            mf = [f'v_mfma_f32_16x16x32_bf16 v[{vO}:{vO+3}], a[{r}:{r+3}], v[{bs}:{bs+3}], v[{vO}:{vO+3}]',
                  f'v_mfma_f32_16x16x32_bf16 v[{vO+4}:{vO+7}], a[{r+4}:{r+7}], v[{bs}:{bs+3}], v[{vO+4}:{vO+7}]',
                  f'v_mfma_f32_16x16x32_bf16 v[{vO}:{vO+3}], a[{r+8}:{r+11}], v[{bs+4}:{bs+7}], v[{vO}:{vO+3}]',
                  f'v_mfma_f32_16x16x32_bf16 v[{vO+4}:{vO+7}], a[{r+12}:{r+15}], v[{bs+4}:{bs+7}], v[{vO+4}:{vO+7}]']
            if SL:
                for q in range(4):
                    j = 4 * u + q
                    G.vmwait_idx(G.lidx[j])
                    slide_issue(j)
                    A(mf[q])
            else:
                G.vmwait(f'u{u}')
                for m_ in mf: A(m_)
                throttled_issue(u, u + LOOKV)
            wt0, wper = self.kw.get('wot', (2, 2))
            if not self.nowo and wper * (32 + t - wt0) < 32: emit_wo(wper * (32 + t - wt0), min(32, wper * (32 + t - wt0 + 1)))
            if t < 17 and not self.norole: emit_role_loads(t)
            if t in (7, 15, 23): G.stamp(20 + t // 8)
            if self.kw.get('st4'): A('s_memrealtime s[96:97]'); A('s_waitcnt lgkmcnt(0)'); A('v_writelane_b32 v252, s96, %d' % (32 + t))
            if t == 27:
                A(f's_cmp_eq_u32 s{sRole}, 1'); A('s_cbranch_scc0 L_pk1')
                for s_ in range(4):
                    for jj in range(4):
                        A(f'v_perm_b32 v{vW1+4*s_+jj}, v{vR+8*s_+2*jj+1}, v{vR+8*s_+2*jj}, s{sPK}')
                A('L_pk1:')
            if t == 17 and not self.kw.get('nocnt'):
                G.vmop(f'buffer_load_dwordx2 v[{vML0}:{vML1}], v{vMLq}, s[{rWS}:{rWS+3}], 0 offen sc1', 'mlq')
            if t == 25 and not self.kw.get('nocnt'):
                G.vmwait('mlq')
                A(f's_mov_b32 s{sSpin}, {self.spin}')
                A('L_ml:')
                ml_compute()
                A('s_cbranch_vccz L_ml_ok')
                A(f's_sub_u32 s{sSpin}, s{sSpin}, 1'); A('s_cbranch_scc1 L_ml_ok')
                A(f'buffer_load_dwordx2 v[{vML0}:{vML1}], v{vMLq}, s[{rWS}:{rWS+3}], 0 offen sc1'); A('s_waitcnt vmcnt(0)')
                A('s_branch L_ml')
                A('L_ml_ok:')
            if t < 31: vprep(t + 1)
        G.stamp(4)
        if self.kw.get('quit'): A('s_branch L_fin')
        for i in range(4): A(f'v_add_f32_dpp v{T(i)}, v{vO+4+i}, v{vO+i} row_ror:8 row_mask:0xf bank_mask:0xf')
        for i in range(4): A(f'v_mul_f32 v{T(i)}, v{vF}, v{T(i)}')
        for i in range(4): A(f'ds_write_b32 v{vOPA}, v{T(i)} offset:{L_OP + 32*i}')
        A(f's_lshl_b32 s{sT}, s{sW}, 9'); A(f'v_lshlrev_b32 v{T(10)}, 2, v{vL}'); A(f'v_add_u32 v{T(10)}, s{sT}, v{T(10)}')
        A(f'v_lshrrev_b32 v{T(11)}, 3, v{vN}'); A(f'v_lshlrev_b32 v{T(11)}, 8, v{T(11)}'); A(f'v_lshl_add_u32 v{T(11)}, v{vG}, 6, v{T(11)}'); A(f'v_add_u32 v{T(11)}, s{sT}, v{T(11)}')
        A('s_waitcnt lgkmcnt(0)'); A('s_barrier')
        for w in range(4): A(f'ds_read_b64 v[{T(2*w+2)}:{T(2*w+3)}], v{vA3} offset:{L_OP + 512*w}')
        A('s_waitcnt lgkmcnt(0)')
        A(f'v_pk_add_f32 v[{T(2)}:{T(3)}], v[{T(2)}:{T(3)}], v[{T(4)}:{T(5)}]'); A(f'v_pk_add_f32 v[{T(6)}:{T(7)}], v[{T(6)}:{T(7)}], v[{T(8)}:{T(9)}]')
        A(f'v_pk_add_f32 v[{T(2)}:{T(3)}], v[{T(2)}:{T(3)}], v[{T(6)}:{T(7)}]')
        A(f'v_cvt_pk_bf16_f32 v{T(4)}, v{T(2)}, v{T(3)}')
        A(f'v_lshlrev_b32 v{T(5)}, 16, v{T(4)}'); A(f'v_and_b32 v{T(6)}, 0xffff0000, v{T(4)}')
        A(f'v_sub_f32 v{T(5)}, v{T(2)}, v{T(5)}'); A(f'v_sub_f32 v{T(6)}, v{T(3)}, v{T(6)}')
        A(f'ds_write_b32 v{T(10)}, v{T(4)} offset:{L_OH}')
        A(f'v_cvt_pk_bf16_f32 v{T(5)}, v{T(5)}, v{T(6)}')
        A(f'ds_write_b32 v{T(10)}, v{T(5)} offset:{L_OH+256}')
        A('s_waitcnt lgkmcnt(0)')
        for k in range(4): A(f'ds_read_b128 v[{vXP+4*k}:{vXP+4*k+3}], v{T(11)} offset:{L_OH+16*k}')
        A('s_waitcnt lgkmcnt(0)')
        delta_steps(32, vDQ, None)
        for i in range(4): A(f'v_add_f32_dpp v{T(i)}, v{vDQ+i}, v{vDQ+i} row_ror:8 row_mask:0xf bank_mask:0xf')
        G.vmop(f'buffer_store_dwordx4 v[{T(0)}:{T(3)}], v{vC1}, s[{rWS}:{rWS+3}], 0 offen sc1', 'c1st')
        G.stamp(5)
        A(f's_cmp_eq_u32 s{sRole}, 1'); A('s_cbranch_scc1 L_m1')
        A(f's_cmp_eq_u32 s{sRole}, 2'); A('s_cbranch_scc0 L_fin')
        A(f's_cmp_eq_u32 s{sW}, 0'); A('s_cbranch_scc0 L_fin')
        def gather_reduce(nl, voff, lab):
            A(f's_mov_b32 s{sSpin}, {self.spin}')
            A(f'{lab}:')
            for k in range(nl):
                if k % 4 == 0: A(f's_mov_b32 s{sT}, {(k//4)*4096}')
                A(f'buffer_load_dwordx4 v[{vR+4*k}:{vR+4*k+3}], v{voff}, s[{rWS}:{rWS+3}], s{sT} offen offset:{(k%4)*1024} sc1')
            k = 1
            A(f's_waitcnt vmcnt({nl-2})')
            for c in (0, 2): A(f'v_pk_add_f32 v[{T(c)}:{T(c+1)}], v[{vR+c}:{vR+c+1}], v[{vR+4+c}:{vR+4+c+1}]')
            for k in range(2, nl):
                A(f's_waitcnt vmcnt({nl-1-k})')
                for c in (0, 2): A(f'v_pk_add_f32 v[{T(c)}:{T(c+1)}], v[{T(c)}:{T(c+1)}], v[{vR+4*k+c}:{vR+4*k+c+1}]')
            A(f'v_cmp_u_f32 vcc, v{T(0)}, v{T(1)}'); A(f'v_cmp_u_f32 s[{sM}:{sM+1}], v{T(2)}, v{T(3)}')
            A(f's_or_b64 vcc, vcc, s[{sM}:{sM+1}]')
            A(f's_cbranch_vccz {lab}_ok')
            A(f's_sub_u32 s{sSpin}, s{sSpin}, 1'); A(f's_cbranch_scc0 {lab}')
            A(f'{lab}_ok:')
            A(f'v_permlane32_swap_b32 v{T(0)}, v{T(2)}'); A(f'v_permlane32_swap_b32 v{T(1)}, v{T(3)}')
            A(f'v_add_f32 v{T(0)}, v{T(0)}, v{T(2)}'); A(f'v_add_f32 v{T(1)}, v{T(1)}, v{T(3)}')
            A(f'v_permlane16_swap_b32 v{T(0)}, v{T(1)}'); A(f'v_add_f32 v{T(0)}, v{T(0)}, v{T(1)}')
            A(f'v_add_f32_dpp v{T(0)}, v{T(0)}, v{T(0)} row_ror:4 row_mask:0xf bank_mask:0xf')
            A(f'v_add_f32_dpp v{T(0)}, v{T(0)}, v{T(0)} row_ror:8 row_mask:0xf bank_mask:0xf')
        A(f'v_lshlrev_b32 v{vXV}, 16, v{vXV}'); A(f'v_lshlrev_b32 v{vB2V}, 16, v{vB2V}')
        gather_reduce(8, vHOFF, 'L_g1')
        G.stamp(6)
        G.rbf(T(0)); A(f'v_add_f32 v{T(0)}, v{vXV}, v{T(0)}'); G.rbf(vHV, T(0))
        A(f'buffer_store_dword v{vHV}, v{vRS}, s[{rWS}:{rWS+3}], 0 offen sc1')
        G.stamp(7)
        gather_reduce(7, vC2OFF, 'L_g2')
        G.stamp(8)
        G.rbf(T(0)); A(f'v_add_f32 v{T(0)}, v{vB2V}, v{T(0)}'); G.rbf(T(0)); A(f'v_add_f32 v{T(0)}, v{vHV}, v{T(0)}')
        A(f'v_cvt_pk_bf16_f32 v{T(0)}, v{T(0)}, v{T(0)}')
        A(f'buffer_store_short v{T(0)}, v{vOUTA}, s[{rOUT}:{rOUT+3}], 0 offen')
        A('s_branch L_fin')
        A('L_m1:')
        A(f's_lshl_b32 s{sT}, s{sW}, 9'); A(f'v_lshrrev_b32 v{T(0)}, 5, v{vL}'); A(f'v_lshlrev_b32 v{T(0)}, 8, v{T(0)}'); A(f'v_and_b32 v{T(1)}, 31, v{vL}')
        A(f'v_lshl_add_u32 v{T(0)}, v{T(1)}, 3, v{T(0)}'); A(f'v_add_u32 v{vA1}, s{sT}, v{T(0)}')
        A(f'v_and_b32 v{T(0)}, 1, v{vN}'); A(f'v_lshlrev_b32 v{T(0)}, 8, v{T(0)}'); A(f'v_lshl_add_u32 v{T(0)}, v{vG}, 4, v{T(0)}'); A(f'v_add_u32 v{vA2}, s{sT}, v{T(0)}')
        A(f's_lshl_b32 s{sT}, s{sW}, 7'); A(f'v_lshlrev_b32 v{T(0)}, 2, v{vN}'); A(f'v_add_u32 v{vA3}, s{sT}, v{T(0)}')
        A(f'v_lshrrev_b32 v{T(0)}, 3, v{vN}'); A(f'v_lshlrev_b32 v{T(0)}, 6, v{T(0)}'); A(f'v_and_b32 v{T(1)}, 3, v{vN}'); A(f'v_lshl_add_u32 v{T(1)}, v{vG}, 2, v{T(1)}')
        A(f'v_lshl_add_u32 v{vA4}, v{T(1)}, 2, v{T(0)}')
        A(f'v_lshlrev_b32 v{vB1}, 16, v{vB1}')
        A(f's_mov_b32 s{sSpin}, {self.spin}')
        H = [vR + i for i in range(16)]
        A('L_g3:')
        for kk in range(4):
            A(f's_add_u32 s{sT}, s{sW}, {kk}'); A(f's_and_b32 s{sT}, s{sT}, 3'); A(f's_lshl_b32 s{sT}, s{sT}, 9')
            A(f'buffer_load_dwordx4 v[{vR+4*kk}:{vR+4*kk+3}], v{vHOFF}, s[{rWS}:{rWS+3}], s{sT} offen sc1')
        A('s_waitcnt vmcnt(0)')
        A(f'v_pk_add_f32 v[{T(0)}:{T(1)}], v[{H[0]}:{H[1]}], v[{H[2]}:{H[3]}]')
        for k in range(2, 8): A(f'v_pk_add_f32 v[{T(0)}:{T(1)}], v[{T(0)}:{T(1)}], v[{H[2*k]}:{H[2*k+1]}]')
        A(f'v_add_f32 v{T(0)}, v{T(0)}, v{T(1)}')
        A(f'v_cmp_u_f32 vcc, v{T(0)}, v{T(0)}')
        A('s_cbranch_vccz L_g3_ok')
        A(f's_sub_u32 s{sSpin}, s{sSpin}, 1'); A('s_cbranch_scc0 L_g3')
        A('L_g3_ok:')
        G.stamp(6)
        self.half_allreduce('add', T(0), T(1))
        A(f'v_mul_f32 v{T(0)}, 0x3b000000, v{T(0)}')
        A(f'v_sub_f32 v{T(2)}, v{H[0]}, v{T(0)}'); A(f'v_mul_f32 v{T(3)}, v{T(2)}, v{T(2)}')
        A(f'v_sub_f32 v{T(4)}, v{H[1]}, v{T(0)}'); A(f'v_mul_f32 v{T(5)}, v{T(4)}, v{T(4)}')
        for k in range(2, 16, 2):
            A(f'v_sub_f32 v{T(2)}, v{H[k]}, v{T(0)}'); A(f'v_sub_f32 v{T(4)}, v{H[k+1]}, v{T(0)}')
            A(f'v_fmac_f32 v{T(3)}, v{T(2)}, v{T(2)}'); A(f'v_fmac_f32 v{T(5)}, v{T(4)}, v{T(4)}')
        A(f'v_add_f32 v{T(3)}, v{T(3)}, v{T(5)}')
        self.half_allreduce('add', T(3), T(1))
        self.ln_finish(T(0), T(3), T(8), T(9), 1.0 / 512)
        Y = H[0:4]
        self.ln_apply(Y, T(8), T(9))
        A(f'v_cvt_pk_bf16_f32 v{T(4)}, v{Y[0]}, v{Y[1]}'); A(f'v_cvt_pk_bf16_f32 v{T(5)}, v{Y[2]}, v{Y[3]}')
        A(f'ds_write_b64 v{vA1}, v[{T(4)}:{T(5)}] offset:{L_YB}')
        A('s_waitcnt lgkmcnt(0)')
        for s_ in range(4): A(f'ds_read_b128 v[{vXP+4*s_}:{vXP+4*s_+3}], v{vA2} offset:{L_YB+64*s_}')
        for s_ in range(4):
            A(f's_waitcnt lgkmcnt({3-s_})')
            c = '0' if s_ == 0 else f'v[{vDQ}:{vDQ+3}]'
            A(f'v_mfma_f32_16x16x32_bf16 v[{vDQ}:{vDQ+3}], v[{vXP+4*s_}:{vXP+4*s_+3}], v[{vW1+4*s_}:{vW1+4*s_+3}], {c}')
        A(f'ds_write_b32 v{vA3}, v{vDQ} offset:{L_TP}'); A(f'ds_write_b32 v{vA3}, v{vDQ+1} offset:{L_TP+64}')
        A('s_waitcnt lgkmcnt(0)'); A('s_barrier')
        for w in range(4): A(f'ds_read_b32 v{T(w)}, v{vA4} offset:{L_TP+128*w}')
        A('s_waitcnt lgkmcnt(0)')
        A(f'v_add_f32 v{T(0)}, v{T(0)}, v{T(1)}'); A(f'v_add_f32 v{T(2)}, v{T(2)}, v{T(3)}'); A(f'v_add_f32 v{T(0)}, v{T(0)}, v{T(2)}')
        G.rbf(T(0)); A(f'v_add_f32 v{T(0)}, v{vB1}, v{T(0)}'); G.rbf(T(0))
        import struct, math
        f2u = lambda f: struct.unpack('<I', struct.pack('<f', f))[0]
        K0 = -2 * math.log2(math.e) * math.sqrt(2 / math.pi); K1 = K0 * 0.044715
        A(f'v_mul_f32 v{T(1)}, v{T(0)}, v{T(0)}'); A(f'v_mov_b32 v{T(2)}, {hex(f2u(K0))}'); A(f'v_fmac_f32 v{T(2)}, {hex(f2u(K1))}, v{T(1)}')
        A(f'v_mul_f32 v{T(1)}, v{T(0)}, v{T(2)}'); A(f'v_exp_f32 v{T(1)}, v{T(1)}'); A(f'v_add_f32 v{T(1)}, 1.0, v{T(1)}'); A(f'v_rcp_f32 v{T(1)}, v{T(1)}')
        A(f'v_mul_f32 v{T(0)}, v{T(0)}, v{T(1)}'); A(f'v_cvt_pk_bf16_f32 v{vGA}, v{T(0)}, v{T(0)}')
        for ii in range(4):
            bs = vB + 4 * ii
            for jj in range(4):
                A(f'v_and_b32_dpp v{bs+jj}, v{vGA}, v{vMASK+jj} quad_perm:[{ii},{ii},{ii},{ii}] row_mask:0xf bank_mask:0xf')
        for ii in range(4):
            bs = vB + 4 * ii
            c = '0' if ii == 0 else f'v[{vDQ}:{vDQ+3}]'
            A(f'v_mfma_f32_16x16x32_bf16 v[{vDQ}:{vDQ+3}], v[{vW2+4*ii}:{vW2+4*ii+3}], v[{bs}:{bs+3}], {c}')
        A(f'buffer_store_dwordx4 v[{vDQ}:{vDQ+3}], v{vRS}, s[{rWS}:{rWS+3}], 0 offen sc1')
        G.stamp(7)
        A('L_fin:')
        if self.diag:
            A(f's_lshl_b32 s{sT}, s2, 2'); A(f's_add_u32 s{sT}, s{sT}, s{sW}'); A(f's_lshl_b32 s{sT}, s{sT}, 7'); A(f's_add_u32 s{sT}, s{sT}, {WS_DIAG}')
            A('s_memrealtime s[96:97]'); A('s_getreg_b32 s98, hwreg(HW_REG_XCC_ID)'); A('s_waitcnt lgkmcnt(0)')
            A('v_writelane_b32 v251, s96, 14'); A('v_writelane_b32 v251, s98, 15')
            A(f'v_lshlrev_b32 v{T(0)}, 2, v{vL}'); A(f'v_add_u32 v{T(0)}, s{sT}, v{T(0)}')
            A(f'v_mov_b32 v{T(1)}, {OOB}'); A(f'v_cmp_gt_u32 vcc, 32, v{vL}'); A(f'v_cndmask_b32 v{T(0)}, v{T(1)}, v{T(0)}, vcc')
            A(f'buffer_store_dword v251, v{T(0)}, s[{rWS}:{rWS+3}], 0 offen')
            if self.kw.get('st3') or self.kw.get('st4'):
                A(f's_lshl_b32 s{sT}, s2, 2'); A(f's_add_u32 s{sT}, s{sT}, s{sW}'); A(f's_lshl_b32 s{sT}, s{sT}, 8'); A(f's_add_u32 s{sT}, s{sT}, {WS_DIAG + 0x20000}')
                A(f'v_lshlrev_b32 v{T(0)}, 2, v{vL}'); A(f'v_add_u32 v{T(0)}, s{sT}, v{T(0)}')
                A(f'buffer_store_dword v252, v{T(0)}, s[{rWS}:{rWS+3}], 0 offen')
        A('L_end:')
        A('s_endpgm')
        return self.wrap()

    def ln_finish(self, mean, ss, om, orstd, inv_n):
        A = self.A
        import struct
        f2u = lambda f: struct.unpack('<I', struct.pack('<f', f))[0]
        A(f'v_mul_f32 v{ss}, {hex(f2u(inv_n))}, v{ss}'); self.rbf(ss)
        A(f'v_add_f32 v{ss}, {hex(f2u(1e-5))}, v{ss}'); self.rbf(ss)
        A(f'v_sqrt_f32 v{ss}, v{ss}'); self.rbf(ss)
        A(f'v_rcp_f32 v{orstd}, v{ss}')
        self.rbf(om, mean)
    def ln_stats(self, X, om, orstd, t0, t1, inv_n, red):
        A = self.A
        import struct
        f2u = lambda f: struct.unpack('<I', struct.pack('<f', f))[0]
        A(f'v_add_f32 v{t0}, v{X[0]}, v{X[1]}')
        for x in X[2:]: A(f'v_add_f32 v{t0}, v{t0}, v{x}')
        red('add', t0, t1)
        A(f'v_mul_f32 v{t0}, {hex(f2u(inv_n))}, v{t0}')
        A(f'v_sub_f32 v{t1}, v{X[0]}, v{t0}'); A(f'v_mul_f32 v{orstd}, v{t1}, v{t1}')
        for x in X[1:]:
            A(f'v_sub_f32 v{t1}, v{x}, v{t0}'); A(f'v_fmac_f32 v{orstd}, v{t1}, v{t1}')
        red('add', orstd, t1)
        A(f'v_mov_b32 v{t1}, v{orstd}')
        self.ln_finish(t0, t1, om, orstd, inv_n)
    def ln_apply(self, X, m, rstd):
        A = self.A
        for k in range(0, len(X), 2):
            A(f'v_sub_f32 v{X[k]}, v{X[k]}, v{m}'); A(f'v_sub_f32 v{X[k+1]}, v{X[k+1]}, v{m}')
            A(f'v_cvt_pk_bf16_f32 v{X[k+1]}, v{X[k]}, v{X[k+1]}')
            A(f'v_lshlrev_b32 v{X[k]}, 16, v{X[k+1]}'); A(f'v_and_b32 v{X[k+1]}, 0xffff0000, v{X[k+1]}')
            A(f'v_mul_f32 v{X[k]}, v{X[k]}, v{rstd}'); A(f'v_mul_f32 v{X[k+1]}, v{X[k+1]}, v{rstd}')

    def finish_debug(self, regs):
        raise NotImplementedError

    def wrap(self):
        body = hz.fix(self.L)
        H = []
        H.append(f'; @launch grid=(256,1,1) block=(256,1,1) lds={LDS_SIZE}')
        H.append('.amdgcn_target "amdgcn-amd-amdhsa--gfx950"')
        H.append('.text'); H.append(f'.globl {KN}'); H.append('.p2align 8'); H.append(f'.type {KN},@function'); H.append(f'{KN}:')
        H += body
        H.append('.section .rodata,"a"'); H.append('.p2align 6'); H.append(f'.amdhsa_kernel {KN}')
        H.append('  .amdhsa_next_free_vgpr 512'); H.append('  .amdhsa_next_free_sgpr 102'); H.append('  .amdhsa_accum_offset 256')
        H.append('  .amdhsa_group_segment_fixed_size 0'); H.append('  .amdhsa_kernarg_size 104'); H.append('  .amdhsa_user_sgpr_count 2')
        H.append('  .amdhsa_user_sgpr_kernarg_segment_ptr 1'); H.append('  .amdhsa_system_sgpr_workgroup_id_x 1')
        H.append('.end_amdhsa_kernel')
        return '\n'.join(H) + '\n'

if __name__ == '__main__':
    import ast
    kw = eval('dict(%s)' % (sys.argv[2] if len(sys.argv) > 2 else ''))
    open(sys.argv[1], 'w').write(Gen(**kw).gen())
```

```python
import sys
import hz
KN = 'sequential_preLN__mha_block_cached__mixer_channel_mlp__decode_kernel'

WS_ML = 0x0
WS_H  = 0x2000
WS_PROG = 0x4000
WS_C1 = 0x10000
WS_C2 = 0x90000
WS_SIZE = 0x100000
WS_DIAG = 0x100000
WS_QX = 0x140000
QX_STR = 0x4400
L_XN2 = 7168
OOB = 0x7ff00000

L_XN = 0
L_QP = 4096
L_QB = 6144
L_OP = 7168
L_OH = 9216
L_YB = 11264
L_TP = 13312
L_DUMMY = 13824
L_LIM = 15360
L_DUM2 = 15616
LDS_SIZE = 16384

SCALE = 0x3DB504F3
LOG2E = 0x3FB8AA3B

class Gen:
    def __init__(self, diag=False, nt='nt', wnt='', spin=1 << 15, ring=8, pre=6, stop=None, nowo=False, nowq=False, norole=False, **kw):
        self.L = []
        self.vm = []
        self.done = -1
        self.diag = diag; self.nt = nt; self.wnt = wnt; self.spin = spin
        self.ring = ring; self.pre = pre; self.stop = stop
        self.nstamp = 0; self.n3 = 0; self.lidx = {}
        self.nowo = nowo; self.nowq = nowq; self.norole = norole; self.kw = kw
    def A(self, s):
        if self.kw.get('nomfma') and s.startswith('v_mfma'): return
        self.L.append('  ' + s if not s.endswith(':') else s)
    def vmop(self, s, tag, optional=False):
        self.A(s); self.vm.append((tag, optional))
        if self.kw.get('st3') and self.n3 < 64 and not optional:
            self.A('s_memrealtime s[96:97]'); self.A('s_waitcnt lgkmcnt(0)'); self.A('v_writelane_b32 v252, s96, %d' % self.n3); self.n3 += 1
        out = len(self.vm) - 1 - self.done
        assert out <= 63, ('too many outstanding', out, tag)
    def vmwait(self, tag):
        idx = max(i for i, (t, o) in enumerate(self.vm) if t == tag)
        n = sum(1 for (t, o) in self.vm[idx + 1:] if not o)
        assert n <= 63
        self.A('s_waitcnt vmcnt(%d)' % n)
        self.done = max(self.done, idx)
    def vmwait_idx(self, idx):
        if idx <= self.done: return
        n = sum(1 for (t, o) in self.vm[idx + 1:] if not o)
        assert n <= 63
        self.A('s_waitcnt vmcnt(%d)' % n)
        self.done = max(self.done, idx)
    def vmdrain(self):
        self.A('s_waitcnt vmcnt(0)'); self.done = len(self.vm) - 1
    def stamp(self, k):
        if self.diag:
            self.A('s_memrealtime s[96:97]'); self.A('s_waitcnt lgkmcnt(0)')
            self.A('v_mov_b32 v250, s96'); self.A('v_writelane_b32 v251, s96, %d' % k)

    def srd(self, r, lo, hi, size, off=None):
        A = self.A
        if off is None:
            A(f's_mov_b32 s{r}, s{lo}'); A(f's_and_b32 s{r+1}, s{hi}, 0xffff')
        else:
            A(f's_add_u32 s{r}, s{lo}, {off}'); A(f's_addc_u32 s{r+1}, s{hi}, 0'); A(f's_and_b32 s{r+1}, s{r+1}, 0xffff')
        A(f's_mov_b32 s{r+2}, {size}'); A(f's_mov_b32 s{r+3}, 0x20000')

    def wave_allreduce(self, op, v, t):
        A = self.A
        for r in (1, 2, 4, 8):
            A(f'v_{op}_f32_dpp v{v}, v{v}, v{v} row_ror:{r} row_mask:0xf bank_mask:0xf')
        A(f'v_mov_b32 v{t}, v{v}'); A(f'v_permlane16_swap_b32 v{v}, v{t}'); A(f'v_{op}_f32 v{v}, v{v}, v{t}')
        A(f'v_mov_b32 v{t}, v{v}'); A(f'v_permlane32_swap_b32 v{v}, v{t}'); A(f'v_{op}_f32 v{v}, v{v}, v{t}')
    def half_allreduce(self, op, v, t):
        A = self.A
        for r in (1, 2, 4, 8):
            A(f'v_{op}_f32_dpp v{v}, v{v}, v{v} row_ror:{r} row_mask:0xf bank_mask:0xf')
        A(f'v_mov_b32 v{t}, v{v}'); A(f'v_permlane16_swap_b32 v{v}, v{t}'); A(f'v_{op}_f32 v{v}, v{v}, v{t}')
    def rbf(self, v, src=None):
        A = self.A
        s = v if src is None else src
        A(f'v_cvt_pk_bf16_f32 v{v}, v{s}, v{s}'); A(f'v_and_b32 v{v}, 0xffff0000, v{v}')

    def gen(self):
        A = self.A; G = self
        RING = self.ring; nt = self.nt; wnt = self.wnt
        sW = 3
        pX, pK, pV, pWQ, pWO, pW1, pB1, pW2, pB2, pOUT, pDBG, pWS = 4, 6, 8, 10, 12, 16, 18, 20, 22, 24, 26, 28
        rK, rV, rWQ, rWO, rWS, rDBG, rX, rW1, rW2, rB1, rB2, rOUT = 32, 36, 40, 44, 48, 52, 56, 60, 64, 68, 72, 76
        sOff, sT, sH, sB, sS, sBH, sRole, sSpin, sT2, sU = 80, 81, 82, 83, 84, 85, 86, 87, 88, 89
        sM = 90
        sPK = 92
        sAt = 93
        vL, vN, vG = 1, 2, 3
        vK, vV, vWQ, vWO, vC1, vMLp, vMLq, vRS = 4, 5, 6, 7, 8, 9, 10, 11
        vSEL = 12
        vMASK = 20
        vBQ = 24
        vS = 32
        vD = 64
        vO = 80
        vB = 88
        vXP = 104
        vDQ = 120
        vT = 124
        vMX, vLS, vM, vNM, vF, vML0, vML1, vCNT = 140, 141, 142, 143, 208, 210, 211, 212
        vW1 = 144
        vW2 = 160
        vR = 176
        vB1, vXV, vB2V, vHV, vOPA, vSENT, vOUTA = 213, 214, 215, 216, 217, 220, 218
        vA1, vA2, vA3, vA4 = 224, 225, 226, 227
        vXR = 228
        vWOFF1, vWOFF2, vB1OFF, vHOFF, vGA = 232, 233, 234, 235, 236
        vONE, vATO = 237, 238
        vXOFF, vB2OFF, vC2OFF = 239, 240, 241
        vPROG = (242, 209); vPUBO, vPRO, vLIMW, vLIMR, vLIM, vPV, vPT, vPT2, vWIN = 243, 244, 245, 246, 247, 248, 249, 219, 253
        vSNAP, vEFF = 254, 255
        sLim, sSp2 = 94, 95
        THR = self.kw.get('thr'); CHK = self.kw.get('chk', 2); NREP = self.kw.get('nrep', 32)
        aW = 128
        T = lambda i: vT + i

        A('s_cmp_ge_u32 s2, 256'); A('s_cbranch_scc1 L_end')
        if self.kw.get('wgx'): A('s_xor_b32 s2, s2, %d' % self.kw['wgx'])
        if self.kw.get('hperm'):
            pc = sum(v << (4 * i) for i, v in enumerate(self.kw['hperm']))
            A('s_and_b32 s3, s2, 7'); A('s_lshl_b32 s3, s3, 2'); A('s_lshr_b32 s3, %d, s3' % pc); A('s_and_b32 s3, s3, 7')
            A('s_andn2_b32 s2, s2, 7'); A('s_or_b32 s2, s2, s3')
        A(f's_load_dwordx16 s[4:19], s[0:1], 0'); A('s_load_dwordx8 s[20:27], s[0:1], 64'); A('s_load_dwordx2 s[28:29], s[0:1], 96')
        if self.diag:
            A('v_mov_b32 v251, 0')
            G.stamp(0)
        A(f'v_and_b32 v{vL}, 63, v0'); A(f'v_lshrrev_b32 v{T(0)}, 6, v0'); A(f'v_and_b32 v{vN}, 15, v0')
        A(f'v_readfirstlane_b32 s{sW}, v{T(0)}')
        A(f'v_lshrrev_b32 v{vG}, 4, v{vL}')
        A(f's_and_b32 s{sH}, s2, 31'); A(f's_lshr_b32 s{sB}, s2, 5'); A(f's_and_b32 s{sB}, s{sB}, 1'); A(f's_lshr_b32 s{sS}, s2, 6'); A(f's_and_b32 s{sBH}, s2, 63')
        if self.kw.get('hmap') == 'c4':
            A(f's_and_b32 s{sT}, s2, 7'); A(f's_lshl_b32 s{sT}, s{sT}, 2'); A(f's_bfe_u32 s{sH}, s2, 0x20003'); A(f's_or_b32 s{sH}, s{sH}, s{sT}')
            A(f's_lshl_b32 s{sT}, s{sB}, 5'); A(f's_or_b32 s{sBH}, s{sH}, s{sT}')
        if self.kw.get('only') is not None:
            kind, val = self.kw['only']
            if kind == 'cls': A(f's_and_b32 s{sT}, s{sH}, 3'); A(f's_cmp_eq_u32 s{sT}, {val}'); A('s_cbranch_scc0 L_end')
            if kind == 'lt': A(f's_cmp_lt_u32 s2, {val}'); A('s_cbranch_scc0 L_end')
        A(f's_lshl_b32 s{sT}, s{sW}, 12')
        A(f'v_lshrrev_b32 v{T(0)}, 1, v{vN}'); A(f'v_lshlrev_b32 v{T(0)}, 8, v{T(0)}')
        A(f'v_and_b32 v{T(1)}, 1, v{vN}'); A(f'v_lshl_add_u32 v{T(0)}, v{T(1)}, 6, v{T(0)}')
        A(f'v_lshl_add_u32 v{T(0)}, v{vG}, 4, v{T(0)}'); A(f'v_add_u32 v{vK}, s{sT}, v{T(0)}')
        A(f'v_lshlrev_b32 v{T(0)}, 9, v{vG}'); A(f'v_lshl_add_u32 v{T(0)}, v{vN}, 4, v{T(0)}'); A(f'v_add_u32 v{vV}, s{sT}, v{T(0)}')
        A(f's_lshl_b32 s{sT}, s{sW}, 20'); A(f'v_lshlrev_b32 v{T(0)}, 18, v{vG}'); A(f'v_lshl_add_u32 v{T(0)}, v{vN}, 4, v{T(0)}'); A(f'v_add_u32 v{vWQ}, s{sT}, v{T(0)}')
        QX = self.kw.get('qx')
        vTG, vEW, vQE, vQS, vQL = 144, 146, 148, 149, 150
        sQ, sJ = 98, 99
        if QX:
            A(f's_lshr_b32 s{sJ}, s2, 5')
            A(f's_lshl_b32 s{sT}, s{sW}, 17'); A(f'v_lshlrev_b32 v{T(0)}, 15, v{vG}'); A(f'v_lshl_add_u32 v{T(0)}, v{vN}, 4, v{T(0)}'); A(f'v_add_u32 v{vWQ}, s{sT}, v{T(0)}')
            A(f's_mul_i32 s{sT}, s{sH}, {QX_STR}'); A(f's_add_u32 s{sT}, s{sT}, {WS_QX}'); A(f'v_mov_b32 v{vQE}, s{sT}')
            A(f's_lshl_b32 s{sT2}, s{sJ}, 11'); A(f's_add_u32 s{sT2}, s{sT2}, s{sT}'); A(f's_add_u32 s{sT2}, s{sT2}, 1024')
            A(f's_lshl_b32 s{sQ}, s{sW}, 9'); A(f's_add_u32 s{sT2}, s{sT2}, s{sQ}')
            A(f'v_lshlrev_b32 v{T(0)}, 4, v{vL}'); A(f'v_add_u32 v{T(1)}, s{sT2}, v{T(0)}'); A(f'v_mov_b32 v{T(3)}, {OOB}')
            A(f'v_cmp_gt_u32 vcc, 32, v{vL}'); A(f'v_cndmask_b32 v{vQS}, v{T(3)}, v{T(1)}, vcc')
            A(f's_lshl_b32 s{sT2}, s{sW}, 12'); A(f's_add_u32 s{sT2}, s{sT2}, s{sT}'); A(f's_lshl_b32 s{sQ}, s{sB}, 10'); A(f's_add_u32 s{sT2}, s{sT2}, s{sQ}')
            A(f's_add_u32 s{sT2}, s{sT2}, 1024'); A(f'v_add_u32 v{vQL}, s{sT2}, v{T(0)}')
            A(f's_mov_b32 s{sQ}, 0')
        A(f's_lshl_b32 s{sT}, s{sB}, 10'); A(f'v_lshlrev_b32 v{T(2)}, 4, v{vL}'); A(f'v_add_u32 v{T(2)}, s{sT}, v{T(2)}')
        if QX:
            A(f'v_lshrrev_b32 v{T(2)}, 5, v{vL}'); A(f'v_lshlrev_b32 v{T(2)}, 10, v{T(2)}'); A(f'v_and_b32 v{T(3)}, 31, v{vL}'); A(f'v_lshl_add_u32 v{T(2)}, v{T(3)}, 5, v{T(2)}')
        A(f's_lshl_b32 s{sT}, s{sB}, 5'); A(f's_lshl_b32 s{sT2}, s{sW}, 3'); A(f's_add_u32 s{sT}, s{sT}, s{sT2}')
        A(f's_lshl_b32 s{sT}, s{sT}, 13')
        A(f's_lshl_b32 s{sT2}, s{sH}, 2'); A(f's_add_u32 s{sT2}, s{sT2}, s{sS}'); A(f's_lshl_b32 s{sT2}, s{sT2}, 6')
        A(f's_add_u32 s{sT}, s{sT}, s{sT2}'); A(f's_add_u32 s{sT}, s{sT}, {WS_C1}')
        A(f'v_lshlrev_b32 v{T(0)}, 1, v{vG}'); A(f'v_lshrrev_b32 v{T(1)}, 2, v{vN}'); A(f'v_add_u32 v{T(0)}, v{T(0)}, v{T(1)}')
        A(f'v_lshlrev_b32 v{T(0)}, 13, v{T(0)}'); A(f'v_and_b32 v{T(1)}, 3, v{vN}'); A(f'v_lshl_add_u32 v{T(0)}, v{T(1)}, 4, v{T(0)}')
        A(f'v_add_u32 v{T(0)}, s{sT}, v{T(0)}')
        A(f'v_mov_b32 v{T(1)}, {OOB}'); A(f'v_cmp_gt_u32 vcc, 8, v{vN}')
        A(f'v_cndmask_b32 v{vC1}, v{T(1)}, v{T(0)}, vcc')
        A(f's_lshl_b32 s{sT}, s{sBH}, 7'); A(f's_lshl_b32 s{sT2}, s{sS}, 2'); A(f's_add_u32 s{sT2}, s{sT2}, s{sW}'); A(f's_lshl_b32 s{sT2}, s{sT2}, 3')
        A(f's_add_u32 s{sT2}, s{sT2}, s{sT}'); A(f'v_mov_b32 v{T(0)}, s{sT2}'); A(f'v_mov_b32 v{T(1)}, {OOB}')
        A(f'v_cmp_eq_u32 vcc, 0, v{vL}'); A(f'v_cndmask_b32 v{vMLp}, v{T(1)}, v{T(0)}, vcc')
        A(f'v_lshlrev_b32 v{T(0)}, 3, v{vN}'); A(f'v_add_u32 v{vMLq}, s{sT}, v{T(0)}')
        kp, vp = self.kw.get('kpat'), self.kw.get('vpat')
        if kp == 'v' or vp == 'k' or kp == 'lin' or vp == 'lin':
            A(f's_lshl_b32 s{sT}, s{sW}, 12')
            if kp == 'v' and vp is None: A(f'v_mov_b32 v{vK}, v{vV}')
            if vp == 'k' and kp is None: A(f'v_mov_b32 v{vV}, v{vK}')
            if kp == 'lin': A(f'v_lshlrev_b32 v{T(0)}, 4, v{vL}'); A(f'v_add_u32 v{vK}, s{sT}, v{T(0)}')
            if vp == 'lin': A(f'v_lshlrev_b32 v{T(0)}, 4, v{vL}'); A(f'v_add_u32 v{vV}, s{sT}, v{T(0)}')
        rot = self.kw.get('rot')
        if rot:
            A(f's_mul_i32 s99, s2, {rot}'); A(f's_lshr_b32 s{sT}, s2, 5'); A(f's_add_u32 s99, s99, s{sT}'); A('s_and_b32 s99, s99, 31'); A('s_lshl_b32 s99, s99, 14')
        A(f's_mov_b32 s{sRole}, 0')
        A(f's_and_b32 s{sT}, s2, 7'); A(f's_mul_i32 s{sT}, s{sT}, 14'); A(f's_lshr_b32 s{sT2}, s2, 3'); A(f's_add_u32 s{sU}, s{sT}, s{sT2}')
        A(f's_cmp_lt_u32 s2, 112'); A(f's_cselect_b32 s{sRole}, 1, 0')
        A(f's_sub_u32 s{sT}, s2, 128'); A(f's_cmp_lt_u32 s{sT}, 64'); A(f's_cselect_b32 s{sRole}, 2, s{sRole}'); A(f's_cselect_b32 s{sU}, s{sT}, s{sU}')
        for r_ in (vRS, vWOFF1, vWOFF2, vB1OFF, vHOFF, vOUTA, vXOFF, vB2OFF, vC2OFF): A(f'v_mov_b32 v{r_}, {OOB}')
        A(f's_cmp_eq_u32 s{sRole}, 1'); A('s_cbranch_scc0 L_r1')
        A(f'v_lshrrev_b32 v{T(0)}, 3, v{vN}'); A(f'v_lshlrev_b32 v{T(0)}, 5, v{T(0)}')
        A(f'v_lshl_add_u32 v{T(0)}, v{vG}, 1, v{T(0)}'); A(f'v_bfe_u32 v{T(1)}, v{vN}, 2, 1'); A(f'v_add_u32 v{T(0)}, v{T(0)}, v{T(1)}')
        A(f's_lshl_b32 s{sT}, s{sW}, 3'); A(f'v_add_u32 v{T(0)}, s{sT}, v{T(0)}')
        A(f'v_mul_u32_u24 v{T(0)}, {112*64}, v{T(0)}'); A(f'v_and_b32 v{T(1)}, 3, v{vN}'); A(f'v_lshl_add_u32 v{T(0)}, v{T(1)}, 4, v{T(0)}')
        if self.kw.get('fakec2'):
            A(f's_and_b32 s{sT}, s2, 7'); A(f's_lshl_b32 s{sT}, s{sT}, 3'); A(f's_lshr_b32 s{sT2}, s2, 3'); A(f's_add_u32 s{sT}, s{sT}, s{sT2}')
            A(f's_lshl_b32 s{sT}, s{sT}, 6'); A(f's_add_u32 s{sT}, s{sT}, {WS_C2}')
            A(f's_cmp_lt_u32 s2, 64'); A(f's_cselect_b32 s{sT}, s{sT}, {OOB}'); A(f'v_add_u32 v{vRS}, s{sT}, v{T(0)}')
        else:
            A(f's_lshl_b32 s{sT}, s{sU}, 6'); A(f's_add_u32 s{sT}, s{sT}, {WS_C2}'); A(f'v_add_u32 v{vRS}, s{sT}, v{T(0)}')
        A(f'v_lshrrev_b32 v{T(0)}, 1, v{vG}'); A(f'v_lshlrev_b32 v{T(0)}, 2, v{T(0)}'); A(f'v_and_b32 v{T(1)}, 1, v{vG}'); A(f'v_lshl_add_u32 v{T(0)}, v{T(1)}, 1, v{T(0)}')
        A(f's_lshl_b32 s{sT}, s{sW}, 7'); A(f'v_add_u32 v{T(0)}, s{sT}, v{T(0)}'); A(f'v_mul_u32_u24 v{T(0)}, 3584, v{T(0)}')
        A(f's_lshl_b32 s{sT}, s{sU}, 5'); A(f'v_lshl_add_u32 v{T(0)}, v{vN}, 1, v{T(0)}'); A(f'v_add_u32 v{vWOFF1}, s{sT}, v{T(0)}')
        A(f's_lshl_b32 s{sT}, s{sU}, 14'); A(f's_lshl_b32 s{sT2}, s{sW}, 8'); A(f's_add_u32 s{sT}, s{sT}, s{sT2}')
        A(f'v_lshlrev_b32 v{T(0)}, 12, v{vG}'); A(f'v_lshl_add_u32 v{T(0)}, v{vN}, 4, v{T(0)}'); A(f'v_add_u32 v{vWOFF2}, s{sT}, v{T(0)}')
        A(f's_lshl_b32 s{sT}, s{sU}, 5'); A(f'v_and_b32 v{T(0)}, 3, v{vN}'); A(f'v_lshl_add_u32 v{T(0)}, v{vG}, 2, v{T(0)}'); A(f'v_lshlrev_b32 v{T(0)}, 1, v{T(0)}'); A(f'v_add_u32 v{vB1OFF}, s{sT}, v{T(0)}')
        A(f'v_lshrrev_b32 v{T(0)}, 5, v{vL}'); A(f'v_lshlrev_b32 v{T(0)}, 11, v{T(0)}'); A(f'v_and_b32 v{T(1)}, 31, v{vL}'); A(f'v_lshl_add_u32 v{T(0)}, v{T(1)}, 4, v{T(0)}')
        WSH = 0x1d0000 if (self.kw.get('hrep') not in (None, True) and self.kw['hrep'] > 8) else WS_H
        A(f'v_add_u32 v{vHOFF}, {WSH}, v{T(0)}')
        if self.kw.get('hrep'):
            NR = 4 if self.kw['hrep'] is True else self.kw['hrep']
            if self.kw.get('hmap'): A(f's_lshr_b32 s{sT}, s2, 3'); A(f's_and_b32 s{sT}, s{sT}, {NR-1}')
            else: A(f's_and_b32 s{sT}, s2, {NR-1}')
            A(f's_lshl_b32 s{sT}, s{sT}, 12'); A(f'v_add_u32 v{vHOFF}, s{sT}, v{vHOFF}')
        A('s_branch L_r2')
        A('L_r1:')
        A(f's_cmp_eq_u32 s{sRole}, 2'); A('s_cbranch_scc0 L_r2')
        A(f's_cmp_eq_u32 s{sW}, 0'); A('s_cbranch_scc0 L_r2')
        A(f's_lshl_b32 s{sT}, s{sU}, 6'); A(f's_add_u32 s{sT}, s{sT}, {WSH}')
        if self.kw.get('hrep'):
            A(f'v_and_b32 v{T(0)}, 3, v{vN}'); A(f'v_lshlrev_b32 v{T(0)}, 4, v{T(0)}'); A(f'v_lshl_add_u32 v{T(0)}, v{vG}, 2, v{T(0)}')
            A(f'v_lshrrev_b32 v{T(1)}, 2, v{vN}'); A(f'v_lshl_add_u32 v{T(0)}, v{T(1)}, 12, v{T(0)}'); A(f'v_add_u32 v{vRS}, s{sT}, v{T(0)}')
        else:
            A(f'v_lshlrev_b32 v{T(0)}, 4, v{vN}'); A(f'v_lshl_add_u32 v{T(0)}, v{vG}, 2, v{T(0)}'); A(f'v_add_u32 v{T(0)}, s{sT}, v{T(0)}')
            A(f'v_mov_b32 v{T(1)}, {OOB}'); A(f'v_cmp_gt_u32 vcc, 4, v{vN}'); A(f'v_cndmask_b32 v{vRS}, v{T(1)}, v{T(0)}, vcc')
        A(f's_and_b32 s{sT}, s{sU}, 31'); A(f's_lshr_b32 s{sT2}, s{sT}, 1'); A(f's_lshl_b32 s{sT2}, s{sT2}, 5')
        A(f's_and_b32 s{sT}, s{sT}, 1'); A(f's_lshl_b32 s{sT}, s{sT}, 2'); A(f's_add_u32 s{sT}, s{sT}, s{sT2}')
        A(f'v_and_b32 v{T(0)}, 3, v{vN}'); A(f'v_lshl_add_u32 v{T(0)}, v{vG}, 3, v{T(0)}'); A(f'v_add_u32 v{T(0)}, s{sT}, v{T(0)}')
        A(f'v_lshlrev_b32 v{vB2OFF}, 1, v{T(0)}')
        A(f's_lshr_b32 s{sT}, s{sU}, 5'); A(f's_lshl_b32 s{sT}, s{sT}, 10'); A(f'v_add_u32 v{vXOFF}, s{sT}, v{vB2OFF}')
        A(f'v_mov_b32 v{T(1)}, {OOB}'); A(f'v_cmp_gt_u32 vcc, 4, v{vN}'); A(f'v_cndmask_b32 v{vOUTA}, v{T(1)}, v{vXOFF}, vcc')
        A(f's_lshl_b32 s{sT}, s{sU}, 13'); A(f's_add_u32 s{sT}, s{sT}, {WS_C1}'); A(f'v_lshlrev_b32 v{T(0)}, 4, v{vL}'); A(f'v_add_u32 v{vHOFF}, s{sT}, v{T(0)}')
        A(f's_mul_i32 s{sT}, s{sU}, 7168'); A(f's_add_u32 s{sT}, s{sT}, {WS_C2}'); A(f'v_add_u32 v{vC2OFF}, s{sT}, v{T(0)}')
        A('L_r2:')
        for i in range(4): A(f'v_mov_b32 v{vSENT+i}, -1')
        A('s_waitcnt lgkmcnt(0)')
        if self.kw.get('st2'): G.stamp(24)
        A(f's_lshl_b32 s{sT}, s{sBH}, 21'); A(f's_lshl_b32 s{sT2}, s{sS}, 19'); A(f's_add_u32 s{sT}, s{sT}, s{sT2}')
        if self.kw.get('krot'): A(f's_add_u32 s{sT}, s{sT}, {self.kw["krot"] << 21}'); A(f's_and_b32 s{sT}, s{sT}, {(64 << 21) - 1}')
        G.srd(rX, pX, pX + 1, 2048)
        vQX, vQR, vQP = vR, vR + 16, vR + 24
        WSZ = (WS_QX + 32 * QX_STR) if QX else WS_SIZE + (0x100000 if self.diag else 0)
        if WSH != WS_H: WSZ = WSH + self.kw['hrep'] * 4096
        if QX and QX.get('skip'):
            G.srd(rWS, pWS, pWS + 1, WSZ)
        elif QX:
            G.vmop(f'buffer_load_dwordx4 v[{vQR}:{vQR+3}], v{T(2)}, s[{rX}:{rX+3}], 0 offen', 'x')
            G.vmop(f'buffer_load_dwordx4 v[{vQR+4}:{vQR+7}], v{T(2)}, s[{rX}:{rX+3}], 0 offen offset:16', 'x')
            A(f's_lshl_b32 s{sT2}, s{sH}, 8')
            G.srd(rWQ, pWQ, pWQ + 1, 0, f's{sT2}'); A(f's_sub_u32 s{rWQ+2}, {512*8192}, s{sT2}')
            A(f's_lshl_b32 s{sT2}, s{sJ}, 19')
            for i in range(4):
                G.vmop(f'buffer_load_dwordx4 a[{aW+4*i}:{aW+4*i+3}], v{vWQ}, s[{rWQ}:{rWQ+3}], s{sT2} offen', f'wq{i}')
                if i < 3: A(f's_add_u32 s{sT2}, s{sT2}, 8192')
            G.srd(rWS, pWS, pWS + 1, WSZ)
            G.vmop(f'buffer_load_dwordx2 v[{vEW}:{vEW+1}], v{vQE}, s[{rWS}:{rWS+3}], 0 offen sc1', 'E')
        G.srd(rK, pK, pK + 1, 0x80000, f's{sT}')
        if not QX: G.vmop(f'buffer_load_dwordx4 v[{vXR}:{vXR+3}], v{T(2)}, s[{rX}:{rX+3}], 0 offen', 'x')
        if self.kw.get('xwait'): G.vmwait('x')
        koffs = [0, 2048, 128, 2176]
        voffs = [0, 2048, 256, 2304]
        if kp == 'v': koffs = list(voffs)
        if vp == 'k': voffs = list(koffs)
        if kp == 'lin': koffs = [0, 1024, 2048, 3072]
        if vp == 'lin': voffs = [0, 1024, 2048, 3072]
        if kp == 'adj': koffs = [0, 128, 2048, 2176]
        if vp == 'adj': voffs = [0, 256, 2048, 2304]
        last_soff = [None]
        def load_one(u, q, setoff=True):
            isK = u < 32; t = u % 32
            if setoff:
                if self.kw.get('rot'):
                    A(f's_add_u32 s{sOff}, s99, {t*16384}'); A(f's_and_b32 s{sOff}, s{sOff}, {31*16384}')
                else:
                    A(f's_mov_b32 s{sOff}, {t*16384}')
            r = ((u % RING) * 4 + q) * 4
            if isK: G.vmop(f'buffer_load_dwordx4 a[{r}:{r+3}], v{vK}, s[{rK}:{rK+3}], s{sOff} offen offset:{koffs[q]} {nt}', f'u{u}')
            else:   G.vmop(f'buffer_load_dwordx4 a[{r}:{r+3}], v{vV}, s[{rV}:{rV+3}], s{sOff} offen offset:{voffs[q]} {nt}', f'u{u}')
            G.lidx[4 * u + q] = len(G.vm) - 1
        def unit_loads(u):
            for q in range(4): load_one(u, q, q == 0)
        PRO = self.kw.get('pro')
        kcur = [None]; kiss = [0]
        def issue_k():
            m = kiss[0]; u_, q_ = m // 4, m % 4
            load_one(u_, q_, u_ != kcur[0]); kcur[0] = u_; kiss[0] += 1
        if QX:
            for _ in range(QX['k0']): issue_k()
        elif PRO:
            for _ in range(PRO[0]): issue_k()
        elif self.pre > 0: unit_loads(0)
        if self.kw.get('st2'): G.stamp(25)
        G.srd(rV, pV, pV + 1, 0x80000, f's{sT}')
        if not QX: G.srd(rWS, pWS, pWS + 1, WSZ)
        A(f's_lshl_b32 s{sT}, s{sH}, 8')
        if self.kw.get('wqsame'): A(f's_mov_b32 s{sT}, 0')
        if self.kw.get('wqrot'): A(f's_add_u32 s{sT}, s{sH}, {self.kw["wqrot"]}'); A(f's_and_b32 s{sT}, s{sT}, 31'); A(f's_lshl_b32 s{sT}, s{sT}, 8')
        if self.kw.get('wqx'): A(f's_lshr_b32 s{sT}, s2, 3'); A(f's_lshl_b32 s{sT}, s{sT}, 8')
        if self.kw.get('wqx4'): A(f's_lshr_b32 s{sT}, s2, 2'); A(f's_and_b32 s{sT}, s{sT}, 31'); A(f's_lshl_b32 s{sT}, s{sT}, 8')
        if QX: pass
        elif self.kw.get('wqbase'):
            pb = {'K': pK, 'V': pV, 'O': pWO}[self.kw['wqbase']]
            G.srd(rWQ, pb, pb + 1, 0, f's{sT}'); A(f's_sub_u32 s{rWQ+2}, {512*8192}, s{sT}')
        else:
            G.srd(rWQ, pWQ, pWQ + 1, 0, f's{sT}'); A(f's_sub_u32 s{rWQ+2}, {512*8192}, s{sT}')
        if self.kw.get('noinit'):
            A(f'v_mov_b32 v{vC1}, {OOB}'); A(f'v_mov_b32 v{vMLp}, {OOB}'); A(f'v_mov_b32 v{vRS}, {OOB}'); A(f'v_mov_b32 v{vHOFF}, {OOB}'); A(f'v_mov_b32 v{vC2OFF}, {OOB}'); A(f'v_mov_b32 v{vMLq}, {OOB}')
        G.vmop(f'buffer_store_dwordx4 v[{vSENT}:{vSENT+3}], v{vC1}, s[{rWS}:{rWS+3}], 0 offen sc1', 'init')
        G.vmop(f'buffer_store_dwordx2 v[{vSENT}:{vSENT+1}], v{vMLp}, s[{rWS}:{rWS+3}], 0 offen sc1', 'init')
        A(f's_cmp_eq_u32 s{sRole}, 1'); A('s_cbranch_scc0 L_i1')
        G.vmop(f'buffer_store_dwordx4 v[{vSENT}:{vSENT+3}], v{vRS}, s[{rWS}:{rWS+3}], 0 offen sc1', 'init', True)
        A('L_i1:')
        A(f's_cmp_eq_u32 s{sRole}, 2'); A('s_cbranch_scc0 L_i2')
        G.vmop(f'buffer_store_dword v{vSENT}, v{vRS}, s[{rWS}:{rWS+3}], 0 offen sc1', 'init', True)
        NRH = self.kw.get('hrep'); NRH = 1 if NRH in (None, True) else NRH // 4
        for r_ in range(1, NRH):
            A(f's_mov_b32 s{sT}, {r_*16384}')
            G.vmop(f'buffer_store_dword v{vSENT}, v{vRS}, s[{rWS}:{rWS+3}], s{sT} offen sc1', 'init', True)
        A('L_i2:')
        if self.kw.get('st2'): G.stamp(26)
        def wq_load(i):
            if self.kw.get('nowq0'): return
            if self.nowq and i >= 4: return
            A(f's_mov_b32 s{sT}, {i*8192}')
            r = aW + 4 * i
            G.vmop(f'buffer_load_dwordx4 a[{r}:{r+3}], v{vWQ}, s[{rWQ}:{rWQ+3}], s{sT} offen {wnt}', f'wq{i}')
            if self.kw.get('st2') and i == 15: G.stamp(27)
            if self.kw.get('st2') and i == 31: G.stamp(28)
        il = self.kw.get('il', 0)
        done_u = 1 if self.pre > 0 else 0
        if QX:
            for _ in range(QX.get('n1', 0)): issue_k()
        elif PRO:
            k0_, pa, pb_, Wp = PRO[:4]
            ktot = PRO[4] if len(PRO) > 4 else 28
            S = []
            for i in range(32):
                S.append(('wq', i))
                if i % pa == pa - 1 and i < 31: S += [('k', None)] * pb_
            S += [('k', None)] * 32
            sp = [0]
            def pro_next():
                while sp[0] < len(S):
                    kind, i = S[sp[0]]; sp[0] += 1
                    if kind == 'wq':
                        A(f's_mov_b32 s{sLim}, {i*8192}')
                        r = aW + 4 * i
                        G.vmop(f'buffer_load_dwordx4 a[{r}:{r+3}], v{vWQ}, s[{rWQ}:{rWQ+3}], s{sLim} offen {wnt}', f'wq{i}')
                        if self.kw.get('st2') and i == 15: G.stamp(27)
                        if self.kw.get('st2') and i == 31: G.stamp(28)
                        return True
                    if kiss[0] < ktot:
                        issue_k(); return True
                return False
            for _ in range(PRO[5] if len(PRO) > 5 else Wp - k0_ - 1): pro_next()
        else:
            for i in range(32):
                wq_load(i)
                if il and i % 4 == 3 and done_u < 1 + il and i < 31:
                    unit_loads(done_u); done_u += 1
            for u in range(done_u, self.pre): unit_loads(u)
        G.stamp(9)
        A(f's_lshl_b32 s{sT}, s{sH}, 17')
        if self.kw.get('wosame'): A(f's_mov_b32 s{sT}, 0')
        if self.kw.get('wox'): A(f's_lshr_b32 s{sT}, s2, 3'); A(f's_lshl_b32 s{sT}, s{sT}, 17')
        if self.kw.get('wox4'): A(f's_lshr_b32 s{sT}, s2, 2'); A(f's_and_b32 s{sT}, s{sT}, 31'); A(f's_lshl_b32 s{sT}, s{sT}, 17')
        if self.kw.get('woxcd'): A(f's_and_b32 s{sT}, s{sH}, 7'); A(f's_lshl_b32 s{sT}, s{sT}, 17')
        G.srd(rWO, pWO, pWO + 1, 131072, f's{sT}')
        G.srd(rDBG, pDBG, pDBG + 1, 256)
        G.srd(rW1, pW1, pW1 + 1, 512 * 3584)
        G.srd(rW2, pW2, pW2 + 1, 1792 * 1024)
        G.srd(rB1, pB1, pB1 + 1, 3584)
        G.srd(rB2, pB2, pB2 + 1, 1024)
        G.srd(rOUT, pOUT, pOUT + 1, 2048)
        A(f's_mov_b32 s{sPK}, 0x05040100')
        A(f's_lshl_b32 s{sT}, s{sW}, 8'); A(f'v_lshlrev_b32 v{T(0)}, 15, v{vG}'); A(f'v_lshl_add_u32 v{T(0)}, v{vN}, 4, v{T(0)}'); A(f'v_add_u32 v{vWO}, s{sT}, v{T(0)}')
        A(f's_lshr_b32 s{sAt}, s2, 4'); A(f's_and_b32 s{sAt}, s{sAt}, 15'); A(f's_cmp_eq_u32 s{sW}, 0'); A(f's_cselect_b32 s{sAt}, s{sAt}, 99')
        A(f'v_mov_b32 v{vONE}, 1'); A(f'v_mov_b32 v{vATO}, {OOB}'); A(f'v_cmp_eq_u32 vcc, 0, v{vL}'); A(f'v_cndmask_b32 v{vATO}, v{vATO}, 0, vcc')
        A(f'v_and_b32 v{T(0)}, 1, v{vN}'); A(f'v_cmp_eq_u32 vcc, 1, v{T(0)}')
        A(f'v_mov_b32 v{T(1)}, 0x0c0c0100'); A(f'v_mov_b32 v{T(2)}, 0x01000c0c'); A(f'v_cndmask_b32 v{T(3)}, v{T(1)}, v{T(2)}, vcc')
        A(f'v_mov_b32 v{T(1)}, 0x0c0c0302'); A(f'v_mov_b32 v{T(2)}, 0x03020c0c'); A(f'v_cndmask_b32 v{T(4)}, v{T(1)}, v{T(2)}, vcc')
        A(f'v_mov_b32 v{T(1)}, 0x0000ffff'); A(f'v_mov_b32 v{T(2)}, 0xffff0000'); A(f'v_cndmask_b32 v{T(5)}, v{T(1)}, v{T(2)}, vcc')
        A(f'v_bfe_u32 v{T(0)}, v{vN}, 1, 2'); A(f'v_mov_b32 v{T(6)}, 0x0c0c0c0c')
        for jj in range(4):
            A(f'v_cmp_eq_u32 vcc, {jj}, v{T(0)}')
            A(f'v_cndmask_b32 v{vSEL+jj}, v{T(6)}, v{T(3)}, vcc'); A(f'v_cndmask_b32 v{vSEL+4+jj}, v{T(6)}, v{T(4)}, vcc')
            A(f'v_cndmask_b32 v{vMASK+jj}, 0, v{T(5)}, vcc')
        if QX:
            A(f's_lshl_b32 s{sT}, s{sW}, 11'); A(f'v_lshlrev_b32 v{T(0)}, 5, v{vL}'); A(f'v_add_u32 v{vA1}, s{sT}, v{T(0)}')
            A(f's_lshl_b32 s{sT2}, s{sJ}, 2'); A(f's_add_u32 s{sT2}, s{sT2}, s{sW}'); A(f's_lshl_b32 s{sT2}, s{sT2}, 5'); A(f's_add_u32 s{sT}, s{sT}, s{sT2}')
            A(f'v_lshrrev_b32 v{T(0)}, 3, v{vN}'); A(f'v_lshlrev_b32 v{T(0)}, 10, v{T(0)}'); A(f'v_lshl_add_u32 v{T(0)}, v{vG}, 3, v{T(0)}'); A(f'v_add_u32 v{vA2}, s{sT}, v{T(0)}')
        else:
            A(f's_lshl_b32 s{sT}, s{sW}, 10'); A(f'v_lshlrev_b32 v{T(0)}, 4, v{vL}'); A(f'v_add_u32 v{vA1}, s{sT}, v{T(0)}')
            A(f's_mul_i32 s{sT}, s{sW}, 1280'); A(f'v_lshlrev_b32 v{T(0)}, 6, v{vG}'); A(f'v_add_u32 v{vA2}, s{sT}, v{T(0)}')
        if THR:
            PSTR = self.kw.get('pstr', 4)
            GSTR = self.kw.get('gstr', 256 if PSTR == 4 else 8 * PSTR)
            A(f's_and_b32 s{sT}, s2, 3'); A(f's_lshl_b32 s{sT}, s{sT}, 3'); A(f's_lshr_b32 s{sT2}, s2, 3'); A(f's_sub_u32 s{sT2}, s{sT2}, s{sT}'); A(f's_and_b32 s{sT2}, s{sT2}, 31')
            A(f's_mul_i32 s{sT2}, s{sT2}, {GSTR}'); A(f's_add_u32 s{sT2}, s{sT2}, {WS_PROG}')
            A(f'v_mov_b32 v{vPT}, {OOB}'); A(f'v_and_b32 v{vPRO}, 7, v{vL}'); A(f'v_mul_u32_u24 v{vPRO}, {PSTR}, v{vPRO}'); A(f'v_add_u32 v{vPRO}, s{sT2}, v{vPRO}')
            A(f's_and_b32 s{sT}, s2, 7'); A(f's_mul_i32 s{sT}, s{sT}, {PSTR}'); A(f's_add_u32 s{sT}, s{sT}, s{sT2}')
            A(f'v_mov_b32 v{vPUBO}, s{sT}'); A(f'v_cmp_eq_u32 vcc, 0, v{vL}'); A(f'v_cndmask_b32 v{vPUBO}, v{vPT}, v{vPUBO}, vcc')
            A(f'v_lshlrev_b32 v{vLIMW}, 2, v{vL}'); A(f'v_add_u32 v{vLIMW}, {L_DUM2}, v{vLIMW}')
            A(f'v_mov_b32 v{vLIMR}, {L_LIM}'); A(f'v_mov_b32 v{vWIN}, {THR}')
            A(f's_cmp_eq_u32 s{sW}, 0'); A('s_cbranch_scc1 L_thw0')
            A(f'v_mov_b32 v{vPUBO}, {OOB}'); A(f'v_mov_b32 v{vPRO}, {OOB}'); A('s_branch L_thw1')
            A('L_thw0:')
            A(f'v_cndmask_b32 v{vLIMW}, v{vLIMW}, v{vLIMR}, vcc')
            A('L_thw1:')
            A(f'ds_write_b32 v{vLIMW}, v{vWIN}'); A(f'v_mov_b32 v{vLIM}, {THR}'); A(f'v_mov_b32 v{vEFF}, 0')
            for r_ in vPROG: A(f'v_mov_b32 v{r_}, 0')
        noq = self.kw.get('noq')
        if noq: A('s_branch L_noq')
        if QX and QX.get('skip'):
            L_keep = list(self.L); vm_keep = list(self.vm); done_keep = self.done; kiss_keep = kiss[0]; kcur_keep = kcur[0]; lidx_keep = dict(self.lidx)
            self.vm += [('x', False), ('wq0', False), ('wq1', False), ('wq2', False), ('wq3', False), ('E', False)]
        if self.kw.get('st2'): G.stamp(29)
        G.vmwait('x')
        if self.kw.get('st2'): G.stamp(30)
        if THR:
            G.vmop(f'buffer_load_dword v{vSNAP}, v{vPRO}, s[{rWS}:{rWS+3}], 0 offen sc1', 'snap')
        if QX:
            for _ in range(QX.get('n2', 0)): issue_k()
            X = [vQX + i for i in range(16)]
            for k in range(8):
                A(f'v_lshlrev_b32 v{X[2*k]}, 16, v{vQR+k}'); A(f'v_and_b32 v{X[2*k+1]}, 0xffff0000, v{vQR+k}')
            self.ln_stats(X, T(8), T(9), T(10), T(11), 1.0 / 512, self.half_allreduce)
            self.ln_apply(X, T(8), T(9))
            for k in range(8): A(f'v_cvt_pk_bf16_f32 v{vQR+k}, v{X[2*k]}, v{X[2*k+1]}')
            A(f'ds_write_b128 v{vA1}, v[{vQR}:{vQR+3}] offset:{L_XN2}'); A(f'ds_write_b128 v{vA1}, v[{vQR+4}:{vQR+7}] offset:{L_XN2+16}')
            for _ in range(QX.get('n3', 0)): issue_k()
            A('s_waitcnt lgkmcnt(0)')
            A(f'ds_read_b64 v[{vXP}:{vXP+1}], v{vA2} offset:{L_XN2}')
        else:
            X = [T(i) for i in range(8)]
            for k in range(4):
                A(f'v_lshlrev_b32 v{X[2*k]}, 16, v{vXR+k}'); A(f'v_and_b32 v{X[2*k+1]}, 0xffff0000, v{vXR+k}')
            self.ln_stats(X, T(8), T(9), T(10), T(11), 1.0 / 512, self.wave_allreduce)
            self.ln_apply(X, T(8), T(9))
            for k in range(4): A(f'v_cvt_pk_bf16_f32 v{vXR+k}, v{X[2*k]}, v{X[2*k+1]}')
            A(f'ds_write_b128 v{vA1}, v[{vXR}:{vXR+3}] offset:{L_XN}')
            A('s_waitcnt lgkmcnt(0)')
            for k in range(4): A(f'ds_read_b128 v[{vXP+4*k}:{vXP+4*k+3}], v{vA2} offset:{L_XN+16*k}')
        A(f's_lshl_b32 s{sT}, s{sW}, 9'); A(f'v_and_b32 v{T(0)}, 7, v{vN}'); A(f'v_lshl_add_u32 v{T(0)}, v{vG}, 5, v{T(0)}'); A(f'v_lshlrev_b32 v{T(0)}, 2, v{T(0)}')
        A(f'v_add_u32 v{vA1}, s{sT}, v{T(0)}')
        A(f'v_mov_b32 v{T(1)}, {L_DUMMY - L_OP}'); A(f'v_cmp_gt_u32 vcc, 8, v{vN}'); A(f'v_cndmask_b32 v{vOPA}, v{T(1)}, v{vA1}, vcc')
        A(f'v_lshlrev_b32 v{vA3}, 3, v{vL}')
        A('s_waitcnt lgkmcnt(0)')
        if self.kw.get('st2'): G.stamp(31)
        def delta_steps(nsteps, acc, tagf, first_zero=True):
            for i in range(nsteps):
                bset = vB + 4 * (i & 1)
                for jj in range(4):
                    A(f'v_perm_b32 v{bset+jj}, v{vXP+(i>>1)}, v{vXP+(i>>1)}, v{vSEL+4*(i&1)+jj}')
                if tagf is not None and i % 4 == 0: G.vmwait(tagf(i + 3))
                r = aW + 4 * i
                c = '0' if i == 0 else f'v[{acc}:{acc+3}]'
                A(f'v_mfma_f32_16x16x32_bf16 v[{acc}:{acc+3}], a[{r}:{r+3}], v[{bset}:{bset+3}], {c}')
        if QX:
            for i in range(4):
                bset = vB + 4 * (i & 1)
                for jj in range(4):
                    A(f'v_perm_b32 v{bset+jj}, v{vXP+(i>>1)}, v{vXP+(i>>1)}, v{vSEL+4*(i&1)+jj}')
                G.vmwait(f'wq{i}')
                c = '0' if i == 0 else f'v[{vDQ}:{vDQ+3}]'
                A(f'v_mfma_f32_16x16x32_bf16 v[{vDQ}:{vDQ+3}], a[{aW+4*i}:{aW+4*i+3}], v[{bset}:{bset+3}], {c}')
            A(f's_lshl_b32 s{sT}, s{sW}, 10'); A(f'v_and_b32 v{T(0)}, 7, v{vN}'); A(f'v_lshl_add_u32 v{T(0)}, v{vG}, 5, v{T(0)}'); A(f'v_lshlrev_b32 v{T(0)}, 2, v{T(0)}')
            A(f'v_lshrrev_b32 v{T(1)}, 3, v{vN}'); A(f'v_lshl_add_u32 v{T(0)}, v{T(1)}, 9, v{T(0)}'); A(f'v_add_u32 v{T(0)}, s{sT}, v{T(0)}')
            A(f's_lshl_b32 s{sT}, s{sW}, 8'); A(f'v_add_u32 v{T(1)}, s{sT}, v{vA3}')
            for i in range(4): A(f'ds_write_b32 v{T(0)}, v{vDQ+i} offset:{L_XN + 32*i}')
            for _ in range(QX.get('n4', 0)): issue_k()
            A('s_waitcnt lgkmcnt(0)'); A('s_barrier')
            for w in range(4): A(f'ds_read_b64 v[{T(2*w+2)}:{T(2*w+3)}], v{T(1)} offset:{L_XN + 1024*w}')
            G.vmwait('E')
            A(f'v_add_u32 v{vTG}, 0x9e3779b9, v{vEW}'); A(f'v_add_u32 v{vTG+1}, 0x7f4a7c15, v{vEW+1}')
            A('s_waitcnt lgkmcnt(0)')
            A(f'v_pk_add_f32 v[{T(2)}:{T(3)}], v[{T(2)}:{T(3)}], v[{T(4)}:{T(5)}]'); A(f'v_pk_add_f32 v[{T(6)}:{T(7)}], v[{T(6)}:{T(7)}], v[{T(8)}:{T(9)}]')
            A(f'v_pk_add_f32 v[{T(2)}:{T(3)}], v[{T(2)}:{T(3)}], v[{T(6)}:{T(7)}]')
            A(f'v_mov_b32 v{T(4)}, v{vTG}'); A(f'v_mov_b32 v{T(5)}, v{vTG+1}')
            G.vmop(f'buffer_store_dwordx4 v[{T(2)}:{T(5)}], v{vQS}, s[{rWS}:{rWS+3}], 0 offen sc1', 'qst')
            G.stamp(10)
            for _ in range(QX.get('n4b', 0)): issue_k()
            Wq, Pq, polls = QX['W'], QX['P'], list(QX['polls'])
            def q_poll(lab, firm):
                if not firm: A(f's_cmp_eq_u32 s{sQ}, 1'); A(f's_cbranch_scc1 {lab}')
                G.vmop(f'buffer_load_dwordx4 v[{vQP}:{vQP+3}], v{vQL}, s[{rWS}:{rWS+3}], 0 offen sc1', 'qpoll', not firm)
                G.vmop(f'buffer_load_dwordx4 v[{vQP+4}:{vQP+7}], v{vQL}, s[{rWS}:{rWS+3}], 0 offen offset:2048 sc1', 'qpoll', not firm)
                if not firm: A(f'{lab}:')
                return len(G.vm) - 1
            def q_cmp():
                A(f'v_cmp_ne_u32 vcc, v{vTG}, v{vQP+2}'); A(f'v_cmp_ne_u32 s[{sM}:{sM+1}], v{vTG+1}, v{vQP+3}'); A(f's_or_b64 vcc, vcc, s[{sM}:{sM+1}]')
                A(f'v_cmp_ne_u32 s[{sM}:{sM+1}], v{vTG}, v{vQP+6}'); A(f's_or_b64 vcc, vcc, s[{sM}:{sM+1}]')
                A(f'v_cmp_ne_u32 s[{sM}:{sM+1}], v{vTG+1}, v{vQP+7}'); A(f's_or_b64 vcc, vcc, s[{sM}:{sM+1}]')
                if QX.get('fake'): A('s_mov_b64 vcc, 0')
            def q_check(lab, idx):
                A(f's_cmp_eq_u32 s{sQ}, 1'); A(f's_cbranch_scc1 {lab}')
                n = sum(1 for (t_, o_) in G.vm[idx + 1:] if not o_)
                A(f's_waitcnt vmcnt({n})')
                q_cmp()
                A(f's_cbranch_vccnz {lab}'); A(f's_mov_b32 s{sQ}, 1')
                A(f'{lab}:')
            pend = None; nq = 0
            while True:
                m = kiss[0]
                if pend is not None and (m >= pend[0] or m >= Pq):
                    q_check(f'L_qc{nq}', pend[1]); pend = None
                if polls and polls[0] <= m and pend is None:
                    polls.pop(0); nq += 1
                    pend = (m + QX.get('d', Wq), q_poll(f'L_qp{nq}', nq == 1))
                    continue
                if m >= Pq: break
                if m - Wq >= 0: G.vmwait_idx(G.lidx[m - Wq])
                issue_k()
            A(f's_cmp_eq_u32 s{sQ}, 1'); A('s_cbranch_scc1 L_qok')
            A(f's_mov_b32 s{sSpin}, {self.spin}')
            G.stamp(12)
            A('L_qspin:')
            A(f'buffer_load_dwordx4 v[{vQP}:{vQP+3}], v{vQL}, s[{rWS}:{rWS+3}], 0 offen sc1')
            A(f'buffer_load_dwordx4 v[{vQP+4}:{vQP+7}], v{vQL}, s[{rWS}:{rWS+3}], 0 offen offset:2048 sc1')
            A('s_waitcnt vmcnt(0)')
            q_cmp()
            A('s_cbranch_vccz L_qok')
            A(f's_sub_u32 s{sSpin}, s{sSpin}, 1'); A('s_cbranch_scc0 L_qspin')
            A('L_qok:')
            G.stamp(11)
            A(f'v_pk_add_f32 v[{vQP}:{vQP+1}], v[{vQP}:{vQP+1}], v[{vQP+4}:{vQP+5}]')
            A(f's_lshl_b32 s{sT}, s{sW}, 9'); A(f'v_add_u32 v{T(0)}, s{sT}, v{vA3}')
            A(f'ds_write_b64 v{T(0)}, v[{vQP}:{vQP+1}] offset:{L_QP}')
            for _ in range(QX.get('n5', 0)): issue_k()
        elif PRO:
            for i in range(32):
                bset = vB + 4 * (i & 1)
                for jj in range(4):
                    A(f'v_perm_b32 v{bset+jj}, v{vXP+(i>>1)}, v{vXP+(i>>1)}, v{vSEL+4*(i&1)+jj}')
                idx = max(k for k, (t_, o_) in enumerate(G.vm) if t_ == f'wq{i}')
                G.vmwait_idx(idx)
                while len(G.vm) - 1 - idx < Wp and pro_next(): pass
                r = aW + 4 * i
                c = '0' if i == 0 else f'v[{vDQ}:{vDQ+3}]'
                A(f'v_mfma_f32_16x16x32_bf16 v[{vDQ}:{vDQ+3}], a[{r}:{r+3}], v[{bset}:{bset+3}], {c}')
            for _ in range(self.kw.get('kq', 0)): issue_k()
        else:
            delta_steps(32, vDQ, lambda i: f'wq{min(i, 3) if self.nowq else i}')
        if not QX:
            for i in range(4): A(f'ds_write_b32 v{vA1}, v{vDQ+i} offset:{L_QP + 32*i}')
        A('s_waitcnt lgkmcnt(0)'); A('s_barrier')
        A(f's_cmp_eq_u32 s{sW}, 0'); A('s_cbranch_scc0 L_c1')
        A(f'v_mov_b32 v{T(0)}, 1'); A(f'v_mov_b32 v{T(1)}, {OOB}'); A(f'v_cmp_eq_u32 vcc, 0, v{vL}'); A(f'v_cndmask_b32 v{T(1)}, v{T(1)}, 0, vcc')
        if not self.kw.get('noatom') and not self.kw.get('atsp'): G.vmop(f'buffer_atomic_add v{T(0)}, v{T(1)}, s[{rDBG}:{rDBG+3}], 0 offen', 'atom', True)
        A('L_c1:')
        for w in range(4): A(f'ds_read_b64 v[{T(2*w+2)}:{T(2*w+3)}], v{vA3} offset:{L_QP + 512*w}')
        if noq:
            A('L_noq:')
            A(f's_cmp_eq_u32 s{sW}, 0'); A('s_cbranch_scc0 L_c1b')
            A(f'v_mov_b32 v{T(0)}, 1'); A(f'v_mov_b32 v{T(1)}, {OOB}'); A(f'v_cmp_eq_u32 vcc, 0, v{vL}'); A(f'v_cndmask_b32 v{T(1)}, v{T(1)}, 0, vcc')
            if not self.kw.get('noatom'): A(f'buffer_atomic_add v{T(0)}, v{T(1)}, s[{rDBG}:{rDBG+3}], 0 offen')
            A('L_c1b:')
        LOOK = self.kw.get('look', RING); LOOKV = self.kw.get('lookv', LOOK)
        nxt = [self.pre]
        def issue_upto(u_hi):
            while nxt[0] <= min(u_hi, 63):
                unit_loads(nxt[0]); nxt[0] += 1
        if PRO or QX:
            while kiss[0] < self.kw.get('topup', 0): issue_k()
        else: issue_upto(LOOK - 1)
        SL = self.kw.get('slide'); SLV = self.kw.get('slidev', SL)
        nxl = [kiss[0] if (PRO or QX) else 4 * nxt[0]]
        m0_ = nxl[0]
        import math
        def lagof(m):
            f = SL if m < 128 else SLV
            eb = self.kw.get('eb')
            if eb and m >= 128 + 4 * eb[0]: f = eb[1]
            kb = self.kw.get('kb')
            if kb and m < 128 and m >= 4 * kb[0]: f = kb[1]
            rp = self.kw.get('ramp')
            if rp and m < 128:
                f = max(f, min(31, int(rp[0] - rp[1] * (m - m0_))))
            if isinstance(f, int) or float(f).is_integer(): return int(f)
            g = int(m // f)
            return int(math.floor((g + 1) * f) - math.floor(g * f))
        def slide_issue(j, boost=0):
            while nxl[0] <= 255 and (nxl[0] - lagof(nxl[0]) <= j or nxl[0] <= j + boost):
                m = nxl[0]; u_, q_ = m // 4, m % 4
                ap = self.kw.get('apace')
                if ap and not boost and m < 128 and m - ap > j: G.vmwait_idx(G.lidx[m - ap])
                load_one(u_, q_, u_ != slide_issue.cur); slide_issue.cur = u_
                nxl[0] += 1
        slide_issue.cur = None
        prog_k = [0]
        def prog_reduce(src):
            A(f'v_cmp_ne_u32 vcc, v{src}, v{vSNAP}'); A(f'v_cndmask_b32 v{vPT}, 0, v{src}, vcc'); A(f'v_max_u32 v{vEFF}, v{vEFF}, v{vPT}')
            A(f'v_min_u32_dpp v{vPT}, v{vEFF}, v{vEFF} row_ror:1 row_mask:0xf bank_mask:0xf')
            for r_ in (2, 4): A(f'v_min_u32_dpp v{vPT}, v{vPT}, v{vPT} row_ror:{r_} row_mask:0xf bank_mask:0xf')
            A(f'v_add_u32 v{vPT}, v{vWIN}, v{vPT}')
            A(f'ds_write_b32 v{vLIMW}, v{vPT}')
        def throttled_issue(g, u_hi):
            u_hi = min(u_hi, 63)
            if not THR: issue_upto(u_hi); return
            need_gate = u_hi >= nxt[0] and u_hi > THR
            if need_gate:
                lab = f'L_th{g}'
                A('s_waitcnt lgkmcnt(0)'); A(f'v_readfirstlane_b32 s{sLim}, v{vLIM}')
                A(f's_cmp_ge_u32 s{sLim}, {u_hi}'); A(f's_cbranch_scc1 {lab}_ok')
                A(f's_mov_b32 s{sSp2}, 4096')
                A(f'{lab}:')
                A(f's_cmp_eq_u32 s{sW}, 0'); A(f's_cbranch_scc0 {lab}_w')
                A(f'buffer_load_dword v{vPV}, v{vPRO}, s[{rWS}:{rWS+3}], 0 offen sc1'); A('s_waitcnt vmcnt(0)')
                prog_reduce(vPV)
                A(f'{lab}_w:')
                A(f'ds_read_b32 v{vLIM}, v{vLIMR}'); A('s_waitcnt lgkmcnt(0)'); A(f'v_readfirstlane_b32 s{sLim}, v{vLIM}')
                A(f's_cmp_ge_u32 s{sLim}, {u_hi}'); A(f's_cbranch_scc1 {lab}_ok')
                A(f's_sub_u32 s{sSp2}, s{sSp2}, 1'); A(f's_cbranch_scc0 {lab}')
                A(f'v_mov_b32 v{vWIN}, 0x100000')
                A(f'{lab}_ok:')
            more = nxt[0] <= 63 or True
            last_gate = 63 - 1
            do_chk = (g % CHK == 0) and nxt[0] < 63
            if do_chk:
                k = prog_k[0]
                G.vmop(f'buffer_load_dword v{vPROG[k & 1]}, v{vPRO}, s[{rWS}:{rWS+3}], 0 offen sc1', f'prog{k}')
            if g % self.kw.get('pubn', 1) == 0 and g < 63 - 2:
                A(f'v_mov_b32 v{vPV}, {g + 1}')
                G.vmop(f'buffer_store_dword v{vPV}, v{vPUBO}, s[{rWS}:{rWS+3}], 0 offen sc1', 'pub')
            issue_upto(u_hi)
            if do_chk:
                k = prog_k[0]
                if k > 0:
                    G.vmwait(f'prog{k-1}')
                    prog_reduce(vPROG[(k - 1) & 1])
                prog_k[0] += 1
            if nxt[0] <= 63: A(f'ds_read_b32 v{vLIM}, v{vLIMR}')
        A(f's_lshl_b32 s{sT}, s{sW}, 8'); A(f'v_lshlrev_b32 v{T(0)}, 2, v{vL}'); A(f'v_add_u32 v{T(0)}, s{sT}, v{T(0)}')
        A(f'v_lshrrev_b32 v{T(1)}, 3, v{vN}'); A(f'v_lshlrev_b32 v{T(1)}, 6, v{T(1)}'); A(f'v_lshl_add_u32 v{T(1)}, v{vG}, 4, v{T(1)}'); A(f'v_add_u32 v{T(1)}, s{sT}, v{T(1)}')
        A('s_waitcnt lgkmcnt(0)')
        A(f'v_pk_add_f32 v[{T(2)}:{T(3)}], v[{T(2)}:{T(3)}], v[{T(4)}:{T(5)}]'); A(f'v_pk_add_f32 v[{T(6)}:{T(7)}], v[{T(6)}:{T(7)}], v[{T(8)}:{T(9)}]')
        A(f'v_pk_add_f32 v[{T(2)}:{T(3)}], v[{T(2)}:{T(3)}], v[{T(6)}:{T(7)}]')
        A(f'v_cvt_pk_bf16_f32 v{T(2)}, v{T(2)}, v{T(3)}')
        A(f'ds_write_b32 v{T(0)}, v{T(2)} offset:{L_QB}')
        A('s_waitcnt lgkmcnt(0)')
        A(f'ds_read_b128 v[{vBQ}:{vBQ+3}], v{T(1)} offset:{L_QB}'); A(f'ds_read_b128 v[{vBQ+4}:{vBQ+7}], v{T(1)} offset:{L_QB+128}')
        A(f'v_mov_b32 v{vMX}, 0xff800000')
        for i in range(8): A(f'v_mov_b32 v{vO+i}, 0')
        A('s_waitcnt lgkmcnt(0)')
        G.stamp(1)
        if QX and QX.get('skip'):
            self.L[:] = L_keep; self.vm[:] = vm_keep; self.done = done_keep; kiss[0] = kiss_keep; kcur[0] = kcur_keep; self.lidx = lidx_keep
            nxl[0] = kiss[0]; m0_ = nxl[0]
            for i in range(8): A(f'v_mov_b32 v{vBQ+i}, 0'); A(f'v_mov_b32 v{vO+i}, 0')
            A(f'v_mov_b32 v{vMX}, 0xff800000')
            A(f's_lshl_b32 s{sT}, s{sW}, 9'); A(f'v_and_b32 v{T(0)}, 7, v{vN}'); A(f'v_lshl_add_u32 v{T(0)}, v{vG}, 5, v{T(0)}'); A(f'v_lshlrev_b32 v{T(0)}, 2, v{T(0)}')
            A(f'v_add_u32 v{vA1}, s{sT}, v{T(0)}')
            A(f'v_mov_b32 v{T(1)}, {L_DUMMY - L_OP}'); A(f'v_cmp_gt_u32 vcc, 8, v{vN}'); A(f'v_cndmask_b32 v{vOPA}, v{T(1)}, v{vA1}, vcc')
            A(f'v_lshlrev_b32 v{vA3}, 3, v{vL}')
            A(f'v_mov_b32 v{vTG}, 0'); A(f'v_mov_b32 v{vTG+1}, 0')
            G.stamp(1)
        if self.kw.get('qonly'): A('s_branch L_fin')
        if self.stop == 'q':
            return self.finish_debug([vBQ + i for i in range(8)])

        wo_loads = []
        for i in range(32):
            r = aW + 4 * i
            wo_loads.append((i // 4 * 4096, f'buffer_load_dwordx4 a[{r}:{r+3}], v{vWO}, s[{rWO}:{rWO+3}], s{sT} offen offset:{(i%4)*1024} {wnt}', f'wo{i}'))
        def emit_wo(k0, k1):
            for k in range(k0, k1):
                so, s, tag = wo_loads[k]
                if self.kw.get('wotiny'): so = 0
                if k == k0 or k % 4 == 0: A(f's_mov_b32 s{sT}, {so}')
                G.vmop(s, tag)
        EX = self.kw.get('exact', False)
        def emit_role_loads(part):
            lab = f'L_rl{part}'
            if part < 16:
                if not EX: A(f's_cmp_eq_u32 s{sRole}, 1'); A(f's_cbranch_scc0 {lab}')
                s_ = part // 4; e3 = part % 4
                A(f's_mov_b32 s{sT}, {(32*s_ + 8*e3)*3584}')
                for eh in (0, 1):
                    e = e3 + 4 * eh
                    G.vmop(f'buffer_load_ushort v{vR + 8*s_ + e}, v{vWOFF1}, s[{rW1}:{rW1+3}], s{sT} offen offset:{eh*3584} {wnt}', 'w1g', not EX)
                if not EX: A(f'{lab}:')
            else:
                if not EX: A(f's_cmp_eq_u32 s{sRole}, 1'); A(f's_cbranch_scc0 {lab}a')
                for ii in range(4):
                    G.vmop(f'buffer_load_dwordx4 v[{vW2+4*ii}:{vW2+4*ii+3}], v{vWOFF2}, s[{rW2}:{rW2+3}], 0 offen offset:{ii*1024} {wnt}', 'w2l', not EX)
                G.vmop(f'buffer_load_ushort v{vB1}, v{vB1OFF}, s[{rB1}:{rB1+3}], 0 offen', 'b1l', not EX)
                if not EX:
                    A(f'{lab}a:')
                    A(f's_cmp_eq_u32 s{sRole}, 2'); A(f's_cbranch_scc0 {lab}b')
                G.vmop(f'buffer_load_ushort v{vXV}, v{vXOFF}, s[{rX}:{rX+3}], 0 offen', 'xv', not EX)
                G.vmop(f'buffer_load_ushort v{vB2V}, v{vB2OFF}, s[{rB2}:{rB2+3}], 0 offen', 'b2l', not EX)
                if not EX: A(f'{lab}b:')
        def kproc(t):
            if self.kw.get('novalu'): return
            D0 = vD + 8 * (t & 1); D1 = D0 + 4
            sA, sB_ = T(0), T(1)
            A(f'v_add_f32_dpp v{sA}, v{D0+1}, v{D0} row_ror:8 row_mask:0xf bank_mask:0x3')
            A(f'v_add_f32_dpp v{sB_}, v{D0+3}, v{D0+2} row_ror:8 row_mask:0xf bank_mask:0x3')
            A(f'v_add_f32_dpp v{sA}, v{D1}, v{D1+1} row_ror:8 row_mask:0xf bank_mask:0xc')
            A(f'v_add_f32_dpp v{sB_}, v{D1+2}, v{D1+3} row_ror:8 row_mask:0xf bank_mask:0xc')
            A(f'v_cvt_pk_bf16_f32 v{T(2)}, v{sA}, v{sB_}')
            A(f'v_max3_f32 v{vMX}, v{vMX}, v{sA}, v{sB_}')
            A(f'v_lshlrev_b32 v{T(3)}, 16, v{T(2)}'); A(f'v_and_b32 v{T(4)}, 0xffff0000, v{T(2)}')
            A(f'v_mul_f32 v{T(3)}, {SCALE}, v{T(3)}'); A(f'v_mul_f32 v{T(4)}, {SCALE}, v{T(4)}')
            A(f'v_cvt_pk_bf16_f32 v{vS+t}, v{T(3)}, v{T(4)}')
        if SL: slide_issue(-1)
        for t in range(32):
            u = t
            D0 = vD + 8 * (t & 1); D1 = D0 + 4
            r = (u % RING) * 16
            mf = [f'v_mfma_f32_16x16x32_bf16 v[{D0}:{D0+3}], a[{r}:{r+3}], v[{vBQ}:{vBQ+3}], 0',
                  f'v_mfma_f32_16x16x32_bf16 v[{D1}:{D1+3}], a[{r+4}:{r+7}], v[{vBQ}:{vBQ+3}], 0',
                  f'v_mfma_f32_16x16x32_bf16 v[{D0}:{D0+3}], a[{r+8}:{r+11}], v[{vBQ+4}:{vBQ+7}], v[{D0}:{D0+3}]',
                  f'v_mfma_f32_16x16x32_bf16 v[{D1}:{D1+3}], a[{r+12}:{r+15}], v[{vBQ+4}:{vBQ+7}], v[{D1}:{D1+3}]']
            if SL:
                for q in range(4):
                    j = 4 * u + q
                    G.vmwait_idx(G.lidx[j])
                    slide_issue(j, self.kw.get('sboost', 0) if (t == 31 and q == 3) else 0)
                    A(mf[q])
            else:
                G.vmwait(f'u{u}')
                for m_ in mf: A(m_)
                throttled_issue(u, u + (self.kw.get('boost', LOOK) if t >= 32 - self.kw.get('boostn', 1) else LOOK))
            if self.kw.get('atsp') and t < 16:
                A(f's_cmp_eq_u32 s{sAt}, {t}'); A(f's_cbranch_scc0 L_at{t}')
                G.vmop(f'buffer_atomic_add v{vONE}, v{vATO}, s[{rDBG}:{rDBG+3}], 0 offen', 'atom', True)
                A(f'L_at{t}:')
            wt0, wper = self.kw.get('wot', (2, 2))
            if not self.nowo and t >= wt0 and wper * (t - wt0) < 32: emit_wo(wper * (t - wt0), min(32, wper * (t - wt0 + 1)))
            if t in (7, 15, 23): G.stamp(16 + t // 8)
            if self.kw.get('st4'): A('s_memrealtime s[96:97]'); A('s_waitcnt lgkmcnt(0)'); A('v_writelane_b32 v252, s96, %d' % t)
            if t == 27 and not self.kw.get('nocnt'):
                A(f'v_mov_b32 v{T(5)}, 0')
                G.vmop(f'buffer_load_dword v{vCNT}, v{T(5)}, s[{rDBG}:{rDBG+3}], 0 offen sc1', 'cnt')
            if t > 0: kproc(t - 1)
        kproc(31)
        G.stamp(2)
        self.wave_allreduce('max', vMX, T(0))
        G.rbf(vM, vMX); A(f'v_mul_f32 v{vM}, {SCALE}, v{vM}'); G.rbf(vM)
        A(f'v_mul_f32 v{vNM}, {LOG2E}, v{vM}'); A(f'v_sub_f32 v{vNM}, 0, v{vNM}')
        A(f's_mov_b32 s{sT2}, {LOG2E}')
        A(f'v_mov_b32 v{vLS}, 0')
        for t in range(0 if self.kw.get('notrans') else 32):
            a, b = T(2 * (t & 1)), T(2 * (t & 1) + 1)
            A(f'v_lshlrev_b32 v{a}, 16, v{vS+t}'); A(f'v_and_b32 v{b}, 0xffff0000, v{vS+t}')
            A(f'v_fma_f32 v{a}, v{a}, s{sT2}, v{vNM}'); A(f'v_fma_f32 v{b}, v{b}, s{sT2}, v{vNM}')
            A(f'v_exp_f32 v{a}, v{a}'); A(f'v_exp_f32 v{b}, v{b}')
            A(f'v_add_f32 v{vLS}, v{vLS}, v{a}'); A(f'v_cvt_pk_bf16_f32 v{vS+t}, v{a}, v{b}'); A(f'v_add_f32 v{vLS}, v{vLS}, v{b}')
        self.wave_allreduce('add', vLS, T(0))
        A(f'v_mul_f32 v{vLS}, 0.125, v{vLS}') if False else A(f'v_mul_f32 v{vLS}, 0x3e000000, v{vLS}')
        A(f'v_mov_b32 v{T(0)}, v{vM}'); A(f'v_mov_b32 v{T(1)}, v{vLS}')
        if not self.kw.get('nocnt'):
            G.vmop(f'buffer_store_dwordx2 v[{T(0)}:{T(1)}], v{vMLp}, s[{rWS}:{rWS+3}], 0 offen sc1', 'mlst')
            G.vmwait('cnt')
        else: A('s_branch L_cnt_ok')
        A(f's_mov_b32 s{sSpin}, {self.spin}')
        A('L_cnt:')
        A(f'v_readfirstlane_b32 s{sT}, v{vCNT}')
        A(f's_cmp_ge_u32 s{sT}, 256'); A('s_cbranch_scc1 L_cnt_ok')
        A(f's_sub_u32 s{sSpin}, s{sSpin}, 1'); A('s_cbranch_scc1 L_cnt_ok')
        A(f'v_mov_b32 v{T(5)}, 0')
        A(f'buffer_load_dword v{vCNT}, v{T(5)}, s[{rDBG}:{rDBG+3}], 0 offen sc1'); A('s_waitcnt vmcnt(0)')
        A('s_branch L_cnt')
        A('L_cnt_ok:')
        if QX:
            A(f's_cmp_lt_u32 s2, 32'); A('s_cbranch_scc0 L_eup'); A(f's_cmp_eq_u32 s{sW}, 0'); A('s_cbranch_scc0 L_eup')
            A(f'v_mov_b32 v{T(0)}, {OOB}'); A(f'v_cmp_eq_u32 vcc, 0, v{vL}'); A(f'v_cndmask_b32 v{T(0)}, v{T(0)}, v{vQE}, vcc')
            G.vmop(f'buffer_store_dwordx2 v[{vTG}:{vTG+1}], v{T(0)}, s[{rWS}:{rWS+3}], 0 offen sc1', 'eup', True)
            A('L_eup:')
        G.stamp(3)
        dl = self.kw.get('delay')
        if dl:
            which, n = dl
            A(f's_cmp_lt_u32 s{sBH}, 8'); A('s_cbranch_scc%d L_nodelay' % (0 if which == 'slow' else 1))
            for _ in range(n): A('s_sleep 64')
            A('L_nodelay:')
        def vprep(t):
            if self.kw.get('novalu'): return
            for ab in range(2):
                bs = vB + 8 * (t & 1) + 4 * ab
                for jj in range(4):
                    A(f'v_perm_b32 v{bs+jj}, v{vS+t}, v{vS+t}, v{vSEL+4*ab+jj}')
        def ml_compute():
            A(f'v_mov_b32 v{T(10)}, v{vML0}')
            for r_ in (1, 2, 4, 8): A(f'v_max_f32_dpp v{T(10)}, v{T(10)}, v{T(10)} row_ror:{r_} row_mask:0xf bank_mask:0xf')
            A(f'v_sub_f32 v{T(11)}, v{vML0}, v{T(10)}'); A(f'v_mul_f32 v{T(11)}, {LOG2E}, v{T(11)}'); A(f'v_exp_f32 v{T(11)}, v{T(11)}')
            A(f'v_mul_f32 v{T(11)}, v{T(11)}, v{vML1}')
            for r_ in (1, 2, 4, 8): A(f'v_add_f32_dpp v{T(11)}, v{T(11)}, v{T(11)} row_ror:{r_} row_mask:0xf bank_mask:0xf')
            A(f'v_sub_f32 v{T(10)}, v{vM}, v{T(10)}'); A(f'v_mul_f32 v{T(10)}, {LOG2E}, v{T(10)}'); A(f'v_exp_f32 v{T(10)}, v{T(10)}')
            A(f'v_rcp_f32 v{T(12)}, v{T(11)}'); A(f'v_mul_f32 v{vF}, v{T(10)}, v{T(12)}')
            A(f'v_cmp_u_f32 vcc, v{T(11)}, v{T(11)}')
        vprep(0)
        for t in range(32):
            u = 32 + t
            r = (u % RING) * 16
            bs = vB + 8 * (t & 1)
            mf = [f'v_mfma_f32_16x16x32_bf16 v[{vO}:{vO+3}], a[{r}:{r+3}], v[{bs}:{bs+3}], v[{vO}:{vO+3}]',
                  f'v_mfma_f32_16x16x32_bf16 v[{vO+4}:{vO+7}], a[{r+4}:{r+7}], v[{bs}:{bs+3}], v[{vO+4}:{vO+7}]',
                  f'v_mfma_f32_16x16x32_bf16 v[{vO}:{vO+3}], a[{r+8}:{r+11}], v[{bs+4}:{bs+7}], v[{vO}:{vO+3}]',
                  f'v_mfma_f32_16x16x32_bf16 v[{vO+4}:{vO+7}], a[{r+12}:{r+15}], v[{bs+4}:{bs+7}], v[{vO+4}:{vO+7}]']
            if SL:
                for q in range(4):
                    j = 4 * u + q
                    G.vmwait_idx(G.lidx[j])
                    slide_issue(j)
                    A(mf[q])
            else:
                G.vmwait(f'u{u}')
                for m_ in mf: A(m_)
                throttled_issue(u, u + LOOKV)
            wt0, wper = self.kw.get('wot', (2, 2))
            if not self.nowo and wper * (32 + t - wt0) < 32: emit_wo(wper * (32 + t - wt0), min(32, wper * (32 + t - wt0 + 1)))
            if t < 17 and not self.norole: emit_role_loads(t)
            if t in (7, 15, 23): G.stamp(20 + t // 8)
            if self.kw.get('st4'): A('s_memrealtime s[96:97]'); A('s_waitcnt lgkmcnt(0)'); A('v_writelane_b32 v252, s96, %d' % (32 + t))
            if t == 27:
                A(f's_cmp_eq_u32 s{sRole}, 1'); A('s_cbranch_scc0 L_pk1')
                for s_ in range(4):
                    for jj in range(4):
                        A(f'v_perm_b32 v{vW1+4*s_+jj}, v{vR+8*s_+2*jj+1}, v{vR+8*s_+2*jj}, s{sPK}')
                A('L_pk1:')
            if t == 17 and not self.kw.get('nocnt'):
                G.vmop(f'buffer_load_dwordx2 v[{vML0}:{vML1}], v{vMLq}, s[{rWS}:{rWS+3}], 0 offen sc1', 'mlq')
            if t == 25 and not self.kw.get('nocnt'):
                G.vmwait('mlq')
                A(f's_mov_b32 s{sSpin}, {self.spin}')
                A('L_ml:')
                ml_compute()
                A('s_cbranch_vccz L_ml_ok')
                A(f's_sub_u32 s{sSpin}, s{sSpin}, 1'); A('s_cbranch_scc1 L_ml_ok')
                A(f'buffer_load_dwordx2 v[{vML0}:{vML1}], v{vMLq}, s[{rWS}:{rWS+3}], 0 offen sc1'); A('s_waitcnt vmcnt(0)')
                A('s_branch L_ml')
                A('L_ml_ok:')
            if t < 31: vprep(t + 1)
        G.stamp(4)
        if self.kw.get('quit'): A('s_branch L_fin')
        for i in range(4): A(f'v_add_f32_dpp v{T(i)}, v{vO+4+i}, v{vO+i} row_ror:8 row_mask:0xf bank_mask:0xf')
        for i in range(4): A(f'v_mul_f32 v{T(i)}, v{vF}, v{T(i)}')
        for i in range(4): A(f'ds_write_b32 v{vOPA}, v{T(i)} offset:{L_OP + 32*i}')
        A(f's_lshl_b32 s{sT}, s{sW}, 9'); A(f'v_lshlrev_b32 v{T(10)}, 2, v{vL}'); A(f'v_add_u32 v{T(10)}, s{sT}, v{T(10)}')
        A(f'v_lshrrev_b32 v{T(11)}, 3, v{vN}'); A(f'v_lshlrev_b32 v{T(11)}, 8, v{T(11)}'); A(f'v_lshl_add_u32 v{T(11)}, v{vG}, 6, v{T(11)}'); A(f'v_add_u32 v{T(11)}, s{sT}, v{T(11)}')
        A('s_waitcnt lgkmcnt(0)'); A('s_barrier')
        for w in range(4): A(f'ds_read_b64 v[{T(2*w+2)}:{T(2*w+3)}], v{vA3} offset:{L_OP + 512*w}')
        A('s_waitcnt lgkmcnt(0)')
        A(f'v_pk_add_f32 v[{T(2)}:{T(3)}], v[{T(2)}:{T(3)}], v[{T(4)}:{T(5)}]'); A(f'v_pk_add_f32 v[{T(6)}:{T(7)}], v[{T(6)}:{T(7)}], v[{T(8)}:{T(9)}]')
        A(f'v_pk_add_f32 v[{T(2)}:{T(3)}], v[{T(2)}:{T(3)}], v[{T(6)}:{T(7)}]')
        A(f'v_cvt_pk_bf16_f32 v{T(4)}, v{T(2)}, v{T(3)}')
        A(f'v_lshlrev_b32 v{T(5)}, 16, v{T(4)}'); A(f'v_and_b32 v{T(6)}, 0xffff0000, v{T(4)}')
        A(f'v_sub_f32 v{T(5)}, v{T(2)}, v{T(5)}'); A(f'v_sub_f32 v{T(6)}, v{T(3)}, v{T(6)}')
        A(f'ds_write_b32 v{T(10)}, v{T(4)} offset:{L_OH}')
        A(f'v_cvt_pk_bf16_f32 v{T(5)}, v{T(5)}, v{T(6)}')
        A(f'ds_write_b32 v{T(10)}, v{T(5)} offset:{L_OH+256}')
        A('s_waitcnt lgkmcnt(0)')
        for k in range(4): A(f'ds_read_b128 v[{vXP+4*k}:{vXP+4*k+3}], v{T(11)} offset:{L_OH+16*k}')
        A('s_waitcnt lgkmcnt(0)')
        delta_steps(32, vDQ, None)
        for i in range(4): A(f'v_add_f32_dpp v{T(i)}, v{vDQ+i}, v{vDQ+i} row_ror:8 row_mask:0xf bank_mask:0xf')
        TSF = self.kw.get('tsf', 'sc1'); TLF = self.kw.get('tlf', 'sc1')
        G.vmop(f'buffer_store_dwordx4 v[{T(0)}:{T(3)}], v{vC1}, s[{rWS}:{rWS+3}], 0 offen {TSF}', 'c1st')
        G.stamp(5)
        A(f's_cmp_eq_u32 s{sRole}, 1'); A('s_cbranch_scc1 L_m1')
        A(f's_cmp_eq_u32 s{sRole}, 2'); A('s_cbranch_scc0 L_fin')
        if self.kw.get('rwarm'):
            A(f's_cmp_lt_u32 s{sW}, 2'); A('s_cbranch_scc0 L_fin')
        else:
            A(f's_cmp_eq_u32 s{sW}, 0'); A('s_cbranch_scc0 L_fin')
        def gather_multi(nl, voff, lab, sets):
            D = len(sets)
            def issue(rs):
                for k in range(nl):
                    if k % 4 == 0: A(f's_mov_b32 s{sT}, {(k//4)*4096}')
                    A(f'buffer_load_dwordx4 v[{rs+4*k}:{rs+4*k+3}], v{voff}, s[{rWS}:{rWS+3}], s{sT} offen offset:{(k%4)*1024} {TLF}')
            A(f's_mov_b32 s{sSpin}, {self.spin}')
            for rs in sets: issue(rs)
            A(f'{lab}:')
            for si, rs in enumerate(sets):
                base = nl * (D - 1)
                A(f's_waitcnt vmcnt({base + nl - 2})')
                for c in (0, 2): A(f'v_pk_add_f32 v[{T(c)}:{T(c+1)}], v[{rs+c}:{rs+c+1}], v[{rs+4+c}:{rs+4+c+1}]')
                for k in range(2, nl):
                    A(f's_waitcnt vmcnt({base + nl - 1 - k})')
                    for c in (0, 2): A(f'v_pk_add_f32 v[{T(c)}:{T(c+1)}], v[{T(c)}:{T(c+1)}], v[{rs+4*k+c}:{rs+4*k+c+1}]')
                A(f'v_cmp_u_f32 vcc, v{T(0)}, v{T(1)}'); A(f'v_cmp_u_f32 s[{sM}:{sM+1}], v{T(2)}, v{T(3)}')
                A(f's_or_b64 vcc, vcc, s[{sM}:{sM+1}]')
                A(f's_cbranch_vccz {lab}_ok')
                issue(rs)
            A(f's_sub_u32 s{sSpin}, s{sSpin}, 1'); A(f's_cbranch_scc0 {lab}')
            A(f'{lab}_ok:')
            gather_finish()
        def gather_finish():
            A(f'v_permlane32_swap_b32 v{T(0)}, v{T(2)}'); A(f'v_permlane32_swap_b32 v{T(1)}, v{T(3)}')
            A(f'v_add_f32 v{T(0)}, v{T(0)}, v{T(2)}'); A(f'v_add_f32 v{T(1)}, v{T(1)}, v{T(3)}')
            A(f'v_permlane16_swap_b32 v{T(0)}, v{T(1)}'); A(f'v_add_f32 v{T(0)}, v{T(0)}, v{T(1)}')
            A(f'v_add_f32_dpp v{T(0)}, v{T(0)}, v{T(0)} row_ror:4 row_mask:0xf bank_mask:0xf')
            A(f'v_add_f32_dpp v{T(0)}, v{T(0)}, v{T(0)} row_ror:8 row_mask:0xf bank_mask:0xf')
        def gather_reduce(nl, voff, lab):
            ms = self.kw.get('mset', {}).get(lab)
            if ms: return gather_multi(nl, voff, lab, [176, 32, 144, 64][:ms])
            A(f's_mov_b32 s{sSpin}, {self.spin}')
            A(f'{lab}:')
            for k in range(nl):
                if k % 4 == 0: A(f's_mov_b32 s{sT}, {(k//4)*4096}')
                A(f'buffer_load_dwordx4 v[{vR+4*k}:{vR+4*k+3}], v{voff}, s[{rWS}:{rWS+3}], s{sT} offen offset:{(k%4)*1024} {TLF}')
            k = 1
            A(f's_waitcnt vmcnt({nl-2})')
            for c in (0, 2): A(f'v_pk_add_f32 v[{T(c)}:{T(c+1)}], v[{vR+c}:{vR+c+1}], v[{vR+4+c}:{vR+4+c+1}]')
            for k in range(2, nl):
                A(f's_waitcnt vmcnt({nl-1-k})')
                for c in (0, 2): A(f'v_pk_add_f32 v[{T(c)}:{T(c+1)}], v[{T(c)}:{T(c+1)}], v[{vR+4*k+c}:{vR+4*k+c+1}]')
            A(f'v_cmp_u_f32 vcc, v{T(0)}, v{T(1)}'); A(f'v_cmp_u_f32 s[{sM}:{sM+1}], v{T(2)}, v{T(3)}')
            A(f's_or_b64 vcc, vcc, s[{sM}:{sM+1}]')
            A(f's_cbranch_vccz {lab}_ok')
            A(f's_sub_u32 s{sSpin}, s{sSpin}, 1'); A(f's_cbranch_scc0 {lab}')
            A(f'{lab}_ok:')
            A(f'v_permlane32_swap_b32 v{T(0)}, v{T(2)}'); A(f'v_permlane32_swap_b32 v{T(1)}, v{T(3)}')
            A(f'v_add_f32 v{T(0)}, v{T(0)}, v{T(2)}'); A(f'v_add_f32 v{T(1)}, v{T(1)}, v{T(3)}')
            A(f'v_permlane16_swap_b32 v{T(0)}, v{T(1)}'); A(f'v_add_f32 v{T(0)}, v{T(0)}, v{T(1)}')
            A(f'v_add_f32_dpp v{T(0)}, v{T(0)}, v{T(0)} row_ror:4 row_mask:0xf bank_mask:0xf')
            A(f'v_add_f32_dpp v{T(0)}, v{T(0)}, v{T(0)} row_ror:8 row_mask:0xf bank_mask:0xf')
        A(f'v_lshlrev_b32 v{vXV}, 16, v{vXV}'); A(f'v_lshlrev_b32 v{vB2V}, 16, v{vB2V}')
        gather_reduce(8, vHOFF, 'L_g1')
        G.stamp(6)
        if self.diag and self.kw.get('stspin'): A(f'v_writelane_b32 v251, s{sSpin}, 23')
        G.rbf(T(0)); A(f'v_add_f32 v{T(0)}, v{vXV}, v{T(0)}'); G.rbf(vHV, T(0))
        A(f'buffer_store_dword v{vHV}, v{vRS}, s[{rWS}:{rWS+3}], 0 offen {TSF}')
        for r_ in range(1, NRH):
            A(f's_mov_b32 s{sT}, {r_*16384}')
            A(f'buffer_store_dword v{vHV}, v{vRS}, s[{rWS}:{rWS+3}], s{sT} offen {TSF}')
        G.stamp(7)
        if self.kw.get('gate2'):
            gk = self.kw['gate2'] - 1
            A(f's_mov_b32 s{sSpin}, {self.spin}'); A(f's_mov_b32 s{sT}, {(gk//4)*4096}')
            A('L_gt2:')
            A(f'buffer_load_dwordx4 v[{vR}:{vR+3}], v{vC2OFF}, s[{rWS}:{rWS+3}], s{sT} offen offset:{(gk%4)*1024} {TLF}')
            A('s_waitcnt vmcnt(0)')
            if self.kw.get('gany'):
                A(f'v_cmp_u_f32 vcc, v{vR}, v{vR}'); A('s_cmp_eq_u64 vcc, -1'); A('s_cbranch_scc0 L_gt2_ok')
            else:
                A(f'v_cmp_u_f32 vcc, v{vR}, v{vR+1}'); A(f'v_cmp_u_f32 s[{sM}:{sM+1}], v{vR+2}, v{vR+3}'); A(f's_or_b64 vcc, vcc, s[{sM}:{sM+1}]')
                A('s_cbranch_vccz L_gt2_ok')
            A(f's_sub_u32 s{sSpin}, s{sSpin}, 1'); A('s_cbranch_scc0 L_gt2')
            A('L_gt2_ok:')
        gather_reduce(4 if self.kw.get('fakec2') else 7, vC2OFF, 'L_g2')
        G.stamp(8)
        if self.diag and self.kw.get('stspin'): A(f'v_writelane_b32 v251, s{sSpin}, 19')
        G.rbf(T(0)); A(f'v_add_f32 v{T(0)}, v{vB2V}, v{T(0)}'); G.rbf(T(0)); A(f'v_add_f32 v{T(0)}, v{vHV}, v{T(0)}')
        A(f'v_cvt_pk_bf16_f32 v{T(0)}, v{T(0)}, v{T(0)}')
        A(f'buffer_store_short v{T(0)}, v{vOUTA}, s[{rOUT}:{rOUT+3}], 0 offen')
        A('s_branch L_fin')
        A('L_m1:')
        A(f's_lshl_b32 s{sT}, s{sW}, 9'); A(f'v_lshrrev_b32 v{T(0)}, 5, v{vL}'); A(f'v_lshlrev_b32 v{T(0)}, 8, v{T(0)}'); A(f'v_and_b32 v{T(1)}, 31, v{vL}')
        A(f'v_lshl_add_u32 v{T(0)}, v{T(1)}, 3, v{T(0)}'); A(f'v_add_u32 v{vA1}, s{sT}, v{T(0)}')
        A(f'v_and_b32 v{T(0)}, 1, v{vN}'); A(f'v_lshlrev_b32 v{T(0)}, 8, v{T(0)}'); A(f'v_lshl_add_u32 v{T(0)}, v{vG}, 4, v{T(0)}'); A(f'v_add_u32 v{vA2}, s{sT}, v{T(0)}')
        A(f's_lshl_b32 s{sT}, s{sW}, 7'); A(f'v_lshlrev_b32 v{T(0)}, 2, v{vN}'); A(f'v_add_u32 v{vA3}, s{sT}, v{T(0)}')
        A(f'v_lshrrev_b32 v{T(0)}, 3, v{vN}'); A(f'v_lshlrev_b32 v{T(0)}, 6, v{T(0)}'); A(f'v_and_b32 v{T(1)}, 3, v{vN}'); A(f'v_lshl_add_u32 v{T(1)}, v{vG}, 2, v{T(1)}')
        A(f'v_lshl_add_u32 v{vA4}, v{T(1)}, 2, v{T(0)}')
        A(f'v_lshlrev_b32 v{vB1}, 16, v{vB1}')
        MW = self.kw.get('mwarm')
        if MW:
            A(f'v_mov_b32 v{vXOFF}, v{vHOFF}'); A(f'v_mov_b32 v{vC2OFF}, v{vRS}')
            A(f'v_mov_b32 v{vHOFF}, {OOB}'); A(f'v_mov_b32 v{vRS}, {OOB}'); A(f's_mov_b32 s{sU}, 0')
            A('L_m1p:')
        A(f's_mov_b32 s{sSpin}, {self.spin}')
        H = [vR + i for i in range(16)]
        MQ = self.kw.get('mq')
        if MQ:
            assert not THR
            A(f's_lshl_b32 s{sLim}, s{sW}, 9')
            A(f'v_lshlrev_b32 v{vWOFF2}, 3, v{vL}'); A(f'v_add_u32 v{vWOFF1}, s{sLim}, v{vWOFF2}')
            if MW: L_ = self.L; lab_ = L_.index('L_m1p:'); ins_ = L_[-3:]; del L_[-3:]; L_[lab_:lab_] = ins_
            if self.kw.get('gate3'):
                A(f's_lshr_b32 s{sT}, s2, {self.kw["gate3"] - 1}'); A(f's_and_b32 s{sT}, s{sT}, 7')
                A(f'v_bfe_u32 v{T(0)}, v{vL}, 2, 3'); A(f'v_cmp_eq_u32 vcc, s{sT}, v{T(0)}')
                A(f'v_mov_b32 v{T(1)}, {OOB}'); A(f'v_cndmask_b32 v{vB2OFF}, v{T(1)}, v{vHOFF}, vcc')
                A('L_gt3:')
                A(f'buffer_load_dwordx4 v[{vR}:{vR+3}], v{vB2OFF}, s[{rWS}:{rWS+3}], s{sLim} offen {TLF}')
                A('s_waitcnt vmcnt(0)')
                A(f'v_add_f32 v{T(0)}, v{H[0]}, v{H[1]}'); A(f'v_add_f32 v{T(1)}, v{H[2]}, v{H[3]}'); A(f'v_add_f32 v{T(0)}, v{T(0)}, v{T(1)}')
                A(f'v_cmp_u_f32 vcc, v{T(0)}, v{T(0)}')
                A('s_cbranch_vccz L_gt3_ok')
                A(f's_sub_u32 s{sSpin}, s{sSpin}, 1'); A('s_cbranch_scc0 L_gt3')
                A(f's_mov_b32 s{sSpin}, 0')
                A('L_gt3_ok:')
            A('L_g3:')
            A(f'buffer_load_dwordx4 v[{vR}:{vR+3}], v{vHOFF}, s[{rWS}:{rWS+3}], s{sLim} offen {TLF}')
            A('s_waitcnt vmcnt(0)')
            A(f'v_add_f32 v{T(0)}, v{H[0]}, v{H[1]}'); A(f'v_add_f32 v{T(1)}, v{H[2]}, v{H[3]}'); A(f'v_add_f32 v{T(0)}, v{T(0)}, v{T(1)}')
            A(f'v_cmp_u_f32 vcc, v{T(0)}, v{T(0)}')
            A('s_cbranch_vccz L_g3_ok')
            A(f's_sub_u32 s{sSpin}, s{sSpin}, 1'); A('s_cbranch_scc0 L_g3')
            A('L_g3_ok:')
            G.stamp(6)
            if self.diag and self.kw.get('stspin'): A(f'v_writelane_b32 v251, s{sSpin}, 19')
            self.half_allreduce('add', T(0), T(1))
            A(f'v_mul_f32 v{T(2)}, 0x3c000000, v{T(0)}')
            A(f'v_sub_f32 v{T(4)}, v{H[0]}, v{T(2)}'); A(f'v_sub_f32 v{T(5)}, v{H[1]}, v{T(2)}'); A(f'v_sub_f32 v{T(6)}, v{H[2]}, v{T(2)}'); A(f'v_sub_f32 v{T(7)}, v{H[3]}, v{T(2)}')
            A(f'v_mul_f32 v{T(3)}, v{T(4)}, v{T(4)}'); A(f'v_mul_f32 v{T(1)}, v{T(5)}, v{T(5)}')
            A(f'v_fmac_f32 v{T(3)}, v{T(6)}, v{T(6)}'); A(f'v_fmac_f32 v{T(1)}, v{T(7)}, v{T(7)}')
            A(f'v_add_f32 v{T(3)}, v{T(3)}, v{T(1)}')
            self.half_allreduce('add', T(3), T(1))
            A(f'ds_write_b64 v{vWOFF1}, v[{T(2)}:{T(3)}] offset:{L_QP}')
            A('s_waitcnt lgkmcnt(0)'); A('s_barrier')
            for w in range(4): A(f'ds_read_b64 v[{T(4+2*w)}:{T(5+2*w)}], v{vWOFF2} offset:{L_QP+512*w}')
            A('s_waitcnt lgkmcnt(2)')
            A(f'v_pk_add_f32 v[{T(12)}:{T(13)}], v[{T(4)}:{T(5)}], v[{T(6)}:{T(7)}]')
            A('s_waitcnt lgkmcnt(0)')
            A(f'v_pk_add_f32 v[{T(14)}:{T(15)}], v[{T(8)}:{T(9)}], v[{T(10)}:{T(11)}]')
            A(f'v_pk_add_f32 v[{T(12)}:{T(13)}], v[{T(12)}:{T(13)}], v[{T(14)}:{T(15)}]')
            A(f'v_mul_f32 v{T(0)}, 0x3e800000, v{T(12)}')
            for w in range(4): A(f'v_sub_f32 v{T(4+2*w)}, v{T(4+2*w)}, v{T(0)}')
            A(f'v_mul_f32 v{T(1)}, v{T(4)}, v{T(4)}'); A(f'v_mul_f32 v{T(2)}, v{T(6)}, v{T(6)}')
            A(f'v_fmac_f32 v{T(1)}, v{T(8)}, v{T(8)}'); A(f'v_fmac_f32 v{T(2)}, v{T(10)}, v{T(10)}')
            A(f'v_add_f32 v{T(1)}, v{T(1)}, v{T(2)}')
            A(f'v_mov_b32 v{T(3)}, v{T(13)}'); A(f'v_fmac_f32 v{T(3)}, 0x43000000, v{T(1)}')
        else:
            A('L_g3:')
            for kk in range(4):
                A(f's_add_u32 s{sT}, s{sW}, {kk}'); A(f's_and_b32 s{sT}, s{sT}, 3'); A(f's_lshl_b32 s{sT}, s{sT}, 9')
                A(f'buffer_load_dwordx4 v[{vR+4*kk}:{vR+4*kk+3}], v{vHOFF}, s[{rWS}:{rWS+3}], s{sT} offen {TLF}')
            A('s_waitcnt vmcnt(0)')
            A(f'v_pk_add_f32 v[{T(0)}:{T(1)}], v[{H[0]}:{H[1]}], v[{H[2]}:{H[3]}]')
            for k in range(2, 8): A(f'v_pk_add_f32 v[{T(0)}:{T(1)}], v[{T(0)}:{T(1)}], v[{H[2*k]}:{H[2*k+1]}]')
            A(f'v_add_f32 v{T(0)}, v{T(0)}, v{T(1)}')
            A(f'v_cmp_u_f32 vcc, v{T(0)}, v{T(0)}')
            A('s_cbranch_vccz L_g3_ok')
            A(f's_sub_u32 s{sSpin}, s{sSpin}, 1'); A('s_cbranch_scc0 L_g3')
            A('L_g3_ok:')
            G.stamp(6)
            self.half_allreduce('add', T(0), T(1))
            A(f'v_mul_f32 v{T(0)}, 0x3b000000, v{T(0)}')
            A(f'v_sub_f32 v{T(2)}, v{H[0]}, v{T(0)}'); A(f'v_mul_f32 v{T(3)}, v{T(2)}, v{T(2)}')
            A(f'v_sub_f32 v{T(4)}, v{H[1]}, v{T(0)}'); A(f'v_mul_f32 v{T(5)}, v{T(4)}, v{T(4)}')
            for k in range(2, 16, 2):
                A(f'v_sub_f32 v{T(2)}, v{H[k]}, v{T(0)}'); A(f'v_sub_f32 v{T(4)}, v{H[k+1]}, v{T(0)}')
                A(f'v_fmac_f32 v{T(3)}, v{T(2)}, v{T(2)}'); A(f'v_fmac_f32 v{T(5)}, v{T(4)}, v{T(4)}')
            A(f'v_add_f32 v{T(3)}, v{T(3)}, v{T(5)}')
            self.half_allreduce('add', T(3), T(1))
        self.ln_finish(T(0), T(3), T(8), T(9), 1.0 / 512)
        Y = H[0:4]
        self.ln_apply(Y, T(8), T(9))
        A(f'v_cvt_pk_bf16_f32 v{T(4)}, v{Y[0]}, v{Y[1]}'); A(f'v_cvt_pk_bf16_f32 v{T(5)}, v{Y[2]}, v{Y[3]}')
        A(f'ds_write_b64 v{vA1}, v[{T(4)}:{T(5)}] offset:{L_YB}')
        A('s_waitcnt lgkmcnt(0)')
        for s_ in range(4): A(f'ds_read_b128 v[{vXP+4*s_}:{vXP+4*s_+3}], v{vA2} offset:{L_YB+64*s_}')
        for s_ in range(4):
            A(f's_waitcnt lgkmcnt({3-s_})')
            c = '0' if s_ == 0 else f'v[{vDQ}:{vDQ+3}]'
            A(f'v_mfma_f32_16x16x32_bf16 v[{vDQ}:{vDQ+3}], v[{vXP+4*s_}:{vXP+4*s_+3}], v[{vW1+4*s_}:{vW1+4*s_+3}], {c}')
        A(f'ds_write_b32 v{vA3}, v{vDQ} offset:{L_TP}'); A(f'ds_write_b32 v{vA3}, v{vDQ+1} offset:{L_TP+64}')
        A('s_waitcnt lgkmcnt(0)'); A('s_barrier')
        for w in range(4): A(f'ds_read_b32 v{T(w)}, v{vA4} offset:{L_TP+128*w}')
        A('s_waitcnt lgkmcnt(0)')
        A(f'v_add_f32 v{T(0)}, v{T(0)}, v{T(1)}'); A(f'v_add_f32 v{T(2)}, v{T(2)}, v{T(3)}'); A(f'v_add_f32 v{T(0)}, v{T(0)}, v{T(2)}')
        G.rbf(T(0)); A(f'v_add_f32 v{T(0)}, v{vB1}, v{T(0)}'); G.rbf(T(0))
        import struct, math
        f2u = lambda f: struct.unpack('<I', struct.pack('<f', f))[0]
        K0 = -2 * math.log2(math.e) * math.sqrt(2 / math.pi); K1 = K0 * 0.044715
        A(f'v_mul_f32 v{T(1)}, v{T(0)}, v{T(0)}'); A(f'v_mov_b32 v{T(2)}, {hex(f2u(K0))}'); A(f'v_fmac_f32 v{T(2)}, {hex(f2u(K1))}, v{T(1)}')
        A(f'v_mul_f32 v{T(1)}, v{T(0)}, v{T(2)}'); A(f'v_exp_f32 v{T(1)}, v{T(1)}'); A(f'v_add_f32 v{T(1)}, 1.0, v{T(1)}'); A(f'v_rcp_f32 v{T(1)}, v{T(1)}')
        A(f'v_mul_f32 v{T(0)}, v{T(0)}, v{T(1)}'); A(f'v_cvt_pk_bf16_f32 v{vGA}, v{T(0)}, v{T(0)}')
        for ii in range(4):
            bs = vB + 4 * ii
            for jj in range(4):
                A(f'v_and_b32_dpp v{bs+jj}, v{vGA}, v{vMASK+jj} quad_perm:[{ii},{ii},{ii},{ii}] row_mask:0xf bank_mask:0xf')
        for ii in range(4):
            bs = vB + 4 * ii
            c = '0' if ii == 0 else f'v[{vDQ}:{vDQ+3}]'
            A(f'v_mfma_f32_16x16x32_bf16 v[{vDQ}:{vDQ+3}], v[{vW2+4*ii}:{vW2+4*ii+3}], v[{bs}:{bs+3}], {c}')
        A(f'buffer_store_dwordx4 v[{vDQ}:{vDQ+3}], v{vRS}, s[{rWS}:{rWS+3}], 0 offen {TSF}')
        G.stamp(7)
        if MW:
            A(f's_cmp_eq_u32 s{sU}, 0'); A('s_cbranch_scc0 L_fin')
            A(f's_mov_b32 s{sU}, 1'); A(f'v_mov_b32 v{vHOFF}, v{vXOFF}'); A(f'v_mov_b32 v{vRS}, v{vC2OFF}')
            A('s_branch L_m1p')
        A('L_fin:')
        if self.diag:
            A(f's_lshl_b32 s{sT}, s2, 2'); A(f's_add_u32 s{sT}, s{sT}, s{sW}'); A(f's_lshl_b32 s{sT}, s{sT}, 7'); A(f's_add_u32 s{sT}, s{sT}, {WS_DIAG}')
            A('s_memrealtime s[96:97]'); A('s_getreg_b32 s98, hwreg(HW_REG_XCC_ID)'); A('s_waitcnt lgkmcnt(0)')
            A('v_writelane_b32 v251, s96, 14'); A('v_writelane_b32 v251, s98, 15')
            A(f'v_lshlrev_b32 v{T(0)}, 2, v{vL}'); A(f'v_add_u32 v{T(0)}, s{sT}, v{T(0)}')
            A(f'v_mov_b32 v{T(1)}, {OOB}'); A(f'v_cmp_gt_u32 vcc, 32, v{vL}'); A(f'v_cndmask_b32 v{T(0)}, v{T(1)}, v{T(0)}, vcc')
            A(f'buffer_store_dword v251, v{T(0)}, s[{rWS}:{rWS+3}], 0 offen')
            if self.kw.get('st3') or self.kw.get('st4'):
                A(f's_lshl_b32 s{sT}, s2, 2'); A(f's_add_u32 s{sT}, s{sT}, s{sW}'); A(f's_lshl_b32 s{sT}, s{sT}, 8'); A(f's_add_u32 s{sT}, s{sT}, {WS_DIAG + 0x20000}')
                A(f'v_lshlrev_b32 v{T(0)}, 2, v{vL}'); A(f'v_add_u32 v{T(0)}, s{sT}, v{T(0)}')
                A(f'buffer_store_dword v252, v{T(0)}, s[{rWS}:{rWS+3}], 0 offen')
        A('L_end:')
        A('s_endpgm')
        return self.wrap()

    def ln_finish(self, mean, ss, om, orstd, inv_n):
        A = self.A
        import struct
        f2u = lambda f: struct.unpack('<I', struct.pack('<f', f))[0]
        A(f'v_mul_f32 v{ss}, {hex(f2u(inv_n))}, v{ss}'); self.rbf(ss)
        A(f'v_add_f32 v{ss}, {hex(f2u(1e-5))}, v{ss}'); self.rbf(ss)
        A(f'v_sqrt_f32 v{ss}, v{ss}'); self.rbf(ss)
        A(f'v_rcp_f32 v{orstd}, v{ss}')
        self.rbf(om, mean)
    def ln_stats(self, X, om, orstd, t0, t1, inv_n, red):
        A = self.A
        import struct
        f2u = lambda f: struct.unpack('<I', struct.pack('<f', f))[0]
        A(f'v_add_f32 v{t0}, v{X[0]}, v{X[1]}')
        for x in X[2:]: A(f'v_add_f32 v{t0}, v{t0}, v{x}')
        red('add', t0, t1)
        A(f'v_mul_f32 v{t0}, {hex(f2u(inv_n))}, v{t0}')
        A(f'v_sub_f32 v{t1}, v{X[0]}, v{t0}'); A(f'v_mul_f32 v{orstd}, v{t1}, v{t1}')
        for x in X[1:]:
            A(f'v_sub_f32 v{t1}, v{x}, v{t0}'); A(f'v_fmac_f32 v{orstd}, v{t1}, v{t1}')
        red('add', orstd, t1)
        A(f'v_mov_b32 v{t1}, v{orstd}')
        self.ln_finish(t0, t1, om, orstd, inv_n)
    def ln_apply(self, X, m, rstd):
        A = self.A
        for k in range(0, len(X), 2):
            A(f'v_sub_f32 v{X[k]}, v{X[k]}, v{m}'); A(f'v_sub_f32 v{X[k+1]}, v{X[k+1]}, v{m}')
            A(f'v_cvt_pk_bf16_f32 v{X[k+1]}, v{X[k]}, v{X[k+1]}')
            A(f'v_lshlrev_b32 v{X[k]}, 16, v{X[k+1]}'); A(f'v_and_b32 v{X[k+1]}, 0xffff0000, v{X[k+1]}')
            A(f'v_mul_f32 v{X[k]}, v{X[k]}, v{rstd}'); A(f'v_mul_f32 v{X[k+1]}, v{X[k+1]}, v{rstd}')

    def finish_debug(self, regs):
        raise NotImplementedError

    def wrap(self):
        body = hz.fix(self.L)
        H = []
        H.append(f'; @launch grid=(256,1,1) block=(256,1,1) lds={LDS_SIZE}')
        H.append('.amdgcn_target "amdgcn-amd-amdhsa--gfx950"')
        H.append('.text'); H.append(f'.globl {KN}'); H.append('.p2align 8'); H.append(f'.type {KN},@function'); H.append(f'{KN}:')
        H += body
        H.append('.section .rodata,"a"'); H.append('.p2align 6'); H.append(f'.amdhsa_kernel {KN}')
        H.append('  .amdhsa_next_free_vgpr 512'); H.append('  .amdhsa_next_free_sgpr 102'); H.append('  .amdhsa_accum_offset 256')
        H.append('  .amdhsa_group_segment_fixed_size 0'); H.append('  .amdhsa_kernarg_size 104'); H.append('  .amdhsa_user_sgpr_count 2')
        H.append('  .amdhsa_user_sgpr_kernarg_segment_ptr 1'); H.append('  .amdhsa_system_sgpr_workgroup_id_x 1')
        H.append('.end_amdhsa_kernel')
        return '\n'.join(H) + '\n'

if __name__ == '__main__':
    import ast
    kw = eval('dict(%s)' % (sys.argv[2] if len(sys.argv) > 2 else ''))
    open(sys.argv[1], 'w').write(Gen(**kw).gen())
```

```python
import sys
import hz
KN = 'sequential_preLN__mha_block_cached__mixer_channel_mlp__decode_kernel'

WS_ML = 0x0
WS_H  = 0x2000
WS_PROG = 0x4000
WS_C1 = 0x10000
WS_C2 = 0x90000
WS_SIZE = 0x100000
WS_DIAG = 0x100000
WS_QX = 0x140000
QX_STR = 0x4400
L_XN2 = 7168
OOB = 0x7ff00000

L_XN = 0
L_QP = 4096
L_QB = 6144
L_OP = 7168
L_OH = 9216
L_YB = 11264
L_TP = 13312
L_DUMMY = 13824
L_LIM = 15360
L_DUM2 = 15616
LDS_SIZE = 16384

SCALE = 0x3DB504F3
LOG2E = 0x3FB8AA3B

class Gen:
    def __init__(self, diag=False, nt='nt', wnt='', spin=1 << 15, ring=8, pre=6, stop=None, nowo=False, nowq=False, norole=False, **kw):
        self.L = []
        self.vm = []
        self.done = -1
        self.diag = diag; self.nt = nt; self.wnt = wnt; self.spin = spin
        self.ring = ring; self.pre = pre; self.stop = stop
        self.nstamp = 0; self.n3 = 0; self.lidx = {}
        self.nowo = nowo; self.nowq = nowq; self.norole = norole; self.kw = kw
    def A(self, s):
        if self.kw.get('nomfma') and s.startswith('v_mfma'): return
        self.L.append('  ' + s if not s.endswith(':') else s)
    def vmop(self, s, tag, optional=False):
        self.A(s); self.vm.append((tag, optional))
        if self.kw.get('st3') and self.n3 < 64 and not optional:
            self.A('s_memrealtime s[96:97]'); self.A('s_waitcnt lgkmcnt(0)'); self.A('v_writelane_b32 v252, s96, %d' % self.n3); self.n3 += 1
        out = len(self.vm) - 1 - self.done
        assert out <= 63, ('too many outstanding', out, tag)
    def vmwait(self, tag):
        idx = max(i for i, (t, o) in enumerate(self.vm) if t == tag)
        n = sum(1 for (t, o) in self.vm[idx + 1:] if not o)
        assert n <= 63
        self.A('s_waitcnt vmcnt(%d)' % n)
        self.done = max(self.done, idx)
    def vmwait_idx(self, idx):
        if idx <= self.done: return
        n = sum(1 for (t, o) in self.vm[idx + 1:] if not o)
        assert n <= 63
        self.A('s_waitcnt vmcnt(%d)' % n)
        self.done = max(self.done, idx)
    def vmdrain(self):
        self.A('s_waitcnt vmcnt(0)'); self.done = len(self.vm) - 1
    def stamp(self, k):
        if self.diag:
            self.A('s_memrealtime s[96:97]'); self.A('s_waitcnt lgkmcnt(0)')
            self.A('v_mov_b32 v250, s96'); self.A('v_writelane_b32 v251, s96, %d' % k)

    def srd(self, r, lo, hi, size, off=None):
        A = self.A
        if off is None:
            A(f's_mov_b32 s{r}, s{lo}'); A(f's_and_b32 s{r+1}, s{hi}, 0xffff')
        else:
            A(f's_add_u32 s{r}, s{lo}, {off}'); A(f's_addc_u32 s{r+1}, s{hi}, 0'); A(f's_and_b32 s{r+1}, s{r+1}, 0xffff')
        A(f's_mov_b32 s{r+2}, {size}'); A(f's_mov_b32 s{r+3}, 0x20000')

    def wave_allreduce(self, op, v, t):
        A = self.A
        for r in (1, 2, 4, 8):
            A(f'v_{op}_f32_dpp v{v}, v{v}, v{v} row_ror:{r} row_mask:0xf bank_mask:0xf')
        A(f'v_mov_b32 v{t}, v{v}'); A(f'v_permlane16_swap_b32 v{v}, v{t}'); A(f'v_{op}_f32 v{v}, v{v}, v{t}')
        A(f'v_mov_b32 v{t}, v{v}'); A(f'v_permlane32_swap_b32 v{v}, v{t}'); A(f'v_{op}_f32 v{v}, v{v}, v{t}')
    def half_allreduce(self, op, v, t):
        A = self.A
        for r in (1, 2, 4, 8):
            A(f'v_{op}_f32_dpp v{v}, v{v}, v{v} row_ror:{r} row_mask:0xf bank_mask:0xf')
        A(f'v_mov_b32 v{t}, v{v}'); A(f'v_permlane16_swap_b32 v{v}, v{t}'); A(f'v_{op}_f32 v{v}, v{v}, v{t}')
    def rbf(self, v, src=None):
        A = self.A
        s = v if src is None else src
        A(f'v_cvt_pk_bf16_f32 v{v}, v{s}, v{s}'); A(f'v_and_b32 v{v}, 0xffff0000, v{v}')

    def gen(self):
        A = self.A; G = self
        RING = self.ring; nt = self.nt; wnt = self.wnt
        sW = 3
        pX, pK, pV, pWQ, pWO, pW1, pB1, pW2, pB2, pOUT, pDBG, pWS = 4, 6, 8, 10, 12, 16, 18, 20, 22, 24, 26, 28
        rK, rV, rWQ, rWO, rWS, rDBG, rX, rW1, rW2, rB1, rB2, rOUT = 32, 36, 40, 44, 48, 52, 56, 60, 64, 68, 72, 76
        sOff, sT, sH, sB, sS, sBH, sRole, sSpin, sT2, sU = 80, 81, 82, 83, 84, 85, 86, 87, 88, 89
        sM = 90
        sPK = 92
        sAt = 93
        vL, vN, vG = 1, 2, 3
        vK, vV, vWQ, vWO, vC1, vMLp, vMLq, vRS = 4, 5, 6, 7, 8, 9, 10, 11
        vSEL = 12
        vMASK = 20
        vBQ = 24
        vS = 32
        vD = 64
        vO = 80
        vB = 88
        vXP = 104
        vDQ = 120
        vT = 124
        vMX, vLS, vM, vNM, vF, vML0, vML1, vCNT = 140, 141, 142, 143, 208, 210, 211, 212
        vW1 = 144
        vW2 = 160
        vR = 176
        vB1, vXV, vB2V, vHV, vOPA, vSENT, vOUTA = 213, 214, 215, 216, 217, 220, 218
        vA1, vA2, vA3, vA4 = 224, 225, 226, 227
        vXR = 228
        vWOFF1, vWOFF2, vB1OFF, vHOFF, vGA = 232, 233, 234, 235, 236
        vONE, vATO = 237, 238
        vXOFF, vB2OFF, vC2OFF = 239, 240, 241
        vPROG = (242, 209); vPUBO, vPRO, vLIMW, vLIMR, vLIM, vPV, vPT, vPT2, vWIN = 243, 244, 245, 246, 247, 248, 249, 219, 253
        vSNAP, vEFF = 254, 255
        sLim, sSp2 = 94, 95
        THR = self.kw.get('thr'); CHK = self.kw.get('chk', 2); NREP = self.kw.get('nrep', 32)
        aW = 128
        T = lambda i: vT + i

        A('s_cmp_ge_u32 s2, 256'); A('s_cbranch_scc1 L_end')
        if self.kw.get('wgx'): A('s_xor_b32 s2, s2, %d' % self.kw['wgx'])
        if self.kw.get('hperm'):
            pc = sum(v << (4 * i) for i, v in enumerate(self.kw['hperm']))
            A('s_and_b32 s3, s2, 7'); A('s_lshl_b32 s3, s3, 2'); A('s_lshr_b32 s3, %d, s3' % pc); A('s_and_b32 s3, s3, 7')
            A('s_andn2_b32 s2, s2, 7'); A('s_or_b32 s2, s2, s3')
        A(f's_load_dwordx16 s[4:19], s[0:1], 0'); A('s_load_dwordx8 s[20:27], s[0:1], 64'); A('s_load_dwordx2 s[28:29], s[0:1], 96')
        if self.diag:
            A('v_mov_b32 v251, 0')
            G.stamp(0)
        A(f'v_and_b32 v{vL}, 63, v0'); A(f'v_lshrrev_b32 v{T(0)}, 6, v0'); A(f'v_and_b32 v{vN}, 15, v0')
        A(f'v_readfirstlane_b32 s{sW}, v{T(0)}')
        A(f'v_lshrrev_b32 v{vG}, 4, v{vL}')
        A(f's_and_b32 s{sH}, s2, 31'); A(f's_lshr_b32 s{sB}, s2, 5'); A(f's_and_b32 s{sB}, s{sB}, 1'); A(f's_lshr_b32 s{sS}, s2, 6'); A(f's_and_b32 s{sBH}, s2, 63')
        if self.kw.get('hmap') == 'c4':
            A(f's_and_b32 s{sT}, s2, 7'); A(f's_lshl_b32 s{sT}, s{sT}, 2'); A(f's_bfe_u32 s{sH}, s2, 0x20003'); A(f's_or_b32 s{sH}, s{sH}, s{sT}')
            A(f's_lshl_b32 s{sT}, s{sB}, 5'); A(f's_or_b32 s{sBH}, s{sH}, s{sT}')
        if self.kw.get('only') is not None:
            kind, val = self.kw['only']
            if kind == 'cls': A(f's_and_b32 s{sT}, s{sH}, 3'); A(f's_cmp_eq_u32 s{sT}, {val}'); A('s_cbranch_scc0 L_end')
            if kind == 'lt': A(f's_cmp_lt_u32 s2, {val}'); A('s_cbranch_scc0 L_end')
        A(f's_lshl_b32 s{sT}, s{sW}, 12')
        A(f'v_lshrrev_b32 v{T(0)}, 1, v{vN}'); A(f'v_lshlrev_b32 v{T(0)}, 8, v{T(0)}')
        A(f'v_and_b32 v{T(1)}, 1, v{vN}'); A(f'v_lshl_add_u32 v{T(0)}, v{T(1)}, 6, v{T(0)}')
        A(f'v_lshl_add_u32 v{T(0)}, v{vG}, 4, v{T(0)}'); A(f'v_add_u32 v{vK}, s{sT}, v{T(0)}')
        A(f'v_lshlrev_b32 v{T(0)}, 9, v{vG}'); A(f'v_lshl_add_u32 v{T(0)}, v{vN}, 4, v{T(0)}'); A(f'v_add_u32 v{vV}, s{sT}, v{T(0)}')
        A(f's_lshl_b32 s{sT}, s{sW}, 20'); A(f'v_lshlrev_b32 v{T(0)}, 18, v{vG}'); A(f'v_lshl_add_u32 v{T(0)}, v{vN}, 4, v{T(0)}'); A(f'v_add_u32 v{vWQ}, s{sT}, v{T(0)}')
        QX = self.kw.get('qx')
        vTG, vEW, vQE, vQS, vQL = 144, 146, 148, 149, 150
        sQ, sJ = 98, 99
        if QX:
            A(f's_lshr_b32 s{sJ}, s2, 5')
            A(f's_lshl_b32 s{sT}, s{sW}, 17'); A(f'v_lshlrev_b32 v{T(0)}, 15, v{vG}'); A(f'v_lshl_add_u32 v{T(0)}, v{vN}, 4, v{T(0)}'); A(f'v_add_u32 v{vWQ}, s{sT}, v{T(0)}')
            A(f's_mul_i32 s{sT}, s{sH}, {QX_STR}'); A(f's_add_u32 s{sT}, s{sT}, {WS_QX}'); A(f'v_mov_b32 v{vQE}, s{sT}')
            A(f's_lshl_b32 s{sT2}, s{sJ}, 11'); A(f's_add_u32 s{sT2}, s{sT2}, s{sT}'); A(f's_add_u32 s{sT2}, s{sT2}, 1024')
            A(f's_lshl_b32 s{sQ}, s{sW}, 9'); A(f's_add_u32 s{sT2}, s{sT2}, s{sQ}')
            A(f'v_lshlrev_b32 v{T(0)}, 4, v{vL}'); A(f'v_add_u32 v{T(1)}, s{sT2}, v{T(0)}'); A(f'v_mov_b32 v{T(3)}, {OOB}')
            A(f'v_cmp_gt_u32 vcc, 32, v{vL}'); A(f'v_cndmask_b32 v{vQS}, v{T(3)}, v{T(1)}, vcc')
            A(f's_lshl_b32 s{sT2}, s{sW}, 12'); A(f's_add_u32 s{sT2}, s{sT2}, s{sT}'); A(f's_lshl_b32 s{sQ}, s{sB}, 10'); A(f's_add_u32 s{sT2}, s{sT2}, s{sQ}')
            A(f's_add_u32 s{sT2}, s{sT2}, 1024'); A(f'v_add_u32 v{vQL}, s{sT2}, v{T(0)}')
            A(f's_mov_b32 s{sQ}, 0')
        A(f's_lshl_b32 s{sT}, s{sB}, 10'); A(f'v_lshlrev_b32 v{T(2)}, 4, v{vL}'); A(f'v_add_u32 v{T(2)}, s{sT}, v{T(2)}')
        if QX:
            A(f'v_lshrrev_b32 v{T(2)}, 5, v{vL}'); A(f'v_lshlrev_b32 v{T(2)}, 10, v{T(2)}'); A(f'v_and_b32 v{T(3)}, 31, v{vL}'); A(f'v_lshl_add_u32 v{T(2)}, v{T(3)}, 5, v{T(2)}')
        A(f's_lshl_b32 s{sT}, s{sB}, 5'); A(f's_lshl_b32 s{sT2}, s{sW}, 3'); A(f's_add_u32 s{sT}, s{sT}, s{sT2}')
        A(f's_lshl_b32 s{sT}, s{sT}, 13')
        A(f's_lshl_b32 s{sT2}, s{sH}, 2'); A(f's_add_u32 s{sT2}, s{sT2}, s{sS}'); A(f's_lshl_b32 s{sT2}, s{sT2}, 6')
        A(f's_add_u32 s{sT}, s{sT}, s{sT2}'); A(f's_add_u32 s{sT}, s{sT}, {WS_C1}')
        A(f'v_lshlrev_b32 v{T(0)}, 1, v{vG}'); A(f'v_lshrrev_b32 v{T(1)}, 2, v{vN}'); A(f'v_add_u32 v{T(0)}, v{T(0)}, v{T(1)}')
        A(f'v_lshlrev_b32 v{T(0)}, 13, v{T(0)}'); A(f'v_and_b32 v{T(1)}, 3, v{vN}'); A(f'v_lshl_add_u32 v{T(0)}, v{T(1)}, 4, v{T(0)}')
        A(f'v_add_u32 v{T(0)}, s{sT}, v{T(0)}')
        A(f'v_mov_b32 v{T(1)}, {OOB}'); A(f'v_cmp_gt_u32 vcc, 8, v{vN}')
        A(f'v_cndmask_b32 v{vC1}, v{T(1)}, v{T(0)}, vcc')
        A(f's_lshl_b32 s{sT}, s{sBH}, 7'); A(f's_lshl_b32 s{sT2}, s{sS}, 2'); A(f's_add_u32 s{sT2}, s{sT2}, s{sW}'); A(f's_lshl_b32 s{sT2}, s{sT2}, 3')
        A(f's_add_u32 s{sT2}, s{sT2}, s{sT}'); A(f'v_mov_b32 v{T(0)}, s{sT2}'); A(f'v_mov_b32 v{T(1)}, {OOB}')
        A(f'v_cmp_eq_u32 vcc, 0, v{vL}'); A(f'v_cndmask_b32 v{vMLp}, v{T(1)}, v{T(0)}, vcc')
        A(f'v_lshlrev_b32 v{T(0)}, 3, v{vN}'); A(f'v_add_u32 v{vMLq}, s{sT}, v{T(0)}')
        kp, vp = self.kw.get('kpat'), self.kw.get('vpat')
        if kp == 'v' or vp == 'k' or kp == 'lin' or vp == 'lin':
            A(f's_lshl_b32 s{sT}, s{sW}, 12')
            if kp == 'v' and vp is None: A(f'v_mov_b32 v{vK}, v{vV}')
            if vp == 'k' and kp is None: A(f'v_mov_b32 v{vV}, v{vK}')
            if kp == 'lin': A(f'v_lshlrev_b32 v{T(0)}, 4, v{vL}'); A(f'v_add_u32 v{vK}, s{sT}, v{T(0)}')
            if vp == 'lin': A(f'v_lshlrev_b32 v{T(0)}, 4, v{vL}'); A(f'v_add_u32 v{vV}, s{sT}, v{T(0)}')
        rot = self.kw.get('rot')
        if rot:
            A(f's_mul_i32 s99, s2, {rot}'); A(f's_lshr_b32 s{sT}, s2, 5'); A(f's_add_u32 s99, s99, s{sT}'); A('s_and_b32 s99, s99, 31'); A('s_lshl_b32 s99, s99, 14')
        A(f's_mov_b32 s{sRole}, 0')
        A(f's_and_b32 s{sT}, s2, 7'); A(f's_mul_i32 s{sT}, s{sT}, 14'); A(f's_lshr_b32 s{sT2}, s2, 3'); A(f's_add_u32 s{sU}, s{sT}, s{sT2}')
        A(f's_cmp_lt_u32 s2, 112'); A(f's_cselect_b32 s{sRole}, 1, 0')
        A(f's_sub_u32 s{sT}, s2, 128'); A(f's_cmp_lt_u32 s{sT}, 64'); A(f's_cselect_b32 s{sRole}, 2, s{sRole}'); A(f's_cselect_b32 s{sU}, s{sT}, s{sU}')
        for r_ in (vRS, vWOFF1, vWOFF2, vB1OFF, vHOFF, vOUTA, vXOFF, vB2OFF, vC2OFF): A(f'v_mov_b32 v{r_}, {OOB}')
        A(f's_cmp_eq_u32 s{sRole}, 1'); A('s_cbranch_scc0 L_r1')
        A(f'v_lshrrev_b32 v{T(0)}, 3, v{vN}'); A(f'v_lshlrev_b32 v{T(0)}, 5, v{T(0)}')
        A(f'v_lshl_add_u32 v{T(0)}, v{vG}, 1, v{T(0)}'); A(f'v_bfe_u32 v{T(1)}, v{vN}, 2, 1'); A(f'v_add_u32 v{T(0)}, v{T(0)}, v{T(1)}')
        A(f's_lshl_b32 s{sT}, s{sW}, 3'); A(f'v_add_u32 v{T(0)}, s{sT}, v{T(0)}')
        A(f'v_mul_u32_u24 v{T(0)}, {112*64}, v{T(0)}'); A(f'v_and_b32 v{T(1)}, 3, v{vN}'); A(f'v_lshl_add_u32 v{T(0)}, v{T(1)}, 4, v{T(0)}')
        if self.kw.get('fakec2'):
            A(f's_and_b32 s{sT}, s2, 7'); A(f's_lshl_b32 s{sT}, s{sT}, 3'); A(f's_lshr_b32 s{sT2}, s2, 3'); A(f's_add_u32 s{sT}, s{sT}, s{sT2}')
            A(f's_lshl_b32 s{sT}, s{sT}, 6'); A(f's_add_u32 s{sT}, s{sT}, {WS_C2}')
            A(f's_cmp_lt_u32 s2, 64'); A(f's_cselect_b32 s{sT}, s{sT}, {OOB}'); A(f'v_add_u32 v{vRS}, s{sT}, v{T(0)}')
        else:
            A(f's_lshl_b32 s{sT}, s{sU}, 6'); A(f's_add_u32 s{sT}, s{sT}, {WS_C2}'); A(f'v_add_u32 v{vRS}, s{sT}, v{T(0)}')
        A(f'v_lshrrev_b32 v{T(0)}, 1, v{vG}'); A(f'v_lshlrev_b32 v{T(0)}, 2, v{T(0)}'); A(f'v_and_b32 v{T(1)}, 1, v{vG}'); A(f'v_lshl_add_u32 v{T(0)}, v{T(1)}, 1, v{T(0)}')
        A(f's_lshl_b32 s{sT}, s{sW}, 7'); A(f'v_add_u32 v{T(0)}, s{sT}, v{T(0)}'); A(f'v_mul_u32_u24 v{T(0)}, 3584, v{T(0)}')
        A(f's_lshl_b32 s{sT}, s{sU}, 5'); A(f'v_lshl_add_u32 v{T(0)}, v{vN}, 1, v{T(0)}'); A(f'v_add_u32 v{vWOFF1}, s{sT}, v{T(0)}')
        A(f's_lshl_b32 s{sT}, s{sU}, 14'); A(f's_lshl_b32 s{sT2}, s{sW}, 8'); A(f's_add_u32 s{sT}, s{sT}, s{sT2}')
        A(f'v_lshlrev_b32 v{T(0)}, 12, v{vG}'); A(f'v_lshl_add_u32 v{T(0)}, v{vN}, 4, v{T(0)}'); A(f'v_add_u32 v{vWOFF2}, s{sT}, v{T(0)}')
        A(f's_lshl_b32 s{sT}, s{sU}, 5'); A(f'v_and_b32 v{T(0)}, 3, v{vN}'); A(f'v_lshl_add_u32 v{T(0)}, v{vG}, 2, v{T(0)}'); A(f'v_lshlrev_b32 v{T(0)}, 1, v{T(0)}'); A(f'v_add_u32 v{vB1OFF}, s{sT}, v{T(0)}')
        A(f'v_lshrrev_b32 v{T(0)}, 5, v{vL}'); A(f'v_lshlrev_b32 v{T(0)}, 11, v{T(0)}'); A(f'v_and_b32 v{T(1)}, 31, v{vL}'); A(f'v_lshl_add_u32 v{T(0)}, v{T(1)}, 4, v{T(0)}')
        WSH = 0x1d0000 if (self.kw.get('hrep') not in (None, True) and self.kw['hrep'] > 8) else WS_H
        A(f'v_add_u32 v{vHOFF}, {WSH}, v{T(0)}')
        if self.kw.get('hrep'):
            NR = 4 if self.kw['hrep'] is True else self.kw['hrep']
            if self.kw.get('hmap'): A(f's_lshr_b32 s{sT}, s2, 3'); A(f's_and_b32 s{sT}, s{sT}, {NR-1}')
            else: A(f's_and_b32 s{sT}, s2, {NR-1}')
            A(f's_lshl_b32 s{sT}, s{sT}, 12'); A(f'v_add_u32 v{vHOFF}, s{sT}, v{vHOFF}')
        A('s_branch L_r2')
        A('L_r1:')
        A(f's_cmp_eq_u32 s{sRole}, 2'); A('s_cbranch_scc0 L_r2')
        A(f's_cmp_eq_u32 s{sW}, 0'); A('s_cbranch_scc0 L_r2')
        A(f's_lshl_b32 s{sT}, s{sU}, 6'); A(f's_add_u32 s{sT}, s{sT}, {WSH}')
        if self.kw.get('hrep'):
            A(f'v_and_b32 v{T(0)}, 3, v{vN}'); A(f'v_lshlrev_b32 v{T(0)}, 4, v{T(0)}'); A(f'v_lshl_add_u32 v{T(0)}, v{vG}, 2, v{T(0)}')
            A(f'v_lshrrev_b32 v{T(1)}, 2, v{vN}'); A(f'v_lshl_add_u32 v{T(0)}, v{T(1)}, 12, v{T(0)}'); A(f'v_add_u32 v{vRS}, s{sT}, v{T(0)}')
        else:
            A(f'v_lshlrev_b32 v{T(0)}, 4, v{vN}'); A(f'v_lshl_add_u32 v{T(0)}, v{vG}, 2, v{T(0)}'); A(f'v_add_u32 v{T(0)}, s{sT}, v{T(0)}')
            A(f'v_mov_b32 v{T(1)}, {OOB}'); A(f'v_cmp_gt_u32 vcc, 4, v{vN}'); A(f'v_cndmask_b32 v{vRS}, v{T(1)}, v{T(0)}, vcc')
        A(f's_and_b32 s{sT}, s{sU}, 31'); A(f's_lshr_b32 s{sT2}, s{sT}, 1'); A(f's_lshl_b32 s{sT2}, s{sT2}, 5')
        A(f's_and_b32 s{sT}, s{sT}, 1'); A(f's_lshl_b32 s{sT}, s{sT}, 2'); A(f's_add_u32 s{sT}, s{sT}, s{sT2}')
        A(f'v_and_b32 v{T(0)}, 3, v{vN}'); A(f'v_lshl_add_u32 v{T(0)}, v{vG}, 3, v{T(0)}'); A(f'v_add_u32 v{T(0)}, s{sT}, v{T(0)}')
        A(f'v_lshlrev_b32 v{vB2OFF}, 1, v{T(0)}')
        A(f's_lshr_b32 s{sT}, s{sU}, 5'); A(f's_lshl_b32 s{sT}, s{sT}, 10'); A(f'v_add_u32 v{vXOFF}, s{sT}, v{vB2OFF}')
        A(f'v_mov_b32 v{T(1)}, {OOB}'); A(f'v_cmp_gt_u32 vcc, 4, v{vN}'); A(f'v_cndmask_b32 v{vOUTA}, v{T(1)}, v{vXOFF}, vcc')
        A(f's_lshl_b32 s{sT}, s{sU}, 13'); A(f's_add_u32 s{sT}, s{sT}, {WS_C1}'); A(f'v_lshlrev_b32 v{T(0)}, 4, v{vL}'); A(f'v_add_u32 v{vHOFF}, s{sT}, v{T(0)}')
        A(f's_mul_i32 s{sT}, s{sU}, 7168'); A(f's_add_u32 s{sT}, s{sT}, {WS_C2}'); A(f'v_add_u32 v{vC2OFF}, s{sT}, v{T(0)}')
        A('L_r2:')
        for i in range(4): A(f'v_mov_b32 v{vSENT+i}, -1')
        A('s_waitcnt lgkmcnt(0)')
        if self.kw.get('st2'): G.stamp(24)
        A(f's_lshl_b32 s{sT}, s{sBH}, 21'); A(f's_lshl_b32 s{sT2}, s{sS}, 19'); A(f's_add_u32 s{sT}, s{sT}, s{sT2}')
        if self.kw.get('krot'): A(f's_add_u32 s{sT}, s{sT}, {self.kw["krot"] << 21}'); A(f's_and_b32 s{sT}, s{sT}, {(64 << 21) - 1}')
        G.srd(rX, pX, pX + 1, 2048)
        vQX, vQR, vQP = vR, vR + 16, vR + 24
        WSZ = (WS_QX + 32 * QX_STR) if QX else WS_SIZE + (0x100000 if self.diag else 0)
        if WSH != WS_H: WSZ = WSH + self.kw['hrep'] * 4096
        if QX and QX.get('skip'):
            G.srd(rWS, pWS, pWS + 1, WSZ)
        elif QX:
            G.vmop(f'buffer_load_dwordx4 v[{vQR}:{vQR+3}], v{T(2)}, s[{rX}:{rX+3}], 0 offen', 'x')
            G.vmop(f'buffer_load_dwordx4 v[{vQR+4}:{vQR+7}], v{T(2)}, s[{rX}:{rX+3}], 0 offen offset:16', 'x')
            A(f's_lshl_b32 s{sT2}, s{sH}, 8')
            G.srd(rWQ, pWQ, pWQ + 1, 0, f's{sT2}'); A(f's_sub_u32 s{rWQ+2}, {512*8192}, s{sT2}')
            A(f's_lshl_b32 s{sT2}, s{sJ}, 19')
            for i in range(4):
                G.vmop(f'buffer_load_dwordx4 a[{aW+4*i}:{aW+4*i+3}], v{vWQ}, s[{rWQ}:{rWQ+3}], s{sT2} offen', f'wq{i}')
                if i < 3: A(f's_add_u32 s{sT2}, s{sT2}, 8192')
            G.srd(rWS, pWS, pWS + 1, WSZ)
            G.vmop(f'buffer_load_dwordx2 v[{vEW}:{vEW+1}], v{vQE}, s[{rWS}:{rWS+3}], 0 offen sc1', 'E')
        G.srd(rK, pK, pK + 1, 0x80000, f's{sT}')
        if not QX: G.vmop(f'buffer_load_dwordx4 v[{vXR}:{vXR+3}], v{T(2)}, s[{rX}:{rX+3}], 0 offen', 'x')
        if self.kw.get('xwait'): G.vmwait('x')
        koffs = [0, 2048, 128, 2176]
        voffs = [0, 2048, 256, 2304]
        if kp == 'v': koffs = list(voffs)
        if vp == 'k': voffs = list(koffs)
        if kp == 'lin': koffs = [0, 1024, 2048, 3072]
        if vp == 'lin': voffs = [0, 1024, 2048, 3072]
        if kp == 'adj': koffs = [0, 128, 2048, 2176]
        if vp == 'adj': voffs = [0, 256, 2048, 2304]
        last_soff = [None]
        def load_one(u, q, setoff=True):
            isK = u < 32; t = u % 32
            if setoff:
                if self.kw.get('rot'):
                    A(f's_add_u32 s{sOff}, s99, {t*16384}'); A(f's_and_b32 s{sOff}, s{sOff}, {31*16384}')
                else:
                    A(f's_mov_b32 s{sOff}, {t*16384}')
            r = ((u % RING) * 4 + q) * 4
            if isK: G.vmop(f'buffer_load_dwordx4 a[{r}:{r+3}], v{vK}, s[{rK}:{rK+3}], s{sOff} offen offset:{koffs[q]} {nt}', f'u{u}')
            else:   G.vmop(f'buffer_load_dwordx4 a[{r}:{r+3}], v{vV}, s[{rV}:{rV+3}], s{sOff} offen offset:{voffs[q]} {nt}', f'u{u}')
            G.lidx[4 * u + q] = len(G.vm) - 1
        def unit_loads(u):
            for q in range(4): load_one(u, q, q == 0)
        PRO = self.kw.get('pro')
        kcur = [None]; kiss = [0]
        def issue_k():
            m = kiss[0]; u_, q_ = m // 4, m % 4
            load_one(u_, q_, u_ != kcur[0]); kcur[0] = u_; kiss[0] += 1
        if QX:
            for _ in range(QX['k0']): issue_k()
        elif PRO:
            for _ in range(PRO[0]): issue_k()
        elif self.pre > 0: unit_loads(0)
        if self.kw.get('st2'): G.stamp(25)
        G.srd(rV, pV, pV + 1, 0x80000, f's{sT}')
        if not QX: G.srd(rWS, pWS, pWS + 1, WSZ)
        A(f's_lshl_b32 s{sT}, s{sH}, 8')
        if self.kw.get('wqsame'): A(f's_mov_b32 s{sT}, 0')
        if self.kw.get('wqrot'): A(f's_add_u32 s{sT}, s{sH}, {self.kw["wqrot"]}'); A(f's_and_b32 s{sT}, s{sT}, 31'); A(f's_lshl_b32 s{sT}, s{sT}, 8')
        if self.kw.get('wqx'): A(f's_lshr_b32 s{sT}, s2, 3'); A(f's_lshl_b32 s{sT}, s{sT}, 8')
        if self.kw.get('wqx4'): A(f's_lshr_b32 s{sT}, s2, 2'); A(f's_and_b32 s{sT}, s{sT}, 31'); A(f's_lshl_b32 s{sT}, s{sT}, 8')
        if QX: pass
        elif self.kw.get('wqbase'):
            pb = {'K': pK, 'V': pV, 'O': pWO}[self.kw['wqbase']]
            G.srd(rWQ, pb, pb + 1, 0, f's{sT}'); A(f's_sub_u32 s{rWQ+2}, {512*8192}, s{sT}')
        else:
            G.srd(rWQ, pWQ, pWQ + 1, 0, f's{sT}'); A(f's_sub_u32 s{rWQ+2}, {512*8192}, s{sT}')
        if self.kw.get('noinit'):
            A(f'v_mov_b32 v{vC1}, {OOB}'); A(f'v_mov_b32 v{vMLp}, {OOB}'); A(f'v_mov_b32 v{vRS}, {OOB}'); A(f'v_mov_b32 v{vHOFF}, {OOB}'); A(f'v_mov_b32 v{vC2OFF}, {OOB}'); A(f'v_mov_b32 v{vMLq}, {OOB}')
        G.vmop(f'buffer_store_dwordx4 v[{vSENT}:{vSENT+3}], v{vC1}, s[{rWS}:{rWS+3}], 0 offen sc1', 'init')
        G.vmop(f'buffer_store_dwordx2 v[{vSENT}:{vSENT+1}], v{vMLp}, s[{rWS}:{rWS+3}], 0 offen sc1', 'init')
        A(f's_cmp_eq_u32 s{sRole}, 1'); A('s_cbranch_scc0 L_i1')
        G.vmop(f'buffer_store_dwordx4 v[{vSENT}:{vSENT+3}], v{vRS}, s[{rWS}:{rWS+3}], 0 offen sc1', 'init', True)
        A('L_i1:')
        A(f's_cmp_eq_u32 s{sRole}, 2'); A('s_cbranch_scc0 L_i2')
        G.vmop(f'buffer_store_dword v{vSENT}, v{vRS}, s[{rWS}:{rWS+3}], 0 offen sc1', 'init', True)
        NRH = self.kw.get('hrep'); NRH = 1 if NRH in (None, True) else NRH // 4
        for r_ in range(1, NRH):
            A(f's_mov_b32 s{sT}, {r_*16384}')
            G.vmop(f'buffer_store_dword v{vSENT}, v{vRS}, s[{rWS}:{rWS+3}], s{sT} offen sc1', 'init', True)
        A('L_i2:')
        if self.kw.get('st2'): G.stamp(26)
        def wq_load(i):
            if self.kw.get('nowq0'): return
            if self.nowq and i >= 4: return
            A(f's_mov_b32 s{sT}, {i*8192}')
            r = aW + 4 * i
            G.vmop(f'buffer_load_dwordx4 a[{r}:{r+3}], v{vWQ}, s[{rWQ}:{rWQ+3}], s{sT} offen {wnt}', f'wq{i}')
            if self.kw.get('st2') and i == 15: G.stamp(27)
            if self.kw.get('st2') and i == 31: G.stamp(28)
        il = self.kw.get('il', 0)
        done_u = 1 if self.pre > 0 else 0
        if QX:
            for _ in range(QX.get('n1', 0)): issue_k()
        elif PRO:
            k0_, pa, pb_, Wp = PRO[:4]
            ktot = PRO[4] if len(PRO) > 4 else 28
            S = []
            for i in range(32):
                S.append(('wq', i))
                if i % pa == pa - 1 and i < 31: S += [('k', None)] * pb_
            S += [('k', None)] * 32
            sp = [0]
            def pro_next():
                while sp[0] < len(S):
                    kind, i = S[sp[0]]; sp[0] += 1
                    if kind == 'wq':
                        A(f's_mov_b32 s{sLim}, {i*8192}')
                        r = aW + 4 * i
                        G.vmop(f'buffer_load_dwordx4 a[{r}:{r+3}], v{vWQ}, s[{rWQ}:{rWQ+3}], s{sLim} offen {wnt}', f'wq{i}')
                        if self.kw.get('st2') and i == 15: G.stamp(27)
                        if self.kw.get('st2') and i == 31: G.stamp(28)
                        return True
                    if kiss[0] < ktot:
                        issue_k(); return True
                return False
            for _ in range(PRO[5] if len(PRO) > 5 else Wp - k0_ - 1): pro_next()
        else:
            for i in range(32):
                wq_load(i)
                if il and i % 4 == 3 and done_u < 1 + il and i < 31:
                    unit_loads(done_u); done_u += 1
            for u in range(done_u, self.pre): unit_loads(u)
        G.stamp(9)
        A(f's_lshl_b32 s{sT}, s{sH}, 17')
        if self.kw.get('wosame'): A(f's_mov_b32 s{sT}, 0')
        if self.kw.get('wox'): A(f's_lshr_b32 s{sT}, s2, 3'); A(f's_lshl_b32 s{sT}, s{sT}, 17')
        if self.kw.get('wox4'): A(f's_lshr_b32 s{sT}, s2, 2'); A(f's_and_b32 s{sT}, s{sT}, 31'); A(f's_lshl_b32 s{sT}, s{sT}, 17')
        if self.kw.get('woxcd'): A(f's_and_b32 s{sT}, s{sH}, 7'); A(f's_lshl_b32 s{sT}, s{sT}, 17')
        G.srd(rWO, pWO, pWO + 1, 131072, f's{sT}')
        G.srd(rDBG, pDBG, pDBG + 1, 256)
        G.srd(rW1, pW1, pW1 + 1, 512 * 3584)
        G.srd(rW2, pW2, pW2 + 1, 1792 * 1024)
        G.srd(rB1, pB1, pB1 + 1, 3584)
        G.srd(rB2, pB2, pB2 + 1, 1024)
        G.srd(rOUT, pOUT, pOUT + 1, 2048)
        A(f's_mov_b32 s{sPK}, 0x05040100')
        A(f's_lshl_b32 s{sT}, s{sW}, 8'); A(f'v_lshlrev_b32 v{T(0)}, 15, v{vG}'); A(f'v_lshl_add_u32 v{T(0)}, v{vN}, 4, v{T(0)}'); A(f'v_add_u32 v{vWO}, s{sT}, v{T(0)}')
        A(f's_lshr_b32 s{sAt}, s2, 4'); A(f's_and_b32 s{sAt}, s{sAt}, 15'); A(f's_cmp_eq_u32 s{sW}, 0'); A(f's_cselect_b32 s{sAt}, s{sAt}, 99')
        A(f'v_mov_b32 v{vONE}, 1'); A(f'v_mov_b32 v{vATO}, {OOB}'); A(f'v_cmp_eq_u32 vcc, 0, v{vL}'); A(f'v_cndmask_b32 v{vATO}, v{vATO}, 0, vcc')
        A(f'v_and_b32 v{T(0)}, 1, v{vN}'); A(f'v_cmp_eq_u32 vcc, 1, v{T(0)}')
        A(f'v_mov_b32 v{T(1)}, 0x0c0c0100'); A(f'v_mov_b32 v{T(2)}, 0x01000c0c'); A(f'v_cndmask_b32 v{T(3)}, v{T(1)}, v{T(2)}, vcc')
        A(f'v_mov_b32 v{T(1)}, 0x0c0c0302'); A(f'v_mov_b32 v{T(2)}, 0x03020c0c'); A(f'v_cndmask_b32 v{T(4)}, v{T(1)}, v{T(2)}, vcc')
        A(f'v_mov_b32 v{T(1)}, 0x0000ffff'); A(f'v_mov_b32 v{T(2)}, 0xffff0000'); A(f'v_cndmask_b32 v{T(5)}, v{T(1)}, v{T(2)}, vcc')
        A(f'v_bfe_u32 v{T(0)}, v{vN}, 1, 2'); A(f'v_mov_b32 v{T(6)}, 0x0c0c0c0c')
        for jj in range(4):
            A(f'v_cmp_eq_u32 vcc, {jj}, v{T(0)}')
            A(f'v_cndmask_b32 v{vSEL+jj}, v{T(6)}, v{T(3)}, vcc'); A(f'v_cndmask_b32 v{vSEL+4+jj}, v{T(6)}, v{T(4)}, vcc')
            A(f'v_cndmask_b32 v{vMASK+jj}, 0, v{T(5)}, vcc')
        if QX:
            A(f's_lshl_b32 s{sT}, s{sW}, 11'); A(f'v_lshlrev_b32 v{T(0)}, 5, v{vL}'); A(f'v_add_u32 v{vA1}, s{sT}, v{T(0)}')
            A(f's_lshl_b32 s{sT2}, s{sJ}, 2'); A(f's_add_u32 s{sT2}, s{sT2}, s{sW}'); A(f's_lshl_b32 s{sT2}, s{sT2}, 5'); A(f's_add_u32 s{sT}, s{sT}, s{sT2}')
            A(f'v_lshrrev_b32 v{T(0)}, 3, v{vN}'); A(f'v_lshlrev_b32 v{T(0)}, 10, v{T(0)}'); A(f'v_lshl_add_u32 v{T(0)}, v{vG}, 3, v{T(0)}'); A(f'v_add_u32 v{vA2}, s{sT}, v{T(0)}')
        else:
            A(f's_lshl_b32 s{sT}, s{sW}, 10'); A(f'v_lshlrev_b32 v{T(0)}, 4, v{vL}'); A(f'v_add_u32 v{vA1}, s{sT}, v{T(0)}')
            A(f's_mul_i32 s{sT}, s{sW}, 1280'); A(f'v_lshlrev_b32 v{T(0)}, 6, v{vG}'); A(f'v_add_u32 v{vA2}, s{sT}, v{T(0)}')
        if THR:
            PSTR = self.kw.get('pstr', 4)
            GSTR = self.kw.get('gstr', 256 if PSTR == 4 else 8 * PSTR)
            A(f's_and_b32 s{sT}, s2, 3'); A(f's_lshl_b32 s{sT}, s{sT}, 3'); A(f's_lshr_b32 s{sT2}, s2, 3'); A(f's_sub_u32 s{sT2}, s{sT2}, s{sT}'); A(f's_and_b32 s{sT2}, s{sT2}, 31')
            A(f's_mul_i32 s{sT2}, s{sT2}, {GSTR}'); A(f's_add_u32 s{sT2}, s{sT2}, {WS_PROG}')
            A(f'v_mov_b32 v{vPT}, {OOB}'); A(f'v_and_b32 v{vPRO}, 7, v{vL}'); A(f'v_mul_u32_u24 v{vPRO}, {PSTR}, v{vPRO}'); A(f'v_add_u32 v{vPRO}, s{sT2}, v{vPRO}')
            A(f's_and_b32 s{sT}, s2, 7'); A(f's_mul_i32 s{sT}, s{sT}, {PSTR}'); A(f's_add_u32 s{sT}, s{sT}, s{sT2}')
            A(f'v_mov_b32 v{vPUBO}, s{sT}'); A(f'v_cmp_eq_u32 vcc, 0, v{vL}'); A(f'v_cndmask_b32 v{vPUBO}, v{vPT}, v{vPUBO}, vcc')
            A(f'v_lshlrev_b32 v{vLIMW}, 2, v{vL}'); A(f'v_add_u32 v{vLIMW}, {L_DUM2}, v{vLIMW}')
            A(f'v_mov_b32 v{vLIMR}, {L_LIM}'); A(f'v_mov_b32 v{vWIN}, {THR}')
            A(f's_cmp_eq_u32 s{sW}, 0'); A('s_cbranch_scc1 L_thw0')
            A(f'v_mov_b32 v{vPUBO}, {OOB}'); A(f'v_mov_b32 v{vPRO}, {OOB}'); A('s_branch L_thw1')
            A('L_thw0:')
            A(f'v_cndmask_b32 v{vLIMW}, v{vLIMW}, v{vLIMR}, vcc')
            A('L_thw1:')
            A(f'ds_write_b32 v{vLIMW}, v{vWIN}'); A(f'v_mov_b32 v{vLIM}, {THR}'); A(f'v_mov_b32 v{vEFF}, 0')
            for r_ in vPROG: A(f'v_mov_b32 v{r_}, 0')
        noq = self.kw.get('noq')
        if noq: A('s_branch L_noq')
        if QX and QX.get('skip'):
            L_keep = list(self.L); vm_keep = list(self.vm); done_keep = self.done; kiss_keep = kiss[0]; kcur_keep = kcur[0]; lidx_keep = dict(self.lidx)
            self.vm += [('x', False), ('wq0', False), ('wq1', False), ('wq2', False), ('wq3', False), ('E', False)]
        if self.kw.get('st2'): G.stamp(29)
        G.vmwait('x')
        if self.kw.get('st2'): G.stamp(30)
        if THR:
            G.vmop(f'buffer_load_dword v{vSNAP}, v{vPRO}, s[{rWS}:{rWS+3}], 0 offen sc1', 'snap')
        if QX:
            for _ in range(QX.get('n2', 0)): issue_k()
            X = [vQX + i for i in range(16)]
            for k in range(8):
                A(f'v_lshlrev_b32 v{X[2*k]}, 16, v{vQR+k}'); A(f'v_and_b32 v{X[2*k+1]}, 0xffff0000, v{vQR+k}')
            self.ln_stats(X, T(8), T(9), T(10), T(11), 1.0 / 512, self.half_allreduce)
            self.ln_apply(X, T(8), T(9))
            for k in range(8): A(f'v_cvt_pk_bf16_f32 v{vQR+k}, v{X[2*k]}, v{X[2*k+1]}')
            A(f'ds_write_b128 v{vA1}, v[{vQR}:{vQR+3}] offset:{L_XN2}'); A(f'ds_write_b128 v{vA1}, v[{vQR+4}:{vQR+7}] offset:{L_XN2+16}')
            for _ in range(QX.get('n3', 0)): issue_k()
            A('s_waitcnt lgkmcnt(0)')
            A(f'ds_read_b64 v[{vXP}:{vXP+1}], v{vA2} offset:{L_XN2}')
        else:
            X = [T(i) for i in range(8)]
            for k in range(4):
                A(f'v_lshlrev_b32 v{X[2*k]}, 16, v{vXR+k}'); A(f'v_and_b32 v{X[2*k+1]}, 0xffff0000, v{vXR+k}')
            self.ln_stats(X, T(8), T(9), T(10), T(11), 1.0 / 512, self.wave_allreduce)
            self.ln_apply(X, T(8), T(9))
            for k in range(4): A(f'v_cvt_pk_bf16_f32 v{vXR+k}, v{X[2*k]}, v{X[2*k+1]}')
            A(f'ds_write_b128 v{vA1}, v[{vXR}:{vXR+3}] offset:{L_XN}')
            A('s_waitcnt lgkmcnt(0)')
            for k in range(4): A(f'ds_read_b128 v[{vXP+4*k}:{vXP+4*k+3}], v{vA2} offset:{L_XN+16*k}')
        A(f's_lshl_b32 s{sT}, s{sW}, 9'); A(f'v_and_b32 v{T(0)}, 7, v{vN}'); A(f'v_lshl_add_u32 v{T(0)}, v{vG}, 5, v{T(0)}'); A(f'v_lshlrev_b32 v{T(0)}, 2, v{T(0)}')
        A(f'v_add_u32 v{vA1}, s{sT}, v{T(0)}')
        A(f'v_mov_b32 v{T(1)}, {L_DUMMY - L_OP}'); A(f'v_cmp_gt_u32 vcc, 8, v{vN}'); A(f'v_cndmask_b32 v{vOPA}, v{T(1)}, v{vA1}, vcc')
        A(f'v_lshlrev_b32 v{vA3}, 3, v{vL}')
        A('s_waitcnt lgkmcnt(0)')
        if self.kw.get('st2'): G.stamp(31)
        def delta_steps(nsteps, acc, tagf, first_zero=True):
            if self.kw.get('dpipe') and tagf is None:
                def prm(i):
                    bset = vB + 4 * (i & 1)
                    for jj in range(4):
                        A(f'v_perm_b32 v{bset+jj}, v{vXP+(i>>1)}, v{vXP+(i>>1)}, v{vSEL+4*(i&1)+jj}')
                prm(0)
                for i in range(nsteps):
                    if i + 1 < nsteps: prm(i + 1)
                    bset = vB + 4 * (i & 1); r = aW + 4 * i
                    c = '0' if i == 0 else f'v[{acc}:{acc+3}]'
                    A(f'v_mfma_f32_16x16x32_bf16 v[{acc}:{acc+3}], a[{r}:{r+3}], v[{bset}:{bset+3}], {c}')
                return
            for i in range(nsteps):
                bset = vB + 4 * (i & 1)
                for jj in range(4):
                    A(f'v_perm_b32 v{bset+jj}, v{vXP+(i>>1)}, v{vXP+(i>>1)}, v{vSEL+4*(i&1)+jj}')
                if tagf is not None and i % 4 == 0: G.vmwait(tagf(i + 3))
                r = aW + 4 * i
                c = '0' if i == 0 else f'v[{acc}:{acc+3}]'
                A(f'v_mfma_f32_16x16x32_bf16 v[{acc}:{acc+3}], a[{r}:{r+3}], v[{bset}:{bset+3}], {c}')
        if QX:
            for i in range(4):
                bset = vB + 4 * (i & 1)
                for jj in range(4):
                    A(f'v_perm_b32 v{bset+jj}, v{vXP+(i>>1)}, v{vXP+(i>>1)}, v{vSEL+4*(i&1)+jj}')
                G.vmwait(f'wq{i}')
                c = '0' if i == 0 else f'v[{vDQ}:{vDQ+3}]'
                A(f'v_mfma_f32_16x16x32_bf16 v[{vDQ}:{vDQ+3}], a[{aW+4*i}:{aW+4*i+3}], v[{bset}:{bset+3}], {c}')
            A(f's_lshl_b32 s{sT}, s{sW}, 10'); A(f'v_and_b32 v{T(0)}, 7, v{vN}'); A(f'v_lshl_add_u32 v{T(0)}, v{vG}, 5, v{T(0)}'); A(f'v_lshlrev_b32 v{T(0)}, 2, v{T(0)}')
            A(f'v_lshrrev_b32 v{T(1)}, 3, v{vN}'); A(f'v_lshl_add_u32 v{T(0)}, v{T(1)}, 9, v{T(0)}'); A(f'v_add_u32 v{T(0)}, s{sT}, v{T(0)}')
            A(f's_lshl_b32 s{sT}, s{sW}, 8'); A(f'v_add_u32 v{T(1)}, s{sT}, v{vA3}')
            for i in range(4): A(f'ds_write_b32 v{T(0)}, v{vDQ+i} offset:{L_XN + 32*i}')
            for _ in range(QX.get('n4', 0)): issue_k()
            A('s_waitcnt lgkmcnt(0)'); A('s_barrier')
            for w in range(4): A(f'ds_read_b64 v[{T(2*w+2)}:{T(2*w+3)}], v{T(1)} offset:{L_XN + 1024*w}')
            G.vmwait('E')
            A(f'v_add_u32 v{vTG}, 0x9e3779b9, v{vEW}'); A(f'v_add_u32 v{vTG+1}, 0x7f4a7c15, v{vEW+1}')
            A('s_waitcnt lgkmcnt(0)')
            A(f'v_pk_add_f32 v[{T(2)}:{T(3)}], v[{T(2)}:{T(3)}], v[{T(4)}:{T(5)}]'); A(f'v_pk_add_f32 v[{T(6)}:{T(7)}], v[{T(6)}:{T(7)}], v[{T(8)}:{T(9)}]')
            A(f'v_pk_add_f32 v[{T(2)}:{T(3)}], v[{T(2)}:{T(3)}], v[{T(6)}:{T(7)}]')
            A(f'v_mov_b32 v{T(4)}, v{vTG}'); A(f'v_mov_b32 v{T(5)}, v{vTG+1}')
            G.vmop(f'buffer_store_dwordx4 v[{T(2)}:{T(5)}], v{vQS}, s[{rWS}:{rWS+3}], 0 offen sc1', 'qst')
            G.stamp(10)
            for _ in range(QX.get('n4b', 0)): issue_k()
            Wq, Pq, polls = QX['W'], QX['P'], list(QX['polls'])
            def q_poll(lab, firm):
                if not firm: A(f's_cmp_eq_u32 s{sQ}, 1'); A(f's_cbranch_scc1 {lab}')
                G.vmop(f'buffer_load_dwordx4 v[{vQP}:{vQP+3}], v{vQL}, s[{rWS}:{rWS+3}], 0 offen sc1', 'qpoll', not firm)
                G.vmop(f'buffer_load_dwordx4 v[{vQP+4}:{vQP+7}], v{vQL}, s[{rWS}:{rWS+3}], 0 offen offset:2048 sc1', 'qpoll', not firm)
                if not firm: A(f'{lab}:')
                return len(G.vm) - 1
            def q_cmp():
                A(f'v_cmp_ne_u32 vcc, v{vTG}, v{vQP+2}'); A(f'v_cmp_ne_u32 s[{sM}:{sM+1}], v{vTG+1}, v{vQP+3}'); A(f's_or_b64 vcc, vcc, s[{sM}:{sM+1}]')
                A(f'v_cmp_ne_u32 s[{sM}:{sM+1}], v{vTG}, v{vQP+6}'); A(f's_or_b64 vcc, vcc, s[{sM}:{sM+1}]')
                A(f'v_cmp_ne_u32 s[{sM}:{sM+1}], v{vTG+1}, v{vQP+7}'); A(f's_or_b64 vcc, vcc, s[{sM}:{sM+1}]')
                if QX.get('fake'): A('s_mov_b64 vcc, 0')
            def q_check(lab, idx):
                A(f's_cmp_eq_u32 s{sQ}, 1'); A(f's_cbranch_scc1 {lab}')
                n = sum(1 for (t_, o_) in G.vm[idx + 1:] if not o_)
                A(f's_waitcnt vmcnt({n})')
                q_cmp()
                A(f's_cbranch_vccnz {lab}'); A(f's_mov_b32 s{sQ}, 1')
                A(f'{lab}:')
            pend = None; nq = 0
            while True:
                m = kiss[0]
                if pend is not None and (m >= pend[0] or m >= Pq):
                    q_check(f'L_qc{nq}', pend[1]); pend = None
                if polls and polls[0] <= m and pend is None:
                    polls.pop(0); nq += 1
                    pend = (m + QX.get('d', Wq), q_poll(f'L_qp{nq}', nq == 1))
                    continue
                if m >= Pq: break
                if m - Wq >= 0: G.vmwait_idx(G.lidx[m - Wq])
                issue_k()
            A(f's_cmp_eq_u32 s{sQ}, 1'); A('s_cbranch_scc1 L_qok')
            A(f's_mov_b32 s{sSpin}, {self.spin}')
            G.stamp(12)
            A('L_qspin:')
            A(f'buffer_load_dwordx4 v[{vQP}:{vQP+3}], v{vQL}, s[{rWS}:{rWS+3}], 0 offen sc1')
            A(f'buffer_load_dwordx4 v[{vQP+4}:{vQP+7}], v{vQL}, s[{rWS}:{rWS+3}], 0 offen offset:2048 sc1')
            A('s_waitcnt vmcnt(0)')
            q_cmp()
            A('s_cbranch_vccz L_qok')
            A(f's_sub_u32 s{sSpin}, s{sSpin}, 1'); A('s_cbranch_scc0 L_qspin')
            A('L_qok:')
            G.stamp(11)
            A(f'v_pk_add_f32 v[{vQP}:{vQP+1}], v[{vQP}:{vQP+1}], v[{vQP+4}:{vQP+5}]')
            A(f's_lshl_b32 s{sT}, s{sW}, 9'); A(f'v_add_u32 v{T(0)}, s{sT}, v{vA3}')
            A(f'ds_write_b64 v{T(0)}, v[{vQP}:{vQP+1}] offset:{L_QP}')
            for _ in range(QX.get('n5', 0)): issue_k()
        elif PRO:
            for i in range(32):
                bset = vB + 4 * (i & 1)
                for jj in range(4):
                    A(f'v_perm_b32 v{bset+jj}, v{vXP+(i>>1)}, v{vXP+(i>>1)}, v{vSEL+4*(i&1)+jj}')
                idx = max(k for k, (t_, o_) in enumerate(G.vm) if t_ == f'wq{i}')
                G.vmwait_idx(idx)
                while len(G.vm) - 1 - idx < Wp and pro_next(): pass
                r = aW + 4 * i
                c = '0' if i == 0 else f'v[{vDQ}:{vDQ+3}]'
                A(f'v_mfma_f32_16x16x32_bf16 v[{vDQ}:{vDQ+3}], a[{r}:{r+3}], v[{bset}:{bset+3}], {c}')
            for _ in range(self.kw.get('kq', 0)): issue_k()
        else:
            delta_steps(32, vDQ, lambda i: f'wq{min(i, 3) if self.nowq else i}')
        if not QX:
            for i in range(4): A(f'ds_write_b32 v{vA1}, v{vDQ+i} offset:{L_QP + 32*i}')
        A('s_waitcnt lgkmcnt(0)'); A('s_barrier')
        A(f's_cmp_eq_u32 s{sW}, 0'); A('s_cbranch_scc0 L_c1')
        A(f'v_mov_b32 v{T(0)}, 1'); A(f'v_mov_b32 v{T(1)}, {OOB}'); A(f'v_cmp_eq_u32 vcc, 0, v{vL}'); A(f'v_cndmask_b32 v{T(1)}, v{T(1)}, 0, vcc')
        if not self.kw.get('noatom') and not self.kw.get('atsp'): G.vmop(f'buffer_atomic_add v{T(0)}, v{T(1)}, s[{rDBG}:{rDBG+3}], 0 offen', 'atom', True)
        A('L_c1:')
        for w in range(4): A(f'ds_read_b64 v[{T(2*w+2)}:{T(2*w+3)}], v{vA3} offset:{L_QP + 512*w}')
        if noq:
            A('L_noq:')
            A(f's_cmp_eq_u32 s{sW}, 0'); A('s_cbranch_scc0 L_c1b')
            A(f'v_mov_b32 v{T(0)}, 1'); A(f'v_mov_b32 v{T(1)}, {OOB}'); A(f'v_cmp_eq_u32 vcc, 0, v{vL}'); A(f'v_cndmask_b32 v{T(1)}, v{T(1)}, 0, vcc')
            if not self.kw.get('noatom'): A(f'buffer_atomic_add v{T(0)}, v{T(1)}, s[{rDBG}:{rDBG+3}], 0 offen')
            A('L_c1b:')
        LOOK = self.kw.get('look', RING); LOOKV = self.kw.get('lookv', LOOK)
        nxt = [self.pre]
        def issue_upto(u_hi):
            while nxt[0] <= min(u_hi, 63):
                unit_loads(nxt[0]); nxt[0] += 1
        if PRO or QX:
            while kiss[0] < self.kw.get('topup', 0): issue_k()
        else: issue_upto(LOOK - 1)
        SL = self.kw.get('slide'); SLV = self.kw.get('slidev', SL)
        nxl = [kiss[0] if (PRO or QX) else 4 * nxt[0]]
        m0_ = nxl[0]
        import math
        def lagof(m):
            f = SL if m < 128 else SLV
            eb = self.kw.get('eb')
            if eb and m >= 128 + 4 * eb[0]: f = eb[1]
            kb = self.kw.get('kb')
            if kb and m < 128 and m >= 4 * kb[0]: f = kb[1]
            rp = self.kw.get('ramp')
            if rp and m < 128:
                f = max(f, min(31, int(rp[0] - rp[1] * (m - m0_))))
            if isinstance(f, int) or float(f).is_integer(): return int(f)
            g = int(m // f)
            return int(math.floor((g + 1) * f) - math.floor(g * f))
        def slide_issue(j, boost=0):
            while nxl[0] <= 255 and (nxl[0] - lagof(nxl[0]) <= j or nxl[0] <= j + boost):
                m = nxl[0]; u_, q_ = m // 4, m % 4
                ap = self.kw.get('apace')
                if ap and not boost and m < 128 and m - ap > j: G.vmwait_idx(G.lidx[m - ap])
                load_one(u_, q_, u_ != slide_issue.cur); slide_issue.cur = u_
                nxl[0] += 1
        slide_issue.cur = None
        prog_k = [0]
        def prog_reduce(src):
            A(f'v_cmp_ne_u32 vcc, v{src}, v{vSNAP}'); A(f'v_cndmask_b32 v{vPT}, 0, v{src}, vcc'); A(f'v_max_u32 v{vEFF}, v{vEFF}, v{vPT}')
            A(f'v_min_u32_dpp v{vPT}, v{vEFF}, v{vEFF} row_ror:1 row_mask:0xf bank_mask:0xf')
            for r_ in (2, 4): A(f'v_min_u32_dpp v{vPT}, v{vPT}, v{vPT} row_ror:{r_} row_mask:0xf bank_mask:0xf')
            A(f'v_add_u32 v{vPT}, v{vWIN}, v{vPT}')
            A(f'ds_write_b32 v{vLIMW}, v{vPT}')
        def throttled_issue(g, u_hi):
            u_hi = min(u_hi, 63)
            if not THR: issue_upto(u_hi); return
            need_gate = u_hi >= nxt[0] and u_hi > THR
            if need_gate:
                lab = f'L_th{g}'
                A('s_waitcnt lgkmcnt(0)'); A(f'v_readfirstlane_b32 s{sLim}, v{vLIM}')
                A(f's_cmp_ge_u32 s{sLim}, {u_hi}'); A(f's_cbranch_scc1 {lab}_ok')
                A(f's_mov_b32 s{sSp2}, 4096')
                A(f'{lab}:')
                A(f's_cmp_eq_u32 s{sW}, 0'); A(f's_cbranch_scc0 {lab}_w')
                A(f'buffer_load_dword v{vPV}, v{vPRO}, s[{rWS}:{rWS+3}], 0 offen sc1'); A('s_waitcnt vmcnt(0)')
                prog_reduce(vPV)
                A(f'{lab}_w:')
                A(f'ds_read_b32 v{vLIM}, v{vLIMR}'); A('s_waitcnt lgkmcnt(0)'); A(f'v_readfirstlane_b32 s{sLim}, v{vLIM}')
                A(f's_cmp_ge_u32 s{sLim}, {u_hi}'); A(f's_cbranch_scc1 {lab}_ok')
                A(f's_sub_u32 s{sSp2}, s{sSp2}, 1'); A(f's_cbranch_scc0 {lab}')
                A(f'v_mov_b32 v{vWIN}, 0x100000')
                A(f'{lab}_ok:')
            more = nxt[0] <= 63 or True
            last_gate = 63 - 1
            do_chk = (g % CHK == 0) and nxt[0] < 63
            if do_chk:
                k = prog_k[0]
                G.vmop(f'buffer_load_dword v{vPROG[k & 1]}, v{vPRO}, s[{rWS}:{rWS+3}], 0 offen sc1', f'prog{k}')
            if g % self.kw.get('pubn', 1) == 0 and g < 63 - 2:
                A(f'v_mov_b32 v{vPV}, {g + 1}')
                G.vmop(f'buffer_store_dword v{vPV}, v{vPUBO}, s[{rWS}:{rWS+3}], 0 offen sc1', 'pub')
            issue_upto(u_hi)
            if do_chk:
                k = prog_k[0]
                if k > 0:
                    G.vmwait(f'prog{k-1}')
                    prog_reduce(vPROG[(k - 1) & 1])
                prog_k[0] += 1
            if nxt[0] <= 63: A(f'ds_read_b32 v{vLIM}, v{vLIMR}')
        A(f's_lshl_b32 s{sT}, s{sW}, 8'); A(f'v_lshlrev_b32 v{T(0)}, 2, v{vL}'); A(f'v_add_u32 v{T(0)}, s{sT}, v{T(0)}')
        A(f'v_lshrrev_b32 v{T(1)}, 3, v{vN}'); A(f'v_lshlrev_b32 v{T(1)}, 6, v{T(1)}'); A(f'v_lshl_add_u32 v{T(1)}, v{vG}, 4, v{T(1)}'); A(f'v_add_u32 v{T(1)}, s{sT}, v{T(1)}')
        A('s_waitcnt lgkmcnt(0)')
        A(f'v_pk_add_f32 v[{T(2)}:{T(3)}], v[{T(2)}:{T(3)}], v[{T(4)}:{T(5)}]'); A(f'v_pk_add_f32 v[{T(6)}:{T(7)}], v[{T(6)}:{T(7)}], v[{T(8)}:{T(9)}]')
        A(f'v_pk_add_f32 v[{T(2)}:{T(3)}], v[{T(2)}:{T(3)}], v[{T(6)}:{T(7)}]')
        A(f'v_cvt_pk_bf16_f32 v{T(2)}, v{T(2)}, v{T(3)}')
        A(f'ds_write_b32 v{T(0)}, v{T(2)} offset:{L_QB}')
        A('s_waitcnt lgkmcnt(0)')
        A(f'ds_read_b128 v[{vBQ}:{vBQ+3}], v{T(1)} offset:{L_QB}'); A(f'ds_read_b128 v[{vBQ+4}:{vBQ+7}], v{T(1)} offset:{L_QB+128}')
        A(f'v_mov_b32 v{vMX}, 0xff800000')
        for i in range(8): A(f'v_mov_b32 v{vO+i}, 0')
        A('s_waitcnt lgkmcnt(0)')
        G.stamp(1)
        if QX and QX.get('skip'):
            self.L[:] = L_keep; self.vm[:] = vm_keep; self.done = done_keep; kiss[0] = kiss_keep; kcur[0] = kcur_keep; self.lidx = lidx_keep
            nxl[0] = kiss[0]; m0_ = nxl[0]
            for i in range(8): A(f'v_mov_b32 v{vBQ+i}, 0'); A(f'v_mov_b32 v{vO+i}, 0')
            A(f'v_mov_b32 v{vMX}, 0xff800000')
            A(f's_lshl_b32 s{sT}, s{sW}, 9'); A(f'v_and_b32 v{T(0)}, 7, v{vN}'); A(f'v_lshl_add_u32 v{T(0)}, v{vG}, 5, v{T(0)}'); A(f'v_lshlrev_b32 v{T(0)}, 2, v{T(0)}')
            A(f'v_add_u32 v{vA1}, s{sT}, v{T(0)}')
            A(f'v_mov_b32 v{T(1)}, {L_DUMMY - L_OP}'); A(f'v_cmp_gt_u32 vcc, 8, v{vN}'); A(f'v_cndmask_b32 v{vOPA}, v{T(1)}, v{vA1}, vcc')
            A(f'v_lshlrev_b32 v{vA3}, 3, v{vL}')
            A(f'v_mov_b32 v{vTG}, 0'); A(f'v_mov_b32 v{vTG+1}, 0')
            G.stamp(1)
        if self.kw.get('qonly'): A('s_branch L_fin')
        if self.stop == 'q':
            return self.finish_debug([vBQ + i for i in range(8)])

        wo_loads = []
        for i in range(32):
            r = aW + 4 * i
            wo_loads.append((i // 4 * 4096, f'buffer_load_dwordx4 a[{r}:{r+3}], v{vWO}, s[{rWO}:{rWO+3}], s{sT} offen offset:{(i%4)*1024} {wnt}', f'wo{i}'))
        def emit_wo(k0, k1):
            for k in range(k0, k1):
                so, s, tag = wo_loads[k]
                if self.kw.get('wotiny'): so = 0
                if k == k0 or k % 4 == 0: A(f's_mov_b32 s{sT}, {so}')
                G.vmop(s, tag)
        EX = self.kw.get('exact', False)
        def emit_role_loads(part):
            lab = f'L_rl{part}'
            if part < 16:
                if not EX: A(f's_cmp_eq_u32 s{sRole}, 1'); A(f's_cbranch_scc0 {lab}')
                s_ = part // 4; e3 = part % 4
                A(f's_mov_b32 s{sT}, {(32*s_ + 8*e3)*3584}')
                for eh in (0, 1):
                    e = e3 + 4 * eh
                    G.vmop(f'buffer_load_ushort v{vR + 8*s_ + e}, v{vWOFF1}, s[{rW1}:{rW1+3}], s{sT} offen offset:{eh*3584} {wnt}', 'w1g', not EX)
                if not EX: A(f'{lab}:')
            else:
                if not EX: A(f's_cmp_eq_u32 s{sRole}, 1'); A(f's_cbranch_scc0 {lab}a')
                for ii in range(4):
                    G.vmop(f'buffer_load_dwordx4 v[{vW2+4*ii}:{vW2+4*ii+3}], v{vWOFF2}, s[{rW2}:{rW2+3}], 0 offen offset:{ii*1024} {wnt}', 'w2l', not EX)
                G.vmop(f'buffer_load_ushort v{vB1}, v{vB1OFF}, s[{rB1}:{rB1+3}], 0 offen', 'b1l', not EX)
                if not EX:
                    A(f'{lab}a:')
                    A(f's_cmp_eq_u32 s{sRole}, 2'); A(f's_cbranch_scc0 {lab}b')
                G.vmop(f'buffer_load_ushort v{vXV}, v{vXOFF}, s[{rX}:{rX+3}], 0 offen', 'xv', not EX)
                G.vmop(f'buffer_load_ushort v{vB2V}, v{vB2OFF}, s[{rB2}:{rB2+3}], 0 offen', 'b2l', not EX)
                if not EX: A(f'{lab}b:')
        def kproc(t):
            if self.kw.get('novalu'): return
            D0 = vD + 8 * (t & 1); D1 = D0 + 4
            sA, sB_ = T(0), T(1)
            A(f'v_add_f32_dpp v{sA}, v{D0+1}, v{D0} row_ror:8 row_mask:0xf bank_mask:0x3')
            A(f'v_add_f32_dpp v{sB_}, v{D0+3}, v{D0+2} row_ror:8 row_mask:0xf bank_mask:0x3')
            A(f'v_add_f32_dpp v{sA}, v{D1}, v{D1+1} row_ror:8 row_mask:0xf bank_mask:0xc')
            A(f'v_add_f32_dpp v{sB_}, v{D1+2}, v{D1+3} row_ror:8 row_mask:0xf bank_mask:0xc')
            A(f'v_cvt_pk_bf16_f32 v{T(2)}, v{sA}, v{sB_}')
            A(f'v_max3_f32 v{vMX}, v{vMX}, v{sA}, v{sB_}')
            A(f'v_lshlrev_b32 v{T(3)}, 16, v{T(2)}'); A(f'v_and_b32 v{T(4)}, 0xffff0000, v{T(2)}')
            A(f'v_mul_f32 v{T(3)}, {SCALE}, v{T(3)}'); A(f'v_mul_f32 v{T(4)}, {SCALE}, v{T(4)}')
            A(f'v_cvt_pk_bf16_f32 v{vS+t}, v{T(3)}, v{T(4)}')
        if SL: slide_issue(-1)
        for t in range(32):
            u = t
            D0 = vD + 8 * (t & 1); D1 = D0 + 4
            r = (u % RING) * 16
            mf = [f'v_mfma_f32_16x16x32_bf16 v[{D0}:{D0+3}], a[{r}:{r+3}], v[{vBQ}:{vBQ+3}], 0',
                  f'v_mfma_f32_16x16x32_bf16 v[{D1}:{D1+3}], a[{r+4}:{r+7}], v[{vBQ}:{vBQ+3}], 0',
                  f'v_mfma_f32_16x16x32_bf16 v[{D0}:{D0+3}], a[{r+8}:{r+11}], v[{vBQ+4}:{vBQ+7}], v[{D0}:{D0+3}]',
                  f'v_mfma_f32_16x16x32_bf16 v[{D1}:{D1+3}], a[{r+12}:{r+15}], v[{vBQ+4}:{vBQ+7}], v[{D1}:{D1+3}]']
            if SL:
                for q in range(4):
                    j = 4 * u + q
                    G.vmwait_idx(G.lidx[j])
                    slide_issue(j, self.kw.get('sboost', 0) if (t == 31 and q == 3) else 0)
                    A(mf[q])
            else:
                G.vmwait(f'u{u}')
                for m_ in mf: A(m_)
                throttled_issue(u, u + (self.kw.get('boost', LOOK) if t >= 32 - self.kw.get('boostn', 1) else LOOK))
            if self.kw.get('atsp') and t < 16:
                A(f's_cmp_eq_u32 s{sAt}, {t}'); A(f's_cbranch_scc0 L_at{t}')
                G.vmop(f'buffer_atomic_add v{vONE}, v{vATO}, s[{rDBG}:{rDBG+3}], 0 offen', 'atom', True)
                A(f'L_at{t}:')
            wt0, wper = self.kw.get('wot', (2, 2))
            if not self.nowo and t >= wt0 and wper * (t - wt0) < 32: emit_wo(wper * (t - wt0), min(32, wper * (t - wt0 + 1)))
            if t in (7, 15, 23): G.stamp(16 + t // 8)
            if self.kw.get('st4'): A('s_memrealtime s[96:97]'); A('s_waitcnt lgkmcnt(0)'); A('v_writelane_b32 v252, s96, %d' % t)
            if t == 27 and not self.kw.get('nocnt'):
                A(f'v_mov_b32 v{T(5)}, 0')
                G.vmop(f'buffer_load_dword v{vCNT}, v{T(5)}, s[{rDBG}:{rDBG+3}], 0 offen sc1', 'cnt')
            if t > 0: kproc(t - 1)
        kproc(31)
        G.stamp(2)
        self.wave_allreduce('max', vMX, T(0))
        G.rbf(vM, vMX); A(f'v_mul_f32 v{vM}, {SCALE}, v{vM}'); G.rbf(vM)
        A(f'v_mul_f32 v{vNM}, {LOG2E}, v{vM}'); A(f'v_sub_f32 v{vNM}, 0, v{vNM}')
        A(f's_mov_b32 s{sT2}, {LOG2E}')
        A(f'v_mov_b32 v{vLS}, 0')
        for t in range(0 if self.kw.get('notrans') else 32):
            a, b = T(2 * (t & 1)), T(2 * (t & 1) + 1)
            A(f'v_lshlrev_b32 v{a}, 16, v{vS+t}'); A(f'v_and_b32 v{b}, 0xffff0000, v{vS+t}')
            A(f'v_fma_f32 v{a}, v{a}, s{sT2}, v{vNM}'); A(f'v_fma_f32 v{b}, v{b}, s{sT2}, v{vNM}')
            A(f'v_exp_f32 v{a}, v{a}'); A(f'v_exp_f32 v{b}, v{b}')
            A(f'v_add_f32 v{vLS}, v{vLS}, v{a}'); A(f'v_cvt_pk_bf16_f32 v{vS+t}, v{a}, v{b}'); A(f'v_add_f32 v{vLS}, v{vLS}, v{b}')
        self.wave_allreduce('add', vLS, T(0))
        A(f'v_mul_f32 v{vLS}, 0.125, v{vLS}') if False else A(f'v_mul_f32 v{vLS}, 0x3e000000, v{vLS}')
        A(f'v_mov_b32 v{T(0)}, v{vM}'); A(f'v_mov_b32 v{T(1)}, v{vLS}')
        if not self.kw.get('nocnt'):
            G.vmop(f'buffer_store_dwordx2 v[{T(0)}:{T(1)}], v{vMLp}, s[{rWS}:{rWS+3}], 0 offen sc1', 'mlst')
            G.vmwait('cnt')
        else: A('s_branch L_cnt_ok')
        A(f's_mov_b32 s{sSpin}, {self.spin}')
        A('L_cnt:')
        A(f'v_readfirstlane_b32 s{sT}, v{vCNT}')
        A(f's_cmp_ge_u32 s{sT}, 256'); A('s_cbranch_scc1 L_cnt_ok')
        A(f's_sub_u32 s{sSpin}, s{sSpin}, 1'); A('s_cbranch_scc1 L_cnt_ok')
        A(f'v_mov_b32 v{T(5)}, 0')
        A(f'buffer_load_dword v{vCNT}, v{T(5)}, s[{rDBG}:{rDBG+3}], 0 offen sc1'); A('s_waitcnt vmcnt(0)')
        A('s_branch L_cnt')
        A('L_cnt_ok:')
        if QX:
            A(f's_cmp_lt_u32 s2, 32'); A('s_cbranch_scc0 L_eup'); A(f's_cmp_eq_u32 s{sW}, 0'); A('s_cbranch_scc0 L_eup')
            A(f'v_mov_b32 v{T(0)}, {OOB}'); A(f'v_cmp_eq_u32 vcc, 0, v{vL}'); A(f'v_cndmask_b32 v{T(0)}, v{T(0)}, v{vQE}, vcc')
            G.vmop(f'buffer_store_dwordx2 v[{vTG}:{vTG+1}], v{T(0)}, s[{rWS}:{rWS+3}], 0 offen sc1', 'eup', True)
            A('L_eup:')
        G.stamp(3)
        dl = self.kw.get('delay')
        if dl:
            which, n = dl
            A(f's_cmp_lt_u32 s{sBH}, 8'); A('s_cbranch_scc%d L_nodelay' % (0 if which == 'slow' else 1))
            for _ in range(n): A('s_sleep 64')
            A('L_nodelay:')
        def vprep(t):
            if self.kw.get('novalu'): return
            for ab in range(2):
                bs = vB + 8 * (t & 1) + 4 * ab
                for jj in range(4):
                    A(f'v_perm_b32 v{bs+jj}, v{vS+t}, v{vS+t}, v{vSEL+4*ab+jj}')
        def ml_compute():
            A(f'v_mov_b32 v{T(10)}, v{vML0}')
            for r_ in (1, 2, 4, 8): A(f'v_max_f32_dpp v{T(10)}, v{T(10)}, v{T(10)} row_ror:{r_} row_mask:0xf bank_mask:0xf')
            A(f'v_sub_f32 v{T(11)}, v{vML0}, v{T(10)}'); A(f'v_mul_f32 v{T(11)}, {LOG2E}, v{T(11)}'); A(f'v_exp_f32 v{T(11)}, v{T(11)}')
            A(f'v_mul_f32 v{T(11)}, v{T(11)}, v{vML1}')
            for r_ in (1, 2, 4, 8): A(f'v_add_f32_dpp v{T(11)}, v{T(11)}, v{T(11)} row_ror:{r_} row_mask:0xf bank_mask:0xf')
            A(f'v_sub_f32 v{T(10)}, v{vM}, v{T(10)}'); A(f'v_mul_f32 v{T(10)}, {LOG2E}, v{T(10)}'); A(f'v_exp_f32 v{T(10)}, v{T(10)}')
            A(f'v_rcp_f32 v{T(12)}, v{T(11)}'); A(f'v_mul_f32 v{vF}, v{T(10)}, v{T(12)}')
            A(f'v_cmp_u_f32 vcc, v{T(11)}, v{T(11)}')
        vprep(0)
        for t in range(32):
            u = 32 + t
            r = (u % RING) * 16
            bs = vB + 8 * (t & 1)
            mf = [f'v_mfma_f32_16x16x32_bf16 v[{vO}:{vO+3}], a[{r}:{r+3}], v[{bs}:{bs+3}], v[{vO}:{vO+3}]',
                  f'v_mfma_f32_16x16x32_bf16 v[{vO+4}:{vO+7}], a[{r+4}:{r+7}], v[{bs}:{bs+3}], v[{vO+4}:{vO+7}]',
                  f'v_mfma_f32_16x16x32_bf16 v[{vO}:{vO+3}], a[{r+8}:{r+11}], v[{bs+4}:{bs+7}], v[{vO}:{vO+3}]',
                  f'v_mfma_f32_16x16x32_bf16 v[{vO+4}:{vO+7}], a[{r+12}:{r+15}], v[{bs+4}:{bs+7}], v[{vO+4}:{vO+7}]']
            if SL:
                for q in range(4):
                    j = 4 * u + q
                    G.vmwait_idx(G.lidx[j])
                    slide_issue(j)
                    A(mf[q])
            else:
                G.vmwait(f'u{u}')
                for m_ in mf: A(m_)
                throttled_issue(u, u + LOOKV)
            wt0, wper = self.kw.get('wot', (2, 2))
            if not self.nowo and wper * (32 + t - wt0) < 32: emit_wo(wper * (32 + t - wt0), min(32, wper * (32 + t - wt0 + 1)))
            if t < 17 and not self.norole: emit_role_loads(t)
            if t in (7, 15, 23): G.stamp(20 + t // 8)
            if self.kw.get('st4'): A('s_memrealtime s[96:97]'); A('s_waitcnt lgkmcnt(0)'); A('v_writelane_b32 v252, s96, %d' % (32 + t))
            if t == 27:
                A(f's_cmp_eq_u32 s{sRole}, 1'); A('s_cbranch_scc0 L_pk1')
                for s_ in range(4):
                    for jj in range(4):
                        A(f'v_perm_b32 v{vW1+4*s_+jj}, v{vR+8*s_+2*jj+1}, v{vR+8*s_+2*jj}, s{sPK}')
                A('L_pk1:')
            if t == 17 and not self.kw.get('nocnt'):
                G.vmop(f'buffer_load_dwordx2 v[{vML0}:{vML1}], v{vMLq}, s[{rWS}:{rWS+3}], 0 offen sc1', 'mlq')
            if t == 25 and not self.kw.get('nocnt'):
                G.vmwait('mlq')
                A(f's_mov_b32 s{sSpin}, {self.spin}')
                A('L_ml:')
                ml_compute()
                A('s_cbranch_vccz L_ml_ok')
                A(f's_sub_u32 s{sSpin}, s{sSpin}, 1'); A('s_cbranch_scc1 L_ml_ok')
                A(f'buffer_load_dwordx2 v[{vML0}:{vML1}], v{vMLq}, s[{rWS}:{rWS+3}], 0 offen sc1'); A('s_waitcnt vmcnt(0)')
                A('s_branch L_ml')
                A('L_ml_ok:')
            if t < 31: vprep(t + 1)
        G.stamp(4)
        if self.kw.get('quit'): A('s_branch L_fin')
        for i in range(4): A(f'v_add_f32_dpp v{T(i)}, v{vO+4+i}, v{vO+i} row_ror:8 row_mask:0xf bank_mask:0xf')
        for i in range(4): A(f'v_mul_f32 v{T(i)}, v{vF}, v{T(i)}')
        for i in range(4): A(f'ds_write_b32 v{vOPA}, v{T(i)} offset:{L_OP + 32*i}')
        A(f's_lshl_b32 s{sT}, s{sW}, 9'); A(f'v_lshlrev_b32 v{T(10)}, 2, v{vL}'); A(f'v_add_u32 v{T(10)}, s{sT}, v{T(10)}')
        A(f'v_lshrrev_b32 v{T(11)}, 3, v{vN}'); A(f'v_lshlrev_b32 v{T(11)}, 8, v{T(11)}'); A(f'v_lshl_add_u32 v{T(11)}, v{vG}, 6, v{T(11)}'); A(f'v_add_u32 v{T(11)}, s{sT}, v{T(11)}')
        A('s_waitcnt lgkmcnt(0)'); A('s_barrier')
        for w in range(4): A(f'ds_read_b64 v[{T(2*w+2)}:{T(2*w+3)}], v{vA3} offset:{L_OP + 512*w}')
        A('s_waitcnt lgkmcnt(0)')
        A(f'v_pk_add_f32 v[{T(2)}:{T(3)}], v[{T(2)}:{T(3)}], v[{T(4)}:{T(5)}]'); A(f'v_pk_add_f32 v[{T(6)}:{T(7)}], v[{T(6)}:{T(7)}], v[{T(8)}:{T(9)}]')
        A(f'v_pk_add_f32 v[{T(2)}:{T(3)}], v[{T(2)}:{T(3)}], v[{T(6)}:{T(7)}]')
        A(f'v_cvt_pk_bf16_f32 v{T(4)}, v{T(2)}, v{T(3)}')
        A(f'v_lshlrev_b32 v{T(5)}, 16, v{T(4)}'); A(f'v_and_b32 v{T(6)}, 0xffff0000, v{T(4)}')
        A(f'v_sub_f32 v{T(5)}, v{T(2)}, v{T(5)}'); A(f'v_sub_f32 v{T(6)}, v{T(3)}, v{T(6)}')
        A(f'ds_write_b32 v{T(10)}, v{T(4)} offset:{L_OH}')
        A(f'v_cvt_pk_bf16_f32 v{T(5)}, v{T(5)}, v{T(6)}')
        A(f'ds_write_b32 v{T(10)}, v{T(5)} offset:{L_OH+256}')
        A('s_waitcnt lgkmcnt(0)')
        for k in range(4): A(f'ds_read_b128 v[{vXP+4*k}:{vXP+4*k+3}], v{T(11)} offset:{L_OH+16*k}')
        A('s_waitcnt lgkmcnt(0)')
        delta_steps(32, vDQ, None)
        for i in range(4): A(f'v_add_f32_dpp v{T(i)}, v{vDQ+i}, v{vDQ+i} row_ror:8 row_mask:0xf bank_mask:0xf')
        TSF = self.kw.get('tsf', 'sc1'); TLF = self.kw.get('tlf', 'sc1')
        G.vmop(f'buffer_store_dwordx4 v[{T(0)}:{T(3)}], v{vC1}, s[{rWS}:{rWS+3}], 0 offen {TSF}', 'c1st')
        G.stamp(5)
        A(f's_cmp_eq_u32 s{sRole}, 1'); A('s_cbranch_scc1 L_m1')
        A(f's_cmp_eq_u32 s{sRole}, 2'); A('s_cbranch_scc0 L_fin')
        if self.kw.get('rwarm'):
            A(f's_cmp_lt_u32 s{sW}, 2'); A('s_cbranch_scc0 L_fin')
        else:
            A(f's_cmp_eq_u32 s{sW}, 0'); A('s_cbranch_scc0 L_fin')
        def gather_multi(nl, voff, lab, sets):
            D = len(sets)
            def issue(rs):
                for k in range(nl):
                    if k % 4 == 0: A(f's_mov_b32 s{sT}, {(k//4)*4096}')
                    A(f'buffer_load_dwordx4 v[{rs+4*k}:{rs+4*k+3}], v{voff}, s[{rWS}:{rWS+3}], s{sT} offen offset:{(k%4)*1024} {TLF}')
            A(f's_mov_b32 s{sSpin}, {self.spin}')
            for rs in sets: issue(rs)
            A(f'{lab}:')
            for si, rs in enumerate(sets):
                base = nl * (D - 1)
                A(f's_waitcnt vmcnt({base + nl - 2})')
                for c in (0, 2): A(f'v_pk_add_f32 v[{T(c)}:{T(c+1)}], v[{rs+c}:{rs+c+1}], v[{rs+4+c}:{rs+4+c+1}]')
                for k in range(2, nl):
                    A(f's_waitcnt vmcnt({base + nl - 1 - k})')
                    for c in (0, 2): A(f'v_pk_add_f32 v[{T(c)}:{T(c+1)}], v[{T(c)}:{T(c+1)}], v[{rs+4*k+c}:{rs+4*k+c+1}]')
                A(f'v_cmp_u_f32 vcc, v{T(0)}, v{T(1)}'); A(f'v_cmp_u_f32 s[{sM}:{sM+1}], v{T(2)}, v{T(3)}')
                A(f's_or_b64 vcc, vcc, s[{sM}:{sM+1}]')
                A(f's_cbranch_vccz {lab}_ok')
                if lab in self.kw.get('mmask', ()):
                    MP = ['s[82:83]', 's[84:85]', 's[88:89]', 's[90:91]', 's[94:95]', 's[98:99]', 's[100:101]', 'vcc']
                    for k in range(nl): A(f'v_cmp_u_f32 {MP[k]}, v{rs+4*k}, v{rs+4*k+3}')
                    for k in range(nl):
                        if k % 4 == 0: A(f's_mov_b32 s{sT}, {(k//4)*4096}')
                        A(f's_or_b64 exec, {MP[k]}, 15')
                        A(f'buffer_load_dwordx4 v[{rs+4*k}:{rs+4*k+3}], v{voff}, s[{rWS}:{rWS+3}], s{sT} offen offset:{(k%4)*1024} {TLF}')
                    A('s_mov_b64 exec, -1')
                else: issue(rs)
            A(f's_sub_u32 s{sSpin}, s{sSpin}, 1'); A(f's_cbranch_scc0 {lab}')
            A(f'{lab}_ok:')
            gather_finish()
        def gather_finish():
            A(f'v_permlane32_swap_b32 v{T(0)}, v{T(2)}'); A(f'v_permlane32_swap_b32 v{T(1)}, v{T(3)}')
            A(f'v_add_f32 v{T(0)}, v{T(0)}, v{T(2)}'); A(f'v_add_f32 v{T(1)}, v{T(1)}, v{T(3)}')
            A(f'v_permlane16_swap_b32 v{T(0)}, v{T(1)}'); A(f'v_add_f32 v{T(0)}, v{T(0)}, v{T(1)}')
            A(f'v_add_f32_dpp v{T(0)}, v{T(0)}, v{T(0)} row_ror:4 row_mask:0xf bank_mask:0xf')
            A(f'v_add_f32_dpp v{T(0)}, v{T(0)}, v{T(0)} row_ror:8 row_mask:0xf bank_mask:0xf')
        def gather_reduce(nl, voff, lab):
            ms = self.kw.get('mset', {}).get(lab)
            if ms: return gather_multi(nl, voff, lab, [176, 32, 144, 64][:ms])
            A(f's_mov_b32 s{sSpin}, {self.spin}')
            A(f'{lab}:')
            for k in range(nl):
                if k % 4 == 0: A(f's_mov_b32 s{sT}, {(k//4)*4096}')
                A(f'buffer_load_dwordx4 v[{vR+4*k}:{vR+4*k+3}], v{voff}, s[{rWS}:{rWS+3}], s{sT} offen offset:{(k%4)*1024} {TLF}')
            k = 1
            A(f's_waitcnt vmcnt({nl-2})')
            for c in (0, 2): A(f'v_pk_add_f32 v[{T(c)}:{T(c+1)}], v[{vR+c}:{vR+c+1}], v[{vR+4+c}:{vR+4+c+1}]')
            for k in range(2, nl):
                A(f's_waitcnt vmcnt({nl-1-k})')
                for c in (0, 2): A(f'v_pk_add_f32 v[{T(c)}:{T(c+1)}], v[{T(c)}:{T(c+1)}], v[{vR+4*k+c}:{vR+4*k+c+1}]')
            A(f'v_cmp_u_f32 vcc, v{T(0)}, v{T(1)}'); A(f'v_cmp_u_f32 s[{sM}:{sM+1}], v{T(2)}, v{T(3)}')
            A(f's_or_b64 vcc, vcc, s[{sM}:{sM+1}]')
            A(f's_cbranch_vccz {lab}_ok')
            A(f's_sub_u32 s{sSpin}, s{sSpin}, 1'); A(f's_cbranch_scc0 {lab}')
            A(f'{lab}_ok:')
            A(f'v_permlane32_swap_b32 v{T(0)}, v{T(2)}'); A(f'v_permlane32_swap_b32 v{T(1)}, v{T(3)}')
            A(f'v_add_f32 v{T(0)}, v{T(0)}, v{T(2)}'); A(f'v_add_f32 v{T(1)}, v{T(1)}, v{T(3)}')
            A(f'v_permlane16_swap_b32 v{T(0)}, v{T(1)}'); A(f'v_add_f32 v{T(0)}, v{T(0)}, v{T(1)}')
            A(f'v_add_f32_dpp v{T(0)}, v{T(0)}, v{T(0)} row_ror:4 row_mask:0xf bank_mask:0xf')
            A(f'v_add_f32_dpp v{T(0)}, v{T(0)}, v{T(0)} row_ror:8 row_mask:0xf bank_mask:0xf')
        A(f'v_lshlrev_b32 v{vXV}, 16, v{vXV}'); A(f'v_lshlrev_b32 v{vB2V}, 16, v{vB2V}')
        gather_reduce(8, vHOFF, 'L_g1')
        G.stamp(6)
        if self.diag and self.kw.get('stspin'): A(f'v_writelane_b32 v251, s{sSpin}, 23')
        G.rbf(T(0)); A(f'v_add_f32 v{T(0)}, v{vXV}, v{T(0)}'); G.rbf(vHV, T(0))
        A(f'buffer_store_dword v{vHV}, v{vRS}, s[{rWS}:{rWS+3}], 0 offen {TSF}')
        for r_ in range(1, NRH):
            A(f's_mov_b32 s{sT}, {r_*16384}')
            A(f'buffer_store_dword v{vHV}, v{vRS}, s[{rWS}:{rWS+3}], s{sT} offen {TSF}')
        G.stamp(7)
        if self.kw.get('gate2'):
            gk = self.kw['gate2'] - 1
            A(f's_mov_b32 s{sSpin}, {self.spin}'); A(f's_mov_b32 s{sT}, {(gk//4)*4096}')
            GD = self.kw.get('g2set', 0)
            if GD:
                assert self.kw.get('gany') and max(self.kw.get('mset', {}).values()) <= 3
                gs = [64 + 4 * i for i in range(GD)]
                ldg = lambda r_: A(f'buffer_load_dwordx4 v[{r_}:{r_+3}], v{vC2OFF}, s[{rWS}:{rWS+3}], s{sT} offen offset:{(gk%4)*1024} {TLF}')
                for r_ in gs: ldg(r_)
                A('L_gt2:')
                for r_ in gs:
                    A(f's_waitcnt vmcnt({GD-1})')
                    A(f'v_cmp_u_f32 vcc, v{r_}, v{r_}'); A('s_cmp_eq_u64 vcc, -1'); A('s_cbranch_scc0 L_gt2_ok')
                    ldg(r_)
                A(f's_sub_u32 s{sSpin}, s{sSpin}, 1'); A('s_cbranch_scc0 L_gt2')
                A('L_gt2_ok:')
            if not GD: A('L_gt2:')

            if not GD:
                A(f'buffer_load_dwordx4 v[{vR}:{vR+3}], v{vC2OFF}, s[{rWS}:{rWS+3}], s{sT} offen offset:{(gk%4)*1024} {TLF}')
                A('s_waitcnt vmcnt(0)')
                if self.kw.get('gany'):
                    A(f'v_cmp_u_f32 vcc, v{vR}, v{vR}'); A('s_cmp_eq_u64 vcc, -1'); A('s_cbranch_scc0 L_gt2_ok')
                else:
                    A(f'v_cmp_u_f32 vcc, v{vR}, v{vR+1}'); A(f'v_cmp_u_f32 s[{sM}:{sM+1}], v{vR+2}, v{vR+3}'); A(f's_or_b64 vcc, vcc, s[{sM}:{sM+1}]')
                    A('s_cbranch_vccz L_gt2_ok')
                A(f's_sub_u32 s{sSpin}, s{sSpin}, 1'); A('s_cbranch_scc0 L_gt2')
                A('L_gt2_ok:')
        gather_reduce(4 if self.kw.get('fakec2') else 7, vC2OFF, 'L_g2')
        G.stamp(8)
        if self.diag and self.kw.get('stspin'): A(f'v_writelane_b32 v251, s{sSpin}, 19')
        G.rbf(T(0)); A(f'v_add_f32 v{T(0)}, v{vB2V}, v{T(0)}'); G.rbf(T(0)); A(f'v_add_f32 v{T(0)}, v{vHV}, v{T(0)}')
        A(f'v_cvt_pk_bf16_f32 v{T(0)}, v{T(0)}, v{T(0)}')
        A(f'buffer_store_short v{T(0)}, v{vOUTA}, s[{rOUT}:{rOUT+3}], 0 offen')
        A('s_branch L_fin')
        A('L_m1:')
        A(f's_lshl_b32 s{sT}, s{sW}, 9'); A(f'v_lshrrev_b32 v{T(0)}, 5, v{vL}'); A(f'v_lshlrev_b32 v{T(0)}, 8, v{T(0)}'); A(f'v_and_b32 v{T(1)}, 31, v{vL}')
        A(f'v_lshl_add_u32 v{T(0)}, v{T(1)}, 3, v{T(0)}'); A(f'v_add_u32 v{vA1}, s{sT}, v{T(0)}')
        A(f'v_and_b32 v{T(0)}, 1, v{vN}'); A(f'v_lshlrev_b32 v{T(0)}, 8, v{T(0)}'); A(f'v_lshl_add_u32 v{T(0)}, v{vG}, 4, v{T(0)}'); A(f'v_add_u32 v{vA2}, s{sT}, v{T(0)}')
        A(f's_lshl_b32 s{sT}, s{sW}, 7'); A(f'v_lshlrev_b32 v{T(0)}, 2, v{vN}'); A(f'v_add_u32 v{vA3}, s{sT}, v{T(0)}')
        A(f'v_lshrrev_b32 v{T(0)}, 3, v{vN}'); A(f'v_lshlrev_b32 v{T(0)}, 6, v{T(0)}'); A(f'v_and_b32 v{T(1)}, 3, v{vN}'); A(f'v_lshl_add_u32 v{T(1)}, v{vG}, 2, v{T(1)}')
        A(f'v_lshl_add_u32 v{vA4}, v{T(1)}, 2, v{T(0)}')
        A(f'v_lshlrev_b32 v{vB1}, 16, v{vB1}')
        MW = self.kw.get('mwarm')
        if MW:
            A(f'v_mov_b32 v{vXOFF}, v{vHOFF}'); A(f'v_mov_b32 v{vC2OFF}, v{vRS}')
            A(f'v_mov_b32 v{vHOFF}, {OOB}'); A(f'v_mov_b32 v{vRS}, {OOB}'); A(f's_mov_b32 s{sU}, 0')
            A('L_m1p:')
        A(f's_mov_b32 s{sSpin}, {self.spin}')
        H = [vR + i for i in range(16)]
        MQ = self.kw.get('mq')
        if MQ:
            assert not THR
            A(f's_lshl_b32 s{sLim}, s{sW}, 9')
            A(f'v_lshlrev_b32 v{vWOFF2}, 3, v{vL}'); A(f'v_add_u32 v{vWOFF1}, s{sLim}, v{vWOFF2}')
            if MW: L_ = self.L; lab_ = L_.index('L_m1p:'); ins_ = L_[-3:]; del L_[-3:]; L_[lab_:lab_] = ins_
            if self.kw.get('gate3'):
                A(f's_lshr_b32 s{sT}, s2, {self.kw["gate3"] - 1}'); A(f's_and_b32 s{sT}, s{sT}, 7')
                A(f'v_bfe_u32 v{T(0)}, v{vL}, 2, 3'); A(f'v_cmp_eq_u32 vcc, s{sT}, v{T(0)}')
                A(f'v_mov_b32 v{T(1)}, {OOB}'); A(f'v_cndmask_b32 v{vB2OFF}, v{T(1)}, v{vHOFF}, vcc')
                A('L_gt3:')
                A(f'buffer_load_dwordx4 v[{vR}:{vR+3}], v{vB2OFF}, s[{rWS}:{rWS+3}], s{sLim} offen {TLF}')
                A('s_waitcnt vmcnt(0)')
                A(f'v_add_f32 v{T(0)}, v{H[0]}, v{H[1]}'); A(f'v_add_f32 v{T(1)}, v{H[2]}, v{H[3]}'); A(f'v_add_f32 v{T(0)}, v{T(0)}, v{T(1)}')
                A(f'v_cmp_u_f32 vcc, v{T(0)}, v{T(0)}')
                A('s_cbranch_vccz L_gt3_ok')
                A(f's_sub_u32 s{sSpin}, s{sSpin}, 1'); A('s_cbranch_scc0 L_gt3')
                A(f's_mov_b32 s{sSpin}, 0')
                A('L_gt3_ok:')
            D3 = self.kw.get('m1set', 0)
            if D3:
                sets3 = [vR + 4 + 4 * i for i in range(D3)]
                ld3 = lambda r_: A(f'buffer_load_dwordx4 v[{r_}:{r_+3}], v{vHOFF}, s[{rWS}:{rWS+3}], s{sLim} offen {TLF}')
                for r_ in sets3: ld3(r_)
                A('L_g3:')
                for si, r_ in enumerate(sets3):
                    A(f's_waitcnt vmcnt({D3-1})')
                    A(f'v_add_f32 v{T(0)}, v{r_}, v{r_+1}'); A(f'v_add_f32 v{T(1)}, v{r_+2}, v{r_+3}'); A(f'v_add_f32 v{T(0)}, v{T(0)}, v{T(1)}')
                    A(f'v_mov_b64 v[{H[0]}:{H[1]}], v[{r_}:{r_+1}]'); A(f'v_cmp_u_f32 vcc, v{T(0)}, v{T(0)}'); A(f'v_mov_b64 v[{H[2]}:{H[3]}], v[{r_+2}:{r_+3}]')
                    A('s_cbranch_vccz L_g3_ok')
                    ld3(r_)
                A(f's_sub_u32 s{sSpin}, s{sSpin}, 1'); A('s_cbranch_scc0 L_g3')
            else:
                A('L_g3:')
                A(f'buffer_load_dwordx4 v[{vR}:{vR+3}], v{vHOFF}, s[{rWS}:{rWS+3}], s{sLim} offen {TLF}')
                A('s_waitcnt vmcnt(0)')
                A(f'v_add_f32 v{T(0)}, v{H[0]}, v{H[1]}'); A(f'v_add_f32 v{T(1)}, v{H[2]}, v{H[3]}'); A(f'v_add_f32 v{T(0)}, v{T(0)}, v{T(1)}')
                A(f'v_cmp_u_f32 vcc, v{T(0)}, v{T(0)}')
                A('s_cbranch_vccz L_g3_ok')
                A(f's_sub_u32 s{sSpin}, s{sSpin}, 1'); A('s_cbranch_scc0 L_g3')
            A('L_g3_ok:')
            G.stamp(6)
            if self.diag and self.kw.get('stspin'): A(f'v_writelane_b32 v251, s{sSpin}, 19')
            self.half_allreduce('add', T(0), T(1))
            A(f'v_mul_f32 v{T(2)}, 0x3c000000, v{T(0)}')
            A(f'v_sub_f32 v{T(4)}, v{H[0]}, v{T(2)}'); A(f'v_sub_f32 v{T(5)}, v{H[1]}, v{T(2)}'); A(f'v_sub_f32 v{T(6)}, v{H[2]}, v{T(2)}'); A(f'v_sub_f32 v{T(7)}, v{H[3]}, v{T(2)}')
            A(f'v_mul_f32 v{T(3)}, v{T(4)}, v{T(4)}'); A(f'v_mul_f32 v{T(1)}, v{T(5)}, v{T(5)}')
            A(f'v_fmac_f32 v{T(3)}, v{T(6)}, v{T(6)}'); A(f'v_fmac_f32 v{T(1)}, v{T(7)}, v{T(7)}')
            A(f'v_add_f32 v{T(3)}, v{T(3)}, v{T(1)}')
            self.half_allreduce('add', T(3), T(1))
            A(f'ds_write_b64 v{vWOFF1}, v[{T(2)}:{T(3)}] offset:{L_QP}')
            A('s_waitcnt lgkmcnt(0)'); A('s_barrier')
            for w in range(4): A(f'ds_read_b64 v[{T(4+2*w)}:{T(5+2*w)}], v{vWOFF2} offset:{L_QP+512*w}')
            A('s_waitcnt lgkmcnt(2)')
            A(f'v_pk_add_f32 v[{T(12)}:{T(13)}], v[{T(4)}:{T(5)}], v[{T(6)}:{T(7)}]')
            A('s_waitcnt lgkmcnt(0)')
            A(f'v_pk_add_f32 v[{T(14)}:{T(15)}], v[{T(8)}:{T(9)}], v[{T(10)}:{T(11)}]')
            A(f'v_pk_add_f32 v[{T(12)}:{T(13)}], v[{T(12)}:{T(13)}], v[{T(14)}:{T(15)}]')
            A(f'v_mul_f32 v{T(0)}, 0x3e800000, v{T(12)}')
            for w in range(4): A(f'v_sub_f32 v{T(4+2*w)}, v{T(4+2*w)}, v{T(0)}')
            A(f'v_mul_f32 v{T(1)}, v{T(4)}, v{T(4)}'); A(f'v_mul_f32 v{T(2)}, v{T(6)}, v{T(6)}')
            A(f'v_fmac_f32 v{T(1)}, v{T(8)}, v{T(8)}'); A(f'v_fmac_f32 v{T(2)}, v{T(10)}, v{T(10)}')
            A(f'v_add_f32 v{T(1)}, v{T(1)}, v{T(2)}')
            A(f'v_mov_b32 v{T(3)}, v{T(13)}'); A(f'v_fmac_f32 v{T(3)}, 0x43000000, v{T(1)}')
        else:
            A('L_g3:')
            for kk in range(4):
                A(f's_add_u32 s{sT}, s{sW}, {kk}'); A(f's_and_b32 s{sT}, s{sT}, 3'); A(f's_lshl_b32 s{sT}, s{sT}, 9')
                A(f'buffer_load_dwordx4 v[{vR+4*kk}:{vR+4*kk+3}], v{vHOFF}, s[{rWS}:{rWS+3}], s{sT} offen {TLF}')
            A('s_waitcnt vmcnt(0)')
            A(f'v_pk_add_f32 v[{T(0)}:{T(1)}], v[{H[0]}:{H[1]}], v[{H[2]}:{H[3]}]')
            for k in range(2, 8): A(f'v_pk_add_f32 v[{T(0)}:{T(1)}], v[{T(0)}:{T(1)}], v[{H[2*k]}:{H[2*k+1]}]')
            A(f'v_add_f32 v{T(0)}, v{T(0)}, v{T(1)}')
            A(f'v_cmp_u_f32 vcc, v{T(0)}, v{T(0)}')
            A('s_cbranch_vccz L_g3_ok')
            A(f's_sub_u32 s{sSpin}, s{sSpin}, 1'); A('s_cbranch_scc0 L_g3')
            A('L_g3_ok:')
            G.stamp(6)
            self.half_allreduce('add', T(0), T(1))
            A(f'v_mul_f32 v{T(0)}, 0x3b000000, v{T(0)}')
            A(f'v_sub_f32 v{T(2)}, v{H[0]}, v{T(0)}'); A(f'v_mul_f32 v{T(3)}, v{T(2)}, v{T(2)}')
            A(f'v_sub_f32 v{T(4)}, v{H[1]}, v{T(0)}'); A(f'v_mul_f32 v{T(5)}, v{T(4)}, v{T(4)}')
            for k in range(2, 16, 2):
                A(f'v_sub_f32 v{T(2)}, v{H[k]}, v{T(0)}'); A(f'v_sub_f32 v{T(4)}, v{H[k+1]}, v{T(0)}')
                A(f'v_fmac_f32 v{T(3)}, v{T(2)}, v{T(2)}'); A(f'v_fmac_f32 v{T(5)}, v{T(4)}, v{T(4)}')
            A(f'v_add_f32 v{T(3)}, v{T(3)}, v{T(5)}')
            self.half_allreduce('add', T(3), T(1))
        self.ln_finish(T(0), T(3), T(8), T(9), 1.0 / 512)
        Y = H[0:4]
        self.ln_apply(Y, T(8), T(9))
        A(f'v_cvt_pk_bf16_f32 v{T(4)}, v{Y[0]}, v{Y[1]}'); A(f'v_cvt_pk_bf16_f32 v{T(5)}, v{Y[2]}, v{Y[3]}')
        A(f'ds_write_b64 v{vA1}, v[{T(4)}:{T(5)}] offset:{L_YB}')
        A('s_waitcnt lgkmcnt(0)')
        for s_ in range(4): A(f'ds_read_b128 v[{vXP+4*s_}:{vXP+4*s_+3}], v{vA2} offset:{L_YB+64*s_}')
        for s_ in range(4):
            A(f's_waitcnt lgkmcnt({3-s_})')
            c = '0' if s_ == 0 else f'v[{vDQ}:{vDQ+3}]'
            A(f'v_mfma_f32_16x16x32_bf16 v[{vDQ}:{vDQ+3}], v[{vXP+4*s_}:{vXP+4*s_+3}], v[{vW1+4*s_}:{vW1+4*s_+3}], {c}')
        A(f'ds_write_b32 v{vA3}, v{vDQ} offset:{L_TP}'); A(f'ds_write_b32 v{vA3}, v{vDQ+1} offset:{L_TP+64}')
        A('s_waitcnt lgkmcnt(0)'); A('s_barrier')
        for w in range(4): A(f'ds_read_b32 v{T(w)}, v{vA4} offset:{L_TP+128*w}')
        A('s_waitcnt lgkmcnt(0)')
        A(f'v_add_f32 v{T(0)}, v{T(0)}, v{T(1)}'); A(f'v_add_f32 v{T(2)}, v{T(2)}, v{T(3)}'); A(f'v_add_f32 v{T(0)}, v{T(0)}, v{T(2)}')
        G.rbf(T(0)); A(f'v_add_f32 v{T(0)}, v{vB1}, v{T(0)}'); G.rbf(T(0))
        import struct, math
        f2u = lambda f: struct.unpack('<I', struct.pack('<f', f))[0]
        K0 = -2 * math.log2(math.e) * math.sqrt(2 / math.pi); K1 = K0 * 0.044715
        A(f'v_mul_f32 v{T(1)}, v{T(0)}, v{T(0)}'); A(f'v_mov_b32 v{T(2)}, {hex(f2u(K0))}'); A(f'v_fmac_f32 v{T(2)}, {hex(f2u(K1))}, v{T(1)}')
        A(f'v_mul_f32 v{T(1)}, v{T(0)}, v{T(2)}'); A(f'v_exp_f32 v{T(1)}, v{T(1)}'); A(f'v_add_f32 v{T(1)}, 1.0, v{T(1)}'); A(f'v_rcp_f32 v{T(1)}, v{T(1)}')
        A(f'v_mul_f32 v{T(0)}, v{T(0)}, v{T(1)}'); A(f'v_cvt_pk_bf16_f32 v{vGA}, v{T(0)}, v{T(0)}')
        for ii in range(4):
            bs = vB + 4 * ii
            for jj in range(4):
                A(f'v_and_b32_dpp v{bs+jj}, v{vGA}, v{vMASK+jj} quad_perm:[{ii},{ii},{ii},{ii}] row_mask:0xf bank_mask:0xf')
        for ii in range(4):
            bs = vB + 4 * ii
            c = '0' if ii == 0 else f'v[{vDQ}:{vDQ+3}]'
            A(f'v_mfma_f32_16x16x32_bf16 v[{vDQ}:{vDQ+3}], v[{vW2+4*ii}:{vW2+4*ii+3}], v[{bs}:{bs+3}], {c}')
        A(f'buffer_store_dwordx4 v[{vDQ}:{vDQ+3}], v{vRS}, s[{rWS}:{rWS+3}], 0 offen {TSF}')
        G.stamp(7)
        if MW:
            A(f's_cmp_eq_u32 s{sU}, 0'); A('s_cbranch_scc0 L_fin')
            A(f's_mov_b32 s{sU}, 1'); A(f'v_mov_b32 v{vHOFF}, v{vXOFF}'); A(f'v_mov_b32 v{vRS}, v{vC2OFF}')
            A('s_branch L_m1p')
        A('L_fin:')
        if self.diag:
            A(f's_lshl_b32 s{sT}, s2, 2'); A(f's_add_u32 s{sT}, s{sT}, s{sW}'); A(f's_lshl_b32 s{sT}, s{sT}, 7'); A(f's_add_u32 s{sT}, s{sT}, {WS_DIAG}')
            A('s_memrealtime s[96:97]'); A('s_getreg_b32 s98, hwreg(HW_REG_XCC_ID)'); A('s_waitcnt lgkmcnt(0)')
            A('v_writelane_b32 v251, s96, 14'); A('v_writelane_b32 v251, s98, 15')
            A(f'v_lshlrev_b32 v{T(0)}, 2, v{vL}'); A(f'v_add_u32 v{T(0)}, s{sT}, v{T(0)}')
            A(f'v_mov_b32 v{T(1)}, {OOB}'); A(f'v_cmp_gt_u32 vcc, 32, v{vL}'); A(f'v_cndmask_b32 v{T(0)}, v{T(1)}, v{T(0)}, vcc')
            A(f'buffer_store_dword v251, v{T(0)}, s[{rWS}:{rWS+3}], 0 offen')
            if self.kw.get('st3') or self.kw.get('st4'):
                A(f's_lshl_b32 s{sT}, s2, 2'); A(f's_add_u32 s{sT}, s{sT}, s{sW}'); A(f's_lshl_b32 s{sT}, s{sT}, 8'); A(f's_add_u32 s{sT}, s{sT}, {WS_DIAG + 0x20000}')
                A(f'v_lshlrev_b32 v{T(0)}, 2, v{vL}'); A(f'v_add_u32 v{T(0)}, s{sT}, v{T(0)}')
                A(f'buffer_store_dword v252, v{T(0)}, s[{rWS}:{rWS+3}], 0 offen')
        A('L_end:')
        A('s_endpgm')
        return self.wrap()

    def ln_finish(self, mean, ss, om, orstd, inv_n):
        A = self.A
        import struct
        f2u = lambda f: struct.unpack('<I', struct.pack('<f', f))[0]
        A(f'v_mul_f32 v{ss}, {hex(f2u(inv_n))}, v{ss}'); self.rbf(ss)
        A(f'v_add_f32 v{ss}, {hex(f2u(1e-5))}, v{ss}'); self.rbf(ss)
        A(f'v_sqrt_f32 v{ss}, v{ss}'); self.rbf(ss)
        A(f'v_rcp_f32 v{orstd}, v{ss}')
        self.rbf(om, mean)
    def ln_stats(self, X, om, orstd, t0, t1, inv_n, red):
        A = self.A
        import struct
        f2u = lambda f: struct.unpack('<I', struct.pack('<f', f))[0]
        A(f'v_add_f32 v{t0}, v{X[0]}, v{X[1]}')
        for x in X[2:]: A(f'v_add_f32 v{t0}, v{t0}, v{x}')
        red('add', t0, t1)
        A(f'v_mul_f32 v{t0}, {hex(f2u(inv_n))}, v{t0}')
        A(f'v_sub_f32 v{t1}, v{X[0]}, v{t0}'); A(f'v_mul_f32 v{orstd}, v{t1}, v{t1}')
        for x in X[1:]:
            A(f'v_sub_f32 v{t1}, v{x}, v{t0}'); A(f'v_fmac_f32 v{orstd}, v{t1}, v{t1}')
        red('add', orstd, t1)
        A(f'v_mov_b32 v{t1}, v{orstd}')
        self.ln_finish(t0, t1, om, orstd, inv_n)
    def ln_apply(self, X, m, rstd):
        A = self.A
        for k in range(0, len(X), 2):
            A(f'v_sub_f32 v{X[k]}, v{X[k]}, v{m}'); A(f'v_sub_f32 v{X[k+1]}, v{X[k+1]}, v{m}')
            A(f'v_cvt_pk_bf16_f32 v{X[k+1]}, v{X[k]}, v{X[k+1]}')
            A(f'v_lshlrev_b32 v{X[k]}, 16, v{X[k+1]}'); A(f'v_and_b32 v{X[k+1]}, 0xffff0000, v{X[k+1]}')
            A(f'v_mul_f32 v{X[k]}, v{X[k]}, v{rstd}'); A(f'v_mul_f32 v{X[k+1]}, v{X[k+1]}, v{rstd}')

    def finish_debug(self, regs):
        raise NotImplementedError

    def wrap(self):
        body = hz.fix(self.L)
        H = []
        H.append(f'; @launch grid=(256,1,1) block=(256,1,1) lds={LDS_SIZE}')
        H.append('.amdgcn_target "amdgcn-amd-amdhsa--gfx950"')
        H.append('.text'); H.append(f'.globl {KN}'); H.append('.p2align 8'); H.append(f'.type {KN},@function'); H.append(f'{KN}:')
        H += body
        H.append('.section .rodata,"a"'); H.append('.p2align 6'); H.append(f'.amdhsa_kernel {KN}')
        H.append('  .amdhsa_next_free_vgpr 512'); H.append('  .amdhsa_next_free_sgpr 102'); H.append('  .amdhsa_accum_offset 256')
        H.append('  .amdhsa_group_segment_fixed_size 0'); H.append('  .amdhsa_kernarg_size 104'); H.append('  .amdhsa_user_sgpr_count 2')
        H.append('  .amdhsa_user_sgpr_kernarg_segment_ptr 1'); H.append('  .amdhsa_system_sgpr_workgroup_id_x 1')
        H.append('.end_amdhsa_kernel')
        return '\n'.join(H) + '\n'

if __name__ == '__main__':
    import ast
    kw = eval('dict(%s)' % (sys.argv[2] if len(sys.argv) > 2 else ''))
    open(sys.argv[1], 'w').write(Gen(**kw).gen())
```

```python
import sys
import hz
KN = 'sequential_preLN__mha_block_cached__mixer_channel_mlp__decode_kernel'

WS_ML = 0x0
WS_H  = 0x2000
WS_PROG = 0x4000
WS_C1 = 0x10000
WS_C2 = 0x90000
WS_SIZE = 0x100000
WS_DIAG = 0x100000
WS_QX = 0x140000
QX_STR = 0x4400
L_XN2 = 7168
OOB = 0x7ff00000

L_XN = 0
L_QP = 4096
L_QB = 6144
L_OP = 7168
L_OH = 9216
L_YB = 11264
L_TP = 13312
L_DUMMY = 13824
L_LIM = 15360
L_ONE = 14592
L_TP3 = 0
L_DUM2 = 15616
LDS_SIZE = 16384

SCALE = 0x3DB504F3
LOG2E = 0x3FB8AA3B

class Gen:
    def __init__(self, diag=False, nt='nt', wnt='', spin=1 << 15, ring=8, pre=6, stop=None, nowo=False, nowq=False, norole=False, **kw):
        self.L = []
        self.vm = []
        self.done = -1
        self.diag = diag; self.nt = nt; self.wnt = wnt; self.spin = spin
        self.ring = ring; self.pre = pre; self.stop = stop
        self.nstamp = 0; self.n3 = 0; self.lidx = {}
        self.nowo = nowo; self.nowq = nowq; self.norole = norole; self.kw = kw
    def A(self, s):
        if self.kw.get('nomfma') and s.startswith('v_mfma'): return
        self.L.append('  ' + s if not s.endswith(':') else s)
    def vmop(self, s, tag, optional=False):
        self.A(s); self.vm.append((tag, optional))
        if self.kw.get('st3') and self.n3 < 64 and not optional:
            self.A('s_memrealtime s[96:97]'); self.A('s_waitcnt lgkmcnt(0)'); self.A('v_writelane_b32 v252, s96, %d' % self.n3); self.n3 += 1
        out = len(self.vm) - 1 - self.done
        assert out <= 63, ('too many outstanding', out, tag)
    def vmwait(self, tag):
        idx = max(i for i, (t, o) in enumerate(self.vm) if t == tag)
        n = sum(1 for (t, o) in self.vm[idx + 1:] if not o)
        assert n <= 63
        self.A('s_waitcnt vmcnt(%d)' % n)
        self.done = max(self.done, idx)
    def vmwait_idx(self, idx):
        if idx <= self.done: return
        n = sum(1 for (t, o) in self.vm[idx + 1:] if not o)
        assert n <= 63
        self.A('s_waitcnt vmcnt(%d)' % n)
        self.done = max(self.done, idx)
    def vmdrain(self):
        self.A('s_waitcnt vmcnt(0)'); self.done = len(self.vm) - 1
    def stamp(self, k):
        if self.diag:
            self.A('s_memrealtime s[96:97]'); self.A('s_waitcnt lgkmcnt(0)')
            self.A('v_mov_b32 v250, s96'); self.A('v_writelane_b32 v251, s96, %d' % k)

    def srd(self, r, lo, hi, size, off=None):
        A = self.A
        if off is None:
            A(f's_mov_b32 s{r}, s{lo}'); A(f's_and_b32 s{r+1}, s{hi}, 0xffff')
        else:
            A(f's_add_u32 s{r}, s{lo}, {off}'); A(f's_addc_u32 s{r+1}, s{hi}, 0'); A(f's_and_b32 s{r+1}, s{r+1}, 0xffff')
        A(f's_mov_b32 s{r+2}, {size}'); A(f's_mov_b32 s{r+3}, 0x20000')

    def wave_allreduce(self, op, v, t):
        A = self.A
        for r in (1, 2, 4, 8):
            A(f'v_{op}_f32_dpp v{v}, v{v}, v{v} row_ror:{r} row_mask:0xf bank_mask:0xf')
        A(f'v_mov_b32 v{t}, v{v}'); A(f'v_permlane16_swap_b32 v{v}, v{t}'); A(f'v_{op}_f32 v{v}, v{v}, v{t}')
        A(f'v_mov_b32 v{t}, v{v}'); A(f'v_permlane32_swap_b32 v{v}, v{t}'); A(f'v_{op}_f32 v{v}, v{v}, v{t}')
    def half_allreduce(self, op, v, t):
        A = self.A
        for r in (1, 2, 4, 8):
            A(f'v_{op}_f32_dpp v{v}, v{v}, v{v} row_ror:{r} row_mask:0xf bank_mask:0xf')
        A(f'v_mov_b32 v{t}, v{v}'); A(f'v_permlane16_swap_b32 v{v}, v{t}'); A(f'v_{op}_f32 v{v}, v{v}, v{t}')
    def rbf(self, v, src=None):
        A = self.A
        s = v if src is None else src
        if self.kw.get('rb1'): A(f'v_cvt_pk_bf16_f32 v{v}, 0, v{s}'); return
        A(f'v_cvt_pk_bf16_f32 v{v}, v{s}, v{s}'); A(f'v_and_b32 v{v}, 0xffff0000, v{v}')

    def gen(self):
        A = self.A; G = self
        RING = self.ring; nt = self.nt; wnt = self.wnt
        sW = 3
        pX, pK, pV, pWQ, pWO, pW1, pB1, pW2, pB2, pOUT, pDBG, pWS = 4, 6, 8, 10, 12, 16, 18, 20, 22, 24, 26, 28
        rK, rV, rWQ, rWO, rWS, rDBG, rX, rW1, rW2, rB1, rB2, rOUT = 32, 36, 40, 44, 48, 52, 56, 60, 64, 68, 72, 76
        sOff, sT, sH, sB, sS, sBH, sRole, sSpin, sT2, sU = 80, 81, 82, 83, 84, 85, 86, 87, 88, 89
        sM = 90
        sPK = 92
        sAt = 93
        vL, vN, vG = 1, 2, 3
        vK, vV, vWQ, vWO, vC1, vMLp, vMLq, vRS = 4, 5, 6, 7, 8, 9, 10, 11
        vSEL = 12
        vMASK = 20
        vBQ = 24
        vS = 32
        vD = 64
        vO = 80
        vB = 88
        vXP = 104
        vDQ = 120
        vT = 124
        vMX, vLS, vM, vNM, vF, vML0, vML1, vCNT = 140, 141, 142, 143, 208, 210, 211, 212
        vW1 = 144
        vW2 = 160
        vR = 176
        vB1, vXV, vB2V, vHV, vOPA, vSENT, vOUTA = 213, 214, 215, 216, 217, 220, 218
        vA1, vA2, vA3, vA4 = 224, 225, 226, 227
        vXR = 228
        vWOFF1, vWOFF2, vB1OFF, vHOFF, vGA = 232, 233, 234, 235, 236
        vONE, vATO = 237, 238
        vXOFF, vB2OFF, vC2OFF = 239, 240, 241
        vPROG = (242, 209); vPUBO, vPRO, vLIMW, vLIMR, vLIM, vPV, vPT, vPT2, vWIN = 243, 244, 245, 246, 247, 248, 249, 219, 253
        vSNAP, vEFF = 254, 255
        sLim, sSp2 = 94, 95
        THR = self.kw.get('thr'); CHK = self.kw.get('chk', 2); NREP = self.kw.get('nrep', 32)
        aW = 128
        T = lambda i: vT + i

        A('s_cmp_ge_u32 s2, 256'); A('s_cbranch_scc1 L_end')
        if self.kw.get('wgx'): A('s_xor_b32 s2, s2, %d' % self.kw['wgx'])
        if self.kw.get('hperm'):
            pc = sum(v << (4 * i) for i, v in enumerate(self.kw['hperm']))
            A('s_and_b32 s3, s2, 7'); A('s_lshl_b32 s3, s3, 2'); A('s_lshr_b32 s3, %d, s3' % pc); A('s_and_b32 s3, s3, 7')
            A('s_andn2_b32 s2, s2, 7'); A('s_or_b32 s2, s2, s3')
        A(f's_load_dwordx16 s[4:19], s[0:1], 0'); A('s_load_dwordx8 s[20:27], s[0:1], 64'); A('s_load_dwordx2 s[28:29], s[0:1], 96')
        if self.diag:
            A('v_mov_b32 v251, 0')
            G.stamp(0)
        A(f'v_and_b32 v{vL}, 63, v0'); A(f'v_lshrrev_b32 v{T(0)}, 6, v0'); A(f'v_and_b32 v{vN}, 15, v0')
        A(f'v_readfirstlane_b32 s{sW}, v{T(0)}')
        A(f'v_lshrrev_b32 v{vG}, 4, v{vL}')
        A(f's_and_b32 s{sH}, s2, 31'); A(f's_lshr_b32 s{sB}, s2, 5'); A(f's_and_b32 s{sB}, s{sB}, 1'); A(f's_lshr_b32 s{sS}, s2, 6'); A(f's_and_b32 s{sBH}, s2, 63')
        if self.kw.get('hmap') == 'c4':
            A(f's_and_b32 s{sT}, s2, 7'); A(f's_lshl_b32 s{sT}, s{sT}, 2'); A(f's_bfe_u32 s{sH}, s2, 0x20003'); A(f's_or_b32 s{sH}, s{sH}, s{sT}')
            A(f's_lshl_b32 s{sT}, s{sB}, 5'); A(f's_or_b32 s{sBH}, s{sH}, s{sT}')
        if self.kw.get('only') is not None:
            kind, val = self.kw['only']
            if kind == 'cls': A(f's_and_b32 s{sT}, s{sH}, 3'); A(f's_cmp_eq_u32 s{sT}, {val}'); A('s_cbranch_scc0 L_end')
            if kind == 'lt': A(f's_cmp_lt_u32 s2, {val}'); A('s_cbranch_scc0 L_end')
        A(f's_lshl_b32 s{sT}, s{sW}, 12')
        A(f'v_lshrrev_b32 v{T(0)}, 1, v{vN}'); A(f'v_lshlrev_b32 v{T(0)}, 8, v{T(0)}')
        A(f'v_and_b32 v{T(1)}, 1, v{vN}'); A(f'v_lshl_add_u32 v{T(0)}, v{T(1)}, 6, v{T(0)}')
        A(f'v_lshl_add_u32 v{T(0)}, v{vG}, 4, v{T(0)}'); A(f'v_add_u32 v{vK}, s{sT}, v{T(0)}')
        A(f'v_lshlrev_b32 v{T(0)}, 9, v{vG}'); A(f'v_lshl_add_u32 v{T(0)}, v{vN}, 4, v{T(0)}'); A(f'v_add_u32 v{vV}, s{sT}, v{T(0)}')
        A(f's_lshl_b32 s{sT}, s{sW}, 20'); A(f'v_lshlrev_b32 v{T(0)}, 18, v{vG}'); A(f'v_lshl_add_u32 v{T(0)}, v{vN}, 4, v{T(0)}'); A(f'v_add_u32 v{vWQ}, s{sT}, v{T(0)}')
        QX = self.kw.get('qx')
        vTG, vEW, vQE, vQS, vQL = 144, 146, 148, 149, 150
        sQ, sJ = 98, 99
        if QX:
            A(f's_lshr_b32 s{sJ}, s2, 5')
            A(f's_lshl_b32 s{sT}, s{sW}, 17'); A(f'v_lshlrev_b32 v{T(0)}, 15, v{vG}'); A(f'v_lshl_add_u32 v{T(0)}, v{vN}, 4, v{T(0)}'); A(f'v_add_u32 v{vWQ}, s{sT}, v{T(0)}')
            A(f's_mul_i32 s{sT}, s{sH}, {QX_STR}'); A(f's_add_u32 s{sT}, s{sT}, {WS_QX}'); A(f'v_mov_b32 v{vQE}, s{sT}')
            A(f's_lshl_b32 s{sT2}, s{sJ}, 11'); A(f's_add_u32 s{sT2}, s{sT2}, s{sT}'); A(f's_add_u32 s{sT2}, s{sT2}, 1024')
            A(f's_lshl_b32 s{sQ}, s{sW}, 9'); A(f's_add_u32 s{sT2}, s{sT2}, s{sQ}')
            A(f'v_lshlrev_b32 v{T(0)}, 4, v{vL}'); A(f'v_add_u32 v{T(1)}, s{sT2}, v{T(0)}'); A(f'v_mov_b32 v{T(3)}, {OOB}')
            A(f'v_cmp_gt_u32 vcc, 32, v{vL}'); A(f'v_cndmask_b32 v{vQS}, v{T(3)}, v{T(1)}, vcc')
            A(f's_lshl_b32 s{sT2}, s{sW}, 12'); A(f's_add_u32 s{sT2}, s{sT2}, s{sT}'); A(f's_lshl_b32 s{sQ}, s{sB}, 10'); A(f's_add_u32 s{sT2}, s{sT2}, s{sQ}')
            A(f's_add_u32 s{sT2}, s{sT2}, 1024'); A(f'v_add_u32 v{vQL}, s{sT2}, v{T(0)}')
            A(f's_mov_b32 s{sQ}, 0')
        A(f's_lshl_b32 s{sT}, s{sB}, 10'); A(f'v_lshlrev_b32 v{T(2)}, 4, v{vL}'); A(f'v_add_u32 v{T(2)}, s{sT}, v{T(2)}')
        if QX:
            A(f'v_lshrrev_b32 v{T(2)}, 5, v{vL}'); A(f'v_lshlrev_b32 v{T(2)}, 10, v{T(2)}'); A(f'v_and_b32 v{T(3)}, 31, v{vL}'); A(f'v_lshl_add_u32 v{T(2)}, v{T(3)}, 5, v{T(2)}')
        A(f's_lshl_b32 s{sT}, s{sB}, 5'); A(f's_lshl_b32 s{sT2}, s{sW}, 3'); A(f's_add_u32 s{sT}, s{sT}, s{sT2}')
        A(f's_lshl_b32 s{sT}, s{sT}, 13')
        A(f's_lshl_b32 s{sT2}, s{sH}, 2'); A(f's_add_u32 s{sT2}, s{sT2}, s{sS}'); A(f's_lshl_b32 s{sT2}, s{sT2}, 6')
        A(f's_add_u32 s{sT}, s{sT}, s{sT2}'); A(f's_add_u32 s{sT}, s{sT}, {WS_C1}')
        A(f'v_lshlrev_b32 v{T(0)}, 1, v{vG}'); A(f'v_lshrrev_b32 v{T(1)}, 2, v{vN}'); A(f'v_add_u32 v{T(0)}, v{T(0)}, v{T(1)}')
        A(f'v_lshlrev_b32 v{T(0)}, 13, v{T(0)}'); A(f'v_and_b32 v{T(1)}, 3, v{vN}'); A(f'v_lshl_add_u32 v{T(0)}, v{T(1)}, 4, v{T(0)}')
        A(f'v_add_u32 v{T(0)}, s{sT}, v{T(0)}')
        A(f'v_mov_b32 v{T(1)}, {OOB}'); A(f'v_cmp_gt_u32 vcc, 8, v{vN}')
        A(f'v_cndmask_b32 v{vC1}, v{T(1)}, v{T(0)}, vcc')
        W2 = self.kw.get('wot2')
        vXO2, vOHW, vOHR = 243, 244, 245
        if W2:
            assert not THR
            A(f'v_lshrrev_b32 v{T(0)}, 2, v{vN}'); A(f'v_lshlrev_b32 v{T(0)}, 1, v{T(0)}'); A(f'v_lshrrev_b32 v{T(1)}, 1, v{vG}'); A(f'v_add_u32 v{T(0)}, v{T(0)}, v{T(1)}')
            A(f'v_lshlrev_b32 v{T(0)}, 13, v{T(0)}'); A(f'v_and_b32 v{T(1)}, 3, v{vN}'); A(f'v_lshl_add_u32 v{T(0)}, v{T(1)}, 4, v{T(0)}')
            A(f'v_and_b32 v{T(1)}, 1, v{vG}'); A(f'v_lshl_add_u32 v{T(0)}, v{T(1)}, 3, v{T(0)}')
            A(f'v_add_u32 v{vC1}, s{sT}, v{T(0)}')
            A(f'v_mov_b32 v{vXO2}, {OOB}')
            A(f's_lshl_b32 s{sT2}, s{sW}, 9'); A(f'v_lshrrev_b32 v{T(0)}, 3, v{vN}'); A(f'v_lshlrev_b32 v{T(0)}, 8, v{T(0)}'); A(f'v_lshl_add_u32 v{T(0)}, v{vG}, 6, v{T(0)}')
            A(f'v_and_b32 v{T(1)}, 7, v{vN}'); A(f'v_lshl_add_u32 v{T(0)}, v{T(1)}, 3, v{T(0)}'); A(f'v_add_u32 v{vOHW}, s{sT2}, v{T(0)}')
            A(f'v_lshrrev_b32 v{T(0)}, 2, v{vN}'); A(f'v_lshlrev_b32 v{T(0)}, 9, v{T(0)}'); A(f'v_and_b32 v{T(1)}, 1, v{vN}'); A(f'v_lshl_add_u32 v{T(0)}, v{T(1)}, 8, v{T(0)}')
            A(f'v_lshl_add_u32 v{vOHR}, v{vG}, 4, v{T(0)}')
        A(f's_lshl_b32 s{sT}, s{sBH}, 7'); A(f's_lshl_b32 s{sT2}, s{sS}, 2'); A(f's_add_u32 s{sT2}, s{sT2}, s{sW}'); A(f's_lshl_b32 s{sT2}, s{sT2}, 3')
        A(f's_add_u32 s{sT2}, s{sT2}, s{sT}'); A(f'v_mov_b32 v{T(0)}, s{sT2}'); A(f'v_mov_b32 v{T(1)}, {OOB}')
        A(f'v_cmp_eq_u32 vcc, 0, v{vL}'); A(f'v_cndmask_b32 v{vMLp}, v{T(1)}, v{T(0)}, vcc')
        A(f'v_lshlrev_b32 v{T(0)}, 3, v{vN}'); A(f'v_add_u32 v{vMLq}, s{sT}, v{T(0)}')
        kp, vp = self.kw.get('kpat'), self.kw.get('vpat')
        if kp == 'v' or vp == 'k' or kp == 'lin' or vp == 'lin':
            A(f's_lshl_b32 s{sT}, s{sW}, 12')
            if kp == 'v' and vp is None: A(f'v_mov_b32 v{vK}, v{vV}')
            if vp == 'k' and kp is None: A(f'v_mov_b32 v{vV}, v{vK}')
            if kp == 'lin': A(f'v_lshlrev_b32 v{T(0)}, 4, v{vL}'); A(f'v_add_u32 v{vK}, s{sT}, v{T(0)}')
            if vp == 'lin': A(f'v_lshlrev_b32 v{T(0)}, 4, v{vL}'); A(f'v_add_u32 v{vV}, s{sT}, v{T(0)}')
        rot = self.kw.get('rot')
        if rot:
            A(f's_mul_i32 s99, s2, {rot}'); A(f's_lshr_b32 s{sT}, s2, 5'); A(f's_add_u32 s99, s99, s{sT}'); A('s_and_b32 s99, s99, 31'); A('s_lshl_b32 s99, s99, 14')
        A(f's_mov_b32 s{sRole}, 0')
        A(f's_and_b32 s{sT}, s2, 7'); A(f's_mul_i32 s{sT}, s{sT}, 14'); A(f's_lshr_b32 s{sT2}, s2, 3'); A(f's_add_u32 s{sU}, s{sT}, s{sT2}')
        A(f's_cmp_lt_u32 s2, 112'); A(f's_cselect_b32 s{sRole}, 1, 0')
        A(f's_sub_u32 s{sT}, s2, 128'); A(f's_cmp_lt_u32 s{sT}, 64'); A(f's_cselect_b32 s{sRole}, 2, s{sRole}'); A(f's_cselect_b32 s{sU}, s{sT}, s{sU}')
        for r_ in (vRS, vWOFF1, vWOFF2, vB1OFF, vHOFF, vOUTA, vXOFF, vB2OFF, vC2OFF): A(f'v_mov_b32 v{r_}, {OOB}')
        A(f's_cmp_eq_u32 s{sRole}, 1'); A('s_cbranch_scc0 L_r1')
        A(f'v_lshrrev_b32 v{T(0)}, 3, v{vN}'); A(f'v_lshlrev_b32 v{T(0)}, 5, v{T(0)}')
        A(f'v_lshl_add_u32 v{T(0)}, v{vG}, 1, v{T(0)}'); A(f'v_bfe_u32 v{T(1)}, v{vN}, 2, 1'); A(f'v_add_u32 v{T(0)}, v{T(0)}, v{T(1)}')
        A(f's_lshl_b32 s{sT}, s{sW}, 3'); A(f'v_add_u32 v{T(0)}, s{sT}, v{T(0)}')
        A(f'v_mul_u32_u24 v{T(0)}, {112*64}, v{T(0)}'); A(f'v_and_b32 v{T(1)}, 3, v{vN}'); A(f'v_lshl_add_u32 v{T(0)}, v{T(1)}, 4, v{T(0)}')
        if self.kw.get('fakec2'):
            A(f's_and_b32 s{sT}, s2, 7'); A(f's_lshl_b32 s{sT}, s{sT}, 3'); A(f's_lshr_b32 s{sT2}, s2, 3'); A(f's_add_u32 s{sT}, s{sT}, s{sT2}')
            A(f's_lshl_b32 s{sT}, s{sT}, 6'); A(f's_add_u32 s{sT}, s{sT}, {WS_C2}')
            A(f's_cmp_lt_u32 s2, 64'); A(f's_cselect_b32 s{sT}, s{sT}, {OOB}'); A(f'v_add_u32 v{vRS}, s{sT}, v{T(0)}')
        else:
            A(f's_lshl_b32 s{sT}, s{sU}, 6'); A(f's_add_u32 s{sT}, s{sT}, {WS_C2}'); A(f'v_add_u32 v{vRS}, s{sT}, v{T(0)}')
        A(f'v_lshrrev_b32 v{T(0)}, 1, v{vG}'); A(f'v_lshlrev_b32 v{T(0)}, 2, v{T(0)}'); A(f'v_and_b32 v{T(1)}, 1, v{vG}'); A(f'v_lshl_add_u32 v{T(0)}, v{T(1)}, 1, v{T(0)}')
        A(f's_lshl_b32 s{sT}, s{sW}, 7'); A(f'v_add_u32 v{T(0)}, s{sT}, v{T(0)}'); A(f'v_mul_u32_u24 v{T(0)}, 3584, v{T(0)}')
        A(f's_lshl_b32 s{sT}, s{sU}, 5'); A(f'v_lshl_add_u32 v{T(0)}, v{vN}, 1, v{T(0)}'); A(f'v_add_u32 v{vWOFF1}, s{sT}, v{T(0)}')
        A(f's_lshl_b32 s{sT}, s{sU}, 14'); A(f's_lshl_b32 s{sT2}, s{sW}, 8'); A(f's_add_u32 s{sT}, s{sT}, s{sT2}')
        A(f'v_lshlrev_b32 v{T(0)}, 12, v{vG}'); A(f'v_lshl_add_u32 v{T(0)}, v{vN}, 4, v{T(0)}'); A(f'v_add_u32 v{vWOFF2}, s{sT}, v{T(0)}')
        A(f's_lshl_b32 s{sT}, s{sU}, 5'); A(f'v_and_b32 v{T(0)}, 3, v{vN}'); A(f'v_lshl_add_u32 v{T(0)}, v{vG}, 2, v{T(0)}'); A(f'v_lshlrev_b32 v{T(0)}, 1, v{T(0)}'); A(f'v_add_u32 v{vB1OFF}, s{sT}, v{T(0)}')
        A(f'v_lshrrev_b32 v{T(0)}, 5, v{vL}'); A(f'v_lshlrev_b32 v{T(0)}, 11, v{T(0)}'); A(f'v_and_b32 v{T(1)}, 31, v{vL}'); A(f'v_lshl_add_u32 v{T(0)}, v{T(1)}, 4, v{T(0)}')
        WSH = 0x1d0000 if (self.kw.get('hrep') not in (None, True) and self.kw['hrep'] > 8) else WS_H
        A(f'v_add_u32 v{vHOFF}, {WSH}, v{T(0)}')
        if self.kw.get('hrep'):
            NR = 4 if self.kw['hrep'] is True else self.kw['hrep']
            if self.kw.get('hmap'): A(f's_lshr_b32 s{sT}, s2, 3'); A(f's_and_b32 s{sT}, s{sT}, {NR-1}')
            else: A(f's_and_b32 s{sT}, s2, {NR-1}')
            A(f's_lshl_b32 s{sT}, s{sT}, 12'); A(f'v_add_u32 v{vHOFF}, s{sT}, v{vHOFF}')
        A('s_branch L_r2')
        A('L_r1:')
        A(f's_cmp_eq_u32 s{sRole}, 2'); A('s_cbranch_scc0 L_r2')
        A(f's_cmp_eq_u32 s{sW}, 0'); A('s_cbranch_scc0 L_r2')
        A(f's_lshl_b32 s{sT}, s{sU}, 6'); A(f's_add_u32 s{sT}, s{sT}, {WSH}')
        if self.kw.get('hrep'):
            if W2: A(f'v_and_b32 v{T(0)}, 3, v{vN}'); A(f'v_lshlrev_b32 v{T(0)}, 2, v{T(0)}'); A(f'v_lshl_add_u32 v{T(0)}, v{vG}, 4, v{T(0)}')
            else: A(f'v_and_b32 v{T(0)}, 3, v{vN}'); A(f'v_lshlrev_b32 v{T(0)}, 4, v{T(0)}'); A(f'v_lshl_add_u32 v{T(0)}, v{vG}, 2, v{T(0)}')
            A(f'v_lshrrev_b32 v{T(1)}, 2, v{vN}'); A(f'v_lshl_add_u32 v{T(0)}, v{T(1)}, 12, v{T(0)}'); A(f'v_add_u32 v{vRS}, s{sT}, v{T(0)}')
        else:
            A(f'v_lshlrev_b32 v{T(0)}, 4, v{vN}'); A(f'v_lshl_add_u32 v{T(0)}, v{vG}, 2, v{T(0)}'); A(f'v_add_u32 v{T(0)}, s{sT}, v{T(0)}')
            A(f'v_mov_b32 v{T(1)}, {OOB}'); A(f'v_cmp_gt_u32 vcc, 4, v{vN}'); A(f'v_cndmask_b32 v{vRS}, v{T(1)}, v{T(0)}, vcc')
        A(f's_and_b32 s{sT}, s{sU}, 31'); A(f's_lshr_b32 s{sT2}, s{sT}, 1'); A(f's_lshl_b32 s{sT2}, s{sT2}, 5')
        A(f's_and_b32 s{sT}, s{sT}, 1'); A(f's_lshl_b32 s{sT}, s{sT}, 2'); A(f's_add_u32 s{sT}, s{sT}, s{sT2}')
        if W2:
            assert self.kw.get('hrep')
            A(f'v_and_b32 v{T(0)}, 3, v{vN}'); A(f'v_lshl_add_u32 v{T(0)}, v{T(0)}, 3, v{vG}'); A(f'v_add_u32 v{T(0)}, s{sT}, v{T(0)}')
            A(f's_lshr_b32 s{sT2}, s{sU}, 5'); A(f's_lshl_b32 s{sT2}, s{sT2}, 10'); A(f'v_lshlrev_b32 v{T(0)}, 1, v{T(0)}'); A(f'v_add_u32 v{vXO2}, s{sT2}, v{T(0)}')
        A(f'v_and_b32 v{T(0)}, 3, v{vN}'); A(f'v_lshl_add_u32 v{T(0)}, v{vG}, 3, v{T(0)}'); A(f'v_add_u32 v{T(0)}, s{sT}, v{T(0)}')
        A(f'v_lshlrev_b32 v{vB2OFF}, 1, v{T(0)}')
        A(f's_lshr_b32 s{sT}, s{sU}, 5'); A(f's_lshl_b32 s{sT}, s{sT}, 10'); A(f'v_add_u32 v{vXOFF}, s{sT}, v{vB2OFF}')
        A(f'v_mov_b32 v{T(1)}, {OOB}'); A(f'v_cmp_gt_u32 vcc, 4, v{vN}'); A(f'v_cndmask_b32 v{vOUTA}, v{T(1)}, v{vXOFF}, vcc')
        A(f's_lshl_b32 s{sT}, s{sU}, 13'); A(f's_add_u32 s{sT}, s{sT}, {WS_C1}'); A(f'v_lshlrev_b32 v{T(0)}, 4, v{vL}'); A(f'v_add_u32 v{vHOFF}, s{sT}, v{T(0)}')
        A(f's_mul_i32 s{sT}, s{sU}, 7168'); A(f's_add_u32 s{sT}, s{sT}, {WS_C2}'); A(f'v_add_u32 v{vC2OFF}, s{sT}, v{T(0)}')
        A('L_r2:')
        for i in range(4): A(f'v_mov_b32 v{vSENT+i}, -1')
        A('s_waitcnt lgkmcnt(0)')
        if self.kw.get('st2'): G.stamp(24)
        A(f's_lshl_b32 s{sT}, s{sBH}, 21'); A(f's_lshl_b32 s{sT2}, s{sS}, 19'); A(f's_add_u32 s{sT}, s{sT}, s{sT2}')
        if self.kw.get('krot'): A(f's_add_u32 s{sT}, s{sT}, {self.kw["krot"] << 21}'); A(f's_and_b32 s{sT}, s{sT}, {(64 << 21) - 1}')
        G.srd(rX, pX, pX + 1, 2048)
        vQX, vQR, vQP = vR, vR + 16, vR + 24
        WSZ = (WS_QX + 32 * QX_STR) if QX else WS_SIZE + (0x100000 if self.diag else 0)
        if WSH != WS_H: WSZ = WSH + self.kw['hrep'] * 4096
        if QX and QX.get('skip'):
            G.srd(rWS, pWS, pWS + 1, WSZ)
        elif QX:
            G.vmop(f'buffer_load_dwordx4 v[{vQR}:{vQR+3}], v{T(2)}, s[{rX}:{rX+3}], 0 offen', 'x')
            G.vmop(f'buffer_load_dwordx4 v[{vQR+4}:{vQR+7}], v{T(2)}, s[{rX}:{rX+3}], 0 offen offset:16', 'x')
            A(f's_lshl_b32 s{sT2}, s{sH}, 8')
            G.srd(rWQ, pWQ, pWQ + 1, 0, f's{sT2}'); A(f's_sub_u32 s{rWQ+2}, {512*8192}, s{sT2}')
            A(f's_lshl_b32 s{sT2}, s{sJ}, 19')
            for i in range(4):
                G.vmop(f'buffer_load_dwordx4 a[{aW+4*i}:{aW+4*i+3}], v{vWQ}, s[{rWQ}:{rWQ+3}], s{sT2} offen', f'wq{i}')
                if i < 3: A(f's_add_u32 s{sT2}, s{sT2}, 8192')
            G.srd(rWS, pWS, pWS + 1, WSZ)
            G.vmop(f'buffer_load_dwordx2 v[{vEW}:{vEW+1}], v{vQE}, s[{rWS}:{rWS+3}], 0 offen sc1', 'E')
        G.srd(rK, pK, pK + 1, 0x80000, f's{sT}')
        if not QX: G.vmop(f'buffer_load_dwordx4 v[{vXR}:{vXR+3}], v{T(2)}, s[{rX}:{rX+3}], 0 offen', 'x')
        if self.kw.get('xwait'): G.vmwait('x')
        koffs = [0, 2048, 128, 2176]
        voffs = [0, 2048, 256, 2304]
        if kp == 'v': koffs = list(voffs)
        if vp == 'k': voffs = list(koffs)
        if kp == 'lin': koffs = [0, 1024, 2048, 3072]
        if vp == 'lin': voffs = [0, 1024, 2048, 3072]
        if kp == 'adj': koffs = [0, 128, 2048, 2176]
        if vp == 'adj': voffs = [0, 256, 2048, 2304]
        last_soff = [None]
        def load_one(u, q, setoff=True):
            isK = u < 32; t = u % 32
            if setoff:
                if self.kw.get('rot'):
                    A(f's_add_u32 s{sOff}, s99, {t*16384}'); A(f's_and_b32 s{sOff}, s{sOff}, {31*16384}')
                else:
                    A(f's_mov_b32 s{sOff}, {t*16384}')
            r = ((u % RING) * 4 + q) * 4
            if isK: G.vmop(f'buffer_load_dwordx4 a[{r}:{r+3}], v{vK}, s[{rK}:{rK+3}], s{sOff} offen offset:{koffs[q]} {nt}', f'u{u}')
            else:   G.vmop(f'buffer_load_dwordx4 a[{r}:{r+3}], v{vV}, s[{rV}:{rV+3}], s{sOff} offen offset:{voffs[q]} {nt}', f'u{u}')
            G.lidx[4 * u + q] = len(G.vm) - 1
        def unit_loads(u):
            for q in range(4): load_one(u, q, q == 0)
        PRO = self.kw.get('pro')
        kcur = [None]; kiss = [0]
        def issue_k():
            m = kiss[0]; u_, q_ = m // 4, m % 4
            load_one(u_, q_, u_ != kcur[0]); kcur[0] = u_; kiss[0] += 1
        if QX:
            for _ in range(QX['k0']): issue_k()
        elif PRO:
            for _ in range(PRO[0]): issue_k()
        elif self.pre > 0: unit_loads(0)
        if self.kw.get('st2'): G.stamp(25)
        G.srd(rV, pV, pV + 1, 0x80000, f's{sT}')
        if not QX: G.srd(rWS, pWS, pWS + 1, WSZ)
        A(f's_lshl_b32 s{sT}, s{sH}, 8')
        if self.kw.get('wqsame'): A(f's_mov_b32 s{sT}, 0')
        if self.kw.get('wqrot'): A(f's_add_u32 s{sT}, s{sH}, {self.kw["wqrot"]}'); A(f's_and_b32 s{sT}, s{sT}, 31'); A(f's_lshl_b32 s{sT}, s{sT}, 8')
        if self.kw.get('wqx'): A(f's_lshr_b32 s{sT}, s2, 3'); A(f's_lshl_b32 s{sT}, s{sT}, 8')
        if self.kw.get('wqx4'): A(f's_lshr_b32 s{sT}, s2, 2'); A(f's_and_b32 s{sT}, s{sT}, 31'); A(f's_lshl_b32 s{sT}, s{sT}, 8')
        if QX: pass
        elif self.kw.get('wqbase'):
            pb = {'K': pK, 'V': pV, 'O': pWO}[self.kw['wqbase']]
            G.srd(rWQ, pb, pb + 1, 0, f's{sT}'); A(f's_sub_u32 s{rWQ+2}, {512*8192}, s{sT}')
        else:
            G.srd(rWQ, pWQ, pWQ + 1, 0, f's{sT}'); A(f's_sub_u32 s{rWQ+2}, {512*8192}, s{sT}')
        if self.kw.get('noinit'):
            A(f'v_mov_b32 v{vC1}, {OOB}'); A(f'v_mov_b32 v{vMLp}, {OOB}'); A(f'v_mov_b32 v{vRS}, {OOB}'); A(f'v_mov_b32 v{vHOFF}, {OOB}'); A(f'v_mov_b32 v{vC2OFF}, {OOB}'); A(f'v_mov_b32 v{vMLq}, {OOB}')
        if W2: G.vmop(f'buffer_store_dwordx2 v[{vSENT}:{vSENT+1}], v{vC1}, s[{rWS}:{rWS+3}], 0 offen sc1', 'init')
        else: G.vmop(f'buffer_store_dwordx4 v[{vSENT}:{vSENT+3}], v{vC1}, s[{rWS}:{rWS+3}], 0 offen sc1', 'init')
        G.vmop(f'buffer_store_dwordx2 v[{vSENT}:{vSENT+1}], v{vMLp}, s[{rWS}:{rWS+3}], 0 offen sc1', 'init')
        A(f's_cmp_eq_u32 s{sRole}, 1'); A('s_cbranch_scc0 L_i1')
        G.vmop(f'buffer_store_dwordx4 v[{vSENT}:{vSENT+3}], v{vRS}, s[{rWS}:{rWS+3}], 0 offen sc1', 'init', True)
        A('L_i1:')
        A(f's_cmp_eq_u32 s{sRole}, 2'); A('s_cbranch_scc0 L_i2')
        G.vmop(f'buffer_store_dword v{vSENT}, v{vRS}, s[{rWS}:{rWS+3}], 0 offen sc1', 'init', True)
        NRH = self.kw.get('hrep'); NRH = 1 if NRH in (None, True) else NRH // 4
        for r_ in range(1, NRH):
            A(f's_mov_b32 s{sT}, {r_*16384}')
            G.vmop(f'buffer_store_dword v{vSENT}, v{vRS}, s[{rWS}:{rWS+3}], s{sT} offen sc1', 'init', True)
        A('L_i2:')
        if self.kw.get('st2'): G.stamp(26)
        def wq_load(i):
            if self.kw.get('nowq0'): return
            if self.nowq and i >= 4: return
            A(f's_mov_b32 s{sT}, {i*8192}')
            r = aW + 4 * i
            G.vmop(f'buffer_load_dwordx4 a[{r}:{r+3}], v{vWQ}, s[{rWQ}:{rWQ+3}], s{sT} offen {wnt}', f'wq{i}')
            if self.kw.get('st2') and i == 15: G.stamp(27)
            if self.kw.get('st2') and i == 31: G.stamp(28)
        il = self.kw.get('il', 0)
        done_u = 1 if self.pre > 0 else 0
        if QX:
            for _ in range(QX.get('n1', 0)): issue_k()
        elif PRO:
            k0_, pa, pb_, Wp = PRO[:4]
            ktot = PRO[4] if len(PRO) > 4 else 28
            S = []
            for i in range(32):
                S.append(('wq', i))
                if i % pa == pa - 1 and i < 31: S += [('k', None)] * pb_
            S += [('k', None)] * 32
            sp = [0]
            def pro_next():
                while sp[0] < len(S):
                    kind, i = S[sp[0]]; sp[0] += 1
                    if kind == 'wq':
                        A(f's_mov_b32 s{sLim}, {i*8192}')
                        r = aW + 4 * i
                        G.vmop(f'buffer_load_dwordx4 a[{r}:{r+3}], v{vWQ}, s[{rWQ}:{rWQ+3}], s{sLim} offen {wnt}', f'wq{i}')
                        if self.kw.get('st2') and i == 15: G.stamp(27)
                        if self.kw.get('st2') and i == 31: G.stamp(28)
                        return True
                    if kiss[0] < ktot:
                        issue_k(); return True
                return False
            for _ in range(PRO[5] if len(PRO) > 5 else Wp - k0_ - 1): pro_next()
        else:
            for i in range(32):
                wq_load(i)
                if il and i % 4 == 3 and done_u < 1 + il and i < 31:
                    unit_loads(done_u); done_u += 1
            for u in range(done_u, self.pre): unit_loads(u)
        G.stamp(9)
        A(f's_lshl_b32 s{sT}, s{sH}, 17')
        if self.kw.get('wosame'): A(f's_mov_b32 s{sT}, 0')
        if self.kw.get('wox'): A(f's_lshr_b32 s{sT}, s2, 3'); A(f's_lshl_b32 s{sT}, s{sT}, 17')
        if self.kw.get('wox4'): A(f's_lshr_b32 s{sT}, s2, 2'); A(f's_and_b32 s{sT}, s{sT}, 31'); A(f's_lshl_b32 s{sT}, s{sT}, 17')
        if self.kw.get('woxcd'): A(f's_and_b32 s{sT}, s{sH}, 7'); A(f's_lshl_b32 s{sT}, s{sT}, 17')
        G.srd(rWO, pWO, pWO + 1, 131072, f's{sT}')
        G.srd(rDBG, pDBG, pDBG + 1, 256)
        G.srd(rW1, pW1, pW1 + 1, 512 * 3584)
        G.srd(rW2, pW2, pW2 + 1, 1792 * 1024)
        G.srd(rB1, pB1, pB1 + 1, 3584)
        G.srd(rB2, pB2, pB2 + 1, 1024)
        G.srd(rOUT, pOUT, pOUT + 1, 2048)
        A(f's_mov_b32 s{sPK}, 0x05040100')
        A(f's_lshl_b32 s{sT}, s{sW}, 8'); A(f'v_lshlrev_b32 v{T(0)}, {11 if W2 else 15}, v{vG}'); A(f'v_lshl_add_u32 v{T(0)}, v{vN}, 4, v{T(0)}'); A(f'v_add_u32 v{vWO}, s{sT}, v{T(0)}')
        if W2: A('s_mov_b32 s100, 0x07060302')
        A(f's_lshr_b32 s{sAt}, s2, 4'); A(f's_and_b32 s{sAt}, s{sAt}, 15'); A(f's_cmp_eq_u32 s{sW}, 0'); A(f's_cselect_b32 s{sAt}, s{sAt}, 99')
        A(f'v_mov_b32 v{vONE}, 1'); A(f'v_mov_b32 v{vATO}, {OOB}'); A(f'v_cmp_eq_u32 vcc, 0, v{vL}'); A(f'v_cndmask_b32 v{vATO}, v{vATO}, 0, vcc')
        A(f'v_and_b32 v{T(0)}, 1, v{vN}'); A(f'v_cmp_eq_u32 vcc, 1, v{T(0)}')
        A(f'v_mov_b32 v{T(1)}, 0x0c0c0100'); A(f'v_mov_b32 v{T(2)}, 0x01000c0c'); A(f'v_cndmask_b32 v{T(3)}, v{T(1)}, v{T(2)}, vcc')
        A(f'v_mov_b32 v{T(1)}, 0x0c0c0302'); A(f'v_mov_b32 v{T(2)}, 0x03020c0c'); A(f'v_cndmask_b32 v{T(4)}, v{T(1)}, v{T(2)}, vcc')
        A(f'v_mov_b32 v{T(1)}, 0x0000ffff'); A(f'v_mov_b32 v{T(2)}, 0xffff0000'); A(f'v_cndmask_b32 v{T(5)}, v{T(1)}, v{T(2)}, vcc')
        A(f'v_bfe_u32 v{T(0)}, v{vN}, 1, 2'); A(f'v_mov_b32 v{T(6)}, 0x0c0c0c0c')
        for jj in range(4):
            A(f'v_cmp_eq_u32 vcc, {jj}, v{T(0)}')
            A(f'v_cndmask_b32 v{vSEL+jj}, v{T(6)}, v{T(3)}, vcc'); A(f'v_cndmask_b32 v{vSEL+4+jj}, v{T(6)}, v{T(4)}, vcc')
            A(f'v_cndmask_b32 v{vMASK+jj}, 0, v{T(5)}, vcc')
        if QX:
            A(f's_lshl_b32 s{sT}, s{sW}, 11'); A(f'v_lshlrev_b32 v{T(0)}, 5, v{vL}'); A(f'v_add_u32 v{vA1}, s{sT}, v{T(0)}')
            A(f's_lshl_b32 s{sT2}, s{sJ}, 2'); A(f's_add_u32 s{sT2}, s{sT2}, s{sW}'); A(f's_lshl_b32 s{sT2}, s{sT2}, 5'); A(f's_add_u32 s{sT}, s{sT}, s{sT2}')
            A(f'v_lshrrev_b32 v{T(0)}, 3, v{vN}'); A(f'v_lshlrev_b32 v{T(0)}, 10, v{T(0)}'); A(f'v_lshl_add_u32 v{T(0)}, v{vG}, 3, v{T(0)}'); A(f'v_add_u32 v{vA2}, s{sT}, v{T(0)}')
        else:
            A(f's_lshl_b32 s{sT}, s{sW}, 10'); A(f'v_lshlrev_b32 v{T(0)}, 4, v{vL}'); A(f'v_add_u32 v{vA1}, s{sT}, v{T(0)}')
            A(f's_mul_i32 s{sT}, s{sW}, 1280'); A(f'v_lshlrev_b32 v{T(0)}, 6, v{vG}'); A(f'v_add_u32 v{vA2}, s{sT}, v{T(0)}')
        if THR:
            PSTR = self.kw.get('pstr', 4)
            GSTR = self.kw.get('gstr', 256 if PSTR == 4 else 8 * PSTR)
            A(f's_and_b32 s{sT}, s2, 3'); A(f's_lshl_b32 s{sT}, s{sT}, 3'); A(f's_lshr_b32 s{sT2}, s2, 3'); A(f's_sub_u32 s{sT2}, s{sT2}, s{sT}'); A(f's_and_b32 s{sT2}, s{sT2}, 31')
            A(f's_mul_i32 s{sT2}, s{sT2}, {GSTR}'); A(f's_add_u32 s{sT2}, s{sT2}, {WS_PROG}')
            A(f'v_mov_b32 v{vPT}, {OOB}'); A(f'v_and_b32 v{vPRO}, 7, v{vL}'); A(f'v_mul_u32_u24 v{vPRO}, {PSTR}, v{vPRO}'); A(f'v_add_u32 v{vPRO}, s{sT2}, v{vPRO}')
            A(f's_and_b32 s{sT}, s2, 7'); A(f's_mul_i32 s{sT}, s{sT}, {PSTR}'); A(f's_add_u32 s{sT}, s{sT}, s{sT2}')
            A(f'v_mov_b32 v{vPUBO}, s{sT}'); A(f'v_cmp_eq_u32 vcc, 0, v{vL}'); A(f'v_cndmask_b32 v{vPUBO}, v{vPT}, v{vPUBO}, vcc')
            A(f'v_lshlrev_b32 v{vLIMW}, 2, v{vL}'); A(f'v_add_u32 v{vLIMW}, {L_DUM2}, v{vLIMW}')
            A(f'v_mov_b32 v{vLIMR}, {L_LIM}'); A(f'v_mov_b32 v{vWIN}, {THR}')
            A(f's_cmp_eq_u32 s{sW}, 0'); A('s_cbranch_scc1 L_thw0')
            A(f'v_mov_b32 v{vPUBO}, {OOB}'); A(f'v_mov_b32 v{vPRO}, {OOB}'); A('s_branch L_thw1')
            A('L_thw0:')
            A(f'v_cndmask_b32 v{vLIMW}, v{vLIMW}, v{vLIMR}, vcc')
            A('L_thw1:')
            A(f'ds_write_b32 v{vLIMW}, v{vWIN}'); A(f'v_mov_b32 v{vLIM}, {THR}'); A(f'v_mov_b32 v{vEFF}, 0')
            for r_ in vPROG: A(f'v_mov_b32 v{r_}, 0')
        noq = self.kw.get('noq')
        if noq: A('s_branch L_noq')
        if QX and QX.get('skip'):
            L_keep = list(self.L); vm_keep = list(self.vm); done_keep = self.done; kiss_keep = kiss[0]; kcur_keep = kcur[0]; lidx_keep = dict(self.lidx)
            self.vm += [('x', False), ('wq0', False), ('wq1', False), ('wq2', False), ('wq3', False), ('E', False)]
        if self.kw.get('st2'): G.stamp(29)
        G.vmwait('x')
        if self.kw.get('st2'): G.stamp(30)
        if THR:
            G.vmop(f'buffer_load_dword v{vSNAP}, v{vPRO}, s[{rWS}:{rWS+3}], 0 offen sc1', 'snap')
        if QX:
            for _ in range(QX.get('n2', 0)): issue_k()
            X = [vQX + i for i in range(16)]
            for k in range(8):
                A(f'v_lshlrev_b32 v{X[2*k]}, 16, v{vQR+k}'); A(f'v_and_b32 v{X[2*k+1]}, 0xffff0000, v{vQR+k}')
            self.ln_stats(X, T(8), T(9), T(10), T(11), 1.0 / 512, self.half_allreduce)
            self.ln_apply(X, T(8), T(9))
            for k in range(8): A(f'v_cvt_pk_bf16_f32 v{vQR+k}, v{X[2*k]}, v{X[2*k+1]}')
            A(f'ds_write_b128 v{vA1}, v[{vQR}:{vQR+3}] offset:{L_XN2}'); A(f'ds_write_b128 v{vA1}, v[{vQR+4}:{vQR+7}] offset:{L_XN2+16}')
            for _ in range(QX.get('n3', 0)): issue_k()
            A('s_waitcnt lgkmcnt(0)')
            A(f'ds_read_b64 v[{vXP}:{vXP+1}], v{vA2} offset:{L_XN2}')
        else:
            X = [T(i) for i in range(8)]
            for k in range(4):
                A(f'v_lshlrev_b32 v{X[2*k]}, 16, v{vXR+k}'); A(f'v_and_b32 v{X[2*k+1]}, 0xffff0000, v{vXR+k}')
            self.ln_stats(X, T(8), T(9), T(10), T(11), 1.0 / 512, self.wave_allreduce)
            self.ln_apply(X, T(8), T(9))
            for k in range(4): A(f'v_cvt_pk_bf16_f32 v{vXR+k}, v{X[2*k]}, v{X[2*k+1]}')
            A(f'ds_write_b128 v{vA1}, v[{vXR}:{vXR+3}] offset:{L_XN}')
            A('s_waitcnt lgkmcnt(0)')
            for k in range(4): A(f'ds_read_b128 v[{vXP+4*k}:{vXP+4*k+3}], v{vA2} offset:{L_XN+16*k}')
        A(f's_lshl_b32 s{sT}, s{sW}, 9'); A(f'v_and_b32 v{T(0)}, 7, v{vN}'); A(f'v_lshl_add_u32 v{T(0)}, v{vG}, 5, v{T(0)}'); A(f'v_lshlrev_b32 v{T(0)}, 2, v{T(0)}')
        A(f'v_add_u32 v{vA1}, s{sT}, v{T(0)}')
        A(f'v_mov_b32 v{T(1)}, {L_DUMMY - L_OP}'); A(f'v_cmp_gt_u32 vcc, 8, v{vN}'); A(f'v_cndmask_b32 v{vOPA}, v{T(1)}, v{vA1}, vcc')
        A(f'v_lshlrev_b32 v{vA3}, 3, v{vL}')
        A('s_waitcnt lgkmcnt(0)')
        if self.kw.get('st2'): G.stamp(31)
        def delta_steps(nsteps, acc, tagf, first_zero=True):
            if self.kw.get('dpipe') and tagf is None:
                def prm(i):
                    bset = vB + 4 * (i & 1)
                    for jj in range(4):
                        A(f'v_perm_b32 v{bset+jj}, v{vXP+(i>>1)}, v{vXP+(i>>1)}, v{vSEL+4*(i&1)+jj}')
                prm(0)
                for i in range(nsteps):
                    if i + 1 < nsteps: prm(i + 1)
                    bset = vB + 4 * (i & 1); r = aW + 4 * i
                    c = '0' if i == 0 else f'v[{acc}:{acc+3}]'
                    A(f'v_mfma_f32_16x16x32_bf16 v[{acc}:{acc+3}], a[{r}:{r+3}], v[{bset}:{bset+3}], {c}')
                return
            for i in range(nsteps):
                bset = vB + 4 * (i & 1)
                for jj in range(4):
                    A(f'v_perm_b32 v{bset+jj}, v{vXP+(i>>1)}, v{vXP+(i>>1)}, v{vSEL+4*(i&1)+jj}')
                if tagf is not None and i % 4 == 0: G.vmwait(tagf(i + 3))
                r = aW + 4 * i
                c = '0' if i == 0 else f'v[{acc}:{acc+3}]'
                A(f'v_mfma_f32_16x16x32_bf16 v[{acc}:{acc+3}], a[{r}:{r+3}], v[{bset}:{bset+3}], {c}')
        if QX:
            for i in range(4):
                bset = vB + 4 * (i & 1)
                for jj in range(4):
                    A(f'v_perm_b32 v{bset+jj}, v{vXP+(i>>1)}, v{vXP+(i>>1)}, v{vSEL+4*(i&1)+jj}')
                G.vmwait(f'wq{i}')
                c = '0' if i == 0 else f'v[{vDQ}:{vDQ+3}]'
                A(f'v_mfma_f32_16x16x32_bf16 v[{vDQ}:{vDQ+3}], a[{aW+4*i}:{aW+4*i+3}], v[{bset}:{bset+3}], {c}')
            A(f's_lshl_b32 s{sT}, s{sW}, 10'); A(f'v_and_b32 v{T(0)}, 7, v{vN}'); A(f'v_lshl_add_u32 v{T(0)}, v{vG}, 5, v{T(0)}'); A(f'v_lshlrev_b32 v{T(0)}, 2, v{T(0)}')
            A(f'v_lshrrev_b32 v{T(1)}, 3, v{vN}'); A(f'v_lshl_add_u32 v{T(0)}, v{T(1)}, 9, v{T(0)}'); A(f'v_add_u32 v{T(0)}, s{sT}, v{T(0)}')
            A(f's_lshl_b32 s{sT}, s{sW}, 8'); A(f'v_add_u32 v{T(1)}, s{sT}, v{vA3}')
            for i in range(4): A(f'ds_write_b32 v{T(0)}, v{vDQ+i} offset:{L_XN + 32*i}')
            for _ in range(QX.get('n4', 0)): issue_k()
            A('s_waitcnt lgkmcnt(0)'); A('s_barrier')
            for w in range(4): A(f'ds_read_b64 v[{T(2*w+2)}:{T(2*w+3)}], v{T(1)} offset:{L_XN + 1024*w}')
            G.vmwait('E')
            A(f'v_add_u32 v{vTG}, 0x9e3779b9, v{vEW}'); A(f'v_add_u32 v{vTG+1}, 0x7f4a7c15, v{vEW+1}')
            A('s_waitcnt lgkmcnt(0)')
            A(f'v_pk_add_f32 v[{T(2)}:{T(3)}], v[{T(2)}:{T(3)}], v[{T(4)}:{T(5)}]'); A(f'v_pk_add_f32 v[{T(6)}:{T(7)}], v[{T(6)}:{T(7)}], v[{T(8)}:{T(9)}]')
            A(f'v_pk_add_f32 v[{T(2)}:{T(3)}], v[{T(2)}:{T(3)}], v[{T(6)}:{T(7)}]')
            A(f'v_mov_b32 v{T(4)}, v{vTG}'); A(f'v_mov_b32 v{T(5)}, v{vTG+1}')
            G.vmop(f'buffer_store_dwordx4 v[{T(2)}:{T(5)}], v{vQS}, s[{rWS}:{rWS+3}], 0 offen sc1', 'qst')
            G.stamp(10)
            for _ in range(QX.get('n4b', 0)): issue_k()
            Wq, Pq, polls = QX['W'], QX['P'], list(QX['polls'])
            def q_poll(lab, firm):
                if not firm: A(f's_cmp_eq_u32 s{sQ}, 1'); A(f's_cbranch_scc1 {lab}')
                G.vmop(f'buffer_load_dwordx4 v[{vQP}:{vQP+3}], v{vQL}, s[{rWS}:{rWS+3}], 0 offen sc1', 'qpoll', not firm)
                G.vmop(f'buffer_load_dwordx4 v[{vQP+4}:{vQP+7}], v{vQL}, s[{rWS}:{rWS+3}], 0 offen offset:2048 sc1', 'qpoll', not firm)
                if not firm: A(f'{lab}:')
                return len(G.vm) - 1
            def q_cmp():
                A(f'v_cmp_ne_u32 vcc, v{vTG}, v{vQP+2}'); A(f'v_cmp_ne_u32 s[{sM}:{sM+1}], v{vTG+1}, v{vQP+3}'); A(f's_or_b64 vcc, vcc, s[{sM}:{sM+1}]')
                A(f'v_cmp_ne_u32 s[{sM}:{sM+1}], v{vTG}, v{vQP+6}'); A(f's_or_b64 vcc, vcc, s[{sM}:{sM+1}]')
                A(f'v_cmp_ne_u32 s[{sM}:{sM+1}], v{vTG+1}, v{vQP+7}'); A(f's_or_b64 vcc, vcc, s[{sM}:{sM+1}]')
                if QX.get('fake'): A('s_mov_b64 vcc, 0')
            def q_check(lab, idx):
                A(f's_cmp_eq_u32 s{sQ}, 1'); A(f's_cbranch_scc1 {lab}')
                n = sum(1 for (t_, o_) in G.vm[idx + 1:] if not o_)
                A(f's_waitcnt vmcnt({n})')
                q_cmp()
                A(f's_cbranch_vccnz {lab}'); A(f's_mov_b32 s{sQ}, 1')
                A(f'{lab}:')
            pend = None; nq = 0
            while True:
                m = kiss[0]
                if pend is not None and (m >= pend[0] or m >= Pq):
                    q_check(f'L_qc{nq}', pend[1]); pend = None
                if polls and polls[0] <= m and pend is None:
                    polls.pop(0); nq += 1
                    pend = (m + QX.get('d', Wq), q_poll(f'L_qp{nq}', nq == 1))
                    continue
                if m >= Pq: break
                if m - Wq >= 0: G.vmwait_idx(G.lidx[m - Wq])
                issue_k()
            A(f's_cmp_eq_u32 s{sQ}, 1'); A('s_cbranch_scc1 L_qok')
            A(f's_mov_b32 s{sSpin}, {self.spin}')
            G.stamp(12)
            A('L_qspin:')
            A(f'buffer_load_dwordx4 v[{vQP}:{vQP+3}], v{vQL}, s[{rWS}:{rWS+3}], 0 offen sc1')
            A(f'buffer_load_dwordx4 v[{vQP+4}:{vQP+7}], v{vQL}, s[{rWS}:{rWS+3}], 0 offen offset:2048 sc1')
            A('s_waitcnt vmcnt(0)')
            q_cmp()
            A('s_cbranch_vccz L_qok')
            A(f's_sub_u32 s{sSpin}, s{sSpin}, 1'); A('s_cbranch_scc0 L_qspin')
            A('L_qok:')
            G.stamp(11)
            A(f'v_pk_add_f32 v[{vQP}:{vQP+1}], v[{vQP}:{vQP+1}], v[{vQP+4}:{vQP+5}]')
            A(f's_lshl_b32 s{sT}, s{sW}, 9'); A(f'v_add_u32 v{T(0)}, s{sT}, v{vA3}')
            A(f'ds_write_b64 v{T(0)}, v[{vQP}:{vQP+1}] offset:{L_QP}')
            for _ in range(QX.get('n5', 0)): issue_k()
        elif PRO:
            for i in range(32):
                bset = vB + 4 * (i & 1)
                for jj in range(4):
                    A(f'v_perm_b32 v{bset+jj}, v{vXP+(i>>1)}, v{vXP+(i>>1)}, v{vSEL+4*(i&1)+jj}')
                idx = max(k for k, (t_, o_) in enumerate(G.vm) if t_ == f'wq{i}')
                G.vmwait_idx(idx)
                while len(G.vm) - 1 - idx < Wp and pro_next(): pass
                r = aW + 4 * i
                c = '0' if i == 0 else f'v[{vDQ}:{vDQ+3}]'
                A(f'v_mfma_f32_16x16x32_bf16 v[{vDQ}:{vDQ+3}], a[{r}:{r+3}], v[{bset}:{bset+3}], {c}')
            for _ in range(self.kw.get('kq', 0)): issue_k()
        else:
            delta_steps(32, vDQ, lambda i: f'wq{min(i, 3) if self.nowq else i}')
        if not QX:
            for i in range(4): A(f'ds_write_b32 v{vA1}, v{vDQ+i} offset:{L_QP + 32*i}')
        A('s_waitcnt lgkmcnt(0)'); A('s_barrier')
        A(f's_cmp_eq_u32 s{sW}, 0'); A('s_cbranch_scc0 L_c1')
        A(f'v_mov_b32 v{T(0)}, 1'); A(f'v_mov_b32 v{T(1)}, {OOB}'); A(f'v_cmp_eq_u32 vcc, 0, v{vL}'); A(f'v_cndmask_b32 v{T(1)}, v{T(1)}, 0, vcc')
        if not self.kw.get('noatom') and not self.kw.get('atsp'): G.vmop(f'buffer_atomic_add v{T(0)}, v{T(1)}, s[{rDBG}:{rDBG+3}], 0 offen', 'atom', True)
        A('L_c1:')
        for w in range(4): A(f'ds_read_b64 v[{T(2*w+2)}:{T(2*w+3)}], v{vA3} offset:{L_QP + 512*w}')
        if noq:
            A('L_noq:')
            A(f's_cmp_eq_u32 s{sW}, 0'); A('s_cbranch_scc0 L_c1b')
            A(f'v_mov_b32 v{T(0)}, 1'); A(f'v_mov_b32 v{T(1)}, {OOB}'); A(f'v_cmp_eq_u32 vcc, 0, v{vL}'); A(f'v_cndmask_b32 v{T(1)}, v{T(1)}, 0, vcc')
            if not self.kw.get('noatom'): A(f'buffer_atomic_add v{T(0)}, v{T(1)}, s[{rDBG}:{rDBG+3}], 0 offen')
            A('L_c1b:')
        LOOK = self.kw.get('look', RING); LOOKV = self.kw.get('lookv', LOOK)
        nxt = [self.pre]
        def issue_upto(u_hi):
            while nxt[0] <= min(u_hi, 63):
                unit_loads(nxt[0]); nxt[0] += 1
        if PRO or QX:
            while kiss[0] < self.kw.get('topup', 0): issue_k()
        else: issue_upto(LOOK - 1)
        SL = self.kw.get('slide'); SLV = self.kw.get('slidev', SL)
        nxl = [kiss[0] if (PRO or QX) else 4 * nxt[0]]
        m0_ = nxl[0]
        import math
        def lagof(m):
            f = SL if m < 128 else SLV
            eb = self.kw.get('eb')
            if eb and m >= 128 + 4 * eb[0]: f = eb[1]
            kb = self.kw.get('kb')
            if kb and m < 128 and m >= 4 * kb[0]: f = kb[1]
            rp = self.kw.get('ramp')
            if rp and m < 128:
                f = max(f, min(31, int(rp[0] - rp[1] * (m - m0_))))
            if isinstance(f, int) or float(f).is_integer(): return int(f)
            g = int(m // f)
            return int(math.floor((g + 1) * f) - math.floor(g * f))
        def slide_issue(j, boost=0):
            while nxl[0] <= 255 and (nxl[0] - lagof(nxl[0]) <= j or nxl[0] <= j + boost):
                m = nxl[0]; u_, q_ = m // 4, m % 4
                ap = self.kw.get('apace')
                if ap and not boost and m < 128 and m - ap > j: G.vmwait_idx(G.lidx[m - ap])
                load_one(u_, q_, u_ != slide_issue.cur); slide_issue.cur = u_
                nxl[0] += 1
        slide_issue.cur = None
        prog_k = [0]
        def prog_reduce(src):
            A(f'v_cmp_ne_u32 vcc, v{src}, v{vSNAP}'); A(f'v_cndmask_b32 v{vPT}, 0, v{src}, vcc'); A(f'v_max_u32 v{vEFF}, v{vEFF}, v{vPT}')
            A(f'v_min_u32_dpp v{vPT}, v{vEFF}, v{vEFF} row_ror:1 row_mask:0xf bank_mask:0xf')
            for r_ in (2, 4): A(f'v_min_u32_dpp v{vPT}, v{vPT}, v{vPT} row_ror:{r_} row_mask:0xf bank_mask:0xf')
            A(f'v_add_u32 v{vPT}, v{vWIN}, v{vPT}')
            A(f'ds_write_b32 v{vLIMW}, v{vPT}')
        def throttled_issue(g, u_hi):
            u_hi = min(u_hi, 63)
            if not THR: issue_upto(u_hi); return
            need_gate = u_hi >= nxt[0] and u_hi > THR
            if need_gate:
                lab = f'L_th{g}'
                A('s_waitcnt lgkmcnt(0)'); A(f'v_readfirstlane_b32 s{sLim}, v{vLIM}')
                A(f's_cmp_ge_u32 s{sLim}, {u_hi}'); A(f's_cbranch_scc1 {lab}_ok')
                A(f's_mov_b32 s{sSp2}, 4096')
                A(f'{lab}:')
                A(f's_cmp_eq_u32 s{sW}, 0'); A(f's_cbranch_scc0 {lab}_w')
                A(f'buffer_load_dword v{vPV}, v{vPRO}, s[{rWS}:{rWS+3}], 0 offen sc1'); A('s_waitcnt vmcnt(0)')
                prog_reduce(vPV)
                A(f'{lab}_w:')
                A(f'ds_read_b32 v{vLIM}, v{vLIMR}'); A('s_waitcnt lgkmcnt(0)'); A(f'v_readfirstlane_b32 s{sLim}, v{vLIM}')
                A(f's_cmp_ge_u32 s{sLim}, {u_hi}'); A(f's_cbranch_scc1 {lab}_ok')
                A(f's_sub_u32 s{sSp2}, s{sSp2}, 1'); A(f's_cbranch_scc0 {lab}')
                A(f'v_mov_b32 v{vWIN}, 0x100000')
                A(f'{lab}_ok:')
            more = nxt[0] <= 63 or True
            last_gate = 63 - 1
            do_chk = (g % CHK == 0) and nxt[0] < 63
            if do_chk:
                k = prog_k[0]
                G.vmop(f'buffer_load_dword v{vPROG[k & 1]}, v{vPRO}, s[{rWS}:{rWS+3}], 0 offen sc1', f'prog{k}')
            if g % self.kw.get('pubn', 1) == 0 and g < 63 - 2:
                A(f'v_mov_b32 v{vPV}, {g + 1}')
                G.vmop(f'buffer_store_dword v{vPV}, v{vPUBO}, s[{rWS}:{rWS+3}], 0 offen sc1', 'pub')
            issue_upto(u_hi)
            if do_chk:
                k = prog_k[0]
                if k > 0:
                    G.vmwait(f'prog{k-1}')
                    prog_reduce(vPROG[(k - 1) & 1])
                prog_k[0] += 1
            if nxt[0] <= 63: A(f'ds_read_b32 v{vLIM}, v{vLIMR}')
        A(f's_lshl_b32 s{sT}, s{sW}, 8'); A(f'v_lshlrev_b32 v{T(0)}, 2, v{vL}'); A(f'v_add_u32 v{T(0)}, s{sT}, v{T(0)}')
        A(f'v_lshrrev_b32 v{T(1)}, 3, v{vN}'); A(f'v_lshlrev_b32 v{T(1)}, 6, v{T(1)}'); A(f'v_lshl_add_u32 v{T(1)}, v{vG}, 4, v{T(1)}'); A(f'v_add_u32 v{T(1)}, s{sT}, v{T(1)}')
        A('s_waitcnt lgkmcnt(0)')
        A(f'v_pk_add_f32 v[{T(2)}:{T(3)}], v[{T(2)}:{T(3)}], v[{T(4)}:{T(5)}]'); A(f'v_pk_add_f32 v[{T(6)}:{T(7)}], v[{T(6)}:{T(7)}], v[{T(8)}:{T(9)}]')
        A(f'v_pk_add_f32 v[{T(2)}:{T(3)}], v[{T(2)}:{T(3)}], v[{T(6)}:{T(7)}]')
        A(f'v_cvt_pk_bf16_f32 v{T(2)}, v{T(2)}, v{T(3)}')
        A(f'ds_write_b32 v{T(0)}, v{T(2)} offset:{L_QB}')
        A('s_waitcnt lgkmcnt(0)')
        A(f'ds_read_b128 v[{vBQ}:{vBQ+3}], v{T(1)} offset:{L_QB}'); A(f'ds_read_b128 v[{vBQ+4}:{vBQ+7}], v{T(1)} offset:{L_QB+128}')
        A(f'v_mov_b32 v{vMX}, 0xff800000')
        for i in range(8): A(f'v_mov_b32 v{vO+i}, 0')
        A('s_waitcnt lgkmcnt(0)')
        G.stamp(1)
        if QX and QX.get('skip'):
            self.L[:] = L_keep; self.vm[:] = vm_keep; self.done = done_keep; kiss[0] = kiss_keep; kcur[0] = kcur_keep; self.lidx = lidx_keep
            nxl[0] = kiss[0]; m0_ = nxl[0]
            for i in range(8): A(f'v_mov_b32 v{vBQ+i}, 0'); A(f'v_mov_b32 v{vO+i}, 0')
            A(f'v_mov_b32 v{vMX}, 0xff800000')
            A(f's_lshl_b32 s{sT}, s{sW}, 9'); A(f'v_and_b32 v{T(0)}, 7, v{vN}'); A(f'v_lshl_add_u32 v{T(0)}, v{vG}, 5, v{T(0)}'); A(f'v_lshlrev_b32 v{T(0)}, 2, v{T(0)}')
            A(f'v_add_u32 v{vA1}, s{sT}, v{T(0)}')
            A(f'v_mov_b32 v{T(1)}, {L_DUMMY - L_OP}'); A(f'v_cmp_gt_u32 vcc, 8, v{vN}'); A(f'v_cndmask_b32 v{vOPA}, v{T(1)}, v{vA1}, vcc')
            A(f'v_lshlrev_b32 v{vA3}, 3, v{vL}')
            A(f'v_mov_b32 v{vTG}, 0'); A(f'v_mov_b32 v{vTG+1}, 0')
            G.stamp(1)
        if self.kw.get('qonly'): A('s_branch L_fin')
        if self.stop == 'q':
            return self.finish_debug([vBQ + i for i in range(8)])

        wo_loads = []
        for i in range(32):
            r = aW + 4 * i
            wo_loads.append((i // 4 * 4096, f'buffer_load_dwordx4 a[{r}:{r+3}], v{vWO}, s[{rWO}:{rWO+3}], s{sT} offen offset:{(i%4)*1024} {wnt}', f'wo{i}'))
        if W2:
            wo_loads = []
            for k in range(32):
                c_, e_ = k >> 3, ((k & 7) >> 1) + 4 * (k & 1)
                r = aW + 4 * (8 * c_ + e_)
                wo_loads.append(((32 * c_ + 8 * (e_ & 3)) * 1024, f'buffer_load_dwordx4 a[{r}:{r+3}], v{vWO}, s[{rWO}:{rWO+3}], s{sT} offen offset:{(e_>>2)*1024} {wnt}', f'wo{k}'))
        tr_items = []
        for c_ in range(4 if W2 else 0):
            b_ = aW + 32 * c_
            for ep in range(4):
                for p_ in range(ep, 4):
                    it = []
                    prs = [(ep, p_)] if ep == p_ else [(ep, p_), (p_, ep)]
                    for q_, (x_, y_) in enumerate(prs):
                        it += [f'v_accvgpr_read_b32 v{T(4*q_)}, a{b_+8*x_+y_}', f'v_accvgpr_read_b32 v{T(4*q_+1)}, a{b_+8*x_+4+y_}']
                    for q_, (x_, y_) in enumerate(prs):
                        it += [f'v_perm_b32 v{T(4*q_+2)}, v{T(4*q_+1)}, v{T(4*q_)}, s{sPK}', f'v_perm_b32 v{T(4*q_+3)}, v{T(4*q_+1)}, v{T(4*q_)}, s100']
                    for q_, (x_, y_) in enumerate(prs):
                        it += [f'v_accvgpr_write_b32 a{b_+8*y_+x_}, v{T(4*q_+2)}', f'v_accvgpr_write_b32 a{b_+8*y_+4+x_}, v{T(4*q_+3)}']
                    tr_items.append(it)
        tr_done = [0, 0]
        def emit_tr(upto):
            while tr_done[0] < len(tr_items) and tr_done[1] < upto:
                if tr_done[0] == 0: G.vmwait_idx(max(i_ for i_, (t_, o_) in enumerate(G.vm) if t_ == 'wo31'))
                for x_ in tr_items[tr_done[0]]: A(x_)
                tr_done[1] += len(tr_items[tr_done[0]]); tr_done[0] += 1
        def emit_wo(k0, k1):
            for k in range(k0, k1):
                if W2:
                    so, s, tag = wo_loads[k]
                    if k == k0 or k % 2 == 0: A(f's_mov_b32 s{sT}, {so}')
                    G.vmop(s, tag); continue
                so, s, tag = wo_loads[k]
                if self.kw.get('wotiny'): so = 0
                if k == k0 or k % 4 == 0: A(f's_mov_b32 s{sT}, {so}')
                G.vmop(s, tag)
        EX = self.kw.get('exact', False)
        def emit_role_loads(part):
            lab = f'L_rl{part}'
            if part < 16:
                if not EX: A(f's_cmp_eq_u32 s{sRole}, 1'); A(f's_cbranch_scc0 {lab}')
                s_ = part // 4; e3 = part % 4
                A(f's_mov_b32 s{sT}, {(32*s_ + 8*e3)*3584}')
                for eh in (0, 1):
                    e = e3 + 4 * eh
                    G.vmop(f'buffer_load_ushort v{vR + 8*s_ + e}, v{vWOFF1}, s[{rW1}:{rW1+3}], s{sT} offen offset:{eh*3584} {wnt}', 'w1g', not EX)
                if not EX: A(f'{lab}:')
            else:
                if not EX: A(f's_cmp_eq_u32 s{sRole}, 1'); A(f's_cbranch_scc0 {lab}a')
                for ii in range(4):
                    G.vmop(f'buffer_load_dwordx4 v[{vW2+4*ii}:{vW2+4*ii+3}], v{vWOFF2}, s[{rW2}:{rW2+3}], 0 offen offset:{ii*1024} {wnt}', 'w2l', not EX)
                G.vmop(f'buffer_load_ushort v{vB1}, v{vB1OFF}, s[{rB1}:{rB1+3}], 0 offen', 'b1l', not EX)
                if not EX:
                    A(f'{lab}a:')
                    A(f's_cmp_eq_u32 s{sRole}, 2'); A(f's_cbranch_scc0 {lab}b')
                G.vmop(f'buffer_load_ushort v{vXV}, v{vXO2 if W2 else vXOFF}, s[{rX}:{rX+3}], 0 offen', 'xv', not EX)
                G.vmop(f'buffer_load_ushort v{vB2V}, v{vB2OFF}, s[{rB2}:{rB2+3}], 0 offen', 'b2l', not EX)
                if not EX: A(f'{lab}b:')
        def kproc(t):
            if self.kw.get('novalu'): return
            D0 = vD + 8 * (t & 1); D1 = D0 + 4
            sA, sB_ = T(0), T(1)
            A(f'v_add_f32_dpp v{sA}, v{D0+1}, v{D0} row_ror:8 row_mask:0xf bank_mask:0x3')
            A(f'v_add_f32_dpp v{sB_}, v{D0+3}, v{D0+2} row_ror:8 row_mask:0xf bank_mask:0x3')
            A(f'v_add_f32_dpp v{sA}, v{D1}, v{D1+1} row_ror:8 row_mask:0xf bank_mask:0xc')
            A(f'v_add_f32_dpp v{sB_}, v{D1+2}, v{D1+3} row_ror:8 row_mask:0xf bank_mask:0xc')
            A(f'v_cvt_pk_bf16_f32 v{T(2)}, v{sA}, v{sB_}')
            A(f'v_max3_f32 v{vMX}, v{vMX}, v{sA}, v{sB_}')
            A(f'v_lshlrev_b32 v{T(3)}, 16, v{T(2)}'); A(f'v_and_b32 v{T(4)}, 0xffff0000, v{T(2)}')
            A(f'v_mul_f32 v{T(3)}, {SCALE}, v{T(3)}'); A(f'v_mul_f32 v{T(4)}, {SCALE}, v{T(4)}')
            A(f'v_cvt_pk_bf16_f32 v{vS+t}, v{T(3)}, v{T(4)}')
        if SL: slide_issue(-1)
        for t in range(32):
            u = t
            D0 = vD + 8 * (t & 1); D1 = D0 + 4
            r = (u % RING) * 16
            mf = [f'v_mfma_f32_16x16x32_bf16 v[{D0}:{D0+3}], a[{r}:{r+3}], v[{vBQ}:{vBQ+3}], 0',
                  f'v_mfma_f32_16x16x32_bf16 v[{D1}:{D1+3}], a[{r+4}:{r+7}], v[{vBQ}:{vBQ+3}], 0',
                  f'v_mfma_f32_16x16x32_bf16 v[{D0}:{D0+3}], a[{r+8}:{r+11}], v[{vBQ+4}:{vBQ+7}], v[{D0}:{D0+3}]',
                  f'v_mfma_f32_16x16x32_bf16 v[{D1}:{D1+3}], a[{r+12}:{r+15}], v[{vBQ+4}:{vBQ+7}], v[{D1}:{D1+3}]']
            if SL:
                for q in range(4):
                    j = 4 * u + q
                    G.vmwait_idx(G.lidx[j])
                    slide_issue(j, self.kw.get('sboost', 0) if (t == 31 and q == 3) else 0)
                    A(mf[q])
            else:
                G.vmwait(f'u{u}')
                for m_ in mf: A(m_)
                throttled_issue(u, u + (self.kw.get('boost', LOOK) if t >= 32 - self.kw.get('boostn', 1) else LOOK))
            if self.kw.get('atsp') and t < 16:
                A(f's_cmp_eq_u32 s{sAt}, {t}'); A(f's_cbranch_scc0 L_at{t}')
                G.vmop(f'buffer_atomic_add v{vONE}, v{vATO}, s[{rDBG}:{rDBG+3}], 0 offen', 'atom', True)
                A(f'L_at{t}:')
            wt0, wper = self.kw.get('wot', (2, 2))
            if not self.nowo and t >= wt0 and wper * (t - wt0) < 32: emit_wo(wper * (t - wt0), min(32, wper * (t - wt0 + 1)))
            if t in (7, 15, 23): G.stamp(16 + t // 8)
            if self.kw.get('st4'): A('s_memrealtime s[96:97]'); A('s_waitcnt lgkmcnt(0)'); A('v_writelane_b32 v252, s96, %d' % t)
            if t == 27 and not self.kw.get('nocnt'):
                A(f'v_mov_b32 v{T(5)}, 0')
                G.vmop(f'buffer_load_dword v{vCNT}, v{T(5)}, s[{rDBG}:{rDBG+3}], 0 offen sc1', 'cnt')
            if t > 0: kproc(t - 1)
        kproc(31)
        G.stamp(2)
        self.wave_allreduce('max', vMX, T(0))
        G.rbf(vM, vMX); A(f'v_mul_f32 v{vM}, {SCALE}, v{vM}'); G.rbf(vM)
        A(f'v_mul_f32 v{vNM}, {LOG2E}, v{vM}'); A(f'v_sub_f32 v{vNM}, 0, v{vNM}')
        A(f's_mov_b32 s{sT2}, {LOG2E}')
        A(f'v_mov_b32 v{vLS}, 0')
        for t in range(0 if self.kw.get('notrans') else 32):
            a, b = T(2 * (t & 1)), T(2 * (t & 1) + 1)
            A(f'v_lshlrev_b32 v{a}, 16, v{vS+t}'); A(f'v_and_b32 v{b}, 0xffff0000, v{vS+t}')
            A(f'v_fma_f32 v{a}, v{a}, s{sT2}, v{vNM}'); A(f'v_fma_f32 v{b}, v{b}, s{sT2}, v{vNM}')
            A(f'v_exp_f32 v{a}, v{a}'); A(f'v_exp_f32 v{b}, v{b}')
            A(f'v_add_f32 v{vLS}, v{vLS}, v{a}'); A(f'v_cvt_pk_bf16_f32 v{vS+t}, v{a}, v{b}'); A(f'v_add_f32 v{vLS}, v{vLS}, v{b}')
        self.wave_allreduce('add', vLS, T(0))
        A(f'v_mul_f32 v{vLS}, 0.125, v{vLS}') if False else A(f'v_mul_f32 v{vLS}, 0x3e000000, v{vLS}')
        A(f'v_mov_b32 v{T(0)}, v{vM}'); A(f'v_mov_b32 v{T(1)}, v{vLS}')
        if not self.kw.get('nocnt'):
            G.vmop(f'buffer_store_dwordx2 v[{T(0)}:{T(1)}], v{vMLp}, s[{rWS}:{rWS+3}], 0 offen sc1', 'mlst')
            G.vmwait('cnt')
        else: A('s_branch L_cnt_ok')
        A(f's_mov_b32 s{sSpin}, {self.spin}')
        A('L_cnt:')
        A(f'v_readfirstlane_b32 s{sT}, v{vCNT}')
        A(f's_cmp_ge_u32 s{sT}, 256'); A('s_cbranch_scc1 L_cnt_ok')
        A(f's_sub_u32 s{sSpin}, s{sSpin}, 1'); A('s_cbranch_scc1 L_cnt_ok')
        A(f'v_mov_b32 v{T(5)}, 0')
        A(f'buffer_load_dword v{vCNT}, v{T(5)}, s[{rDBG}:{rDBG+3}], 0 offen sc1'); A('s_waitcnt vmcnt(0)')
        A('s_branch L_cnt')
        A('L_cnt_ok:')
        if QX:
            A(f's_cmp_lt_u32 s2, 32'); A('s_cbranch_scc0 L_eup'); A(f's_cmp_eq_u32 s{sW}, 0'); A('s_cbranch_scc0 L_eup')
            A(f'v_mov_b32 v{T(0)}, {OOB}'); A(f'v_cmp_eq_u32 vcc, 0, v{vL}'); A(f'v_cndmask_b32 v{T(0)}, v{T(0)}, v{vQE}, vcc')
            G.vmop(f'buffer_store_dwordx2 v[{vTG}:{vTG+1}], v{T(0)}, s[{rWS}:{rWS+3}], 0 offen sc1', 'eup', True)
            A('L_eup:')
        G.stamp(3)
        dl = self.kw.get('delay')
        if dl:
            which, n = dl
            A(f's_cmp_lt_u32 s{sBH}, 8'); A('s_cbranch_scc%d L_nodelay' % (0 if which == 'slow' else 1))
            for _ in range(n): A('s_sleep 64')
            A('L_nodelay:')
        def vprep(t):
            if self.kw.get('novalu'): return
            for ab in range(2):
                bs = vB + 8 * (t & 1) + 4 * ab
                for jj in range(4):
                    A(f'v_perm_b32 v{bs+jj}, v{vS+t}, v{vS+t}, v{vSEL+4*ab+jj}')
        def ml_compute():
            A(f'v_mov_b32 v{T(10)}, v{vML0}')
            for r_ in (1, 2, 4, 8): A(f'v_max_f32_dpp v{T(10)}, v{T(10)}, v{T(10)} row_ror:{r_} row_mask:0xf bank_mask:0xf')
            A(f'v_sub_f32 v{T(11)}, v{vML0}, v{T(10)}'); A(f'v_mul_f32 v{T(11)}, {LOG2E}, v{T(11)}'); A(f'v_exp_f32 v{T(11)}, v{T(11)}')
            A(f'v_mul_f32 v{T(11)}, v{T(11)}, v{vML1}')
            for r_ in (1, 2, 4, 8): A(f'v_add_f32_dpp v{T(11)}, v{T(11)}, v{T(11)} row_ror:{r_} row_mask:0xf bank_mask:0xf')
            A(f'v_sub_f32 v{T(10)}, v{vM}, v{T(10)}'); A(f'v_mul_f32 v{T(10)}, {LOG2E}, v{T(10)}'); A(f'v_exp_f32 v{T(10)}, v{T(10)}')
            A(f'v_rcp_f32 v{T(12)}, v{T(11)}'); A(f'v_mul_f32 v{vF}, v{T(10)}, v{T(12)}')
            A(f'v_cmp_u_f32 vcc, v{T(11)}, v{T(11)}')
        vprep(0)
        for t in range(32):
            u = 32 + t
            r = (u % RING) * 16
            bs = vB + 8 * (t & 1)
            mf = [f'v_mfma_f32_16x16x32_bf16 v[{vO}:{vO+3}], a[{r}:{r+3}], v[{bs}:{bs+3}], v[{vO}:{vO+3}]',
                  f'v_mfma_f32_16x16x32_bf16 v[{vO+4}:{vO+7}], a[{r+4}:{r+7}], v[{bs}:{bs+3}], v[{vO+4}:{vO+7}]',
                  f'v_mfma_f32_16x16x32_bf16 v[{vO}:{vO+3}], a[{r+8}:{r+11}], v[{bs+4}:{bs+7}], v[{vO}:{vO+3}]',
                  f'v_mfma_f32_16x16x32_bf16 v[{vO+4}:{vO+7}], a[{r+12}:{r+15}], v[{bs+4}:{bs+7}], v[{vO+4}:{vO+7}]']
            if SL:
                for q in range(4):
                    j = 4 * u + q
                    G.vmwait_idx(G.lidx[j])
                    slide_issue(j)
                    A(mf[q])
            else:
                G.vmwait(f'u{u}')
                for m_ in mf: A(m_)
                throttled_issue(u, u + LOOKV)
            wt0, wper = self.kw.get('wot', (2, 2))
            if not self.nowo and wper * (32 + t - wt0) < 32: emit_wo(wper * (32 + t - wt0), min(32, wper * (32 + t - wt0 + 1)))
            if t < 17 and not self.norole: emit_role_loads(t)
            if t in (7, 15, 23): G.stamp(20 + t // 8)
            if self.kw.get('st4'): A('s_memrealtime s[96:97]'); A('s_waitcnt lgkmcnt(0)'); A('v_writelane_b32 v252, s96, %d' % (32 + t))
            if W2: emit_tr(16 * (t + 1) if t < 24 else 9999)
            if t == 27:
                A(f's_cmp_eq_u32 s{sRole}, 1'); A('s_cbranch_scc0 L_pk1')
                for s_ in range(4):
                    for jj in range(4):
                        A(f'v_perm_b32 v{vW1+4*s_+jj}, v{vR+8*s_+2*jj+1}, v{vR+8*s_+2*jj}, s{sPK}')
                A('L_pk1:')
            if t == 17 and not self.kw.get('nocnt'):
                G.vmop(f'buffer_load_dwordx2 v[{vML0}:{vML1}], v{vMLq}, s[{rWS}:{rWS+3}], 0 offen sc1', 'mlq')
            if t == 25 and not self.kw.get('nocnt'):
                G.vmwait('mlq')
                A(f's_mov_b32 s{sSpin}, {self.spin}')
                A('L_ml:')
                ml_compute()
                A('s_cbranch_vccz L_ml_ok')
                A(f's_sub_u32 s{sSpin}, s{sSpin}, 1'); A('s_cbranch_scc1 L_ml_ok')
                A(f'buffer_load_dwordx2 v[{vML0}:{vML1}], v{vMLq}, s[{rWS}:{rWS+3}], 0 offen sc1'); A('s_waitcnt vmcnt(0)')
                A('s_branch L_ml')
                A('L_ml_ok:')
            if t < 31: vprep(t + 1)
        G.stamp(4)
        if self.kw.get('quit'): A('s_branch L_fin')
        if W2:
            assert tr_done[0] == len(tr_items)
            for i in range(4): A(f'v_add_f32_dpp v{T(i)}, v{vO+4+i}, v{vO+i} row_ror:8 row_mask:0xf bank_mask:0x3')
            for i in range(4): A(f'v_add_f32_dpp v{T(i)}, v{vO+i}, v{vO+4+i} row_ror:8 row_mask:0xf bank_mask:0xc')
            for i in range(4): A(f'v_mul_f32 v{T(i)}, v{vF}, v{T(i)}')
            A(f'v_cvt_pk_bf16_f32 v{T(4)}, v{T(0)}, v{T(1)}'); A(f'v_cvt_pk_bf16_f32 v{T(5)}, v{T(2)}, v{T(3)}')
            A(f'v_cmp_lt_u32 vcc, 7, v{vN}')
            A(f'v_lshlrev_b32 v{T(6)}, 16, v{T(4)}'); A(f'v_and_b32 v{T(7)}, 0xffff0000, v{T(4)}'); A(f'v_lshlrev_b32 v{T(8)}, 16, v{T(5)}'); A(f'v_and_b32 v{T(9)}, 0xffff0000, v{T(5)}')
            for i in range(4): A(f'v_sub_f32 v{T(i)}, v{T(i)}, v{T(6+i)}')
            A(f'v_cvt_pk_bf16_f32 v{T(6)}, v{T(0)}, v{T(1)}'); A(f'v_cvt_pk_bf16_f32 v{T(7)}, v{T(2)}, v{T(3)}')
            A(f'v_cndmask_b32 v{T(4)}, v{T(4)}, v{T(6)}, vcc'); A(f'v_cndmask_b32 v{T(5)}, v{T(5)}, v{T(7)}, vcc')
            A(f'ds_write_b64 v{vOHW}, v[{T(4)}:{T(5)}] offset:{L_OH}')
            A('s_waitcnt lgkmcnt(0)'); A('s_barrier')
            for c_ in range(4): A(f'ds_read_b128 v[{vXP+4*c_}:{vXP+4*c_+3}], v{vOHR} offset:{L_OH+64*c_}')
            DJ = lambda j_: vR + 4 * j_
            order = [0, 4, 1, 5, 2, 6, 3, 7]
            fin = []
            def s_add(j_): A(f'v_add_f32 v{DJ(j_)}, v{DJ(j_)}, v{DJ(j_)+1}')
            def u_pair(j_):
                A(f'v_permlane32_swap_b32 v{DJ(j_)}, v{DJ(j_+4)}'); A(f'v_add_f32 v{DJ(j_)}, v{DJ(j_)}, v{DJ(j_+4)}')
            seq = [(0,0),(0,1),(1,0),(1,1),(2,0),(2,1),(3,0),(3,1),(0,2),(1,2),(2,2),(3,2),(0,3),(1,3),(2,3),(3,3)]
            sw32 = lambda j_: A(f'v_permlane32_swap_b32 v{DJ(j_)}, v{DJ(j_+4)}')
            uadd = lambda j_: A(f'v_add_f32 v{DJ(j_)}, v{DJ(j_)}, v{DJ(j_+4)}')
            post = {10: [lambda: s_add(0), lambda: s_add(4)], 11: [lambda: s_add(1), lambda: s_add(5)], 12: [lambda: sw32(0), lambda: sw32(1)],
                    13: [lambda: uadd(0), lambda: uadd(1)]}
            seen = set()
            for x_, (c_, p_) in enumerate(seq):
                if c_ not in seen: seen.add(c_); A(f's_waitcnt lgkmcnt({3-c_})')
                for j_ in (p_, p_ + 4):
                    cc = '0' if c_ == 0 else f'v[{DJ(j_)}:{DJ(j_)+3}]'
                    rb = aW + 32 * c_ + 4 * j_
                    A(f'v_mfma_f32_16x16x32_bf16 v[{DJ(j_)}:{DJ(j_)+3}], v[{vXP+4*c_}:{vXP+4*c_+3}], a[{rb}:{rb+3}], {cc}')
                for f_ in post.get(x_, []): f_()
            s_add(2); s_add(6); sw32(2); uadd(2)
            A(f'v_permlane16_swap_b32 v{DJ(0)}, v{DJ(2)}'); s_add(3); s_add(7); A(f'v_add_f32 v{T(0)}, v{DJ(0)}, v{DJ(2)}')
            sw32(3); uadd(3)
            A(f'v_permlane16_swap_b32 v{DJ(1)}, v{DJ(3)}'); A(f'v_add_f32 v{T(1)}, v{DJ(1)}, v{DJ(3)}')
            TSF = self.kw.get('tsf', 'sc1'); TLF = self.kw.get('tlf', 'sc1')
            G.vmop(f'buffer_store_dwordx2 v[{T(0)}:{T(1)}], v{vC1}, s[{rWS}:{rWS+3}], 0 offen {TSF}', 'c1st')
            G.stamp(5)
        L_keep3_ = len(self.L); vm_keep3_ = list(G.vm); n3_keep = G.done
        for i in range(4): A(f'v_add_f32_dpp v{T(i)}, v{vO+4+i}, v{vO+i} row_ror:8 row_mask:0xf bank_mask:0xf')
        for i in range(4): A(f'v_mul_f32 v{T(i)}, v{vF}, v{T(i)}')
        for i in range(4): A(f'ds_write_b32 v{vOPA}, v{T(i)} offset:{L_OP + 32*i}')
        A(f's_lshl_b32 s{sT}, s{sW}, 9'); A(f'v_lshlrev_b32 v{T(10)}, 2, v{vL}'); A(f'v_add_u32 v{T(10)}, s{sT}, v{T(10)}')
        A(f'v_lshrrev_b32 v{T(11)}, 3, v{vN}'); A(f'v_lshlrev_b32 v{T(11)}, 8, v{T(11)}'); A(f'v_lshl_add_u32 v{T(11)}, v{vG}, 6, v{T(11)}'); A(f'v_add_u32 v{T(11)}, s{sT}, v{T(11)}')
        A('s_waitcnt lgkmcnt(0)'); A('s_barrier')
        for w in range(4): A(f'ds_read_b64 v[{T(2*w+2)}:{T(2*w+3)}], v{vA3} offset:{L_OP + 512*w}')
        A('s_waitcnt lgkmcnt(0)')
        A(f'v_pk_add_f32 v[{T(2)}:{T(3)}], v[{T(2)}:{T(3)}], v[{T(4)}:{T(5)}]'); A(f'v_pk_add_f32 v[{T(6)}:{T(7)}], v[{T(6)}:{T(7)}], v[{T(8)}:{T(9)}]')
        A(f'v_pk_add_f32 v[{T(2)}:{T(3)}], v[{T(2)}:{T(3)}], v[{T(6)}:{T(7)}]')
        A(f'v_cvt_pk_bf16_f32 v{T(4)}, v{T(2)}, v{T(3)}')
        A(f'v_lshlrev_b32 v{T(5)}, 16, v{T(4)}'); A(f'v_and_b32 v{T(6)}, 0xffff0000, v{T(4)}')
        A(f'v_sub_f32 v{T(5)}, v{T(2)}, v{T(5)}'); A(f'v_sub_f32 v{T(6)}, v{T(3)}, v{T(6)}')
        A(f'ds_write_b32 v{T(10)}, v{T(4)} offset:{L_OH}')
        A(f'v_cvt_pk_bf16_f32 v{T(5)}, v{T(5)}, v{T(6)}')
        A(f'ds_write_b32 v{T(10)}, v{T(5)} offset:{L_OH+256}')
        A('s_waitcnt lgkmcnt(0)')
        for k in range(4): A(f'ds_read_b128 v[{vXP+4*k}:{vXP+4*k+3}], v{T(11)} offset:{L_OH+16*k}')
        A('s_waitcnt lgkmcnt(0)')
        delta_steps(32, vDQ, None)
        for i in range(4): A(f'v_add_f32_dpp v{T(i)}, v{vDQ+i}, v{vDQ+i} row_ror:8 row_mask:0xf bank_mask:0xf')
        TSF = self.kw.get('tsf', 'sc1'); TLF = self.kw.get('tlf', 'sc1')
        G.vmop(f'buffer_store_dwordx4 v[{T(0)}:{T(3)}], v{vC1}, s[{rWS}:{rWS+3}], 0 offen {TSF}', 'c1st')
        G.stamp(5)
        if W2: del self.L[L_keep3_:]; G.vm[:] = vm_keep3_; G.done = n3_keep
        A(f's_cmp_eq_u32 s{sRole}, 1'); A('s_cbranch_scc1 L_m1')
        A(f's_cmp_eq_u32 s{sRole}, 2'); A('s_cbranch_scc0 L_fin')
        if self.kw.get('rwarm'):
            A(f's_cmp_lt_u32 s{sW}, 2'); A('s_cbranch_scc0 L_fin')
        else:
            A(f's_cmp_eq_u32 s{sW}, 0'); A('s_cbranch_scc0 L_fin')
        def gather_multi(nl, voff, lab, sets):
            D = len(sets)
            def issue(rs):
                for k in range(nl):
                    if k % 4 == 0: A(f's_mov_b32 s{sT}, {(k//4)*4096}')
                    A(f'buffer_load_dwordx4 v[{rs+4*k}:{rs+4*k+3}], v{voff}, s[{rWS}:{rWS+3}], s{sT} offen offset:{(k%4)*1024} {TLF}')
            A(f's_mov_b32 s{sSpin}, {self.spin}')
            for rs in sets: issue(rs)
            A(f'{lab}:')
            for si, rs in enumerate(sets):
                base = nl * (D - 1)
                A(f's_waitcnt vmcnt({base + nl - 2})')
                for c in (0, 2): A(f'v_pk_add_f32 v[{T(c)}:{T(c+1)}], v[{rs+c}:{rs+c+1}], v[{rs+4+c}:{rs+4+c+1}]')
                for k in range(2, nl):
                    A(f's_waitcnt vmcnt({base + nl - 1 - k})')
                    for c in (0, 2): A(f'v_pk_add_f32 v[{T(c)}:{T(c+1)}], v[{T(c)}:{T(c+1)}], v[{rs+4*k+c}:{rs+4*k+c+1}]')
                A(f'v_cmp_u_f32 vcc, v{T(0)}, v{T(1)}'); A(f'v_cmp_u_f32 s[{sM}:{sM+1}], v{T(2)}, v{T(3)}')
                A(f's_or_b64 vcc, vcc, s[{sM}:{sM+1}]')
                A(f's_cbranch_vccz {lab}_ok')
                if lab in self.kw.get('mmask', ()):
                    MP = ['s[82:83]', 's[84:85]', 's[88:89]', 's[90:91]', 's[94:95]', 's[98:99]', 's[100:101]', 'vcc']
                    for k in range(nl): A(f'v_cmp_u_f32 {MP[k]}, v{rs+4*k}, v{rs+4*k+3}')
                    for k in range(nl):
                        if k % 4 == 0: A(f's_mov_b32 s{sT}, {(k//4)*4096}')
                        A(f's_or_b64 exec, {MP[k]}, 15')
                        A(f'buffer_load_dwordx4 v[{rs+4*k}:{rs+4*k+3}], v{voff}, s[{rWS}:{rWS+3}], s{sT} offen offset:{(k%4)*1024} {TLF}')
                    A('s_mov_b64 exec, -1')
                else: issue(rs)
            A(f's_sub_u32 s{sSpin}, s{sSpin}, 1'); A(f's_cbranch_scc0 {lab}')
            A(f'{lab}_ok:')
            gather_finish()
        def gather_finish():
            A(f'v_permlane32_swap_b32 v{T(0)}, v{T(2)}'); A(f'v_permlane32_swap_b32 v{T(1)}, v{T(3)}')
            A(f'v_add_f32 v{T(0)}, v{T(0)}, v{T(2)}'); A(f'v_add_f32 v{T(1)}, v{T(1)}, v{T(3)}')
            A(f'v_permlane16_swap_b32 v{T(0)}, v{T(1)}'); A(f'v_add_f32 v{T(0)}, v{T(0)}, v{T(1)}')
            A(f'v_add_f32_dpp v{T(0)}, v{T(0)}, v{T(0)} row_ror:4 row_mask:0xf bank_mask:0xf')
            A(f'v_add_f32_dpp v{T(0)}, v{T(0)}, v{T(0)} row_ror:8 row_mask:0xf bank_mask:0xf')
        def gather_reduce(nl, voff, lab):
            ms = self.kw.get('mset', {}).get(lab)
            if ms: return gather_multi(nl, voff, lab, [176, 32, 144, 64][:ms])
            A(f's_mov_b32 s{sSpin}, {self.spin}')
            A(f'{lab}:')
            for k in range(nl):
                if k % 4 == 0: A(f's_mov_b32 s{sT}, {(k//4)*4096}')
                A(f'buffer_load_dwordx4 v[{vR+4*k}:{vR+4*k+3}], v{voff}, s[{rWS}:{rWS+3}], s{sT} offen offset:{(k%4)*1024} {TLF}')
            k = 1
            A(f's_waitcnt vmcnt({nl-2})')
            for c in (0, 2): A(f'v_pk_add_f32 v[{T(c)}:{T(c+1)}], v[{vR+c}:{vR+c+1}], v[{vR+4+c}:{vR+4+c+1}]')
            for k in range(2, nl):
                A(f's_waitcnt vmcnt({nl-1-k})')
                for c in (0, 2): A(f'v_pk_add_f32 v[{T(c)}:{T(c+1)}], v[{T(c)}:{T(c+1)}], v[{vR+4*k+c}:{vR+4*k+c+1}]')
            A(f'v_cmp_u_f32 vcc, v{T(0)}, v{T(1)}'); A(f'v_cmp_u_f32 s[{sM}:{sM+1}], v{T(2)}, v{T(3)}')
            A(f's_or_b64 vcc, vcc, s[{sM}:{sM+1}]')
            A(f's_cbranch_vccz {lab}_ok')
            A(f's_sub_u32 s{sSpin}, s{sSpin}, 1'); A(f's_cbranch_scc0 {lab}')
            A(f'{lab}_ok:')
            A(f'v_permlane32_swap_b32 v{T(0)}, v{T(2)}'); A(f'v_permlane32_swap_b32 v{T(1)}, v{T(3)}')
            A(f'v_add_f32 v{T(0)}, v{T(0)}, v{T(2)}'); A(f'v_add_f32 v{T(1)}, v{T(1)}, v{T(3)}')
            A(f'v_permlane16_swap_b32 v{T(0)}, v{T(1)}'); A(f'v_add_f32 v{T(0)}, v{T(0)}, v{T(1)}')
            A(f'v_add_f32_dpp v{T(0)}, v{T(0)}, v{T(0)} row_ror:4 row_mask:0xf bank_mask:0xf')
            A(f'v_add_f32_dpp v{T(0)}, v{T(0)}, v{T(0)} row_ror:8 row_mask:0xf bank_mask:0xf')
        A(f'v_lshlrev_b32 v{vXV}, 16, v{vXV}'); A(f'v_lshlrev_b32 v{vB2V}, 16, v{vB2V}')
        gather_reduce(8, vHOFF, 'L_g1')
        G.stamp(6)
        if self.diag and self.kw.get('stspin'): A(f'v_writelane_b32 v251, s{sSpin}, 23')
        G.rbf(T(0)); A(f'v_add_f32 v{T(0)}, v{vXV}, v{T(0)}'); G.rbf(vHV, T(0))
        A(f'buffer_store_dword v{vHV}, v{vRS}, s[{rWS}:{rWS+3}], 0 offen {TSF}')
        for r_ in range(1, NRH):
            A(f's_mov_b32 s{sT}, {r_*16384}')
            A(f'buffer_store_dword v{vHV}, v{vRS}, s[{rWS}:{rWS+3}], s{sT} offen {TSF}')
        G.stamp(7)
        if W2:
            A(f'v_and_b32 v{T(4)}, 3, v{vN}'); A(f'v_lshl_add_u32 v{T(4)}, v{T(4)}, 4, v{vG}'); A(f'v_lshlrev_b32 v{T(4)}, 2, v{T(4)}')
            A(f'ds_bpermute_b32 v{vHV}, v{T(4)}, v{vHV}'); A('s_waitcnt lgkmcnt(0)')
        if self.kw.get('gate2'):
            gk = self.kw['gate2'] - 1
            A(f's_mov_b32 s{sSpin}, {self.spin}'); A(f's_mov_b32 s{sT}, {(gk//4)*4096}')
            GD = self.kw.get('g2set', 0)
            if GD:
                assert self.kw.get('gany') and max(self.kw.get('mset', {}).values()) <= 3
                gs = [64 + 4 * i for i in range(GD)]
                ldg = lambda r_: A(f'buffer_load_dwordx4 v[{r_}:{r_+3}], v{vC2OFF}, s[{rWS}:{rWS+3}], s{sT} offen offset:{(gk%4)*1024} {TLF}')
                for r_ in gs: ldg(r_)
                A('L_gt2:')
                for r_ in gs:
                    A(f's_waitcnt vmcnt({GD-1})')
                    A(f'v_cmp_u_f32 vcc, v{r_}, v{r_}'); A('s_cmp_eq_u64 vcc, -1'); A('s_cbranch_scc0 L_gt2_ok')
                    ldg(r_)
                A(f's_sub_u32 s{sSpin}, s{sSpin}, 1'); A('s_cbranch_scc0 L_gt2')
                A('L_gt2_ok:')
            if not GD: A('L_gt2:')

            if not GD:
                A(f'buffer_load_dwordx4 v[{vR}:{vR+3}], v{vC2OFF}, s[{rWS}:{rWS+3}], s{sT} offen offset:{(gk%4)*1024} {TLF}')
                A('s_waitcnt vmcnt(0)')
                if self.kw.get('gany'):
                    A(f'v_cmp_u_f32 vcc, v{vR}, v{vR}'); A('s_cmp_eq_u64 vcc, -1'); A('s_cbranch_scc0 L_gt2_ok')
                else:
                    A(f'v_cmp_u_f32 vcc, v{vR}, v{vR+1}'); A(f'v_cmp_u_f32 s[{sM}:{sM+1}], v{vR+2}, v{vR+3}'); A(f's_or_b64 vcc, vcc, s[{sM}:{sM+1}]')
                    A('s_cbranch_vccz L_gt2_ok')
                A(f's_sub_u32 s{sSpin}, s{sSpin}, 1'); A('s_cbranch_scc0 L_gt2')
                A('L_gt2_ok:')
        gather_reduce(4 if self.kw.get('fakec2') else 7, vC2OFF, 'L_g2')
        G.stamp(8)
        if self.diag and self.kw.get('stspin'): A(f'v_writelane_b32 v251, s{sSpin}, 19')
        G.rbf(T(0)); A(f'v_add_f32 v{T(0)}, v{vB2V}, v{T(0)}'); G.rbf(T(0)); A(f'v_add_f32 v{T(0)}, v{vHV}, v{T(0)}')
        A(f'v_cvt_pk_bf16_f32 v{T(0)}, v{T(0)}, v{T(0)}')
        A(f'buffer_store_short v{T(0)}, v{vOUTA}, s[{rOUT}:{rOUT+3}], 0 offen')
        A('s_branch L_fin')
        A('L_m1:')
        A(f's_lshl_b32 s{sT}, s{sW}, 9'); A(f'v_lshrrev_b32 v{T(0)}, 5, v{vL}'); A(f'v_lshlrev_b32 v{T(0)}, 8, v{T(0)}'); A(f'v_and_b32 v{T(1)}, 31, v{vL}')
        A(f'v_lshl_add_u32 v{T(0)}, v{T(1)}, 3, v{T(0)}'); A(f'v_add_u32 v{vA1}, s{sT}, v{T(0)}')
        A(f'v_and_b32 v{T(0)}, 1, v{vN}'); A(f'v_lshlrev_b32 v{T(0)}, 8, v{T(0)}'); A(f'v_lshl_add_u32 v{T(0)}, v{vG}, 4, v{T(0)}'); A(f'v_add_u32 v{vA2}, s{sT}, v{T(0)}')
        A(f's_lshl_b32 s{sT}, s{sW}, 7'); A(f'v_lshlrev_b32 v{T(0)}, 2, v{vN}'); A(f'v_add_u32 v{vA3}, s{sT}, v{T(0)}')
        A(f'v_lshrrev_b32 v{T(0)}, 3, v{vN}'); A(f'v_lshlrev_b32 v{T(0)}, 6, v{T(0)}'); A(f'v_and_b32 v{T(1)}, 3, v{vN}'); A(f'v_lshl_add_u32 v{T(1)}, v{vG}, 2, v{T(1)}')
        A(f'v_lshl_add_u32 v{vA4}, v{T(1)}, 2, v{T(0)}')
        A(f'v_lshlrev_b32 v{vB1}, 16, v{vB1}')
        ML_ = self.kw.get('mlin')
        if ML_:
            assert self.kw.get('mq') and not THR
            A(f'v_mov_b32 v{T(1)}, 0x3f803f80'); A(f'v_lshlrev_b32 v{T(0)}, 2, v{vL}'); A(f'ds_write_b32 v{T(0)}, v{T(1)} offset:{L_ONE}')
            A(f'v_and_b32 v{T(0)}, 3, v{vN}'); A(f'v_cmp_eq_u32 vcc, 2, v{T(0)}'); A(f'v_mov_b32 v{T(1)}, {L_ONE - L_YB}'); A(f'v_cndmask_b32 v{vA2}, v{vA2}, v{T(1)}, vcc')
            A(f's_lshl_b32 s{sT}, s{sW}, 8'); A(f'v_and_b32 v{T(0)}, 1, v{vG}'); A(f'v_cmp_eq_u32 s[{sM}:{sM+1}], 1, v{T(0)}')
            A(f'v_lshlrev_b32 v{T(0)}, 7, v{T(0)}'); A(f'v_lshl_add_u32 v{T(0)}, v{vN}, 3, v{T(0)}'); A(f'v_add_u32 v{vA3}, s{sT}, v{T(0)}')
            A(f'v_lshrrev_b32 v{T(0)}, 3, v{vN}'); A(f'v_lshlrev_b32 v{vB2OFF}, 8, v{T(0)}')
            A(f'v_lshlrev_b32 v{T(0)}, 7, v{T(0)}'); A(f'v_and_b32 v{T(1)}, 3, v{vN}'); A(f'v_lshl_add_u32 v{T(1)}, v{vG}, 2, v{T(1)}')
            A(f'v_lshl_add_u32 v{vA4}, v{T(1)}, 3, v{T(0)}')
        MW = self.kw.get('mwarm')
        if MW:
            A(f'v_mov_b32 v{vXOFF}, v{vHOFF}'); A(f'v_mov_b32 v{vC2OFF}, v{vRS}')
            A(f'v_mov_b32 v{vHOFF}, {OOB}'); A(f'v_mov_b32 v{vRS}, {OOB}'); A(f's_mov_b32 s{sU}, 0')
            A('L_m1p:')
        A(f's_mov_b32 s{sSpin}, {self.spin}')
        H = [vR + i for i in range(16)]
        MQ = self.kw.get('mq')
        if MQ:
            assert not THR
            A(f's_lshl_b32 s{sLim}, s{sW}, 9')
            A(f'v_lshlrev_b32 v{vWOFF2}, 3, v{vL}'); A(f'v_add_u32 v{vWOFF1}, s{sLim}, v{vWOFF2}')
            if MW: L_ = self.L; lab_ = L_.index('L_m1p:'); ins_ = L_[-3:]; del L_[-3:]; L_[lab_:lab_] = ins_
            if self.kw.get('gate3'):
                A(f's_lshr_b32 s{sT}, s2, {self.kw["gate3"] - 1}'); A(f's_and_b32 s{sT}, s{sT}, 7')
                A(f'v_bfe_u32 v{T(0)}, v{vL}, 2, 3'); A(f'v_cmp_eq_u32 vcc, s{sT}, v{T(0)}')
                A(f'v_mov_b32 v{T(1)}, {OOB}'); A(f'v_cndmask_b32 v{vB2OFF}, v{T(1)}, v{vHOFF}, vcc')
                A('L_gt3:')
                A(f'buffer_load_dwordx4 v[{vR}:{vR+3}], v{vB2OFF}, s[{rWS}:{rWS+3}], s{sLim} offen {TLF}')
                A('s_waitcnt vmcnt(0)')
                A(f'v_add_f32 v{T(0)}, v{H[0]}, v{H[1]}'); A(f'v_add_f32 v{T(1)}, v{H[2]}, v{H[3]}'); A(f'v_add_f32 v{T(0)}, v{T(0)}, v{T(1)}')
                A(f'v_cmp_u_f32 vcc, v{T(0)}, v{T(0)}')
                A('s_cbranch_vccz L_gt3_ok')
                A(f's_sub_u32 s{sSpin}, s{sSpin}, 1'); A('s_cbranch_scc0 L_gt3')
                A(f's_mov_b32 s{sSpin}, 0')
                A('L_gt3_ok:')
            D3 = self.kw.get('m1set', 0)
            if D3:
                sets3 = [vR + 4 + 4 * i for i in range(D3)]
                ld3 = lambda r_: A(f'buffer_load_dwordx4 v[{r_}:{r_+3}], v{vHOFF}, s[{rWS}:{rWS+3}], s{sLim} offen {TLF}')
                for r_ in sets3: ld3(r_)
                A('L_g3:')
                for si, r_ in enumerate(sets3):
                    A(f's_waitcnt vmcnt({D3-1})')
                    A(f'v_add_f32 v{T(0)}, v{r_}, v{r_+1}'); A(f'v_add_f32 v{T(1)}, v{r_+2}, v{r_+3}'); A(f'v_add_f32 v{T(0)}, v{T(0)}, v{T(1)}')
                    A(f'v_mov_b64 v[{H[0]}:{H[1]}], v[{r_}:{r_+1}]'); A(f'v_cmp_u_f32 vcc, v{T(0)}, v{T(0)}'); A(f'v_mov_b64 v[{H[2]}:{H[3]}], v[{r_+2}:{r_+3}]')
                    A('s_cbranch_vccz L_g3_ok')
                    ld3(r_)
                A(f's_sub_u32 s{sSpin}, s{sSpin}, 1'); A('s_cbranch_scc0 L_g3')
            else:
                A('L_g3:')
                A(f'buffer_load_dwordx4 v[{vR}:{vR+3}], v{vHOFF}, s[{rWS}:{rWS+3}], s{sLim} offen {TLF}')
                A('s_waitcnt vmcnt(0)')
                A(f'v_add_f32 v{T(0)}, v{H[0]}, v{H[1]}'); A(f'v_add_f32 v{T(1)}, v{H[2]}, v{H[3]}'); A(f'v_add_f32 v{T(0)}, v{T(0)}, v{T(1)}')
                A(f'v_cmp_u_f32 vcc, v{T(0)}, v{T(0)}')
                A('s_cbranch_vccz L_g3_ok')
                A(f's_sub_u32 s{sSpin}, s{sSpin}, 1'); A('s_cbranch_scc0 L_g3')
            A('L_g3_ok:')
            G.stamp(6)
            if self.diag and self.kw.get('stspin'): A(f'v_writelane_b32 v251, s{sSpin}, 19')
            if ML_:
                assert not self.kw.get('gate3')
                A(f'v_cvt_pk_bf16_f32 v{T(14)}, v{H[0]}, v{H[1]}'); A(f'v_cvt_pk_bf16_f32 v{T(15)}, v{H[2]}, v{H[3]}')
                A(f'ds_write_b64 v{vA1}, v[{T(14)}:{T(15)}] offset:{L_YB}')
                for s_ in range(4): A(f'ds_read_b128 v[{vXP+4*s_}:{vXP+4*s_+3}], v{vA2} offset:{L_YB+64*s_}')
                self.half_allreduce('add', T(0), T(1))
                A(f'v_mul_f32 v{T(2)}, 0x3c000000, v{T(0)}')
                A(f'v_sub_f32 v{T(4)}, v{H[0]}, v{T(2)}'); A(f'v_sub_f32 v{T(5)}, v{H[1]}, v{T(2)}'); A(f'v_sub_f32 v{T(6)}, v{H[2]}, v{T(2)}'); A(f'v_sub_f32 v{T(7)}, v{H[3]}, v{T(2)}')
                A(f'v_mul_f32 v{T(3)}, v{T(4)}, v{T(4)}'); A(f'v_mul_f32 v{T(1)}, v{T(5)}, v{T(5)}')
                A(f'v_fmac_f32 v{T(3)}, v{T(6)}, v{T(6)}'); A(f'v_fmac_f32 v{T(1)}, v{T(7)}, v{T(7)}')
                A(f'v_add_f32 v{T(3)}, v{T(3)}, v{T(1)}')
                for s_ in range(4):
                    A(f's_waitcnt lgkmcnt({3-s_})')
                    c = '0' if s_ == 0 else f'v[{vDQ}:{vDQ+3}]'
                    A(f'v_mfma_f32_16x16x32_bf16 v[{vDQ}:{vDQ+3}], v[{vXP+4*s_}:{vXP+4*s_+3}], v[{vW1+4*s_}:{vW1+4*s_+3}], {c}')
                    if self.kw.get('mtrim'): A(f'v_add_f32_dpp v{T(3)}, v{T(3)}, v{T(3)} row_ror:{1 << s_} row_mask:0xf bank_mask:0xf')
                if self.kw.get('mtrim'):
                    A(f'v_mov_b32 v{T(1)}, v{T(3)}'); A(f'v_permlane16_swap_b32 v{T(3)}, v{T(1)}'); A(f'v_add_f32 v{T(3)}, v{T(3)}, v{T(1)}')
                else: self.half_allreduce('add', T(3), T(1))
                A(f'ds_write_b64 v{vWOFF1}, v[{T(2)}:{T(3)}] offset:{L_QP}')
                A(f'v_cndmask_b32 v{T(4)}, v{vDQ}, v{vDQ+1}, s[{sM}:{sM+1}]'); A(f'v_mov_b32 v{T(5)}, v{vDQ+2}')
                A(f'ds_write_b64 v{vA3}, v[{T(4)}:{T(5)}] offset:{L_TP3}')
                A('s_waitcnt lgkmcnt(0)'); A('s_barrier')
                for w in range(4): A(f'ds_read_b64 v[{T(4+2*w)}:{T(5+2*w)}], v{vB2OFF} offset:{L_QP+512*w}')
                for w in range(4): A(f'ds_read_b64 v[{vXP+2*w}:{vXP+2*w+1}], v{vA4} offset:{L_TP3+256*w}')
                A('s_waitcnt lgkmcnt(6)')
                A(f'v_pk_add_f32 v[{T(12)}:{T(13)}], v[{T(4)}:{T(5)}], v[{T(6)}:{T(7)}]')
                A('s_waitcnt lgkmcnt(4)')
                A(f'v_pk_add_f32 v[{T(14)}:{T(15)}], v[{T(8)}:{T(9)}], v[{T(10)}:{T(11)}]')
                A(f'v_pk_add_f32 v[{T(12)}:{T(13)}], v[{T(12)}:{T(13)}], v[{T(14)}:{T(15)}]')
                A(f'v_mul_f32 v{T(0)}, 0x3e800000, v{T(12)}')
                for w in range(4): A(f'v_sub_f32 v{T(4+2*w)}, v{T(4+2*w)}, v{T(0)}')
                A(f'v_mul_f32 v{T(1)}, v{T(4)}, v{T(4)}'); A(f'v_mul_f32 v{T(2)}, v{T(6)}, v{T(6)}')
                A(f'v_fmac_f32 v{T(1)}, v{T(8)}, v{T(8)}'); A(f'v_fmac_f32 v{T(2)}, v{T(10)}, v{T(10)}')
                A(f'v_add_f32 v{T(1)}, v{T(1)}, v{T(2)}')
                A(f'v_mov_b32 v{T(3)}, v{T(13)}'); A(f'v_fmac_f32 v{T(3)}, 0x43000000, v{T(1)}')
                A('s_waitcnt lgkmcnt(0)')
                A(f'v_pk_add_f32 v[{vXP}:{vXP+1}], v[{vXP}:{vXP+1}], v[{vXP+2}:{vXP+3}]'); A(f'v_pk_add_f32 v[{vXP+4}:{vXP+5}], v[{vXP+4}:{vXP+5}], v[{vXP+6}:{vXP+7}]')
                A(f'v_pk_add_f32 v[{vXP}:{vXP+1}], v[{vXP}:{vXP+1}], v[{vXP+4}:{vXP+5}]')
                self.ln_finish(T(0), T(3), T(8), T(9), 1.0 / 512)
                A(f'v_fma_f32 v{T(0)}, -v{T(8)}, v{vXP+1}, v{vXP}'); A(f'v_mul_f32 v{T(0)}, v{T(0)}, v{T(9)}')
            if not ML_: self.half_allreduce('add', T(0), T(1))
            if not ML_: A(f'v_mul_f32 v{T(2)}, 0x3c000000, v{T(0)}')
            L_keep_ = len(self.L)
            A(f'v_sub_f32 v{T(4)}, v{H[0]}, v{T(2)}'); A(f'v_sub_f32 v{T(5)}, v{H[1]}, v{T(2)}'); A(f'v_sub_f32 v{T(6)}, v{H[2]}, v{T(2)}'); A(f'v_sub_f32 v{T(7)}, v{H[3]}, v{T(2)}')
            A(f'v_mul_f32 v{T(3)}, v{T(4)}, v{T(4)}'); A(f'v_mul_f32 v{T(1)}, v{T(5)}, v{T(5)}')
            A(f'v_fmac_f32 v{T(3)}, v{T(6)}, v{T(6)}'); A(f'v_fmac_f32 v{T(1)}, v{T(7)}, v{T(7)}')
            A(f'v_add_f32 v{T(3)}, v{T(3)}, v{T(1)}')
            self.half_allreduce('add', T(3), T(1))
            A(f'ds_write_b64 v{vWOFF1}, v[{T(2)}:{T(3)}] offset:{L_QP}')
            A('s_waitcnt lgkmcnt(0)'); A('s_barrier')
            for w in range(4): A(f'ds_read_b64 v[{T(4+2*w)}:{T(5+2*w)}], v{vWOFF2} offset:{L_QP+512*w}')
            A('s_waitcnt lgkmcnt(2)')
            A(f'v_pk_add_f32 v[{T(12)}:{T(13)}], v[{T(4)}:{T(5)}], v[{T(6)}:{T(7)}]')
            A('s_waitcnt lgkmcnt(0)')
            A(f'v_pk_add_f32 v[{T(14)}:{T(15)}], v[{T(8)}:{T(9)}], v[{T(10)}:{T(11)}]')
            A(f'v_pk_add_f32 v[{T(12)}:{T(13)}], v[{T(12)}:{T(13)}], v[{T(14)}:{T(15)}]')
            A(f'v_mul_f32 v{T(0)}, 0x3e800000, v{T(12)}')
            for w in range(4): A(f'v_sub_f32 v{T(4+2*w)}, v{T(4+2*w)}, v{T(0)}')
            A(f'v_mul_f32 v{T(1)}, v{T(4)}, v{T(4)}'); A(f'v_mul_f32 v{T(2)}, v{T(6)}, v{T(6)}')
            A(f'v_fmac_f32 v{T(1)}, v{T(8)}, v{T(8)}'); A(f'v_fmac_f32 v{T(2)}, v{T(10)}, v{T(10)}')
            A(f'v_add_f32 v{T(1)}, v{T(1)}, v{T(2)}')
            A(f'v_mov_b32 v{T(3)}, v{T(13)}'); A(f'v_fmac_f32 v{T(3)}, 0x43000000, v{T(1)}')
            if ML_: del self.L[L_keep_:]
        else:
            A('L_g3:')
            for kk in range(4):
                A(f's_add_u32 s{sT}, s{sW}, {kk}'); A(f's_and_b32 s{sT}, s{sT}, 3'); A(f's_lshl_b32 s{sT}, s{sT}, 9')
                A(f'buffer_load_dwordx4 v[{vR+4*kk}:{vR+4*kk+3}], v{vHOFF}, s[{rWS}:{rWS+3}], s{sT} offen {TLF}')
            A('s_waitcnt vmcnt(0)')
            A(f'v_pk_add_f32 v[{T(0)}:{T(1)}], v[{H[0]}:{H[1]}], v[{H[2]}:{H[3]}]')
            for k in range(2, 8): A(f'v_pk_add_f32 v[{T(0)}:{T(1)}], v[{T(0)}:{T(1)}], v[{H[2*k]}:{H[2*k+1]}]')
            A(f'v_add_f32 v{T(0)}, v{T(0)}, v{T(1)}')
            A(f'v_cmp_u_f32 vcc, v{T(0)}, v{T(0)}')
            A('s_cbranch_vccz L_g3_ok')
            A(f's_sub_u32 s{sSpin}, s{sSpin}, 1'); A('s_cbranch_scc0 L_g3')
            A('L_g3_ok:')
            G.stamp(6)
            self.half_allreduce('add', T(0), T(1))
            A(f'v_mul_f32 v{T(0)}, 0x3b000000, v{T(0)}')
            A(f'v_sub_f32 v{T(2)}, v{H[0]}, v{T(0)}'); A(f'v_mul_f32 v{T(3)}, v{T(2)}, v{T(2)}')
            A(f'v_sub_f32 v{T(4)}, v{H[1]}, v{T(0)}'); A(f'v_mul_f32 v{T(5)}, v{T(4)}, v{T(4)}')
            for k in range(2, 16, 2):
                A(f'v_sub_f32 v{T(2)}, v{H[k]}, v{T(0)}'); A(f'v_sub_f32 v{T(4)}, v{H[k+1]}, v{T(0)}')
                A(f'v_fmac_f32 v{T(3)}, v{T(2)}, v{T(2)}'); A(f'v_fmac_f32 v{T(5)}, v{T(4)}, v{T(4)}')
            A(f'v_add_f32 v{T(3)}, v{T(3)}, v{T(5)}')
            self.half_allreduce('add', T(3), T(1))
        L_keep2_ = len(self.L)
        self.ln_finish(T(0), T(3), T(8), T(9), 1.0 / 512)
        Y = H[0:4]
        self.ln_apply(Y, T(8), T(9))
        A(f'v_cvt_pk_bf16_f32 v{T(4)}, v{Y[0]}, v{Y[1]}'); A(f'v_cvt_pk_bf16_f32 v{T(5)}, v{Y[2]}, v{Y[3]}')
        A(f'ds_write_b64 v{vA1}, v[{T(4)}:{T(5)}] offset:{L_YB}')
        A('s_waitcnt lgkmcnt(0)')
        for s_ in range(4): A(f'ds_read_b128 v[{vXP+4*s_}:{vXP+4*s_+3}], v{vA2} offset:{L_YB+64*s_}')
        for s_ in range(4):
            A(f's_waitcnt lgkmcnt({3-s_})')
            c = '0' if s_ == 0 else f'v[{vDQ}:{vDQ+3}]'
            A(f'v_mfma_f32_16x16x32_bf16 v[{vDQ}:{vDQ+3}], v[{vXP+4*s_}:{vXP+4*s_+3}], v[{vW1+4*s_}:{vW1+4*s_+3}], {c}')
        A(f'ds_write_b32 v{vA3}, v{vDQ} offset:{L_TP}'); A(f'ds_write_b32 v{vA3}, v{vDQ+1} offset:{L_TP+64}')
        A('s_waitcnt lgkmcnt(0)'); A('s_barrier')
        for w in range(4): A(f'ds_read_b32 v{T(w)}, v{vA4} offset:{L_TP+128*w}')
        A('s_waitcnt lgkmcnt(0)')
        A(f'v_add_f32 v{T(0)}, v{T(0)}, v{T(1)}'); A(f'v_add_f32 v{T(2)}, v{T(2)}, v{T(3)}'); A(f'v_add_f32 v{T(0)}, v{T(0)}, v{T(2)}')
        if ML_: del self.L[L_keep2_:]
        G.rbf(T(0)); A(f'v_add_f32 v{T(0)}, v{vB1}, v{T(0)}'); G.rbf(T(0))
        import struct, math
        f2u = lambda f: struct.unpack('<I', struct.pack('<f', f))[0]
        K0 = -2 * math.log2(math.e) * math.sqrt(2 / math.pi); K1 = K0 * 0.044715
        A(f'v_mul_f32 v{T(1)}, v{T(0)}, v{T(0)}'); A(f'v_mov_b32 v{T(2)}, {hex(f2u(K0))}'); A(f'v_fmac_f32 v{T(2)}, {hex(f2u(K1))}, v{T(1)}')
        A(f'v_mul_f32 v{T(1)}, v{T(0)}, v{T(2)}'); A(f'v_exp_f32 v{T(1)}, v{T(1)}'); A(f'v_add_f32 v{T(1)}, 1.0, v{T(1)}'); A(f'v_rcp_f32 v{T(1)}, v{T(1)}')
        A(f'v_mul_f32 v{T(0)}, v{T(0)}, v{T(1)}'); A(f'v_cvt_pk_bf16_f32 v{vGA}, v{T(0)}, v{T(0)}')
        def w2and(ii):
            for jj in range(4):
                A(f'v_and_b32_dpp v{vB+4*ii+jj}, v{vGA}, v{vMASK+jj} quad_perm:[{ii},{ii},{ii},{ii}] row_mask:0xf bank_mask:0xf')
        def w2mf(ii):
            bs = vB + 4 * ii
            c = '0' if ii == 0 else f'v[{vDQ}:{vDQ+3}]'
            A(f'v_mfma_f32_16x16x32_bf16 v[{vDQ}:{vDQ+3}], v[{vW2+4*ii}:{vW2+4*ii+3}], v[{bs}:{bs+3}], {c}')
        if self.kw.get('mtrim'):
            w2and(0); w2and(1); w2mf(0); w2and(2); w2mf(1); w2and(3); w2mf(2); w2mf(3)
        else:
            for ii in range(4): w2and(ii)
            for ii in range(4): w2mf(ii)
        A(f'buffer_store_dwordx4 v[{vDQ}:{vDQ+3}], v{vRS}, s[{rWS}:{rWS+3}], 0 offen {TSF}')
        G.stamp(7)
        if MW:
            A(f's_cmp_eq_u32 s{sU}, 0'); A('s_cbranch_scc0 L_fin')
            A(f's_mov_b32 s{sU}, 1'); A(f'v_mov_b32 v{vHOFF}, v{vXOFF}'); A(f'v_mov_b32 v{vRS}, v{vC2OFF}')
            A('s_branch L_m1p')
        A('L_fin:')
        if self.diag:
            A(f's_lshl_b32 s{sT}, s2, 2'); A(f's_add_u32 s{sT}, s{sT}, s{sW}'); A(f's_lshl_b32 s{sT}, s{sT}, 7'); A(f's_add_u32 s{sT}, s{sT}, {WS_DIAG}')
            A('s_memrealtime s[96:97]'); A('s_getreg_b32 s98, hwreg(HW_REG_XCC_ID)'); A('s_waitcnt lgkmcnt(0)')
            A('v_writelane_b32 v251, s96, 14'); A('v_writelane_b32 v251, s98, 15')
            A(f'v_lshlrev_b32 v{T(0)}, 2, v{vL}'); A(f'v_add_u32 v{T(0)}, s{sT}, v{T(0)}')
            A(f'v_mov_b32 v{T(1)}, {OOB}'); A(f'v_cmp_gt_u32 vcc, 32, v{vL}'); A(f'v_cndmask_b32 v{T(0)}, v{T(1)}, v{T(0)}, vcc')
            A(f'buffer_store_dword v251, v{T(0)}, s[{rWS}:{rWS+3}], 0 offen')
            if self.kw.get('st3') or self.kw.get('st4'):
                A(f's_lshl_b32 s{sT}, s2, 2'); A(f's_add_u32 s{sT}, s{sT}, s{sW}'); A(f's_lshl_b32 s{sT}, s{sT}, 8'); A(f's_add_u32 s{sT}, s{sT}, {WS_DIAG + 0x20000}')
                A(f'v_lshlrev_b32 v{T(0)}, 2, v{vL}'); A(f'v_add_u32 v{T(0)}, s{sT}, v{T(0)}')
                A(f'buffer_store_dword v252, v{T(0)}, s[{rWS}:{rWS+3}], 0 offen')
        A('L_end:')
        A('s_endpgm')
        return self.wrap()

    def ln_finish(self, mean, ss, om, orstd, inv_n):
        A = self.A
        import struct
        f2u = lambda f: struct.unpack('<I', struct.pack('<f', f))[0]
        A(f'v_mul_f32 v{ss}, {hex(f2u(inv_n))}, v{ss}'); self.rbf(ss)
        A(f'v_add_f32 v{ss}, {hex(f2u(1e-5))}, v{ss}'); self.rbf(ss)
        A(f'v_sqrt_f32 v{ss}, v{ss}'); self.rbf(ss)
        A(f'v_rcp_f32 v{orstd}, v{ss}')
        self.rbf(om, mean)
    def ln_stats(self, X, om, orstd, t0, t1, inv_n, red):
        A = self.A
        import struct
        f2u = lambda f: struct.unpack('<I', struct.pack('<f', f))[0]
        A(f'v_add_f32 v{t0}, v{X[0]}, v{X[1]}')
        for x in X[2:]: A(f'v_add_f32 v{t0}, v{t0}, v{x}')
        red('add', t0, t1)
        A(f'v_mul_f32 v{t0}, {hex(f2u(inv_n))}, v{t0}')
        A(f'v_sub_f32 v{t1}, v{X[0]}, v{t0}'); A(f'v_mul_f32 v{orstd}, v{t1}, v{t1}')
        for x in X[1:]:
            A(f'v_sub_f32 v{t1}, v{x}, v{t0}'); A(f'v_fmac_f32 v{orstd}, v{t1}, v{t1}')
        red('add', orstd, t1)
        A(f'v_mov_b32 v{t1}, v{orstd}')
        self.ln_finish(t0, t1, om, orstd, inv_n)
    def ln_apply(self, X, m, rstd):
        A = self.A
        for k in range(0, len(X), 2):
            A(f'v_sub_f32 v{X[k]}, v{X[k]}, v{m}'); A(f'v_sub_f32 v{X[k+1]}, v{X[k+1]}, v{m}')
            A(f'v_cvt_pk_bf16_f32 v{X[k+1]}, v{X[k]}, v{X[k+1]}')
            A(f'v_lshlrev_b32 v{X[k]}, 16, v{X[k+1]}'); A(f'v_and_b32 v{X[k+1]}, 0xffff0000, v{X[k+1]}')
            A(f'v_mul_f32 v{X[k]}, v{X[k]}, v{rstd}'); A(f'v_mul_f32 v{X[k+1]}, v{X[k+1]}, v{rstd}')

    def finish_debug(self, regs):
        raise NotImplementedError

    def wrap(self):
        body = hz.fix(self.L)
        H = []
        H.append(f'; @launch grid=(256,1,1) block=(256,1,1) lds={LDS_SIZE}')
        H.append('.amdgcn_target "amdgcn-amd-amdhsa--gfx950"')
        H.append('.text'); H.append(f'.globl {KN}'); H.append('.p2align 8'); H.append(f'.type {KN},@function'); H.append(f'{KN}:')
        H += body
        H.append('.section .rodata,"a"'); H.append('.p2align 6'); H.append(f'.amdhsa_kernel {KN}')
        H.append('  .amdhsa_next_free_vgpr 512'); H.append('  .amdhsa_next_free_sgpr 102'); H.append('  .amdhsa_accum_offset 256')
        H.append('  .amdhsa_group_segment_fixed_size 0'); H.append('  .amdhsa_kernarg_size 104'); H.append('  .amdhsa_user_sgpr_count 2')
        H.append('  .amdhsa_user_sgpr_kernarg_segment_ptr 1'); H.append('  .amdhsa_system_sgpr_workgroup_id_x 1')
        H.append('.end_amdhsa_kernel')
        return '\n'.join(H) + '\n'

if __name__ == '__main__':
    import ast
    kw = eval('dict(%s)' % (sys.argv[2] if len(sys.argv) > 2 else ''))
    open(sys.argv[1], 'w').write(Gen(**kw).gen())
```

```python
import sys
import hz
KN = 'sequential_preLN__mha_block_cached__mixer_channel_mlp__decode_kernel'

WS_ML = 0x0
WS_H  = 0x2000
WS_PROG = 0x4000
WS_C1 = 0x10000
WS_C2 = 0x90000
WS_SIZE = 0x100000
WS_DIAG = 0x100000
WS_QX = 0x140000
QX_STR = 0x4400
L_XN2 = 7168
OOB = 0x7ff00000

L_XN = 0
L_QP = 4096
L_QB = 6144
L_OP = 7168
L_OH = 9216
L_YB = 11264
L_TP = 13312
L_DUMMY = 13824
L_LIM = 15360
L_ONE = 14592
L_TP3 = 0
L_DUM2 = 15616
LDS_SIZE = 16384
L_PRG = 16384

SCALE = 0x3DB504F3
LOG2E = 0x3FB8AA3B

class Gen:
    def __init__(self, diag=False, nt='nt', wnt='', spin=1 << 15, ring=8, pre=6, stop=None, nowo=False, nowq=False, norole=False, **kw):
        self.L = []
        self.vm = []
        self.done = -1
        self.diag = diag; self.nt = nt; self.wnt = wnt; self.spin = spin
        self.ring = ring; self.pre = pre; self.stop = stop
        self.nstamp = 0; self.n3 = 0; self.lidx = {}
        self.nowo = nowo; self.nowq = nowq; self.norole = norole; self.kw = kw
    def A(self, s):
        if self.kw.get('nomfma') and s.startswith('v_mfma'): return
        self.L.append('  ' + s if not s.endswith(':') else s)
    def vmop(self, s, tag, optional=False):
        self.A(s); self.vm.append((tag, optional))
        if self.kw.get('st3') and self.n3 < 64 and not optional:
            self.A('s_memrealtime s[96:97]'); self.A('s_waitcnt lgkmcnt(0)'); self.A('v_writelane_b32 v252, s96, %d' % self.n3); self.n3 += 1
        out = len(self.vm) - 1 - self.done
        assert out <= 63, ('too many outstanding', out, tag)
    def vmwait(self, tag):
        idx = max(i for i, (t, o) in enumerate(self.vm) if t == tag)
        n = sum(1 for (t, o) in self.vm[idx + 1:] if not o)
        assert n <= 63
        self.A('s_waitcnt vmcnt(%d)' % n)
        self.done = max(self.done, idx)
    def vmwait_idx(self, idx):
        if idx <= self.done: return
        n = sum(1 for (t, o) in self.vm[idx + 1:] if not o)
        assert n <= 63
        self.A('s_waitcnt vmcnt(%d)' % n)
        self.done = max(self.done, idx)
    def vmdrain(self):
        self.A('s_waitcnt vmcnt(0)'); self.done = len(self.vm) - 1
    def stamp(self, k):
        if self.diag:
            self.A('s_memrealtime s[96:97]'); self.A('s_waitcnt lgkmcnt(0)')
            self.A('v_mov_b32 v250, s96'); self.A('v_writelane_b32 v251, s96, %d' % k)

    def srd(self, r, lo, hi, size, off=None):
        A = self.A
        if off is None:
            A(f's_mov_b32 s{r}, s{lo}'); A(f's_and_b32 s{r+1}, s{hi}, 0xffff')
        else:
            A(f's_add_u32 s{r}, s{lo}, {off}'); A(f's_addc_u32 s{r+1}, s{hi}, 0'); A(f's_and_b32 s{r+1}, s{r+1}, 0xffff')
        A(f's_mov_b32 s{r+2}, {size}'); A(f's_mov_b32 s{r+3}, 0x20000')

    def wave_allreduce(self, op, v, t):
        A = self.A
        for r in (1, 2, 4, 8):
            A(f'v_{op}_f32_dpp v{v}, v{v}, v{v} row_ror:{r} row_mask:0xf bank_mask:0xf')
        A(f'v_mov_b32 v{t}, v{v}'); A(f'v_permlane16_swap_b32 v{v}, v{t}'); A(f'v_{op}_f32 v{v}, v{v}, v{t}')
        A(f'v_mov_b32 v{t}, v{v}'); A(f'v_permlane32_swap_b32 v{v}, v{t}'); A(f'v_{op}_f32 v{v}, v{v}, v{t}')
    def half_allreduce(self, op, v, t):
        A = self.A
        for r in (1, 2, 4, 8):
            A(f'v_{op}_f32_dpp v{v}, v{v}, v{v} row_ror:{r} row_mask:0xf bank_mask:0xf')
        A(f'v_mov_b32 v{t}, v{v}'); A(f'v_permlane16_swap_b32 v{v}, v{t}'); A(f'v_{op}_f32 v{v}, v{v}, v{t}')
    def rbf(self, v, src=None):
        A = self.A
        s = v if src is None else src
        if self.kw.get('rb1'): A(f'v_cvt_pk_bf16_f32 v{v}, 0, v{s}'); return
        A(f'v_cvt_pk_bf16_f32 v{v}, v{s}, v{s}'); A(f'v_and_b32 v{v}, 0xffff0000, v{v}')

    def gen(self):
        A = self.A; G = self
        RING = self.ring; nt = self.nt; wnt = self.wnt
        sW = 3
        pX, pK, pV, pWQ, pWO, pW1, pB1, pW2, pB2, pOUT, pDBG, pWS = 4, 6, 8, 10, 12, 16, 18, 20, 22, 24, 26, 28
        rK, rV, rWQ, rWO, rWS, rDBG, rX, rW1, rW2, rB1, rB2, rOUT = 32, 36, 40, 44, 48, 52, 56, 60, 64, 68, 72, 76
        sOff, sT, sH, sB, sS, sBH, sRole, sSpin, sT2, sU = 80, 81, 82, 83, 84, 85, 86, 87, 88, 89
        sM = 90
        sPK = 92
        sAt = 93
        vL, vN, vG = 1, 2, 3
        vK, vV, vWQ, vWO, vC1, vMLp, vMLq, vRS = 4, 5, 6, 7, 8, 9, 10, 11
        vSEL = 12
        vMASK = 20
        vBQ = 24
        vS = 32
        vD = 64
        vO = 80
        vB = 88
        vXP = 104
        vDQ = 120
        vT = 124
        vMX, vLS, vM, vNM, vF, vML0, vML1, vCNT = 140, 141, 142, 143, 208, 210, 211, 212
        vW1 = 144
        vW2 = 160
        vR = 176
        vB1, vXV, vB2V, vHV, vOPA, vSENT, vOUTA = 213, 214, 215, 216, 217, 220, 218
        vA1, vA2, vA3, vA4 = 224, 225, 226, 227
        vXR = 228
        vWOFF1, vWOFF2, vB1OFF, vHOFF, vGA = 232, 233, 234, 235, 236
        vONE, vATO = 237, 238
        vXOFF, vB2OFF, vC2OFF = 239, 240, 241
        vPROG = (242, 209); vPUBO, vPRO, vLIMW, vLIMR, vLIM, vPV, vPT, vPT2, vWIN = 243, 244, 245, 246, 247, 248, 249, 219, 253
        vSNAP, vEFF = 254, 255
        sLim, sSp2 = 94, 95
        THR = self.kw.get('thr'); CHK = self.kw.get('chk', 2); NREP = self.kw.get('nrep', 32)
        aW = 128
        T = lambda i: vT + i

        A('s_cmp_ge_u32 s2, 256'); A('s_cbranch_scc1 L_end')
        if self.kw.get('wgx'): A('s_xor_b32 s2, s2, %d' % self.kw['wgx'])
        if self.kw.get('hperm'):
            pc = sum(v << (4 * i) for i, v in enumerate(self.kw['hperm']))
            A('s_and_b32 s3, s2, 7'); A('s_lshl_b32 s3, s3, 2'); A('s_lshr_b32 s3, %d, s3' % pc); A('s_and_b32 s3, s3, 7')
            A('s_andn2_b32 s2, s2, 7'); A('s_or_b32 s2, s2, s3')
        A(f's_load_dwordx16 s[4:19], s[0:1], 0'); A('s_load_dwordx8 s[20:27], s[0:1], 64'); A('s_load_dwordx2 s[28:29], s[0:1], 96')
        if self.diag:
            A('v_mov_b32 v251, 0')
            G.stamp(0)
        A(f'v_and_b32 v{vL}, 63, v0'); A(f'v_lshrrev_b32 v{T(0)}, 6, v0'); A(f'v_and_b32 v{vN}, 15, v0')
        A(f'v_readfirstlane_b32 s{sW}, v{T(0)}')
        A(f'v_lshrrev_b32 v{vG}, 4, v{vL}')
        A(f's_and_b32 s{sH}, s2, 31'); A(f's_lshr_b32 s{sB}, s2, 5'); A(f's_and_b32 s{sB}, s{sB}, 1'); A(f's_lshr_b32 s{sS}, s2, 6'); A(f's_and_b32 s{sBH}, s2, 63')
        if self.kw.get('hmap') == 'c4':
            A(f's_and_b32 s{sT}, s2, 7'); A(f's_lshl_b32 s{sT}, s{sT}, 2'); A(f's_bfe_u32 s{sH}, s2, 0x20003'); A(f's_or_b32 s{sH}, s{sH}, s{sT}')
            A(f's_lshl_b32 s{sT}, s{sB}, 5'); A(f's_or_b32 s{sBH}, s{sH}, s{sT}')
        if self.kw.get('only') is not None:
            kind, val = self.kw['only']
            if kind == 'cls': A(f's_and_b32 s{sT}, s{sH}, 3'); A(f's_cmp_eq_u32 s{sT}, {val}'); A('s_cbranch_scc0 L_end')
            if kind == 'lt': A(f's_cmp_lt_u32 s2, {val}'); A('s_cbranch_scc0 L_end')
        A(f's_lshl_b32 s{sT}, s{sW}, 12')
        A(f'v_lshrrev_b32 v{T(0)}, 1, v{vN}'); A(f'v_lshlrev_b32 v{T(0)}, 8, v{T(0)}')
        A(f'v_and_b32 v{T(1)}, 1, v{vN}'); A(f'v_lshl_add_u32 v{T(0)}, v{T(1)}, 6, v{T(0)}')
        A(f'v_lshl_add_u32 v{T(0)}, v{vG}, 4, v{T(0)}'); A(f'v_add_u32 v{vK}, s{sT}, v{T(0)}')
        A(f'v_lshlrev_b32 v{T(0)}, 9, v{vG}'); A(f'v_lshl_add_u32 v{T(0)}, v{vN}, 4, v{T(0)}'); A(f'v_add_u32 v{vV}, s{sT}, v{T(0)}')
        A(f's_lshl_b32 s{sT}, s{sW}, 20'); A(f'v_lshlrev_b32 v{T(0)}, 18, v{vG}'); A(f'v_lshl_add_u32 v{T(0)}, v{vN}, 4, v{T(0)}'); A(f'v_add_u32 v{vWQ}, s{sT}, v{T(0)}')
        QX = self.kw.get('qx')
        vTG, vEW, vQE, vQS, vQL = 144, 146, 148, 149, 150
        sQ, sJ = 98, 99
        if QX:
            A(f's_lshr_b32 s{sJ}, s2, 5')
            A(f's_lshl_b32 s{sT}, s{sW}, 17'); A(f'v_lshlrev_b32 v{T(0)}, 15, v{vG}'); A(f'v_lshl_add_u32 v{T(0)}, v{vN}, 4, v{T(0)}'); A(f'v_add_u32 v{vWQ}, s{sT}, v{T(0)}')
            A(f's_mul_i32 s{sT}, s{sH}, {QX_STR}'); A(f's_add_u32 s{sT}, s{sT}, {WS_QX}'); A(f'v_mov_b32 v{vQE}, s{sT}')
            A(f's_lshl_b32 s{sT2}, s{sJ}, 11'); A(f's_add_u32 s{sT2}, s{sT2}, s{sT}'); A(f's_add_u32 s{sT2}, s{sT2}, 1024')
            A(f's_lshl_b32 s{sQ}, s{sW}, 9'); A(f's_add_u32 s{sT2}, s{sT2}, s{sQ}')
            A(f'v_lshlrev_b32 v{T(0)}, 4, v{vL}'); A(f'v_add_u32 v{T(1)}, s{sT2}, v{T(0)}'); A(f'v_mov_b32 v{T(3)}, {OOB}')
            A(f'v_cmp_gt_u32 vcc, 32, v{vL}'); A(f'v_cndmask_b32 v{vQS}, v{T(3)}, v{T(1)}, vcc')
            A(f's_lshl_b32 s{sT2}, s{sW}, 12'); A(f's_add_u32 s{sT2}, s{sT2}, s{sT}'); A(f's_lshl_b32 s{sQ}, s{sB}, 10'); A(f's_add_u32 s{sT2}, s{sT2}, s{sQ}')
            A(f's_add_u32 s{sT2}, s{sT2}, 1024'); A(f'v_add_u32 v{vQL}, s{sT2}, v{T(0)}')
            A(f's_mov_b32 s{sQ}, 0')
        A(f's_lshl_b32 s{sT}, s{sB}, 10'); A(f'v_lshlrev_b32 v{T(2)}, 4, v{vL}'); A(f'v_add_u32 v{T(2)}, s{sT}, v{T(2)}')
        if QX:
            A(f'v_lshrrev_b32 v{T(2)}, 5, v{vL}'); A(f'v_lshlrev_b32 v{T(2)}, 10, v{T(2)}'); A(f'v_and_b32 v{T(3)}, 31, v{vL}'); A(f'v_lshl_add_u32 v{T(2)}, v{T(3)}, 5, v{T(2)}')
        A(f's_lshl_b32 s{sT}, s{sB}, 5'); A(f's_lshl_b32 s{sT2}, s{sW}, 3'); A(f's_add_u32 s{sT}, s{sT}, s{sT2}')
        A(f's_lshl_b32 s{sT}, s{sT}, 13')
        A(f's_lshl_b32 s{sT2}, s{sH}, 2'); A(f's_add_u32 s{sT2}, s{sT2}, s{sS}'); A(f's_lshl_b32 s{sT2}, s{sT2}, 6')
        A(f's_add_u32 s{sT}, s{sT}, s{sT2}'); A(f's_add_u32 s{sT}, s{sT}, {WS_C1}')
        A(f'v_lshlrev_b32 v{T(0)}, 1, v{vG}'); A(f'v_lshrrev_b32 v{T(1)}, 2, v{vN}'); A(f'v_add_u32 v{T(0)}, v{T(0)}, v{T(1)}')
        A(f'v_lshlrev_b32 v{T(0)}, 13, v{T(0)}'); A(f'v_and_b32 v{T(1)}, 3, v{vN}'); A(f'v_lshl_add_u32 v{T(0)}, v{T(1)}, 4, v{T(0)}')
        A(f'v_add_u32 v{T(0)}, s{sT}, v{T(0)}')
        A(f'v_mov_b32 v{T(1)}, {OOB}'); A(f'v_cmp_gt_u32 vcc, 8, v{vN}')
        A(f'v_cndmask_b32 v{vC1}, v{T(1)}, v{T(0)}, vcc')
        W2 = self.kw.get('wot2')
        vXO2, vOHW, vOHR = 243, 244, 245
        if W2:
            assert not THR
            A(f'v_lshrrev_b32 v{T(0)}, 2, v{vN}'); A(f'v_lshlrev_b32 v{T(0)}, 1, v{T(0)}'); A(f'v_lshrrev_b32 v{T(1)}, 1, v{vG}'); A(f'v_add_u32 v{T(0)}, v{T(0)}, v{T(1)}')
            A(f'v_lshlrev_b32 v{T(0)}, 13, v{T(0)}'); A(f'v_and_b32 v{T(1)}, 3, v{vN}'); A(f'v_lshl_add_u32 v{T(0)}, v{T(1)}, 4, v{T(0)}')
            if self.kw.get('c1x4'):
                A(f'v_add_u32 v{T(0)}, s{sT}, v{T(0)}'); A(f'v_and_b32 v{T(1)}, 1, v{vG}'); A(f'v_cmp_eq_u32 vcc, 0, v{T(1)}')
                A(f'v_mov_b32 v{T(1)}, {OOB}'); A(f'v_cndmask_b32 v{vC1}, v{T(1)}, v{T(0)}, vcc')
            else:
                A(f'v_and_b32 v{T(1)}, 1, v{vG}'); A(f'v_lshl_add_u32 v{T(0)}, v{T(1)}, 3, v{T(0)}')
                A(f'v_add_u32 v{vC1}, s{sT}, v{T(0)}')
            A(f'v_mov_b32 v{vXO2}, {OOB}')
            A(f's_lshl_b32 s{sT2}, s{sW}, 9'); A(f'v_lshrrev_b32 v{T(0)}, 3, v{vN}'); A(f'v_lshlrev_b32 v{T(0)}, 8, v{T(0)}'); A(f'v_lshl_add_u32 v{T(0)}, v{vG}, 6, v{T(0)}')
            A(f'v_and_b32 v{T(1)}, 7, v{vN}'); A(f'v_lshl_add_u32 v{T(0)}, v{T(1)}, 3, v{T(0)}'); A(f'v_add_u32 v{vOHW}, s{sT2}, v{T(0)}')
            A(f'v_lshrrev_b32 v{T(0)}, 2, v{vN}'); A(f'v_lshlrev_b32 v{T(0)}, 9, v{T(0)}'); A(f'v_and_b32 v{T(1)}, 1, v{vN}'); A(f'v_lshl_add_u32 v{T(0)}, v{T(1)}, 8, v{T(0)}')
            A(f'v_lshl_add_u32 v{vOHR}, v{vG}, 4, v{T(0)}')
        A(f's_lshl_b32 s{sT}, s{sBH}, 7'); A(f's_lshl_b32 s{sT2}, s{sS}, 2'); A(f's_add_u32 s{sT2}, s{sT2}, s{sW}'); A(f's_lshl_b32 s{sT2}, s{sT2}, 3')
        A(f's_add_u32 s{sT2}, s{sT2}, s{sT}'); A(f'v_mov_b32 v{T(0)}, s{sT2}'); A(f'v_mov_b32 v{T(1)}, {OOB}')
        A(f'v_cmp_eq_u32 vcc, 0, v{vL}'); A(f'v_cndmask_b32 v{vMLp}, v{T(1)}, v{T(0)}, vcc')
        A(f'v_lshlrev_b32 v{T(0)}, 3, v{vN}'); A(f'v_add_u32 v{vMLq}, s{sT}, v{T(0)}')
        kp, vp = self.kw.get('kpat'), self.kw.get('vpat')
        if kp == 'v' or vp == 'k' or kp == 'lin' or vp == 'lin':
            A(f's_lshl_b32 s{sT}, s{sW}, 12')
            if kp == 'v' and vp is None: A(f'v_mov_b32 v{vK}, v{vV}')
            if vp == 'k' and kp is None: A(f'v_mov_b32 v{vV}, v{vK}')
            if kp == 'lin': A(f'v_lshlrev_b32 v{T(0)}, 4, v{vL}'); A(f'v_add_u32 v{vK}, s{sT}, v{T(0)}')
            if vp == 'lin': A(f'v_lshlrev_b32 v{T(0)}, 4, v{vL}'); A(f'v_add_u32 v{vV}, s{sT}, v{T(0)}')
        rot = self.kw.get('rot')
        if rot:
            A(f's_mul_i32 s99, s2, {rot}'); A(f's_lshr_b32 s{sT}, s2, 5'); A(f's_add_u32 s99, s99, s{sT}'); A('s_and_b32 s99, s99, 31'); A('s_lshl_b32 s99, s99, 14')
        A(f's_mov_b32 s{sRole}, 0')
        A(f's_and_b32 s{sT}, s2, 7'); A(f's_mul_i32 s{sT}, s{sT}, 14'); A(f's_lshr_b32 s{sT2}, s2, 3'); A(f's_add_u32 s{sU}, s{sT}, s{sT2}')
        A(f's_cmp_lt_u32 s2, 112'); A(f's_cselect_b32 s{sRole}, 1, 0')
        A(f's_sub_u32 s{sT}, s2, 128'); A(f's_cmp_lt_u32 s{sT}, 64'); A(f's_cselect_b32 s{sRole}, 2, s{sRole}'); A(f's_cselect_b32 s{sU}, s{sT}, s{sU}')
        for r_ in (vRS, vWOFF1, vWOFF2, vB1OFF, vHOFF, vOUTA, vXOFF, vB2OFF, vC2OFF): A(f'v_mov_b32 v{r_}, {OOB}')
        A(f's_cmp_eq_u32 s{sRole}, 1'); A('s_cbranch_scc0 L_r1')
        A(f'v_lshrrev_b32 v{T(0)}, 3, v{vN}'); A(f'v_lshlrev_b32 v{T(0)}, 5, v{T(0)}')
        A(f'v_lshl_add_u32 v{T(0)}, v{vG}, 1, v{T(0)}'); A(f'v_bfe_u32 v{T(1)}, v{vN}, 2, 1'); A(f'v_add_u32 v{T(0)}, v{T(0)}, v{T(1)}')
        A(f's_lshl_b32 s{sT}, s{sW}, 3'); A(f'v_add_u32 v{T(0)}, s{sT}, v{T(0)}')
        A(f'v_mul_u32_u24 v{T(0)}, {112*64}, v{T(0)}'); A(f'v_and_b32 v{T(1)}, 3, v{vN}'); A(f'v_lshl_add_u32 v{T(0)}, v{T(1)}, 4, v{T(0)}')
        if self.kw.get('fakec2'):
            A(f's_and_b32 s{sT}, s2, 7'); A(f's_lshl_b32 s{sT}, s{sT}, 3'); A(f's_lshr_b32 s{sT2}, s2, 3'); A(f's_add_u32 s{sT}, s{sT}, s{sT2}')
            A(f's_lshl_b32 s{sT}, s{sT}, 6'); A(f's_add_u32 s{sT}, s{sT}, {WS_C2}')
            A(f's_cmp_lt_u32 s2, 64'); A(f's_cselect_b32 s{sT}, s{sT}, {OOB}'); A(f'v_add_u32 v{vRS}, s{sT}, v{T(0)}')
        else:
            A(f's_lshl_b32 s{sT}, s{sU}, 6'); A(f's_add_u32 s{sT}, s{sT}, {WS_C2}'); A(f'v_add_u32 v{vRS}, s{sT}, v{T(0)}')
        A(f'v_lshrrev_b32 v{T(0)}, 1, v{vG}'); A(f'v_lshlrev_b32 v{T(0)}, 2, v{T(0)}'); A(f'v_and_b32 v{T(1)}, 1, v{vG}'); A(f'v_lshl_add_u32 v{T(0)}, v{T(1)}, 1, v{T(0)}')
        A(f's_lshl_b32 s{sT}, s{sW}, 7'); A(f'v_add_u32 v{T(0)}, s{sT}, v{T(0)}'); A(f'v_mul_u32_u24 v{T(0)}, 3584, v{T(0)}')
        A(f's_lshl_b32 s{sT}, s{sU}, 5'); A(f'v_lshl_add_u32 v{T(0)}, v{vN}, 1, v{T(0)}'); A(f'v_add_u32 v{vWOFF1}, s{sT}, v{T(0)}')
        A(f's_lshl_b32 s{sT}, s{sU}, 14'); A(f's_lshl_b32 s{sT2}, s{sW}, 8'); A(f's_add_u32 s{sT}, s{sT}, s{sT2}')
        A(f'v_lshlrev_b32 v{T(0)}, 12, v{vG}'); A(f'v_lshl_add_u32 v{T(0)}, v{vN}, 4, v{T(0)}'); A(f'v_add_u32 v{vWOFF2}, s{sT}, v{T(0)}')
        A(f's_lshl_b32 s{sT}, s{sU}, 5'); A(f'v_and_b32 v{T(0)}, 3, v{vN}'); A(f'v_lshl_add_u32 v{T(0)}, v{vG}, 2, v{T(0)}'); A(f'v_lshlrev_b32 v{T(0)}, 1, v{T(0)}'); A(f'v_add_u32 v{vB1OFF}, s{sT}, v{T(0)}')
        A(f'v_lshrrev_b32 v{T(0)}, 5, v{vL}'); A(f'v_lshlrev_b32 v{T(0)}, 11, v{T(0)}'); A(f'v_and_b32 v{T(1)}, 31, v{vL}'); A(f'v_lshl_add_u32 v{T(0)}, v{T(1)}, 4, v{T(0)}')
        WSH = 0x1d0000 if (self.kw.get('hrep') not in (None, True) and self.kw['hrep'] > 8) else WS_H
        A(f'v_add_u32 v{vHOFF}, {WSH}, v{T(0)}')
        if self.kw.get('hrep'):
            NR = 4 if self.kw['hrep'] is True else self.kw['hrep']
            if self.kw.get('hmap'): A(f's_lshr_b32 s{sT}, s2, 3'); A(f's_and_b32 s{sT}, s{sT}, {NR-1}')
            else: A(f's_and_b32 s{sT}, s2, {NR-1}')
            A(f's_lshl_b32 s{sT}, s{sT}, 12'); A(f'v_add_u32 v{vHOFF}, s{sT}, v{vHOFF}')
        if self.kw.get('w1oob'): A(f'v_mov_b32 v{vWOFF1}, {OOB}')
        if self.kw.get('w2oob'): A(f'v_mov_b32 v{vWOFF2}, {OOB}')
        A('s_branch L_r2')
        A('L_r1:')
        A(f's_cmp_eq_u32 s{sRole}, 2'); A('s_cbranch_scc0 L_r2')
        A(f's_cmp_eq_u32 s{sW}, 0'); A('s_cbranch_scc0 L_r2')
        A(f's_lshl_b32 s{sT}, s{sU}, 6'); A(f's_add_u32 s{sT}, s{sT}, {WSH}')
        if self.kw.get('hrep'):
            if W2: A(f'v_and_b32 v{T(0)}, 3, v{vN}'); A(f'v_lshlrev_b32 v{T(0)}, 2, v{T(0)}'); A(f'v_lshl_add_u32 v{T(0)}, v{vG}, 4, v{T(0)}')
            else: A(f'v_and_b32 v{T(0)}, 3, v{vN}'); A(f'v_lshlrev_b32 v{T(0)}, 4, v{T(0)}'); A(f'v_lshl_add_u32 v{T(0)}, v{vG}, 2, v{T(0)}')
            A(f'v_lshrrev_b32 v{T(1)}, 2, v{vN}'); A(f'v_lshl_add_u32 v{T(0)}, v{T(1)}, 12, v{T(0)}'); A(f'v_add_u32 v{vRS}, s{sT}, v{T(0)}')
        else:
            A(f'v_lshlrev_b32 v{T(0)}, 4, v{vN}'); A(f'v_lshl_add_u32 v{T(0)}, v{vG}, 2, v{T(0)}'); A(f'v_add_u32 v{T(0)}, s{sT}, v{T(0)}')
            A(f'v_mov_b32 v{T(1)}, {OOB}'); A(f'v_cmp_gt_u32 vcc, 4, v{vN}'); A(f'v_cndmask_b32 v{vRS}, v{T(1)}, v{T(0)}, vcc')
        A(f's_and_b32 s{sT}, s{sU}, 31'); A(f's_lshr_b32 s{sT2}, s{sT}, 1'); A(f's_lshl_b32 s{sT2}, s{sT2}, 5')
        A(f's_and_b32 s{sT}, s{sT}, 1'); A(f's_lshl_b32 s{sT}, s{sT}, 2'); A(f's_add_u32 s{sT}, s{sT}, s{sT2}')
        if W2:
            assert self.kw.get('hrep')
            A(f'v_and_b32 v{T(0)}, 3, v{vN}'); A(f'v_lshl_add_u32 v{T(0)}, v{T(0)}, 3, v{vG}'); A(f'v_add_u32 v{T(0)}, s{sT}, v{T(0)}')
            A(f's_lshr_b32 s{sT2}, s{sU}, 5'); A(f's_lshl_b32 s{sT2}, s{sT2}, 10'); A(f'v_lshlrev_b32 v{T(0)}, 1, v{T(0)}'); A(f'v_add_u32 v{vXO2}, s{sT2}, v{T(0)}')
        A(f'v_and_b32 v{T(0)}, 3, v{vN}'); A(f'v_lshl_add_u32 v{T(0)}, v{vG}, 3, v{T(0)}'); A(f'v_add_u32 v{T(0)}, s{sT}, v{T(0)}')
        A(f'v_lshlrev_b32 v{vB2OFF}, 1, v{T(0)}')
        A(f's_lshr_b32 s{sT}, s{sU}, 5'); A(f's_lshl_b32 s{sT}, s{sT}, 10'); A(f'v_add_u32 v{vXOFF}, s{sT}, v{vB2OFF}')
        A(f'v_mov_b32 v{T(1)}, {OOB}'); A(f'v_cmp_gt_u32 vcc, 4, v{vN}'); A(f'v_cndmask_b32 v{vOUTA}, v{T(1)}, v{vXOFF}, vcc')
        A(f's_lshl_b32 s{sT}, s{sU}, 13'); A(f's_add_u32 s{sT}, s{sT}, {WS_C1}'); A(f'v_lshlrev_b32 v{T(0)}, 4, v{vL}'); A(f'v_add_u32 v{vHOFF}, s{sT}, v{T(0)}')
        A(f's_mul_i32 s{sT}, s{sU}, 7168'); A(f's_add_u32 s{sT}, s{sT}, {WS_C2}'); A(f'v_add_u32 v{vC2OFF}, s{sT}, v{T(0)}')
        A('L_r2:')
        for i in range(4): A(f'v_mov_b32 v{vSENT+i}, -1')
        A('s_waitcnt lgkmcnt(0)')
        if self.kw.get('st2'): G.stamp(24)
        A(f's_lshl_b32 s{sT}, s{sBH}, 21'); A(f's_lshl_b32 s{sT2}, s{sS}, 19'); A(f's_add_u32 s{sT}, s{sT}, s{sT2}')
        if self.kw.get('krot'): A(f's_add_u32 s{sT}, s{sT}, {self.kw["krot"] << 21}'); A(f's_and_b32 s{sT}, s{sT}, {(64 << 21) - 1}')
        G.srd(rX, pX, pX + 1, 2048)
        vQX, vQR, vQP = vR, vR + 16, vR + 24
        WSZ = (WS_QX + 32 * QX_STR) if QX else WS_SIZE + (0x100000 if self.diag else 0)
        if WSH != WS_H: WSZ = WSH + self.kw['hrep'] * 4096
        if QX and QX.get('skip'):
            G.srd(rWS, pWS, pWS + 1, WSZ)
        elif QX:
            G.vmop(f'buffer_load_dwordx4 v[{vQR}:{vQR+3}], v{T(2)}, s[{rX}:{rX+3}], 0 offen', 'x')
            G.vmop(f'buffer_load_dwordx4 v[{vQR+4}:{vQR+7}], v{T(2)}, s[{rX}:{rX+3}], 0 offen offset:16', 'x')
            A(f's_lshl_b32 s{sT2}, s{sH}, 8')
            G.srd(rWQ, pWQ, pWQ + 1, 0, f's{sT2}'); A(f's_sub_u32 s{rWQ+2}, {512*8192}, s{sT2}')
            A(f's_lshl_b32 s{sT2}, s{sJ}, 19')
            for i in range(4):
                G.vmop(f'buffer_load_dwordx4 a[{aW+4*i}:{aW+4*i+3}], v{vWQ}, s[{rWQ}:{rWQ+3}], s{sT2} offen', f'wq{i}')
                if i < 3: A(f's_add_u32 s{sT2}, s{sT2}, 8192')
            G.srd(rWS, pWS, pWS + 1, WSZ)
            G.vmop(f'buffer_load_dwordx2 v[{vEW}:{vEW+1}], v{vQE}, s[{rWS}:{rWS+3}], 0 offen sc1', 'E')
        G.srd(rK, pK, pK + 1, 0x80000, f's{sT}')
        if not QX: G.vmop(f'buffer_load_dwordx4 v[{vXR}:{vXR+3}], v{T(2)}, s[{rX}:{rX+3}], 0 offen', 'x')
        if self.kw.get('xwait'): G.vmwait('x')
        koffs = [0, 2048, 128, 2176]
        voffs = [0, 2048, 256, 2304]
        if kp == 'v': koffs = list(voffs)
        if vp == 'k': voffs = list(koffs)
        if kp == 'lin': koffs = [0, 1024, 2048, 3072]
        if vp == 'lin': voffs = [0, 1024, 2048, 3072]
        if kp == 'adj': koffs = [0, 128, 2048, 2176]
        if vp == 'adj': voffs = [0, 256, 2048, 2304]
        last_soff = [None]
        def load_one(u, q, setoff=True):
            isK = u < 32; t = u % 32
            if setoff:
                if self.kw.get('rot'):
                    A(f's_add_u32 s{sOff}, s99, {t*16384}'); A(f's_and_b32 s{sOff}, s{sOff}, {31*16384}')
                else:
                    A(f's_mov_b32 s{sOff}, {t*16384}')
            r = ((u % RING) * 4 + q) * 4
            if isK: G.vmop(f'buffer_load_dwordx4 a[{r}:{r+3}], v{vK}, s[{rK}:{rK+3}], s{sOff} offen offset:{koffs[q]} {nt}', f'u{u}')
            else:   G.vmop(f'buffer_load_dwordx4 a[{r}:{r+3}], v{vV}, s[{rV}:{rV+3}], s{sOff} offen offset:{voffs[q]} {nt}', f'u{u}')
            G.lidx[4 * u + q] = len(G.vm) - 1
        def unit_loads(u):
            for q in range(4): load_one(u, q, q == 0)
        PRO = self.kw.get('pro')
        kcur = [None]; kiss = [0]
        def issue_k():
            m = kiss[0]; u_, q_ = m // 4, m % 4
            load_one(u_, q_, u_ != kcur[0]); kcur[0] = u_; kiss[0] += 1
        if QX:
            for _ in range(QX['k0']): issue_k()
        elif PRO:
            for _ in range(PRO[0]): issue_k()
        elif self.pre > 0: unit_loads(0)
        if self.kw.get('st2'): G.stamp(25)
        G.srd(rV, pV, pV + 1, 0x80000, f's{sT}')
        if not QX: G.srd(rWS, pWS, pWS + 1, WSZ)
        A(f's_lshl_b32 s{sT}, s{sH}, 8')
        if self.kw.get('wqsame'): A(f's_mov_b32 s{sT}, 0')
        if self.kw.get('wqrot'): A(f's_add_u32 s{sT}, s{sH}, {self.kw["wqrot"]}'); A(f's_and_b32 s{sT}, s{sT}, 31'); A(f's_lshl_b32 s{sT}, s{sT}, 8')
        if self.kw.get('wqx'): A(f's_lshr_b32 s{sT}, s2, 3'); A(f's_lshl_b32 s{sT}, s{sT}, 8')
        if self.kw.get('wqx4'): A(f's_lshr_b32 s{sT}, s2, 2'); A(f's_and_b32 s{sT}, s{sT}, 31'); A(f's_lshl_b32 s{sT}, s{sT}, 8')
        if QX: pass
        elif self.kw.get('wqbase'):
            pb = {'K': pK, 'V': pV, 'O': pWO}[self.kw['wqbase']]
            G.srd(rWQ, pb, pb + 1, 0, f's{sT}'); A(f's_sub_u32 s{rWQ+2}, {512*8192}, s{sT}')
        else:
            G.srd(rWQ, pWQ, pWQ + 1, 0, f's{sT}'); A(f's_sub_u32 s{rWQ+2}, {512*8192}, s{sT}')
        if self.kw.get('noinit'):
            A(f'v_mov_b32 v{vC1}, {OOB}'); A(f'v_mov_b32 v{vMLp}, {OOB}'); A(f'v_mov_b32 v{vRS}, {OOB}'); A(f'v_mov_b32 v{vHOFF}, {OOB}'); A(f'v_mov_b32 v{vC2OFF}, {OOB}'); A(f'v_mov_b32 v{vMLq}, {OOB}')
        if W2 and not self.kw.get('c1x4'): G.vmop(f'buffer_store_dwordx2 v[{vSENT}:{vSENT+1}], v{vC1}, s[{rWS}:{rWS+3}], 0 offen sc1', 'init')
        else: G.vmop(f'buffer_store_dwordx4 v[{vSENT}:{vSENT+3}], v{vC1}, s[{rWS}:{rWS+3}], 0 offen sc1', 'init')
        G.vmop(f'buffer_store_dwordx2 v[{vSENT}:{vSENT+1}], v{vMLp}, s[{rWS}:{rWS+3}], 0 offen sc1', 'init')
        A(f's_cmp_eq_u32 s{sRole}, 1'); A('s_cbranch_scc0 L_i1')
        G.vmop(f'buffer_store_dwordx4 v[{vSENT}:{vSENT+3}], v{vRS}, s[{rWS}:{rWS+3}], 0 offen sc1', 'init', True)
        A('L_i1:')
        A(f's_cmp_eq_u32 s{sRole}, 2'); A('s_cbranch_scc0 L_i2')
        G.vmop(f'buffer_store_dword v{vSENT}, v{vRS}, s[{rWS}:{rWS+3}], 0 offen sc1', 'init', True)
        NRH = self.kw.get('hrep'); NRH = 1 if NRH in (None, True) else NRH // 4
        for r_ in range(1, NRH):
            A(f's_mov_b32 s{sT}, {r_*16384}')
            G.vmop(f'buffer_store_dword v{vSENT}, v{vRS}, s[{rWS}:{rWS+3}], s{sT} offen sc1', 'init', True)
        A('L_i2:')
        if self.kw.get('st2'): G.stamp(26)
        def wq_load(i):
            if self.kw.get('nowq0'): return
            if self.nowq and i >= 4: return
            A(f's_mov_b32 s{sT}, {i*8192}')
            r = aW + 4 * i
            G.vmop(f'buffer_load_dwordx4 a[{r}:{r+3}], v{vWQ}, s[{rWQ}:{rWQ+3}], s{sT} offen {wnt}', f'wq{i}')
            if self.kw.get('st2') and i == 15: G.stamp(27)
            if self.kw.get('st2') and i == 31: G.stamp(28)
        il = self.kw.get('il', 0)
        done_u = 1 if self.pre > 0 else 0
        if QX:
            for _ in range(QX.get('n1', 0)): issue_k()
        elif PRO:
            k0_, pa, pb_, Wp = PRO[:4]
            ktot = PRO[4] if len(PRO) > 4 else 28
            S = []
            for i in range(32):
                S.append(('wq', i))
                if i % pa == pa - 1 and i < 31: S += [('k', None)] * pb_
            S += [('k', None)] * 32
            sp = [0]
            def pro_next():
                while sp[0] < len(S):
                    kind, i = S[sp[0]]; sp[0] += 1
                    if kind == 'wq':
                        A(f's_mov_b32 s{sLim}, {i*8192}')
                        r = aW + 4 * i
                        G.vmop(f'buffer_load_dwordx4 a[{r}:{r+3}], v{vWQ}, s[{rWQ}:{rWQ+3}], s{sLim} offen {wnt}', f'wq{i}')
                        if self.kw.get('st2') and i == 15: G.stamp(27)
                        if self.kw.get('st2') and i == 31: G.stamp(28)
                        return True
                    if kiss[0] < ktot:
                        issue_k(); return True
                return False
            for _ in range(PRO[5] if len(PRO) > 5 else Wp - k0_ - 1): pro_next()
        else:
            for i in range(32):
                wq_load(i)
                if il and i % 4 == 3 and done_u < 1 + il and i < 31:
                    unit_loads(done_u); done_u += 1
            for u in range(done_u, self.pre): unit_loads(u)
        G.stamp(9)
        A(f's_lshl_b32 s{sT}, s{sH}, 17')
        if self.kw.get('wosame'): A(f's_mov_b32 s{sT}, 0')
        if self.kw.get('wox'): A(f's_lshr_b32 s{sT}, s2, 3'); A(f's_lshl_b32 s{sT}, s{sT}, 17')
        if self.kw.get('wox4'): A(f's_lshr_b32 s{sT}, s2, 2'); A(f's_and_b32 s{sT}, s{sT}, 31'); A(f's_lshl_b32 s{sT}, s{sT}, 17')
        if self.kw.get('woxcd'): A(f's_and_b32 s{sT}, s{sH}, 7'); A(f's_lshl_b32 s{sT}, s{sT}, 17')
        G.srd(rWO, pWO, pWO + 1, 131072, f's{sT}')
        G.srd(rDBG, pDBG, pDBG + 1, 256)
        G.srd(rW1, pW1, pW1 + 1, 512 * 3584)
        G.srd(rW2, pW2, pW2 + 1, 1792 * 1024)
        G.srd(rB1, pB1, pB1 + 1, 3584)
        G.srd(rB2, pB2, pB2 + 1, 1024)
        G.srd(rOUT, pOUT, pOUT + 1, 2048)
        A(f's_mov_b32 s{sPK}, 0x05040100')
        A(f's_lshl_b32 s{sT}, s{sW}, 8'); A(f'v_lshlrev_b32 v{T(0)}, {11 if W2 else 15}, v{vG}'); A(f'v_lshl_add_u32 v{T(0)}, v{vN}, 4, v{T(0)}'); A(f'v_add_u32 v{vWO}, s{sT}, v{T(0)}')
        if W2: A('s_mov_b32 s100, 0x07060302')
        A(f's_lshr_b32 s{sAt}, s2, 4'); A(f's_and_b32 s{sAt}, s{sAt}, 15'); A(f's_cmp_eq_u32 s{sW}, %d' % self.kw.get('atw', 0)); A(f's_cselect_b32 s{sAt}, s{sAt}, 99')
        ATT = self.kw.get('att')
        if ATT:
            A(f'v_mov_b32 v{vONE}, 1'); A(f's_lshr_b32 s{sT}, s2, {3 if self.kw.get("xr") else 6}'); A(f's_and_b32 s{sT}, s{sT}, 3'); A(f's_lshl_b32 s{sT}, s{sT}, {5 if self.kw.get("xr") else 6}'); A(f's_mov_b32 s95, s{sT}'); A(f's_cmp_eq_u32 s{sW}, 0'); A(f's_cselect_b32 s{sT}, s{sT}, {OOB}')
            A(f'v_mov_b32 v{vATO}, {OOB}'); A(f'v_mov_b32 v{T(0)}, s{sT}'); A(f'v_cmp_eq_u32 vcc, 0, v{vL}'); A(f'v_cndmask_b32 v{vATO}, v{vATO}, v{T(0)}, vcc')
        else:
            A(f'v_mov_b32 v{vONE}, 1'); A(f'v_mov_b32 v{vATO}, {OOB}'); A(f'v_cmp_eq_u32 vcc, 0, v{vL}'); A(f'v_cndmask_b32 v{vATO}, v{vATO}, 0, vcc')
        XR = self.kw.get('xr')
        if XR:
            if ATT:
                A('s_add_u32 s94, s95, 128'); A(f's_mov_b32 s95, {OOB}'); A(f's_cmp_eq_u32 s{sW}, {XR[4][1] if len(XR) > 4 else 0}'); A('s_cselect_b32 s94, s94, s95')
            else:
                A(f's_mov_b32 s95, {OOB}'); A(f's_cmp_eq_u32 s{sW}, 0'); A('s_cselect_b32 s94, 128, s95')
            A(f'v_mov_b32 v246, {OOB}'); A(f'v_mov_b32 v247, s94'); A(f'v_cmp_eq_u32 vcc, 0, v{vL}'); A(f'v_cndmask_b32 v246, v246, v247, vcc')
            A(f's_mov_b32 s95, {L_DUM2}'); A(f's_cmp_eq_u32 s{sW}, 0'); A(f's_cselect_b32 s94, {L_LIM}, s95'); A('v_mov_b32 v248, s94')
            A(f'v_mov_b32 v249, {L_LIM}'); A('v_mov_b32 v247, 0'); A('ds_write_b32 v249, v247'); A('s_mov_b32 s94, 0')
            A('s_waitcnt lgkmcnt(0)'); A('v_mov_b32 v247, 1')
        A(f'v_and_b32 v{T(0)}, 1, v{vN}'); A(f'v_cmp_eq_u32 vcc, 1, v{T(0)}')
        A(f'v_mov_b32 v{T(1)}, 0x0c0c0100'); A(f'v_mov_b32 v{T(2)}, 0x01000c0c'); A(f'v_cndmask_b32 v{T(3)}, v{T(1)}, v{T(2)}, vcc')
        A(f'v_mov_b32 v{T(1)}, 0x0c0c0302'); A(f'v_mov_b32 v{T(2)}, 0x03020c0c'); A(f'v_cndmask_b32 v{T(4)}, v{T(1)}, v{T(2)}, vcc')
        A(f'v_mov_b32 v{T(1)}, 0x0000ffff'); A(f'v_mov_b32 v{T(2)}, 0xffff0000'); A(f'v_cndmask_b32 v{T(5)}, v{T(1)}, v{T(2)}, vcc')
        A(f'v_bfe_u32 v{T(0)}, v{vN}, 1, 2'); A(f'v_mov_b32 v{T(6)}, 0x0c0c0c0c')
        for jj in range(4):
            A(f'v_cmp_eq_u32 vcc, {jj}, v{T(0)}')
            A(f'v_cndmask_b32 v{vSEL+jj}, v{T(6)}, v{T(3)}, vcc'); A(f'v_cndmask_b32 v{vSEL+4+jj}, v{T(6)}, v{T(4)}, vcc')
            A(f'v_cndmask_b32 v{vMASK+jj}, 0, v{T(5)}, vcc')
        if QX:
            A(f's_lshl_b32 s{sT}, s{sW}, 11'); A(f'v_lshlrev_b32 v{T(0)}, 5, v{vL}'); A(f'v_add_u32 v{vA1}, s{sT}, v{T(0)}')
            A(f's_lshl_b32 s{sT2}, s{sJ}, 2'); A(f's_add_u32 s{sT2}, s{sT2}, s{sW}'); A(f's_lshl_b32 s{sT2}, s{sT2}, 5'); A(f's_add_u32 s{sT}, s{sT}, s{sT2}')
            A(f'v_lshrrev_b32 v{T(0)}, 3, v{vN}'); A(f'v_lshlrev_b32 v{T(0)}, 10, v{T(0)}'); A(f'v_lshl_add_u32 v{T(0)}, v{vG}, 3, v{T(0)}'); A(f'v_add_u32 v{vA2}, s{sT}, v{T(0)}')
        else:
            A(f's_lshl_b32 s{sT}, s{sW}, 10'); A(f'v_lshlrev_b32 v{T(0)}, 4, v{vL}'); A(f'v_add_u32 v{vA1}, s{sT}, v{T(0)}')
            A(f's_mul_i32 s{sT}, s{sW}, 1280'); A(f'v_lshlrev_b32 v{T(0)}, 6, v{vG}'); A(f'v_add_u32 v{vA2}, s{sT}, v{T(0)}')
        if THR:
            PSTR = self.kw.get('pstr', 4)
            GSTR = self.kw.get('gstr', 256 if PSTR == 4 else 8 * PSTR)
            A(f's_and_b32 s{sT}, s2, 3'); A(f's_lshl_b32 s{sT}, s{sT}, 3'); A(f's_lshr_b32 s{sT2}, s2, 3'); A(f's_sub_u32 s{sT2}, s{sT2}, s{sT}'); A(f's_and_b32 s{sT2}, s{sT2}, 31')
            A(f's_mul_i32 s{sT2}, s{sT2}, {GSTR}'); A(f's_add_u32 s{sT2}, s{sT2}, {WS_PROG}')
            A(f'v_mov_b32 v{vPT}, {OOB}'); A(f'v_and_b32 v{vPRO}, 7, v{vL}'); A(f'v_mul_u32_u24 v{vPRO}, {PSTR}, v{vPRO}'); A(f'v_add_u32 v{vPRO}, s{sT2}, v{vPRO}')
            A(f's_and_b32 s{sT}, s2, 7'); A(f's_mul_i32 s{sT}, s{sT}, {PSTR}'); A(f's_add_u32 s{sT}, s{sT}, s{sT2}')
            A(f'v_mov_b32 v{vPUBO}, s{sT}'); A(f'v_cmp_eq_u32 vcc, 0, v{vL}'); A(f'v_cndmask_b32 v{vPUBO}, v{vPT}, v{vPUBO}, vcc')
            A(f'v_lshlrev_b32 v{vLIMW}, 2, v{vL}'); A(f'v_add_u32 v{vLIMW}, {L_DUM2}, v{vLIMW}')
            A(f'v_mov_b32 v{vLIMR}, {L_LIM}'); A(f'v_mov_b32 v{vWIN}, {THR}')
            A(f's_cmp_eq_u32 s{sW}, 0'); A('s_cbranch_scc1 L_thw0')
            A(f'v_mov_b32 v{vPUBO}, {OOB}'); A(f'v_mov_b32 v{vPRO}, {OOB}'); A('s_branch L_thw1')
            A('L_thw0:')
            A(f'v_cndmask_b32 v{vLIMW}, v{vLIMW}, v{vLIMR}, vcc')
            A('L_thw1:')
            A(f'ds_write_b32 v{vLIMW}, v{vWIN}'); A(f'v_mov_b32 v{vLIM}, {THR}'); A(f'v_mov_b32 v{vEFF}, 0')
            for r_ in vPROG: A(f'v_mov_b32 v{r_}, 0')
        noq = self.kw.get('noq')
        if noq: A('s_branch L_noq')
        if QX and QX.get('skip'):
            L_keep = list(self.L); vm_keep = list(self.vm); done_keep = self.done; kiss_keep = kiss[0]; kcur_keep = kcur[0]; lidx_keep = dict(self.lidx)
            self.vm += [('x', False), ('wq0', False), ('wq1', False), ('wq2', False), ('wq3', False), ('E', False)]
        if self.kw.get('st2'): G.stamp(29)
        G.vmwait('x')
        if self.kw.get('st2'): G.stamp(30)
        if THR:
            G.vmop(f'buffer_load_dword v{vSNAP}, v{vPRO}, s[{rWS}:{rWS+3}], 0 offen sc1', 'snap')
        if QX:
            for _ in range(QX.get('n2', 0)): issue_k()
            X = [vQX + i for i in range(16)]
            for k in range(8):
                A(f'v_lshlrev_b32 v{X[2*k]}, 16, v{vQR+k}'); A(f'v_and_b32 v{X[2*k+1]}, 0xffff0000, v{vQR+k}')
            self.ln_stats(X, T(8), T(9), T(10), T(11), 1.0 / 512, self.half_allreduce)
            self.ln_apply(X, T(8), T(9))
            for k in range(8): A(f'v_cvt_pk_bf16_f32 v{vQR+k}, v{X[2*k]}, v{X[2*k+1]}')
            A(f'ds_write_b128 v{vA1}, v[{vQR}:{vQR+3}] offset:{L_XN2}'); A(f'ds_write_b128 v{vA1}, v[{vQR+4}:{vQR+7}] offset:{L_XN2+16}')
            for _ in range(QX.get('n3', 0)): issue_k()
            A('s_waitcnt lgkmcnt(0)')
            A(f'ds_read_b64 v[{vXP}:{vXP+1}], v{vA2} offset:{L_XN2}')
        else:
            X = [T(i) for i in range(8)]
            for k in range(4):
                A(f'v_lshlrev_b32 v{X[2*k]}, 16, v{vXR+k}'); A(f'v_and_b32 v{X[2*k+1]}, 0xffff0000, v{vXR+k}')
            self.ln_stats(X, T(8), T(9), T(10), T(11), 1.0 / 512, self.wave_allreduce)
            self.ln_apply(X, T(8), T(9))
            for k in range(4): A(f'v_cvt_pk_bf16_f32 v{vXR+k}, v{X[2*k]}, v{X[2*k+1]}')
            A(f'ds_write_b128 v{vA1}, v[{vXR}:{vXR+3}] offset:{L_XN}')
            A('s_waitcnt lgkmcnt(0)')
            for k in range(4): A(f'ds_read_b128 v[{vXP+4*k}:{vXP+4*k+3}], v{vA2} offset:{L_XN+16*k}')
        A(f's_lshl_b32 s{sT}, s{sW}, 9'); A(f'v_and_b32 v{T(0)}, 7, v{vN}'); A(f'v_lshl_add_u32 v{T(0)}, v{vG}, 5, v{T(0)}'); A(f'v_lshlrev_b32 v{T(0)}, 2, v{T(0)}')
        A(f'v_add_u32 v{vA1}, s{sT}, v{T(0)}')
        A(f'v_mov_b32 v{T(1)}, {L_DUMMY - L_OP}'); A(f'v_cmp_gt_u32 vcc, 8, v{vN}'); A(f'v_cndmask_b32 v{vOPA}, v{T(1)}, v{vA1}, vcc')
        A(f'v_lshlrev_b32 v{vA3}, 3, v{vL}')
        A('s_waitcnt lgkmcnt(0)')
        if self.kw.get('st2'): G.stamp(31)
        def delta_steps(nsteps, acc, tagf, first_zero=True):
            if self.kw.get('dpipe') and tagf is None:
                def prm(i):
                    bset = vB + 4 * (i & 1)
                    for jj in range(4):
                        A(f'v_perm_b32 v{bset+jj}, v{vXP+(i>>1)}, v{vXP+(i>>1)}, v{vSEL+4*(i&1)+jj}')
                prm(0)
                for i in range(nsteps):
                    if i + 1 < nsteps: prm(i + 1)
                    bset = vB + 4 * (i & 1); r = aW + 4 * i
                    c = '0' if i == 0 else f'v[{acc}:{acc+3}]'
                    A(f'v_mfma_f32_16x16x32_bf16 v[{acc}:{acc+3}], a[{r}:{r+3}], v[{bset}:{bset+3}], {c}')
                return
            for i in range(nsteps):
                bset = vB + 4 * (i & 1)
                for jj in range(4):
                    A(f'v_perm_b32 v{bset+jj}, v{vXP+(i>>1)}, v{vXP+(i>>1)}, v{vSEL+4*(i&1)+jj}')
                if tagf is not None and i % 4 == 0: G.vmwait(tagf(i + 3))
                r = aW + 4 * i
                c = '0' if i == 0 else f'v[{acc}:{acc+3}]'
                A(f'v_mfma_f32_16x16x32_bf16 v[{acc}:{acc+3}], a[{r}:{r+3}], v[{bset}:{bset+3}], {c}')
        if QX:
            for i in range(4):
                bset = vB + 4 * (i & 1)
                for jj in range(4):
                    A(f'v_perm_b32 v{bset+jj}, v{vXP+(i>>1)}, v{vXP+(i>>1)}, v{vSEL+4*(i&1)+jj}')
                G.vmwait(f'wq{i}')
                c = '0' if i == 0 else f'v[{vDQ}:{vDQ+3}]'
                A(f'v_mfma_f32_16x16x32_bf16 v[{vDQ}:{vDQ+3}], a[{aW+4*i}:{aW+4*i+3}], v[{bset}:{bset+3}], {c}')
            A(f's_lshl_b32 s{sT}, s{sW}, 10'); A(f'v_and_b32 v{T(0)}, 7, v{vN}'); A(f'v_lshl_add_u32 v{T(0)}, v{vG}, 5, v{T(0)}'); A(f'v_lshlrev_b32 v{T(0)}, 2, v{T(0)}')
            A(f'v_lshrrev_b32 v{T(1)}, 3, v{vN}'); A(f'v_lshl_add_u32 v{T(0)}, v{T(1)}, 9, v{T(0)}'); A(f'v_add_u32 v{T(0)}, s{sT}, v{T(0)}')
            A(f's_lshl_b32 s{sT}, s{sW}, 8'); A(f'v_add_u32 v{T(1)}, s{sT}, v{vA3}')
            for i in range(4): A(f'ds_write_b32 v{T(0)}, v{vDQ+i} offset:{L_XN + 32*i}')
            for _ in range(QX.get('n4', 0)): issue_k()
            A('s_waitcnt lgkmcnt(0)'); A('s_barrier')
            for w in range(4): A(f'ds_read_b64 v[{T(2*w+2)}:{T(2*w+3)}], v{T(1)} offset:{L_XN + 1024*w}')
            G.vmwait('E')
            A(f'v_add_u32 v{vTG}, 0x9e3779b9, v{vEW}'); A(f'v_add_u32 v{vTG+1}, 0x7f4a7c15, v{vEW+1}')
            A('s_waitcnt lgkmcnt(0)')
            A(f'v_pk_add_f32 v[{T(2)}:{T(3)}], v[{T(2)}:{T(3)}], v[{T(4)}:{T(5)}]'); A(f'v_pk_add_f32 v[{T(6)}:{T(7)}], v[{T(6)}:{T(7)}], v[{T(8)}:{T(9)}]')
            A(f'v_pk_add_f32 v[{T(2)}:{T(3)}], v[{T(2)}:{T(3)}], v[{T(6)}:{T(7)}]')
            A(f'v_mov_b32 v{T(4)}, v{vTG}'); A(f'v_mov_b32 v{T(5)}, v{vTG+1}')
            G.vmop(f'buffer_store_dwordx4 v[{T(2)}:{T(5)}], v{vQS}, s[{rWS}:{rWS+3}], 0 offen sc1', 'qst')
            G.stamp(10)
            for _ in range(QX.get('n4b', 0)): issue_k()
            Wq, Pq, polls = QX['W'], QX['P'], list(QX['polls'])
            def q_poll(lab, firm):
                if not firm: A(f's_cmp_eq_u32 s{sQ}, 1'); A(f's_cbranch_scc1 {lab}')
                G.vmop(f'buffer_load_dwordx4 v[{vQP}:{vQP+3}], v{vQL}, s[{rWS}:{rWS+3}], 0 offen sc1', 'qpoll', not firm)
                G.vmop(f'buffer_load_dwordx4 v[{vQP+4}:{vQP+7}], v{vQL}, s[{rWS}:{rWS+3}], 0 offen offset:2048 sc1', 'qpoll', not firm)
                if not firm: A(f'{lab}:')
                return len(G.vm) - 1
            def q_cmp():
                A(f'v_cmp_ne_u32 vcc, v{vTG}, v{vQP+2}'); A(f'v_cmp_ne_u32 s[{sM}:{sM+1}], v{vTG+1}, v{vQP+3}'); A(f's_or_b64 vcc, vcc, s[{sM}:{sM+1}]')
                A(f'v_cmp_ne_u32 s[{sM}:{sM+1}], v{vTG}, v{vQP+6}'); A(f's_or_b64 vcc, vcc, s[{sM}:{sM+1}]')
                A(f'v_cmp_ne_u32 s[{sM}:{sM+1}], v{vTG+1}, v{vQP+7}'); A(f's_or_b64 vcc, vcc, s[{sM}:{sM+1}]')
                if QX.get('fake'): A('s_mov_b64 vcc, 0')
            def q_check(lab, idx):
                A(f's_cmp_eq_u32 s{sQ}, 1'); A(f's_cbranch_scc1 {lab}')
                n = sum(1 for (t_, o_) in G.vm[idx + 1:] if not o_)
                A(f's_waitcnt vmcnt({n})')
                q_cmp()
                A(f's_cbranch_vccnz {lab}'); A(f's_mov_b32 s{sQ}, 1')
                A(f'{lab}:')
            pend = None; nq = 0
            while True:
                m = kiss[0]
                if pend is not None and (m >= pend[0] or m >= Pq):
                    q_check(f'L_qc{nq}', pend[1]); pend = None
                if polls and polls[0] <= m and pend is None:
                    polls.pop(0); nq += 1
                    pend = (m + QX.get('d', Wq), q_poll(f'L_qp{nq}', nq == 1))
                    continue
                if m >= Pq: break
                if m - Wq >= 0: G.vmwait_idx(G.lidx[m - Wq])
                issue_k()
            A(f's_cmp_eq_u32 s{sQ}, 1'); A('s_cbranch_scc1 L_qok')
            A(f's_mov_b32 s{sSpin}, {self.spin}')
            G.stamp(12)
            A('L_qspin:')
            A(f'buffer_load_dwordx4 v[{vQP}:{vQP+3}], v{vQL}, s[{rWS}:{rWS+3}], 0 offen sc1')
            A(f'buffer_load_dwordx4 v[{vQP+4}:{vQP+7}], v{vQL}, s[{rWS}:{rWS+3}], 0 offen offset:2048 sc1')
            A('s_waitcnt vmcnt(0)')
            q_cmp()
            A('s_cbranch_vccz L_qok')
            A(f's_sub_u32 s{sSpin}, s{sSpin}, 1'); A('s_cbranch_scc0 L_qspin')
            A('L_qok:')
            G.stamp(11)
            A(f'v_pk_add_f32 v[{vQP}:{vQP+1}], v[{vQP}:{vQP+1}], v[{vQP+4}:{vQP+5}]')
            A(f's_lshl_b32 s{sT}, s{sW}, 9'); A(f'v_add_u32 v{T(0)}, s{sT}, v{vA3}')
            A(f'ds_write_b64 v{T(0)}, v[{vQP}:{vQP+1}] offset:{L_QP}')
            for _ in range(QX.get('n5', 0)): issue_k()
        elif PRO:
            for i in range(32):
                bset = vB + 4 * (i & 1)
                for jj in range(4):
                    A(f'v_perm_b32 v{bset+jj}, v{vXP+(i>>1)}, v{vXP+(i>>1)}, v{vSEL+4*(i&1)+jj}')
                idx = max(k for k, (t_, o_) in enumerate(G.vm) if t_ == f'wq{i}')
                G.vmwait_idx(idx)
                while len(G.vm) - 1 - idx < Wp and pro_next(): pass
                r = aW + 4 * i
                c = '0' if i == 0 else f'v[{vDQ}:{vDQ+3}]'
                A(f'v_mfma_f32_16x16x32_bf16 v[{vDQ}:{vDQ+3}], a[{r}:{r+3}], v[{bset}:{bset+3}], {c}')
            for _ in range(self.kw.get('kq', 0)): issue_k()
        else:
            delta_steps(32, vDQ, lambda i: f'wq{min(i, 3) if self.nowq else i}')
        if not QX:
            for i in range(4): A(f'ds_write_b32 v{vA1}, v{vDQ+i} offset:{L_QP + 32*i}')
        if self.kw.get('wbal'):
            A(f's_lshl_b32 s{sT2}, s{sW}, 8'); A(f'v_lshlrev_b32 v246, 2, v{vL}'); A(f'v_add_u32 v246, s{sT2}, v246')
            A(f'v_and_b32 v247, 3, v{vL}'); A(f'v_lshlrev_b32 v247, 8, v247'); A('v_mov_b32 v248, %d' % ((self.kw['wbal'][2] - self.kw['wlean']) if self.kw.get('wlean') else 0)); A(f'ds_write_b32 v246, v248 offset:{L_PRG}')
            if self.kw.get('wlean'): A('v_mov_b32 v248, %d' % self.kw['wlean'])
        A('s_waitcnt lgkmcnt(0)'); A('s_barrier')
        A(f's_cmp_eq_u32 s{sW}, 0'); A('s_cbranch_scc0 L_c1')
        A(f'v_mov_b32 v{T(0)}, 1'); A(f'v_mov_b32 v{T(1)}, {OOB}'); A(f'v_cmp_eq_u32 vcc, 0, v{vL}'); A(f'v_cndmask_b32 v{T(1)}, v{T(1)}, 0, vcc')
        if not self.kw.get('noatom') and not self.kw.get('atsp'): G.vmop(f'buffer_atomic_add v{T(0)}, v{T(1)}, s[{rDBG}:{rDBG+3}], 0 offen', 'atom', True)
        A('L_c1:')
        for w in range(4): A(f'ds_read_b64 v[{T(2*w+2)}:{T(2*w+3)}], v{vA3} offset:{L_QP + 512*w}')
        if noq:
            A('L_noq:')
            A(f's_cmp_eq_u32 s{sW}, 0'); A('s_cbranch_scc0 L_c1b')
            A(f'v_mov_b32 v{T(0)}, 1'); A(f'v_mov_b32 v{T(1)}, {OOB}'); A(f'v_cmp_eq_u32 vcc, 0, v{vL}'); A(f'v_cndmask_b32 v{T(1)}, v{T(1)}, 0, vcc')
            if not self.kw.get('noatom'): A(f'buffer_atomic_add v{T(0)}, v{T(1)}, s[{rDBG}:{rDBG+3}], 0 offen')
            A('L_c1b:')
        LOOK = self.kw.get('look', RING); LOOKV = self.kw.get('lookv', LOOK)
        nxt = [self.pre]
        def issue_upto(u_hi):
            while nxt[0] <= min(u_hi, 63):
                unit_loads(nxt[0]); nxt[0] += 1
        if PRO or QX:
            while kiss[0] < self.kw.get('topup', 0): issue_k()
        else: issue_upto(LOOK - 1)
        SL = self.kw.get('slide'); SLV = self.kw.get('slidev', SL)
        nxl = [kiss[0] if (PRO or QX) else 4 * nxt[0]]
        m0_ = nxl[0]
        import math
        def lagof(m):
            f = SL if m < 128 else SLV
            eb = self.kw.get('eb')
            if eb and m >= 128 + 4 * eb[0]: f = eb[1]
            kb = self.kw.get('kb')
            if kb and m < 128 and m >= 4 * kb[0]: f = kb[1]
            rp = self.kw.get('ramp')
            if rp and m < 128:
                f = max(f, min(31, int(rp[0] - rp[1] * (m - m0_))))
            if isinstance(f, int) or float(f).is_integer(): return int(f)
            g = int(m // f)
            return int(math.floor((g + 1) * f) - math.floor(g * f))
        WB = self.kw.get('wbal')
        vPW, vPR, vPJ, vPQ, vPX, vPN = 246, 247, 248, 249, 253, 254
        sPA, sPB = 94, 95
        wb_live = [False]; wb_n = [0]
        BB = self.kw.get('wbb')
        def cond_waits(m, j):
            if XR and m >= 128 and lagof(m) == SLV and m - SLV == j:
                def cnt_(idx): return sum(1 for (t_, o_) in G.vm[idx + 1:] if not o_)
                wb_n[0] += 1; lab = f'L_xr{wb_n[0]}'
                lv = XR[1]
                assert lv[0][1] == SLV
                for k_, (th_, w_) in enumerate(lv):
                    nw = lv[k_ + 1][1] if k_ + 1 < len(lv) else SL
                    A(f's_cmp_ge_u32 s94, {th_}'); A(f's_cbranch_scc1 {lab}'); A(f's_waitcnt vmcnt({cnt_(G.lidx[m - nw])})')
                A(f'{lab}:')
                return
            if not (WB and wb_live[0] and lagof(m) == SL and m - SL == j): return
            def cnt(idx): return sum(1 for (t_, o_) in G.vm[idx + 1:] if not o_)
            i5, i4 = G.lidx[m - SL + 1], G.lidx[m - SL + 2]
            wb_n[0] += 1; lab = f'L_wb{wb_n[0]}'
            A(f's_cbranch_vccnz {lab}'); A(f's_waitcnt vmcnt({cnt(i5)})')
            if WB[1]: A(f's_cbranch_scc{1 if BB else 0} {lab}'); A(f's_waitcnt vmcnt({cnt(i4)})')
            A(f'{lab}:')
        WL = self.kw.get('wlean')
        def wb_step(j):
            if not WB: return
            if WL:
                assert self.kw.get('wpost') and WB[2] % WL == 0
                last = 128 + 4 * self.kw['eb'][0] - SL
                if j >= WB[2] and j < last:
                    if j % WL == 0:
                        A(f'ds_add_u32 v{vPW}, v{vPJ} offset:{L_PRG}'); A(f'ds_read_b32 v{vPQ}, v{vPR} offset:{L_PRG}')
                    if j % WL == 1 % WL:
                        A('s_waitcnt lgkmcnt(0)'); A(f'v_cmp_le_u32 vcc, {j - 1 + WB[0]}, v{vPQ}')
                        wb_live[0] = True
                else: wb_live[0] = False
                return
            live = j >= WB[2] and j < 128 + 4 * self.kw['eb'][0] - SL
            if live and j % 2 == 0:
                A('s_waitcnt lgkmcnt(0)')
                A(f'v_max_u32_dpp v{vPX}, v{vPQ}, v{vPQ} quad_perm:[1,0,3,2] row_mask:0xf bank_mask:0xf')
                if WB[1] and not BB: A(f'v_min_u32_dpp v{vPN}, v{vPQ}, v{vPQ} quad_perm:[1,0,3,2] row_mask:0xf bank_mask:0xf')
                A(f'v_max_u32_dpp v{vPX}, v{vPX}, v{vPX} quad_perm:[2,3,0,1] row_mask:0xf bank_mask:0xf')
                if WB[1] and not BB: A(f'v_min_u32_dpp v{vPN}, v{vPN}, v{vPN} quad_perm:[2,3,0,1] row_mask:0xf bank_mask:0xf')
                A(f'v_readfirstlane_b32 s{sPA}, v{vPX}')
                if WB[1] and not BB: A(f'v_readfirstlane_b32 s{sPB}, v{vPN}')
                if BB:
                    A(f's_cmp_ge_u32 s{sPA}, {j + WB[1]}'); A('s_cselect_b64 vcc, -1, 0'); A(f's_cmp_ge_u32 s{sPA}, {j + WB[0]}')
                else: A(f's_cmp_ge_u32 s{sPA}, {j + WB[0]}')
                if BB: pass
                elif WB[1]:
                    A(f's_cselect_b32 s{sPA}, 0, 1'); A(f's_cmp_le_u32 s{sPB}, {j - WB[1]}'); A(f's_addc_u32 s{sPA}, s{sPA}, 0')
                    A(f's_cmp_eq_u32 s{sPA}, 0'); A('s_cselect_b64 vcc, -1, 0'); A(f's_cmp_eq_u32 s{sPA}, 2')
                else: A('s_cselect_b64 vcc, -1, 0')
            wb_live[0] = live if not self.kw.get('wpost') else (live and (j % 2 == 0 or wb_live[0]))
            if j >= WB[2] - 2 and j < 128 + 4 * self.kw['eb'][0] - SL:
                A(f'v_mov_b32 v{vPJ}, {j}'); A(f'ds_write_b32 v{vPW}, v{vPJ} offset:{L_PRG}')
                if j % 2 == 1: A(f'ds_read_b32 v{vPQ}, v{vPR} offset:{L_PRG}')
        def slide_issue(j, boost=0):
            while nxl[0] <= 255 and (nxl[0] - lagof(nxl[0]) <= j or nxl[0] <= j + boost):
                m = nxl[0]; u_, q_ = m // 4, m % 4
                ap = self.kw.get('apace')
                if ap and not boost and m < 128 and m - ap > j and not (WB and lagof(m) == SL): G.vmwait_idx(G.lidx[m - ap])
                if not (boost and self.kw.get('xr')): cond_waits(m, j)
                load_one(u_, q_, u_ != slide_issue.cur); slide_issue.cur = u_
                nxl[0] += 1
        slide_issue.cur = None
        prog_k = [0]
        def prog_reduce(src):
            A(f'v_cmp_ne_u32 vcc, v{src}, v{vSNAP}'); A(f'v_cndmask_b32 v{vPT}, 0, v{src}, vcc'); A(f'v_max_u32 v{vEFF}, v{vEFF}, v{vPT}')
            A(f'v_min_u32_dpp v{vPT}, v{vEFF}, v{vEFF} row_ror:1 row_mask:0xf bank_mask:0xf')
            for r_ in (2, 4): A(f'v_min_u32_dpp v{vPT}, v{vPT}, v{vPT} row_ror:{r_} row_mask:0xf bank_mask:0xf')
            A(f'v_add_u32 v{vPT}, v{vWIN}, v{vPT}')
            A(f'ds_write_b32 v{vLIMW}, v{vPT}')
        def throttled_issue(g, u_hi):
            u_hi = min(u_hi, 63)
            if not THR: issue_upto(u_hi); return
            need_gate = u_hi >= nxt[0] and u_hi > THR
            if need_gate:
                lab = f'L_th{g}'
                A('s_waitcnt lgkmcnt(0)'); A(f'v_readfirstlane_b32 s{sLim}, v{vLIM}')
                A(f's_cmp_ge_u32 s{sLim}, {u_hi}'); A(f's_cbranch_scc1 {lab}_ok')
                A(f's_mov_b32 s{sSp2}, 4096')
                A(f'{lab}:')
                A(f's_cmp_eq_u32 s{sW}, 0'); A(f's_cbranch_scc0 {lab}_w')
                A(f'buffer_load_dword v{vPV}, v{vPRO}, s[{rWS}:{rWS+3}], 0 offen sc1'); A('s_waitcnt vmcnt(0)')
                prog_reduce(vPV)
                A(f'{lab}_w:')
                A(f'ds_read_b32 v{vLIM}, v{vLIMR}'); A('s_waitcnt lgkmcnt(0)'); A(f'v_readfirstlane_b32 s{sLim}, v{vLIM}')
                A(f's_cmp_ge_u32 s{sLim}, {u_hi}'); A(f's_cbranch_scc1 {lab}_ok')
                A(f's_sub_u32 s{sSp2}, s{sSp2}, 1'); A(f's_cbranch_scc0 {lab}')
                A(f'v_mov_b32 v{vWIN}, 0x100000')
                A(f'{lab}_ok:')
            more = nxt[0] <= 63 or True
            last_gate = 63 - 1
            do_chk = (g % CHK == 0) and nxt[0] < 63
            if do_chk:
                k = prog_k[0]
                G.vmop(f'buffer_load_dword v{vPROG[k & 1]}, v{vPRO}, s[{rWS}:{rWS+3}], 0 offen sc1', f'prog{k}')
            if g % self.kw.get('pubn', 1) == 0 and g < 63 - 2:
                A(f'v_mov_b32 v{vPV}, {g + 1}')
                G.vmop(f'buffer_store_dword v{vPV}, v{vPUBO}, s[{rWS}:{rWS+3}], 0 offen sc1', 'pub')
            issue_upto(u_hi)
            if do_chk:
                k = prog_k[0]
                if k > 0:
                    G.vmwait(f'prog{k-1}')
                    prog_reduce(vPROG[(k - 1) & 1])
                prog_k[0] += 1
            if nxt[0] <= 63: A(f'ds_read_b32 v{vLIM}, v{vLIMR}')
        A(f's_lshl_b32 s{sT}, s{sW}, 8'); A(f'v_lshlrev_b32 v{T(0)}, 2, v{vL}'); A(f'v_add_u32 v{T(0)}, s{sT}, v{T(0)}')
        A(f'v_lshrrev_b32 v{T(1)}, 3, v{vN}'); A(f'v_lshlrev_b32 v{T(1)}, 6, v{T(1)}'); A(f'v_lshl_add_u32 v{T(1)}, v{vG}, 4, v{T(1)}'); A(f'v_add_u32 v{T(1)}, s{sT}, v{T(1)}')
        A('s_waitcnt lgkmcnt(0)')
        A(f'v_pk_add_f32 v[{T(2)}:{T(3)}], v[{T(2)}:{T(3)}], v[{T(4)}:{T(5)}]'); A(f'v_pk_add_f32 v[{T(6)}:{T(7)}], v[{T(6)}:{T(7)}], v[{T(8)}:{T(9)}]')
        A(f'v_pk_add_f32 v[{T(2)}:{T(3)}], v[{T(2)}:{T(3)}], v[{T(6)}:{T(7)}]')
        A(f'v_cvt_pk_bf16_f32 v{T(2)}, v{T(2)}, v{T(3)}')
        A(f'ds_write_b32 v{T(0)}, v{T(2)} offset:{L_QB}')
        A('s_waitcnt lgkmcnt(0)')
        A(f'ds_read_b128 v[{vBQ}:{vBQ+3}], v{T(1)} offset:{L_QB}'); A(f'ds_read_b128 v[{vBQ+4}:{vBQ+7}], v{T(1)} offset:{L_QB+128}')
        A(f'v_mov_b32 v{vMX}, 0xff800000')
        for i in range(8): A(f'v_mov_b32 v{vO+i}, 0')
        A('s_waitcnt lgkmcnt(0)')
        G.stamp(1)
        if QX and QX.get('skip'):
            self.L[:] = L_keep; self.vm[:] = vm_keep; self.done = done_keep; kiss[0] = kiss_keep; kcur[0] = kcur_keep; self.lidx = lidx_keep
            nxl[0] = kiss[0]; m0_ = nxl[0]
            for i in range(8): A(f'v_mov_b32 v{vBQ+i}, 0'); A(f'v_mov_b32 v{vO+i}, 0')
            A(f'v_mov_b32 v{vMX}, 0xff800000')
            A(f's_lshl_b32 s{sT}, s{sW}, 9'); A(f'v_and_b32 v{T(0)}, 7, v{vN}'); A(f'v_lshl_add_u32 v{T(0)}, v{vG}, 5, v{T(0)}'); A(f'v_lshlrev_b32 v{T(0)}, 2, v{T(0)}')
            A(f'v_add_u32 v{vA1}, s{sT}, v{T(0)}')
            A(f'v_mov_b32 v{T(1)}, {L_DUMMY - L_OP}'); A(f'v_cmp_gt_u32 vcc, 8, v{vN}'); A(f'v_cndmask_b32 v{vOPA}, v{T(1)}, v{vA1}, vcc')
            A(f'v_lshlrev_b32 v{vA3}, 3, v{vL}')
            A(f'v_mov_b32 v{vTG}, 0'); A(f'v_mov_b32 v{vTG+1}, 0')
            G.stamp(1)
        if self.kw.get('qonly'): A('s_branch L_fin')
        if self.stop == 'q':
            return self.finish_debug([vBQ + i for i in range(8)])

        wo_loads = []
        for i in range(32):
            r = aW + 4 * i
            wo_loads.append((i // 4 * 4096, f'buffer_load_dwordx4 a[{r}:{r+3}], v{vWO}, s[{rWO}:{rWO+3}], s{sT} offen offset:{(i%4)*1024} {wnt}', f'wo{i}'))
        if W2:
            wo_loads = []
            for k in range(32):
                c_, e_ = k >> 3, ((k & 7) >> 1) + 4 * (k & 1)
                r = aW + 4 * (8 * c_ + e_)
                wo_loads.append(((32 * c_ + 8 * (e_ & 3)) * 1024, f'buffer_load_dwordx4 a[{r}:{r+3}], v{vWO}, s[{rWO}:{rWO+3}], s{sT} offen offset:{(e_>>2)*1024} {wnt}', f'wo{k}'))
        tr_items = []
        for c_ in range(4 if W2 else 0):
            b_ = aW + 32 * c_
            for ep in range(4):
                for p_ in range(ep, 4):
                    it = []
                    prs = [(ep, p_)] if ep == p_ else [(ep, p_), (p_, ep)]
                    for q_, (x_, y_) in enumerate(prs):
                        it += [f'v_accvgpr_read_b32 v{T(4*q_)}, a{b_+8*x_+y_}', f'v_accvgpr_read_b32 v{T(4*q_+1)}, a{b_+8*x_+4+y_}']
                    for q_, (x_, y_) in enumerate(prs):
                        it += [f'v_perm_b32 v{T(4*q_+2)}, v{T(4*q_+1)}, v{T(4*q_)}, s{sPK}', f'v_perm_b32 v{T(4*q_+3)}, v{T(4*q_+1)}, v{T(4*q_)}, s100']
                    for q_, (x_, y_) in enumerate(prs):
                        it += [f'v_accvgpr_write_b32 a{b_+8*y_+x_}, v{T(4*q_+2)}', f'v_accvgpr_write_b32 a{b_+8*y_+4+x_}, v{T(4*q_+3)}']
                    tr_items.append(it)
        tr_done = [0, 0]
        def emit_tr(upto):
            while tr_done[0] < len(tr_items) and tr_done[1] < upto:
                if tr_done[0] == 0: G.vmwait_idx(max(i_ for i_, (t_, o_) in enumerate(G.vm) if t_ == 'wo31'))
                for x_ in tr_items[tr_done[0]]: A(x_)
                tr_done[1] += len(tr_items[tr_done[0]]); tr_done[0] += 1
        def emit_wo(k0, k1):
            for k in range(k0, k1):
                if W2:
                    so, s, tag = wo_loads[k]
                    if k == k0 or k % 2 == 0: A(f's_mov_b32 s{sT}, {so}')
                    G.vmop(s, tag); continue
                so, s, tag = wo_loads[k]
                if self.kw.get('wotiny'): so = 0
                if k == k0 or k % 4 == 0: A(f's_mov_b32 s{sT}, {so}')
                G.vmop(s, tag)
        EX = self.kw.get('exact', False)
        def emit_role_loads(part):
            lab = f'L_rl{part}'
            if part < 16:
                if not EX: A(f's_cmp_eq_u32 s{sRole}, 1'); A(f's_cbranch_scc0 {lab}')
                s_ = part // 4; e3 = part % 4
                A(f's_mov_b32 s{sT}, {(32*s_ + 8*e3)*3584}')
                for eh in (0, 1):
                    e = e3 + 4 * eh
                    G.vmop(f'buffer_load_ushort v{vR + 8*s_ + e}, v{vWOFF1}, s[{rW1}:{rW1+3}], s{sT} offen offset:{eh*3584} {wnt}', 'w1g', not EX)
                if not EX: A(f'{lab}:')
            else:
                if not EX: A(f's_cmp_eq_u32 s{sRole}, 1'); A(f's_cbranch_scc0 {lab}a')
                for ii in range(4):
                    G.vmop(f'buffer_load_dwordx4 v[{vW2+4*ii}:{vW2+4*ii+3}], v{vWOFF2}, s[{rW2}:{rW2+3}], 0 offen offset:{ii*1024} {wnt}', 'w2l', not EX)
                G.vmop(f'buffer_load_ushort v{vB1}, v{vB1OFF}, s[{rB1}:{rB1+3}], 0 offen', 'b1l', not EX)
                if not EX:
                    A(f'{lab}a:')
                    A(f's_cmp_eq_u32 s{sRole}, 2'); A(f's_cbranch_scc0 {lab}b')
                G.vmop(f'buffer_load_ushort v{vXV}, v{vXO2 if W2 else vXOFF}, s[{rX}:{rX+3}], 0 offen', 'xv', not EX)
                G.vmop(f'buffer_load_ushort v{vB2V}, v{vB2OFF}, s[{rB2}:{rB2+3}], 0 offen', 'b2l', not EX)
                if not EX: A(f'{lab}b:')
        def kproc(t):
            if self.kw.get('novalu'): return
            D0 = vD + 8 * (t & 1); D1 = D0 + 4
            sA, sB_ = T(0), T(1)
            A(f'v_add_f32_dpp v{sA}, v{D0+1}, v{D0} row_ror:8 row_mask:0xf bank_mask:0x3')
            A(f'v_add_f32_dpp v{sB_}, v{D0+3}, v{D0+2} row_ror:8 row_mask:0xf bank_mask:0x3')
            A(f'v_add_f32_dpp v{sA}, v{D1}, v{D1+1} row_ror:8 row_mask:0xf bank_mask:0xc')
            A(f'v_add_f32_dpp v{sB_}, v{D1+2}, v{D1+3} row_ror:8 row_mask:0xf bank_mask:0xc')
            A(f'v_cvt_pk_bf16_f32 v{T(2)}, v{sA}, v{sB_}')
            A(f'v_max3_f32 v{vMX}, v{vMX}, v{sA}, v{sB_}')
            A(f'v_lshlrev_b32 v{T(3)}, 16, v{T(2)}'); A(f'v_and_b32 v{T(4)}, 0xffff0000, v{T(2)}')
            A(f'v_mul_f32 v{T(3)}, {SCALE}, v{T(3)}'); A(f'v_mul_f32 v{T(4)}, {SCALE}, v{T(4)}')
            A(f'v_cvt_pk_bf16_f32 v{vS+t}, v{T(3)}, v{T(4)}')
        if SL: slide_issue(-1)
        for t in range(32):
            u = t
            D0 = vD + 8 * (t & 1); D1 = D0 + 4
            r = (u % RING) * 16
            mf = [f'v_mfma_f32_16x16x32_bf16 v[{D0}:{D0+3}], a[{r}:{r+3}], v[{vBQ}:{vBQ+3}], 0',
                  f'v_mfma_f32_16x16x32_bf16 v[{D1}:{D1+3}], a[{r+4}:{r+7}], v[{vBQ}:{vBQ+3}], 0',
                  f'v_mfma_f32_16x16x32_bf16 v[{D0}:{D0+3}], a[{r+8}:{r+11}], v[{vBQ+4}:{vBQ+7}], v[{D0}:{D0+3}]',
                  f'v_mfma_f32_16x16x32_bf16 v[{D1}:{D1+3}], a[{r+12}:{r+15}], v[{vBQ+4}:{vBQ+7}], v[{D1}:{D1+3}]']
            if SL:
                for q in range(4):
                    j = 4 * u + q
                    G.vmwait_idx(G.lidx[j])
                    if not self.kw.get('wpost'): wb_step(j)
                    if XR and t == XR[3] and q == 3:
                        G.vmop(f'buffer_atomic_add v247, v{vATO if ATT else 246}, s[{rDBG}:{rDBG+3}], 0 offen sc0', 'xrk')
                    slide_issue(j, self.kw.get('sboost', 0) if (t == 31 and q == 3) else 0)
                    A(mf[q])
                    if self.kw.get('wpost'): wb_step(j)
            else:
                G.vmwait(f'u{u}')
                for m_ in mf: A(m_)
                throttled_issue(u, u + (self.kw.get('boost', LOOK) if t >= 32 - self.kw.get('boostn', 1) else LOOK))
            if ATT and t == 31 and not XR:
                G.vmop(f'buffer_atomic_add v{vONE}, v{vATO}, s[{rDBG}:{rDBG+3}], 0 offen', 'atom')
            if self.kw.get('atsp') and t < 16 and not ATT:
                A(f's_cmp_eq_u32 s{sAt}, {t}'); A(f's_cbranch_scc0 L_at{t}')
                G.vmop(f'buffer_atomic_add v{vONE}, v{vATO}, s[{rDBG}:{rDBG+3}], 0 offen', 'atom', True)
                A(f'L_at{t}:')
            wt0, wper = self.kw.get('wot', (2, 2))
            if not self.nowo and t >= wt0 and wper * (t - wt0) < 32: emit_wo(wper * (t - wt0), min(32, wper * (t - wt0 + 1)))
            if t in (7, 15, 23): G.stamp(16 + t // 8)
            if self.kw.get('st4'): A('s_memrealtime s[96:97]'); A('s_waitcnt lgkmcnt(0)'); A('v_writelane_b32 v252, s96, %d' % t)
            if t == 27 and not self.kw.get('nocnt') and not ATT:
                A(f'v_mov_b32 v{T(5)}, 0')
                G.vmop(f'buffer_load_dword v{vCNT}, v{T(5)}, s[{rDBG}:{rDBG+3}], 0 offen sc1', 'cnt')
            if t > 0: kproc(t - 1)
        kproc(31)
        G.stamp(2)
        self.wave_allreduce('max', vMX, T(0))
        G.rbf(vM, vMX); A(f'v_mul_f32 v{vM}, {SCALE}, v{vM}'); G.rbf(vM)
        A(f'v_mul_f32 v{vNM}, {LOG2E}, v{vM}'); A(f'v_sub_f32 v{vNM}, 0, v{vNM}')
        A(f's_mov_b32 s{sT2}, {LOG2E}')
        A(f'v_mov_b32 v{vLS}, 0')
        for t in range(0 if self.kw.get('notrans') else 32):
            a, b = T(2 * (t & 1)), T(2 * (t & 1) + 1)
            A(f'v_lshlrev_b32 v{a}, 16, v{vS+t}'); A(f'v_and_b32 v{b}, 0xffff0000, v{vS+t}')
            A(f'v_fma_f32 v{a}, v{a}, s{sT2}, v{vNM}'); A(f'v_fma_f32 v{b}, v{b}, s{sT2}, v{vNM}')
            A(f'v_exp_f32 v{a}, v{a}'); A(f'v_exp_f32 v{b}, v{b}')
            A(f'v_add_f32 v{vLS}, v{vLS}, v{a}'); A(f'v_cvt_pk_bf16_f32 v{vS+t}, v{a}, v{b}'); A(f'v_add_f32 v{vLS}, v{vLS}, v{b}')
        self.wave_allreduce('add', vLS, T(0))
        A(f'v_mul_f32 v{vLS}, 0.125, v{vLS}') if False else A(f'v_mul_f32 v{vLS}, 0x3e000000, v{vLS}')
        A(f'v_mov_b32 v{T(0)}, v{vM}'); A(f'v_mov_b32 v{T(1)}, v{vLS}')
        if not self.kw.get('nocnt'):
            G.vmop(f'buffer_store_dwordx2 v[{T(0)}:{T(1)}], v{vMLp}, s[{rWS}:{rWS+3}], 0 offen sc1', 'mlst')
            if not ATT: G.vmwait('cnt')
        else: A('s_branch L_cnt_ok')
        def cnt_addr():
            if XR:
                A(f'v_lshlrev_b32 v{T(5)}, 5, v{vL}'); A(f'v_mov_b32 v{T(6)}, {OOB}'); A(f'v_cmp_gt_u32 vcc, 4, v{vL}'); A(f'v_cndmask_b32 v{T(5)}, v{T(6)}, v{T(5)}, vcc')
            else: A(f'v_lshlrev_b32 v{T(5)}, 6, v{vL}')
        def cnt_check():
            A(f's_mov_b32 s{sSpin}, {self.spin}')
            A('L_cnt:')
            if ATT:
                A(f'v_cmp_gt_u32 vcc, 64, v{vCNT}'); A('s_and_b32 vcc_lo, vcc_lo, 15'); A('s_cbranch_scc0 L_cnt_ok')
            else:
                A(f'v_readfirstlane_b32 s{sT}, v{vCNT}')
                A(f's_cmp_ge_u32 s{sT}, 256'); A('s_cbranch_scc1 L_cnt_ok')
            A(f's_sub_u32 s{sSpin}, s{sSpin}, 1'); A('s_cbranch_scc1 L_cnt_ok')
            if ATT: cnt_addr()
            else: A(f'v_mov_b32 v{T(5)}, 0')
            A(f'buffer_load_dword v{vCNT}, v{T(5)}, s[{rDBG}:{rDBG+3}], 0 offen sc1'); A('s_waitcnt vmcnt(0)')
            A('s_branch L_cnt')
            A('L_cnt_ok:')
            if QX:
                A(f's_cmp_lt_u32 s2, 32'); A('s_cbranch_scc0 L_eup'); A(f's_cmp_eq_u32 s{sW}, 0'); A('s_cbranch_scc0 L_eup')
                A(f'v_mov_b32 v{T(0)}, {OOB}'); A(f'v_cmp_eq_u32 vcc, 0, v{vL}'); A(f'v_cndmask_b32 v{T(0)}, v{T(0)}, v{vQE}, vcc')
                G.vmop(f'buffer_store_dwordx2 v[{vTG}:{vTG+1}], v{T(0)}, s[{rWS}:{rWS+3}], 0 offen sc1', 'eup', True)
                A('L_eup:')
        if not ATT: cnt_check()
        G.stamp(3)
        dl = self.kw.get('delay')
        if dl:
            which, n = dl
            A(f's_cmp_lt_u32 s{sBH}, 8'); A('s_cbranch_scc%d L_nodelay' % (0 if which == 'slow' else 1))
            for _ in range(n): A('s_sleep 64')
            A('L_nodelay:')
        def vprep(t):
            if self.kw.get('novalu'): return
            for ab in range(2):
                bs = vB + 8 * (t & 1) + 4 * ab
                for jj in range(4):
                    A(f'v_perm_b32 v{bs+jj}, v{vS+t}, v{vS+t}, v{vSEL+4*ab+jj}')
        def ml_compute():
            A(f'v_mov_b32 v{T(10)}, v{vML0}')
            for r_ in (1, 2, 4, 8): A(f'v_max_f32_dpp v{T(10)}, v{T(10)}, v{T(10)} row_ror:{r_} row_mask:0xf bank_mask:0xf')
            A(f'v_sub_f32 v{T(11)}, v{vML0}, v{T(10)}'); A(f'v_mul_f32 v{T(11)}, {LOG2E}, v{T(11)}'); A(f'v_exp_f32 v{T(11)}, v{T(11)}')
            A(f'v_mul_f32 v{T(11)}, v{T(11)}, v{vML1}')
            for r_ in (1, 2, 4, 8): A(f'v_add_f32_dpp v{T(11)}, v{T(11)}, v{T(11)} row_ror:{r_} row_mask:0xf bank_mask:0xf')
            A(f'v_sub_f32 v{T(10)}, v{vM}, v{T(10)}'); A(f'v_mul_f32 v{T(10)}, {LOG2E}, v{T(10)}'); A(f'v_exp_f32 v{T(10)}, v{T(10)}')
            A(f'v_rcp_f32 v{T(12)}, v{T(11)}'); A(f'v_mul_f32 v{vF}, v{T(10)}, v{T(12)}')
            A(f'v_cmp_u_f32 vcc, v{T(11)}, v{T(11)}')
        def xbias(k):
            b_ = self.kw.get('xbias', (0, 0))[k]
            if b_: A(f's_cmp_eq_u32 s{sRole}, 1'); A(f's_cselect_b32 vcc_lo, {b_}, 0'); A('s_add_u32 s95, s95, vcc_lo')
        vprep(0)
        for t in range(32):
            u = 32 + t
            r = (u % RING) * 16
            bs = vB + 8 * (t & 1)
            mf = [f'v_mfma_f32_16x16x32_bf16 v[{vO}:{vO+3}], a[{r}:{r+3}], v[{bs}:{bs+3}], v[{vO}:{vO+3}]',
                  f'v_mfma_f32_16x16x32_bf16 v[{vO+4}:{vO+7}], a[{r+4}:{r+7}], v[{bs}:{bs+3}], v[{vO+4}:{vO+7}]',
                  f'v_mfma_f32_16x16x32_bf16 v[{vO}:{vO+3}], a[{r+8}:{r+11}], v[{bs+4}:{bs+7}], v[{vO}:{vO+3}]',
                  f'v_mfma_f32_16x16x32_bf16 v[{vO+4}:{vO+7}], a[{r+12}:{r+15}], v[{bs+4}:{bs+7}], v[{vO+4}:{vO+7}]']
            if SL:
                for q in range(4):
                    j = 4 * u + q
                    G.vmwait_idx(G.lidx[j])
                    if not self.kw.get('wpost'): wb_step(j)
                    slide_issue(j, self.kw.get('xmb', 0) if (XR and len(XR) > 4 and t == XR[4][0] and q == 3) else 0)
                    A(mf[q])
                    if self.kw.get('wpost'): wb_step(j)
            else:
                G.vmwait(f'u{u}')
                for m_ in mf: A(m_)
                throttled_issue(u, u + LOOKV)
            wt0, wper = self.kw.get('wot', (2, 2))
            if not self.nowo and wper * (32 + t - wt0) < 32: emit_wo(wper * (32 + t - wt0), min(32, wper * (32 + t - wt0 + 1)))
            if XR:
                tws = [XR[0]] + ([XR[4][2]] if len(XR) > 4 else [])
                rds = sorted(set(tw + d_ for tw in tws for d_ in XR[2]))
                if t - 1 in rds:
                    A('s_waitcnt lgkmcnt(0)'); A('v_readfirstlane_b32 s94, v253')
                if t == tws[0]:
                    G.vmwait('xrk'); A('v_readfirstlane_b32 s95, v247'); xbias(0); A('s_nop 0'); A('v_mov_b32 v247, s95'); A('ds_write_b32 v248, v247')
                if len(XR) > 4 and t == XR[4][0]:
                    A(f's_mov_b32 s95, {L_DUM2}'); A(f's_cmp_eq_u32 s{sW}, {XR[4][1]}'); A(f's_cselect_b32 s95, {L_LIM}, s95'); A('s_waitcnt lgkmcnt(0)'); A('v_mov_b32 v248, s95'); A('v_mov_b32 v247, 1')
                    G.vmop(f'buffer_atomic_add v247, v246, s[{rDBG}:{rDBG+3}], 0 offen sc0', 'xrk2')
                if len(XR) > 4 and t == XR[4][2]:
                    G.vmwait('xrk2'); A('v_readfirstlane_b32 s95, v247'); xbias(1); A('s_nop 0'); A('v_mov_b32 v247, s95'); A('ds_write_b32 v248, v247')
                if t in rds: A('ds_read_b32 v253, v249')
            if XR and self.diag and t == 16: A('v_writelane_b32 v251, s94, 12')
            if t < 17 and not self.norole: emit_role_loads(t)
            if t in (7, 15, 23): G.stamp(20 + t // 8)
            if self.kw.get('st4'): A('s_memrealtime s[96:97]'); A('s_waitcnt lgkmcnt(0)'); A('v_writelane_b32 v252, s96, %d' % (32 + t))
            if W2: emit_tr(16 * (t + 1) if t < 24 else 9999)
            if t == 27:
                A(f's_cmp_eq_u32 s{sRole}, 1'); A('s_cbranch_scc0 L_pk1')
                for s_ in range(4):
                    for jj in range(4):
                        A(f'v_perm_b32 v{vW1+4*s_+jj}, v{vR+8*s_+2*jj+1}, v{vR+8*s_+2*jj}, s{sPK}')
                A('L_pk1:')
            if ATT and t == ATT[0]:
                cnt_addr()
                G.vmop(f'buffer_load_dword v{vCNT}, v{T(5)}, s[{rDBG}:{rDBG+3}], 0 offen sc1', 'cnt')
            if ATT and t == ATT[1]:
                assert ATT[1] <= 17
                G.vmwait('cnt'); cnt_check()
            if t == 17 and not self.kw.get('nocnt'):
                G.vmop(f'buffer_load_dwordx2 v[{vML0}:{vML1}], v{vMLq}, s[{rWS}:{rWS+3}], 0 offen sc1', 'mlq')
            if t == 25 and not self.kw.get('nocnt'):
                G.vmwait('mlq')
                A(f's_mov_b32 s{sSpin}, {self.spin}')
                A('L_ml:')
                ml_compute()
                A('s_cbranch_vccz L_ml_ok')
                A(f's_sub_u32 s{sSpin}, s{sSpin}, 1'); A('s_cbranch_scc1 L_ml_ok')
                A(f'buffer_load_dwordx2 v[{vML0}:{vML1}], v{vMLq}, s[{rWS}:{rWS+3}], 0 offen sc1'); A('s_waitcnt vmcnt(0)')
                A('s_branch L_ml')
                A('L_ml_ok:')
            if t < 31: vprep(t + 1)
        G.stamp(4)
        if self.kw.get('quit'): A('s_branch L_fin')
        if W2:
            assert tr_done[0] == len(tr_items)
            for i in range(4): A(f'v_add_f32_dpp v{T(i)}, v{vO+4+i}, v{vO+i} row_ror:8 row_mask:0xf bank_mask:0x3')
            for i in range(4): A(f'v_add_f32_dpp v{T(i)}, v{vO+i}, v{vO+4+i} row_ror:8 row_mask:0xf bank_mask:0xc')
            for i in range(4): A(f'v_mul_f32 v{T(i)}, v{vF}, v{T(i)}')
            A(f'v_cvt_pk_bf16_f32 v{T(4)}, v{T(0)}, v{T(1)}'); A(f'v_cvt_pk_bf16_f32 v{T(5)}, v{T(2)}, v{T(3)}')
            A(f'v_cmp_lt_u32 vcc, 7, v{vN}')
            A(f'v_lshlrev_b32 v{T(6)}, 16, v{T(4)}'); A(f'v_and_b32 v{T(7)}, 0xffff0000, v{T(4)}'); A(f'v_lshlrev_b32 v{T(8)}, 16, v{T(5)}'); A(f'v_and_b32 v{T(9)}, 0xffff0000, v{T(5)}')
            for i in range(4): A(f'v_sub_f32 v{T(i)}, v{T(i)}, v{T(6+i)}')
            A(f'v_cvt_pk_bf16_f32 v{T(6)}, v{T(0)}, v{T(1)}'); A(f'v_cvt_pk_bf16_f32 v{T(7)}, v{T(2)}, v{T(3)}')
            A(f'v_cndmask_b32 v{T(4)}, v{T(4)}, v{T(6)}, vcc'); A(f'v_cndmask_b32 v{T(5)}, v{T(5)}, v{T(7)}, vcc')
            A(f'ds_write_b64 v{vOHW}, v[{T(4)}:{T(5)}] offset:{L_OH}')
            A('s_waitcnt lgkmcnt(0)'); A('s_barrier')
            for c_ in range(4): A(f'ds_read_b128 v[{vXP+4*c_}:{vXP+4*c_+3}], v{vOHR} offset:{L_OH+64*c_}')
            DJ = lambda j_: vR + 4 * j_
            order = [0, 4, 1, 5, 2, 6, 3, 7]
            fin = []
            def s_add(j_): A(f'v_add_f32 v{DJ(j_)}, v{DJ(j_)}, v{DJ(j_)+1}')
            def u_pair(j_):
                A(f'v_permlane32_swap_b32 v{DJ(j_)}, v{DJ(j_+4)}'); A(f'v_add_f32 v{DJ(j_)}, v{DJ(j_)}, v{DJ(j_+4)}')
            seq = [(0,0),(0,1),(1,0),(1,1),(2,0),(2,1),(3,0),(3,1),(0,2),(1,2),(2,2),(3,2),(0,3),(1,3),(2,3),(3,3)]
            sw32 = lambda j_: A(f'v_permlane32_swap_b32 v{DJ(j_)}, v{DJ(j_+4)}')
            uadd = lambda j_: A(f'v_add_f32 v{DJ(j_)}, v{DJ(j_)}, v{DJ(j_+4)}')
            post = {10: [lambda: s_add(0), lambda: s_add(4)], 11: [lambda: s_add(1), lambda: s_add(5)], 12: [lambda: sw32(0), lambda: sw32(1)],
                    13: [lambda: uadd(0), lambda: uadd(1)]}
            seen = set()
            for x_, (c_, p_) in enumerate(seq):
                if c_ not in seen: seen.add(c_); A(f's_waitcnt lgkmcnt({3-c_})')
                for j_ in (p_, p_ + 4):
                    cc = '0' if c_ == 0 else f'v[{DJ(j_)}:{DJ(j_)+3}]'
                    rb = aW + 32 * c_ + 4 * j_
                    A(f'v_mfma_f32_16x16x32_bf16 v[{DJ(j_)}:{DJ(j_)+3}], v[{vXP+4*c_}:{vXP+4*c_+3}], a[{rb}:{rb+3}], {cc}')
                for f_ in post.get(x_, []): f_()
            s_add(2); s_add(6); sw32(2); uadd(2)
            A(f'v_permlane16_swap_b32 v{DJ(0)}, v{DJ(2)}'); s_add(3); s_add(7); A(f'v_add_f32 v{T(0)}, v{DJ(0)}, v{DJ(2)}')
            sw32(3); uadd(3)
            A(f'v_permlane16_swap_b32 v{DJ(1)}, v{DJ(3)}'); A(f'v_add_f32 v{T(1)}, v{DJ(1)}, v{DJ(3)}')
            TSF = self.kw.get('tsf', 'sc1'); TLF = self.kw.get('tlf', 'sc1')
            if self.kw.get('c1x4'):
                A(f'v_mov_b32 v{T(2)}, v{T(0)}'); A(f'v_mov_b32 v{T(3)}, v{T(1)}')
                A(f'v_permlane16_swap_b32 v{T(0)}, v{T(2)}'); A(f'v_permlane16_swap_b32 v{T(1)}, v{T(3)}')
                G.vmop(f'buffer_store_dwordx4 v[{T(0)}:{T(3)}], v{vC1}, s[{rWS}:{rWS+3}], 0 offen {TSF}', 'c1st')
            else:
                G.vmop(f'buffer_store_dwordx2 v[{T(0)}:{T(1)}], v{vC1}, s[{rWS}:{rWS+3}], 0 offen {TSF}', 'c1st')
            G.stamp(5)
        L_keep3_ = len(self.L); vm_keep3_ = list(G.vm); n3_keep = G.done
        for i in range(4): A(f'v_add_f32_dpp v{T(i)}, v{vO+4+i}, v{vO+i} row_ror:8 row_mask:0xf bank_mask:0xf')
        for i in range(4): A(f'v_mul_f32 v{T(i)}, v{vF}, v{T(i)}')
        for i in range(4): A(f'ds_write_b32 v{vOPA}, v{T(i)} offset:{L_OP + 32*i}')
        A(f's_lshl_b32 s{sT}, s{sW}, 9'); A(f'v_lshlrev_b32 v{T(10)}, 2, v{vL}'); A(f'v_add_u32 v{T(10)}, s{sT}, v{T(10)}')
        A(f'v_lshrrev_b32 v{T(11)}, 3, v{vN}'); A(f'v_lshlrev_b32 v{T(11)}, 8, v{T(11)}'); A(f'v_lshl_add_u32 v{T(11)}, v{vG}, 6, v{T(11)}'); A(f'v_add_u32 v{T(11)}, s{sT}, v{T(11)}')
        A('s_waitcnt lgkmcnt(0)'); A('s_barrier')
        for w in range(4): A(f'ds_read_b64 v[{T(2*w+2)}:{T(2*w+3)}], v{vA3} offset:{L_OP + 512*w}')
        A('s_waitcnt lgkmcnt(0)')
        A(f'v_pk_add_f32 v[{T(2)}:{T(3)}], v[{T(2)}:{T(3)}], v[{T(4)}:{T(5)}]'); A(f'v_pk_add_f32 v[{T(6)}:{T(7)}], v[{T(6)}:{T(7)}], v[{T(8)}:{T(9)}]')
        A(f'v_pk_add_f32 v[{T(2)}:{T(3)}], v[{T(2)}:{T(3)}], v[{T(6)}:{T(7)}]')
        A(f'v_cvt_pk_bf16_f32 v{T(4)}, v{T(2)}, v{T(3)}')
        A(f'v_lshlrev_b32 v{T(5)}, 16, v{T(4)}'); A(f'v_and_b32 v{T(6)}, 0xffff0000, v{T(4)}')
        A(f'v_sub_f32 v{T(5)}, v{T(2)}, v{T(5)}'); A(f'v_sub_f32 v{T(6)}, v{T(3)}, v{T(6)}')
        A(f'ds_write_b32 v{T(10)}, v{T(4)} offset:{L_OH}')
        A(f'v_cvt_pk_bf16_f32 v{T(5)}, v{T(5)}, v{T(6)}')
        A(f'ds_write_b32 v{T(10)}, v{T(5)} offset:{L_OH+256}')
        A('s_waitcnt lgkmcnt(0)')
        for k in range(4): A(f'ds_read_b128 v[{vXP+4*k}:{vXP+4*k+3}], v{T(11)} offset:{L_OH+16*k}')
        A('s_waitcnt lgkmcnt(0)')
        delta_steps(32, vDQ, None)
        for i in range(4): A(f'v_add_f32_dpp v{T(i)}, v{vDQ+i}, v{vDQ+i} row_ror:8 row_mask:0xf bank_mask:0xf')
        TSF = self.kw.get('tsf', 'sc1'); TLF = self.kw.get('tlf', 'sc1')
        G.vmop(f'buffer_store_dwordx4 v[{T(0)}:{T(3)}], v{vC1}, s[{rWS}:{rWS+3}], 0 offen {TSF}', 'c1st')
        G.stamp(5)
        if W2: del self.L[L_keep3_:]; G.vm[:] = vm_keep3_; G.done = n3_keep
        A(f's_cmp_eq_u32 s{sRole}, 1'); A('s_cbranch_scc1 L_m1')
        A(f's_cmp_eq_u32 s{sRole}, 2'); A('s_cbranch_scc0 L_fin')
        if self.kw.get('rwarm'):
            A(f's_cmp_lt_u32 s{sW}, 2'); A('s_cbranch_scc0 L_fin')
        else:
            A(f's_cmp_eq_u32 s{sW}, 0'); A('s_cbranch_scc0 L_fin')
        def gather_multi(nl, voff, lab, sets):
            D = len(sets)
            def issue(rs):
                for k in range(nl):
                    if k % 4 == 0: A(f's_mov_b32 s{sT}, {(k//4)*4096}')
                    A(f'buffer_load_dwordx4 v[{rs+4*k}:{rs+4*k+3}], v{voff}, s[{rWS}:{rWS+3}], s{sT} offen offset:{(k%4)*1024} {TLF}')
            A(f's_mov_b32 s{sSpin}, {self.spin}')
            for rs in sets: issue(rs)
            A(f'{lab}:')
            for si, rs in enumerate(sets):
                base = nl * (D - 1)
                A(f's_waitcnt vmcnt({base + nl - 2})')
                for c in (0, 2): A(f'v_pk_add_f32 v[{T(c)}:{T(c+1)}], v[{rs+c}:{rs+c+1}], v[{rs+4+c}:{rs+4+c+1}]')
                for k in range(2, nl):
                    A(f's_waitcnt vmcnt({base + nl - 1 - k})')
                    for c in (0, 2): A(f'v_pk_add_f32 v[{T(c)}:{T(c+1)}], v[{T(c)}:{T(c+1)}], v[{rs+4*k+c}:{rs+4*k+c+1}]')
                A(f'v_cmp_u_f32 vcc, v{T(0)}, v{T(1)}'); A(f'v_cmp_u_f32 s[{sM}:{sM+1}], v{T(2)}, v{T(3)}')
                A(f's_or_b64 vcc, vcc, s[{sM}:{sM+1}]')
                A(f's_cbranch_vccz {lab}_ok')
                if lab in self.kw.get('mmask', ()):
                    MP = ['s[82:83]', 's[84:85]', 's[88:89]', 's[90:91]', 's[94:95]', 's[98:99]', 's[100:101]', 'vcc']
                    for k in range(nl): A(f'v_cmp_u_f32 {MP[k]}, v{rs+4*k}, v{rs+4*k+3}')
                    for k in range(nl):
                        if k % 4 == 0: A(f's_mov_b32 s{sT}, {(k//4)*4096}')
                        A(f's_or_b64 exec, {MP[k]}, 15')
                        A(f'buffer_load_dwordx4 v[{rs+4*k}:{rs+4*k+3}], v{voff}, s[{rWS}:{rWS+3}], s{sT} offen offset:{(k%4)*1024} {TLF}')
                    A('s_mov_b64 exec, -1')
                else: issue(rs)
            A(f's_sub_u32 s{sSpin}, s{sSpin}, 1'); A(f's_cbranch_scc0 {lab}')
            A(f'{lab}_ok:')
            gather_finish()
        def gather_finish():
            A(f'v_permlane32_swap_b32 v{T(0)}, v{T(2)}'); A(f'v_permlane32_swap_b32 v{T(1)}, v{T(3)}')
            A(f'v_add_f32 v{T(0)}, v{T(0)}, v{T(2)}'); A(f'v_add_f32 v{T(1)}, v{T(1)}, v{T(3)}')
            A(f'v_permlane16_swap_b32 v{T(0)}, v{T(1)}'); A(f'v_add_f32 v{T(0)}, v{T(0)}, v{T(1)}')
            A(f'v_add_f32_dpp v{T(0)}, v{T(0)}, v{T(0)} row_ror:4 row_mask:0xf bank_mask:0xf')
            A(f'v_add_f32_dpp v{T(0)}, v{T(0)}, v{T(0)} row_ror:8 row_mask:0xf bank_mask:0xf')
        def gather_reduce(nl, voff, lab):
            ms = self.kw.get('mset', {}).get(lab)
            if ms: return gather_multi(nl, voff, lab, [176, 32, 144, 64][:ms])
            A(f's_mov_b32 s{sSpin}, {self.spin}')
            A(f'{lab}:')
            for k in range(nl):
                if k % 4 == 0: A(f's_mov_b32 s{sT}, {(k//4)*4096}')
                A(f'buffer_load_dwordx4 v[{vR+4*k}:{vR+4*k+3}], v{voff}, s[{rWS}:{rWS+3}], s{sT} offen offset:{(k%4)*1024} {TLF}')
            k = 1
            A(f's_waitcnt vmcnt({nl-2})')
            for c in (0, 2): A(f'v_pk_add_f32 v[{T(c)}:{T(c+1)}], v[{vR+c}:{vR+c+1}], v[{vR+4+c}:{vR+4+c+1}]')
            for k in range(2, nl):
                A(f's_waitcnt vmcnt({nl-1-k})')
                for c in (0, 2): A(f'v_pk_add_f32 v[{T(c)}:{T(c+1)}], v[{T(c)}:{T(c+1)}], v[{vR+4*k+c}:{vR+4*k+c+1}]')
            A(f'v_cmp_u_f32 vcc, v{T(0)}, v{T(1)}'); A(f'v_cmp_u_f32 s[{sM}:{sM+1}], v{T(2)}, v{T(3)}')
            A(f's_or_b64 vcc, vcc, s[{sM}:{sM+1}]')
            A(f's_cbranch_vccz {lab}_ok')
            A(f's_sub_u32 s{sSpin}, s{sSpin}, 1'); A(f's_cbranch_scc0 {lab}')
            A(f'{lab}_ok:')
            A(f'v_permlane32_swap_b32 v{T(0)}, v{T(2)}'); A(f'v_permlane32_swap_b32 v{T(1)}, v{T(3)}')
            A(f'v_add_f32 v{T(0)}, v{T(0)}, v{T(2)}'); A(f'v_add_f32 v{T(1)}, v{T(1)}, v{T(3)}')
            A(f'v_permlane16_swap_b32 v{T(0)}, v{T(1)}'); A(f'v_add_f32 v{T(0)}, v{T(0)}, v{T(1)}')
            A(f'v_add_f32_dpp v{T(0)}, v{T(0)}, v{T(0)} row_ror:4 row_mask:0xf bank_mask:0xf')
            A(f'v_add_f32_dpp v{T(0)}, v{T(0)}, v{T(0)} row_ror:8 row_mask:0xf bank_mask:0xf')
        A(f'v_lshlrev_b32 v{vXV}, 16, v{vXV}'); A(f'v_lshlrev_b32 v{vB2V}, 16, v{vB2V}')
        gather_reduce(8, vHOFF, 'L_g1')
        G.stamp(6)
        if self.diag and self.kw.get('stspin'): A(f'v_writelane_b32 v251, s{sSpin}, 23')
        G.rbf(T(0)); A(f'v_add_f32 v{T(0)}, v{vXV}, v{T(0)}'); G.rbf(vHV, T(0))
        A(f'buffer_store_dword v{vHV}, v{vRS}, s[{rWS}:{rWS+3}], 0 offen {TSF}')
        for r_ in range(1, NRH):
            A(f's_mov_b32 s{sT}, {r_*16384}')
            A(f'buffer_store_dword v{vHV}, v{vRS}, s[{rWS}:{rWS+3}], s{sT} offen {TSF}')
        G.stamp(7)
        if W2:
            A(f'v_and_b32 v{T(4)}, 3, v{vN}'); A(f'v_lshl_add_u32 v{T(4)}, v{T(4)}, 4, v{vG}'); A(f'v_lshlrev_b32 v{T(4)}, 2, v{T(4)}')
            A(f'ds_bpermute_b32 v{vHV}, v{T(4)}, v{vHV}'); A('s_waitcnt lgkmcnt(0)')
        if self.kw.get('gate2'):
            gk = self.kw['gate2'] - 1
            A(f's_mov_b32 s{sSpin}, {self.spin}'); A(f's_mov_b32 s{sT}, {(gk//4)*4096}')
            GD = self.kw.get('g2set', 0)
            if GD:
                assert self.kw.get('gany') and max(self.kw.get('mset', {}).values()) <= 3
                gs = [64 + 4 * i for i in range(GD)]
                ldg = lambda r_: A(f'buffer_load_dwordx4 v[{r_}:{r_+3}], v{vC2OFF}, s[{rWS}:{rWS+3}], s{sT} offen offset:{(gk%4)*1024} {TLF}')
                for r_ in gs: ldg(r_)
                A('L_gt2:')
                for r_ in gs:
                    A(f's_waitcnt vmcnt({GD-1})')
                    A(f'v_cmp_u_f32 vcc, v{r_}, v{r_}'); A('s_cmp_eq_u64 vcc, -1'); A('s_cbranch_scc0 L_gt2_ok')
                    ldg(r_)
                A(f's_sub_u32 s{sSpin}, s{sSpin}, 1'); A('s_cbranch_scc0 L_gt2')
                A('L_gt2_ok:')
            if not GD: A('L_gt2:')

            if not GD:
                A(f'buffer_load_dwordx4 v[{vR}:{vR+3}], v{vC2OFF}, s[{rWS}:{rWS+3}], s{sT} offen offset:{(gk%4)*1024} {TLF}')
                A('s_waitcnt vmcnt(0)')
                if self.kw.get('gany'):
                    A(f'v_cmp_u_f32 vcc, v{vR}, v{vR}'); A('s_cmp_eq_u64 vcc, -1'); A('s_cbranch_scc0 L_gt2_ok')
                else:
                    A(f'v_cmp_u_f32 vcc, v{vR}, v{vR+1}'); A(f'v_cmp_u_f32 s[{sM}:{sM+1}], v{vR+2}, v{vR+3}'); A(f's_or_b64 vcc, vcc, s[{sM}:{sM+1}]')
                    A('s_cbranch_vccz L_gt2_ok')
                A(f's_sub_u32 s{sSpin}, s{sSpin}, 1'); A('s_cbranch_scc0 L_gt2')
                A('L_gt2_ok:')
        gather_reduce(4 if self.kw.get('fakec2') else 7, vC2OFF, 'L_g2')
        G.stamp(8)
        if self.diag and self.kw.get('stspin'): A(f'v_writelane_b32 v251, s{sSpin}, 19')
        G.rbf(T(0)); A(f'v_add_f32 v{T(0)}, v{vB2V}, v{T(0)}'); G.rbf(T(0)); A(f'v_add_f32 v{T(0)}, v{vHV}, v{T(0)}')
        A(f'v_cvt_pk_bf16_f32 v{T(0)}, v{T(0)}, v{T(0)}')
        A(f'buffer_store_short v{T(0)}, v{vOUTA}, s[{rOUT}:{rOUT+3}], 0 offen')
        A('s_branch L_fin')
        A('L_m1:')
        A(f's_lshl_b32 s{sT}, s{sW}, 9'); A(f'v_lshrrev_b32 v{T(0)}, 5, v{vL}'); A(f'v_lshlrev_b32 v{T(0)}, 8, v{T(0)}'); A(f'v_and_b32 v{T(1)}, 31, v{vL}')
        A(f'v_lshl_add_u32 v{T(0)}, v{T(1)}, 3, v{T(0)}'); A(f'v_add_u32 v{vA1}, s{sT}, v{T(0)}')
        A(f'v_and_b32 v{T(0)}, 1, v{vN}'); A(f'v_lshlrev_b32 v{T(0)}, 8, v{T(0)}'); A(f'v_lshl_add_u32 v{T(0)}, v{vG}, 4, v{T(0)}'); A(f'v_add_u32 v{vA2}, s{sT}, v{T(0)}')
        A(f's_lshl_b32 s{sT}, s{sW}, 7'); A(f'v_lshlrev_b32 v{T(0)}, 2, v{vN}'); A(f'v_add_u32 v{vA3}, s{sT}, v{T(0)}')
        A(f'v_lshrrev_b32 v{T(0)}, 3, v{vN}'); A(f'v_lshlrev_b32 v{T(0)}, 6, v{T(0)}'); A(f'v_and_b32 v{T(1)}, 3, v{vN}'); A(f'v_lshl_add_u32 v{T(1)}, v{vG}, 2, v{T(1)}')
        A(f'v_lshl_add_u32 v{vA4}, v{T(1)}, 2, v{T(0)}')
        A(f'v_lshlrev_b32 v{vB1}, 16, v{vB1}')
        ML_ = self.kw.get('mlin')
        if ML_:
            assert self.kw.get('mq') and not THR
            A(f'v_mov_b32 v{T(1)}, 0x3f803f80'); A(f'v_lshlrev_b32 v{T(0)}, 2, v{vL}'); A(f'ds_write_b32 v{T(0)}, v{T(1)} offset:{L_ONE}')
            A(f'v_and_b32 v{T(0)}, 3, v{vN}'); A(f'v_cmp_eq_u32 vcc, 2, v{T(0)}'); A(f'v_mov_b32 v{T(1)}, {L_ONE - L_YB}'); A(f'v_cndmask_b32 v{vA2}, v{vA2}, v{T(1)}, vcc')
            A(f's_lshl_b32 s{sT}, s{sW}, 8'); A(f'v_and_b32 v{T(0)}, 1, v{vG}'); A(f'v_cmp_eq_u32 s[{sM}:{sM+1}], 1, v{T(0)}')
            A(f'v_lshlrev_b32 v{T(0)}, 7, v{T(0)}'); A(f'v_lshl_add_u32 v{T(0)}, v{vN}, 3, v{T(0)}'); A(f'v_add_u32 v{vA3}, s{sT}, v{T(0)}')
            A(f'v_lshrrev_b32 v{T(0)}, 3, v{vN}'); A(f'v_lshlrev_b32 v{vB2OFF}, 8, v{T(0)}')
            A(f'v_lshlrev_b32 v{T(0)}, 7, v{T(0)}'); A(f'v_and_b32 v{T(1)}, 3, v{vN}'); A(f'v_lshl_add_u32 v{T(1)}, v{vG}, 2, v{T(1)}')
            A(f'v_lshl_add_u32 v{vA4}, v{T(1)}, 3, v{T(0)}')
        MW = self.kw.get('mwarm')
        if MW:
            A(f'v_mov_b32 v{vXOFF}, v{vHOFF}'); A(f'v_mov_b32 v{vC2OFF}, v{vRS}')
            A(f'v_mov_b32 v{vHOFF}, {OOB}'); A(f'v_mov_b32 v{vRS}, {OOB}'); A(f's_mov_b32 s{sU}, 0')
            A('L_m1p:')
        A(f's_mov_b32 s{sSpin}, {self.spin}')
        H = [vR + i for i in range(16)]
        MQ = self.kw.get('mq')
        if MQ:
            assert not THR
            A(f's_lshl_b32 s{sLim}, s{sW}, 9')
            A(f'v_lshlrev_b32 v{vWOFF2}, 3, v{vL}'); A(f'v_add_u32 v{vWOFF1}, s{sLim}, v{vWOFF2}')
            if MW: L_ = self.L; lab_ = L_.index('L_m1p:'); ins_ = L_[-3:]; del L_[-3:]; L_[lab_:lab_] = ins_
            if self.kw.get('gate3'):
                A(f's_lshr_b32 s{sT}, s2, {self.kw["gate3"] - 1}'); A(f's_and_b32 s{sT}, s{sT}, 7')
                A(f'v_bfe_u32 v{T(0)}, v{vL}, 2, 3'); A(f'v_cmp_eq_u32 vcc, s{sT}, v{T(0)}')
                A(f'v_mov_b32 v{T(1)}, {OOB}'); A(f'v_cndmask_b32 v{vB2OFF}, v{T(1)}, v{vHOFF}, vcc')
                A('L_gt3:')
                A(f'buffer_load_dwordx4 v[{vR}:{vR+3}], v{vB2OFF}, s[{rWS}:{rWS+3}], s{sLim} offen {TLF}')
                A('s_waitcnt vmcnt(0)')
                A(f'v_add_f32 v{T(0)}, v{H[0]}, v{H[1]}'); A(f'v_add_f32 v{T(1)}, v{H[2]}, v{H[3]}'); A(f'v_add_f32 v{T(0)}, v{T(0)}, v{T(1)}')
                A(f'v_cmp_u_f32 vcc, v{T(0)}, v{T(0)}')
                A('s_cbranch_vccz L_gt3_ok')
                A(f's_sub_u32 s{sSpin}, s{sSpin}, 1'); A('s_cbranch_scc0 L_gt3')
                A(f's_mov_b32 s{sSpin}, 0')
                A('L_gt3_ok:')
            D3 = self.kw.get('m1set', 0)
            if D3:
                sets3 = [vR + 4 + 4 * i for i in range(D3)]
                ld3 = lambda r_: A(f'buffer_load_dwordx4 v[{r_}:{r_+3}], v{vHOFF}, s[{rWS}:{rWS+3}], s{sLim} offen {TLF}')
                for r_ in sets3: ld3(r_)
                A('L_g3:')
                for si, r_ in enumerate(sets3):
                    A(f's_waitcnt vmcnt({D3-1})')
                    A(f'v_add_f32 v{T(0)}, v{r_}, v{r_+1}'); A(f'v_add_f32 v{T(1)}, v{r_+2}, v{r_+3}'); A(f'v_add_f32 v{T(0)}, v{T(0)}, v{T(1)}')
                    A(f'v_mov_b64 v[{H[0]}:{H[1]}], v[{r_}:{r_+1}]'); A(f'v_cmp_u_f32 vcc, v{T(0)}, v{T(0)}'); A(f'v_mov_b64 v[{H[2]}:{H[3]}], v[{r_+2}:{r_+3}]')
                    A('s_cbranch_vccz L_g3_ok')
                    ld3(r_)
                A(f's_sub_u32 s{sSpin}, s{sSpin}, 1'); A('s_cbranch_scc0 L_g3')
            else:
                A('L_g3:')
                A(f'buffer_load_dwordx4 v[{vR}:{vR+3}], v{vHOFF}, s[{rWS}:{rWS+3}], s{sLim} offen {TLF}')
                A('s_waitcnt vmcnt(0)')
                A(f'v_add_f32 v{T(0)}, v{H[0]}, v{H[1]}'); A(f'v_add_f32 v{T(1)}, v{H[2]}, v{H[3]}'); A(f'v_add_f32 v{T(0)}, v{T(0)}, v{T(1)}')
                A(f'v_cmp_u_f32 vcc, v{T(0)}, v{T(0)}')
                A('s_cbranch_vccz L_g3_ok')
                A(f's_sub_u32 s{sSpin}, s{sSpin}, 1'); A('s_cbranch_scc0 L_g3')
            A('L_g3_ok:')
            G.stamp(6)
            if self.diag and self.kw.get('stspin'): A(f'v_writelane_b32 v251, s{sSpin}, 19')
            if ML_:
                assert not self.kw.get('gate3')
                A(f'v_cvt_pk_bf16_f32 v{T(14)}, v{H[0]}, v{H[1]}'); A(f'v_cvt_pk_bf16_f32 v{T(15)}, v{H[2]}, v{H[3]}')
                A(f'ds_write_b64 v{vA1}, v[{T(14)}:{T(15)}] offset:{L_YB}')
                for s_ in range(4): A(f'ds_read_b128 v[{vXP+4*s_}:{vXP+4*s_+3}], v{vA2} offset:{L_YB+64*s_}')
                self.half_allreduce('add', T(0), T(1))
                A(f'v_mul_f32 v{T(2)}, 0x3c000000, v{T(0)}')
                A(f'v_sub_f32 v{T(4)}, v{H[0]}, v{T(2)}'); A(f'v_sub_f32 v{T(5)}, v{H[1]}, v{T(2)}'); A(f'v_sub_f32 v{T(6)}, v{H[2]}, v{T(2)}'); A(f'v_sub_f32 v{T(7)}, v{H[3]}, v{T(2)}')
                A(f'v_mul_f32 v{T(3)}, v{T(4)}, v{T(4)}'); A(f'v_mul_f32 v{T(1)}, v{T(5)}, v{T(5)}')
                A(f'v_fmac_f32 v{T(3)}, v{T(6)}, v{T(6)}'); A(f'v_fmac_f32 v{T(1)}, v{T(7)}, v{T(7)}')
                A(f'v_add_f32 v{T(3)}, v{T(3)}, v{T(1)}')
                for s_ in range(4):
                    A(f's_waitcnt lgkmcnt({3-s_})')
                    c = '0' if s_ == 0 else f'v[{vDQ}:{vDQ+3}]'
                    A(f'v_mfma_f32_16x16x32_bf16 v[{vDQ}:{vDQ+3}], v[{vXP+4*s_}:{vXP+4*s_+3}], v[{vW1+4*s_}:{vW1+4*s_+3}], {c}')
                    if self.kw.get('mtrim'): A(f'v_add_f32_dpp v{T(3)}, v{T(3)}, v{T(3)} row_ror:{1 << s_} row_mask:0xf bank_mask:0xf')
                if self.kw.get('mtrim'):
                    A(f'v_mov_b32 v{T(1)}, v{T(3)}'); A(f'v_permlane16_swap_b32 v{T(3)}, v{T(1)}'); A(f'v_add_f32 v{T(3)}, v{T(3)}, v{T(1)}')
                else: self.half_allreduce('add', T(3), T(1))
                A(f'ds_write_b64 v{vWOFF1}, v[{T(2)}:{T(3)}] offset:{L_QP}')
                A(f'v_cndmask_b32 v{T(4)}, v{vDQ}, v{vDQ+1}, s[{sM}:{sM+1}]'); A(f'v_mov_b32 v{T(5)}, v{vDQ+2}')
                A(f'ds_write_b64 v{vA3}, v[{T(4)}:{T(5)}] offset:{L_TP3}')
                A('s_waitcnt lgkmcnt(0)'); A('s_barrier')
                for w in range(4): A(f'ds_read_b64 v[{T(4+2*w)}:{T(5+2*w)}], v{vB2OFF} offset:{L_QP+512*w}')
                for w in range(4): A(f'ds_read_b64 v[{vXP+2*w}:{vXP+2*w+1}], v{vA4} offset:{L_TP3+256*w}')
                A('s_waitcnt lgkmcnt(6)')
                A(f'v_pk_add_f32 v[{T(12)}:{T(13)}], v[{T(4)}:{T(5)}], v[{T(6)}:{T(7)}]')
                A('s_waitcnt lgkmcnt(4)')
                A(f'v_pk_add_f32 v[{T(14)}:{T(15)}], v[{T(8)}:{T(9)}], v[{T(10)}:{T(11)}]')
                A(f'v_pk_add_f32 v[{T(12)}:{T(13)}], v[{T(12)}:{T(13)}], v[{T(14)}:{T(15)}]')
                A(f'v_mul_f32 v{T(0)}, 0x3e800000, v{T(12)}')
                for w in range(4): A(f'v_sub_f32 v{T(4+2*w)}, v{T(4+2*w)}, v{T(0)}')
                A(f'v_mul_f32 v{T(1)}, v{T(4)}, v{T(4)}'); A(f'v_mul_f32 v{T(2)}, v{T(6)}, v{T(6)}')
                A(f'v_fmac_f32 v{T(1)}, v{T(8)}, v{T(8)}'); A(f'v_fmac_f32 v{T(2)}, v{T(10)}, v{T(10)}')
                A(f'v_add_f32 v{T(1)}, v{T(1)}, v{T(2)}')
                A(f'v_mov_b32 v{T(3)}, v{T(13)}'); A(f'v_fmac_f32 v{T(3)}, 0x43000000, v{T(1)}')
                A('s_waitcnt lgkmcnt(0)')
                A(f'v_pk_add_f32 v[{vXP}:{vXP+1}], v[{vXP}:{vXP+1}], v[{vXP+2}:{vXP+3}]'); A(f'v_pk_add_f32 v[{vXP+4}:{vXP+5}], v[{vXP+4}:{vXP+5}], v[{vXP+6}:{vXP+7}]')
                A(f'v_pk_add_f32 v[{vXP}:{vXP+1}], v[{vXP}:{vXP+1}], v[{vXP+4}:{vXP+5}]')
                self.ln_finish(T(0), T(3), T(8), T(9), 1.0 / 512)
                A(f'v_fma_f32 v{T(0)}, -v{T(8)}, v{vXP+1}, v{vXP}'); A(f'v_mul_f32 v{T(0)}, v{T(0)}, v{T(9)}')
            if not ML_: self.half_allreduce('add', T(0), T(1))
            if not ML_: A(f'v_mul_f32 v{T(2)}, 0x3c000000, v{T(0)}')
            L_keep_ = len(self.L)
            A(f'v_sub_f32 v{T(4)}, v{H[0]}, v{T(2)}'); A(f'v_sub_f32 v{T(5)}, v{H[1]}, v{T(2)}'); A(f'v_sub_f32 v{T(6)}, v{H[2]}, v{T(2)}'); A(f'v_sub_f32 v{T(7)}, v{H[3]}, v{T(2)}')
            A(f'v_mul_f32 v{T(3)}, v{T(4)}, v{T(4)}'); A(f'v_mul_f32 v{T(1)}, v{T(5)}, v{T(5)}')
            A(f'v_fmac_f32 v{T(3)}, v{T(6)}, v{T(6)}'); A(f'v_fmac_f32 v{T(1)}, v{T(7)}, v{T(7)}')
            A(f'v_add_f32 v{T(3)}, v{T(3)}, v{T(1)}')
            self.half_allreduce('add', T(3), T(1))
            A(f'ds_write_b64 v{vWOFF1}, v[{T(2)}:{T(3)}] offset:{L_QP}')
            A('s_waitcnt lgkmcnt(0)'); A('s_barrier')
            for w in range(4): A(f'ds_read_b64 v[{T(4+2*w)}:{T(5+2*w)}], v{vWOFF2} offset:{L_QP+512*w}')
            A('s_waitcnt lgkmcnt(2)')
            A(f'v_pk_add_f32 v[{T(12)}:{T(13)}], v[{T(4)}:{T(5)}], v[{T(6)}:{T(7)}]')
            A('s_waitcnt lgkmcnt(0)')
            A(f'v_pk_add_f32 v[{T(14)}:{T(15)}], v[{T(8)}:{T(9)}], v[{T(10)}:{T(11)}]')
            A(f'v_pk_add_f32 v[{T(12)}:{T(13)}], v[{T(12)}:{T(13)}], v[{T(14)}:{T(15)}]')
            A(f'v_mul_f32 v{T(0)}, 0x3e800000, v{T(12)}')
            for w in range(4): A(f'v_sub_f32 v{T(4+2*w)}, v{T(4+2*w)}, v{T(0)}')
            A(f'v_mul_f32 v{T(1)}, v{T(4)}, v{T(4)}'); A(f'v_mul_f32 v{T(2)}, v{T(6)}, v{T(6)}')
            A(f'v_fmac_f32 v{T(1)}, v{T(8)}, v{T(8)}'); A(f'v_fmac_f32 v{T(2)}, v{T(10)}, v{T(10)}')
            A(f'v_add_f32 v{T(1)}, v{T(1)}, v{T(2)}')
            A(f'v_mov_b32 v{T(3)}, v{T(13)}'); A(f'v_fmac_f32 v{T(3)}, 0x43000000, v{T(1)}')
            if ML_: del self.L[L_keep_:]
        else:
            A('L_g3:')
            for kk in range(4):
                A(f's_add_u32 s{sT}, s{sW}, {kk}'); A(f's_and_b32 s{sT}, s{sT}, 3'); A(f's_lshl_b32 s{sT}, s{sT}, 9')
                A(f'buffer_load_dwordx4 v[{vR+4*kk}:{vR+4*kk+3}], v{vHOFF}, s[{rWS}:{rWS+3}], s{sT} offen {TLF}')
            A('s_waitcnt vmcnt(0)')
            A(f'v_pk_add_f32 v[{T(0)}:{T(1)}], v[{H[0]}:{H[1]}], v[{H[2]}:{H[3]}]')
            for k in range(2, 8): A(f'v_pk_add_f32 v[{T(0)}:{T(1)}], v[{T(0)}:{T(1)}], v[{H[2*k]}:{H[2*k+1]}]')
            A(f'v_add_f32 v{T(0)}, v{T(0)}, v{T(1)}')
            A(f'v_cmp_u_f32 vcc, v{T(0)}, v{T(0)}')
            A('s_cbranch_vccz L_g3_ok')
            A(f's_sub_u32 s{sSpin}, s{sSpin}, 1'); A('s_cbranch_scc0 L_g3')
            A('L_g3_ok:')
            G.stamp(6)
            self.half_allreduce('add', T(0), T(1))
            A(f'v_mul_f32 v{T(0)}, 0x3b000000, v{T(0)}')
            A(f'v_sub_f32 v{T(2)}, v{H[0]}, v{T(0)}'); A(f'v_mul_f32 v{T(3)}, v{T(2)}, v{T(2)}')
            A(f'v_sub_f32 v{T(4)}, v{H[1]}, v{T(0)}'); A(f'v_mul_f32 v{T(5)}, v{T(4)}, v{T(4)}')
            for k in range(2, 16, 2):
                A(f'v_sub_f32 v{T(2)}, v{H[k]}, v{T(0)}'); A(f'v_sub_f32 v{T(4)}, v{H[k+1]}, v{T(0)}')
                A(f'v_fmac_f32 v{T(3)}, v{T(2)}, v{T(2)}'); A(f'v_fmac_f32 v{T(5)}, v{T(4)}, v{T(4)}')
            A(f'v_add_f32 v{T(3)}, v{T(3)}, v{T(5)}')
            self.half_allreduce('add', T(3), T(1))
        L_keep2_ = len(self.L)
        self.ln_finish(T(0), T(3), T(8), T(9), 1.0 / 512)
        Y = H[0:4]
        self.ln_apply(Y, T(8), T(9))
        A(f'v_cvt_pk_bf16_f32 v{T(4)}, v{Y[0]}, v{Y[1]}'); A(f'v_cvt_pk_bf16_f32 v{T(5)}, v{Y[2]}, v{Y[3]}')
        A(f'ds_write_b64 v{vA1}, v[{T(4)}:{T(5)}] offset:{L_YB}')
        A('s_waitcnt lgkmcnt(0)')
        for s_ in range(4): A(f'ds_read_b128 v[{vXP+4*s_}:{vXP+4*s_+3}], v{vA2} offset:{L_YB+64*s_}')
        for s_ in range(4):
            A(f's_waitcnt lgkmcnt({3-s_})')
            c = '0' if s_ == 0 else f'v[{vDQ}:{vDQ+3}]'
            A(f'v_mfma_f32_16x16x32_bf16 v[{vDQ}:{vDQ+3}], v[{vXP+4*s_}:{vXP+4*s_+3}], v[{vW1+4*s_}:{vW1+4*s_+3}], {c}')
        A(f'ds_write_b32 v{vA3}, v{vDQ} offset:{L_TP}'); A(f'ds_write_b32 v{vA3}, v{vDQ+1} offset:{L_TP+64}')
        A('s_waitcnt lgkmcnt(0)'); A('s_barrier')
        for w in range(4): A(f'ds_read_b32 v{T(w)}, v{vA4} offset:{L_TP+128*w}')
        A('s_waitcnt lgkmcnt(0)')
        A(f'v_add_f32 v{T(0)}, v{T(0)}, v{T(1)}'); A(f'v_add_f32 v{T(2)}, v{T(2)}, v{T(3)}'); A(f'v_add_f32 v{T(0)}, v{T(0)}, v{T(2)}')
        if ML_: del self.L[L_keep2_:]
        G.rbf(T(0)); A(f'v_add_f32 v{T(0)}, v{vB1}, v{T(0)}'); G.rbf(T(0))
        import struct, math
        f2u = lambda f: struct.unpack('<I', struct.pack('<f', f))[0]
        K0 = -2 * math.log2(math.e) * math.sqrt(2 / math.pi); K1 = K0 * 0.044715
        A(f'v_mul_f32 v{T(1)}, v{T(0)}, v{T(0)}'); A(f'v_mov_b32 v{T(2)}, {hex(f2u(K0))}'); A(f'v_fmac_f32 v{T(2)}, {hex(f2u(K1))}, v{T(1)}')
        A(f'v_mul_f32 v{T(1)}, v{T(0)}, v{T(2)}'); A(f'v_exp_f32 v{T(1)}, v{T(1)}'); A(f'v_add_f32 v{T(1)}, 1.0, v{T(1)}'); A(f'v_rcp_f32 v{T(1)}, v{T(1)}')
        A(f'v_mul_f32 v{T(0)}, v{T(0)}, v{T(1)}'); A(f'v_cvt_pk_bf16_f32 v{vGA}, v{T(0)}, v{T(0)}')
        def w2and(ii):
            for jj in range(4):
                A(f'v_and_b32_dpp v{vB+4*ii+jj}, v{vGA}, v{vMASK+jj} quad_perm:[{ii},{ii},{ii},{ii}] row_mask:0xf bank_mask:0xf')
        def w2mf(ii):
            bs = vB + 4 * ii
            c = '0' if ii == 0 else f'v[{vDQ}:{vDQ+3}]'
            A(f'v_mfma_f32_16x16x32_bf16 v[{vDQ}:{vDQ+3}], v[{vW2+4*ii}:{vW2+4*ii+3}], v[{bs}:{bs+3}], {c}')
        if self.kw.get('mtrim'):
            w2and(0); w2and(1); w2mf(0); w2and(2); w2mf(1); w2and(3); w2mf(2); w2mf(3)
        else:
            for ii in range(4): w2and(ii)
            for ii in range(4): w2mf(ii)
        A(f'buffer_store_dwordx4 v[{vDQ}:{vDQ+3}], v{vRS}, s[{rWS}:{rWS+3}], 0 offen {TSF}')
        G.stamp(7)
        if MW:
            A(f's_cmp_eq_u32 s{sU}, 0'); A('s_cbranch_scc0 L_fin')
            A(f's_mov_b32 s{sU}, 1'); A(f'v_mov_b32 v{vHOFF}, v{vXOFF}'); A(f'v_mov_b32 v{vRS}, v{vC2OFF}')
            A('s_branch L_m1p')
        A('L_fin:')
        if self.diag:
            A(f's_lshl_b32 s{sT}, s2, 2'); A(f's_add_u32 s{sT}, s{sT}, s{sW}'); A(f's_lshl_b32 s{sT}, s{sT}, 7'); A(f's_add_u32 s{sT}, s{sT}, {WS_DIAG}')
            A('s_memrealtime s[96:97]'); A('s_getreg_b32 s98, hwreg(HW_REG_XCC_ID)'); A('s_waitcnt lgkmcnt(0)')
            A('v_writelane_b32 v251, s96, 14'); A('v_writelane_b32 v251, s98, 15')
            A(f'v_lshlrev_b32 v{T(0)}, 2, v{vL}'); A(f'v_add_u32 v{T(0)}, s{sT}, v{T(0)}')
            A(f'v_mov_b32 v{T(1)}, {OOB}'); A(f'v_cmp_gt_u32 vcc, 32, v{vL}'); A(f'v_cndmask_b32 v{T(0)}, v{T(1)}, v{T(0)}, vcc')
            A(f'buffer_store_dword v251, v{T(0)}, s[{rWS}:{rWS+3}], 0 offen')
            if self.kw.get('st3') or self.kw.get('st4'):
                A(f's_lshl_b32 s{sT}, s2, 2'); A(f's_add_u32 s{sT}, s{sT}, s{sW}'); A(f's_lshl_b32 s{sT}, s{sT}, 8'); A(f's_add_u32 s{sT}, s{sT}, {WS_DIAG + 0x20000}')
                A(f'v_lshlrev_b32 v{T(0)}, 2, v{vL}'); A(f'v_add_u32 v{T(0)}, s{sT}, v{T(0)}')
                A(f'buffer_store_dword v252, v{T(0)}, s[{rWS}:{rWS+3}], 0 offen')
        A('L_end:')
        A('s_endpgm')
        return self.wrap()

    def ln_finish(self, mean, ss, om, orstd, inv_n):
        A = self.A
        import struct
        f2u = lambda f: struct.unpack('<I', struct.pack('<f', f))[0]
        A(f'v_mul_f32 v{ss}, {hex(f2u(inv_n))}, v{ss}'); self.rbf(ss)
        A(f'v_add_f32 v{ss}, {hex(f2u(1e-5))}, v{ss}'); self.rbf(ss)
        A(f'v_sqrt_f32 v{ss}, v{ss}'); self.rbf(ss)
        A(f'v_rcp_f32 v{orstd}, v{ss}')
        self.rbf(om, mean)
    def ln_stats(self, X, om, orstd, t0, t1, inv_n, red):
        A = self.A
        import struct
        f2u = lambda f: struct.unpack('<I', struct.pack('<f', f))[0]
        A(f'v_add_f32 v{t0}, v{X[0]}, v{X[1]}')
        for x in X[2:]: A(f'v_add_f32 v{t0}, v{t0}, v{x}')
        red('add', t0, t1)
        A(f'v_mul_f32 v{t0}, {hex(f2u(inv_n))}, v{t0}')
        A(f'v_sub_f32 v{t1}, v{X[0]}, v{t0}'); A(f'v_mul_f32 v{orstd}, v{t1}, v{t1}')
        for x in X[1:]:
            A(f'v_sub_f32 v{t1}, v{x}, v{t0}'); A(f'v_fmac_f32 v{orstd}, v{t1}, v{t1}')
        red('add', orstd, t1)
        A(f'v_mov_b32 v{t1}, v{orstd}')
        self.ln_finish(t0, t1, om, orstd, inv_n)
    def ln_apply(self, X, m, rstd):
        A = self.A
        for k in range(0, len(X), 2):
            A(f'v_sub_f32 v{X[k]}, v{X[k]}, v{m}'); A(f'v_sub_f32 v{X[k+1]}, v{X[k+1]}, v{m}')
            A(f'v_cvt_pk_bf16_f32 v{X[k+1]}, v{X[k]}, v{X[k+1]}')
            A(f'v_lshlrev_b32 v{X[k]}, 16, v{X[k+1]}'); A(f'v_and_b32 v{X[k+1]}, 0xffff0000, v{X[k+1]}')
            A(f'v_mul_f32 v{X[k]}, v{X[k]}, v{rstd}'); A(f'v_mul_f32 v{X[k+1]}, v{X[k+1]}, v{rstd}')

    def finish_debug(self, regs):
        raise NotImplementedError

    def wrap(self):
        body = hz.fix(self.L)
        H = []
        H.append(f'; @launch grid=(256,1,1) block=(256,1,1) lds={LDS_SIZE + (1024 if self.kw.get("wbal") else 0)}')
        H.append('.amdgcn_target "amdgcn-amd-amdhsa--gfx950"')
        H.append('.text'); H.append(f'.globl {KN}'); H.append('.p2align 8'); H.append(f'.type {KN},@function'); H.append(f'{KN}:')
        H += body
        H.append('.section .rodata,"a"'); H.append('.p2align 6'); H.append(f'.amdhsa_kernel {KN}')
        H.append('  .amdhsa_next_free_vgpr 512'); H.append('  .amdhsa_next_free_sgpr 102'); H.append('  .amdhsa_accum_offset 256')
        H.append('  .amdhsa_group_segment_fixed_size 0'); H.append('  .amdhsa_kernarg_size 104'); H.append('  .amdhsa_user_sgpr_count 2')
        H.append('  .amdhsa_user_sgpr_kernarg_segment_ptr 1'); H.append('  .amdhsa_system_sgpr_workgroup_id_x 1')
        H.append('.end_amdhsa_kernel')
        return '\n'.join(H) + '\n'

if __name__ == '__main__':
    import ast
    kw = eval('dict(%s)' % (sys.argv[2] if len(sys.argv) > 2 else ''))
    open(sys.argv[1], 'w').write(Gen(**kw).gen())
```

```python
import sys
import hz
KN = 'sequential_preLN__mha_block_cached__mixer_channel_mlp__decode_kernel'

WS_ML = 0x0
WS_H  = 0x2000
WS_PROG = 0x4000
WS_C1 = 0x10000
WS_C2 = 0x90000
WS_SIZE = 0x100000
WS_DIAG = 0x100000
WS_QX = 0x140000
QX_STR = 0x4400
L_XN2 = 7168
OOB = 0x7ff00000

L_XN = 0
L_QP = 4096
L_QB = 6144
L_OP = 7168
L_OH = 9216
L_YB = 11264
L_TP = 13312
L_DUMMY = 13824
L_LIM = 15360
L_ONE = 14592
L_TP3 = 0
L_DUM2 = 15616
LDS_SIZE = 16384
L_PRG = 16384

SCALE = 0x3DB504F3
LOG2E = 0x3FB8AA3B

class Gen:
    def __init__(self, diag=False, nt='nt', wnt='', spin=1 << 15, ring=8, pre=6, stop=None, nowo=False, nowq=False, norole=False, **kw):
        self.L = []
        self.vm = []
        self.done = -1
        self.diag = diag; self.nt = nt; self.wnt = wnt; self.spin = spin
        self.ring = ring; self.pre = pre; self.stop = stop
        self.nstamp = 0; self.n3 = 0; self.lidx = {}
        self.nowo = nowo; self.nowq = nowq; self.norole = norole; self.kw = kw
    def A(self, s):
        if self.kw.get('nomfma') and s.startswith('v_mfma'): return
        self.L.append('  ' + s if not s.endswith(':') else s)
    def vmop(self, s, tag, optional=False):
        self.A(s); self.vm.append((tag, optional))
        if self.kw.get('st3') and self.n3 < 64 and not optional:
            self.A('s_memrealtime s[96:97]'); self.A('s_waitcnt lgkmcnt(0)'); self.A('v_writelane_b32 v252, s96, %d' % self.n3); self.n3 += 1
        out = len(self.vm) - 1 - self.done
        assert out <= 63, ('too many outstanding', out, tag)
    def vmwait(self, tag):
        idx = max(i for i, (t, o) in enumerate(self.vm) if t == tag)
        n = sum(1 for (t, o) in self.vm[idx + 1:] if not o)
        assert n <= 63
        self.A('s_waitcnt vmcnt(%d)' % n)
        self.done = max(self.done, idx)
    def vmwait_idx(self, idx):
        if idx <= self.done: return
        n = sum(1 for (t, o) in self.vm[idx + 1:] if not o)
        assert n <= 63
        self.A('s_waitcnt vmcnt(%d)' % n)
        self.done = max(self.done, idx)
    def vmdrain(self):
        self.A('s_waitcnt vmcnt(0)'); self.done = len(self.vm) - 1
    def stamp(self, k):
        if self.diag:
            self.A('s_memrealtime s[96:97]'); self.A('s_waitcnt lgkmcnt(0)')
            self.A('v_mov_b32 v250, s96'); self.A('v_writelane_b32 v251, s96, %d' % k)

    def srd(self, r, lo, hi, size, off=None):
        A = self.A
        if off is None:
            A(f's_mov_b32 s{r}, s{lo}'); A(f's_and_b32 s{r+1}, s{hi}, 0xffff')
        else:
            A(f's_add_u32 s{r}, s{lo}, {off}'); A(f's_addc_u32 s{r+1}, s{hi}, 0'); A(f's_and_b32 s{r+1}, s{r+1}, 0xffff')
        A(f's_mov_b32 s{r+2}, {size}'); A(f's_mov_b32 s{r+3}, 0x20000')

    def wave_allreduce(self, op, v, t):
        A = self.A
        for r in (1, 2, 4, 8):
            A(f'v_{op}_f32_dpp v{v}, v{v}, v{v} row_ror:{r} row_mask:0xf bank_mask:0xf')
        A(f'v_mov_b32 v{t}, v{v}'); A(f'v_permlane16_swap_b32 v{v}, v{t}'); A(f'v_{op}_f32 v{v}, v{v}, v{t}')
        A(f'v_mov_b32 v{t}, v{v}'); A(f'v_permlane32_swap_b32 v{v}, v{t}'); A(f'v_{op}_f32 v{v}, v{v}, v{t}')
    def half_allreduce(self, op, v, t):
        A = self.A
        for r in (1, 2, 4, 8):
            A(f'v_{op}_f32_dpp v{v}, v{v}, v{v} row_ror:{r} row_mask:0xf bank_mask:0xf')
        A(f'v_mov_b32 v{t}, v{v}'); A(f'v_permlane16_swap_b32 v{v}, v{t}'); A(f'v_{op}_f32 v{v}, v{v}, v{t}')
    def rbf(self, v, src=None):
        A = self.A
        s = v if src is None else src
        if self.kw.get('rb1'): A(f'v_cvt_pk_bf16_f32 v{v}, 0, v{s}'); return
        A(f'v_cvt_pk_bf16_f32 v{v}, v{s}, v{s}'); A(f'v_and_b32 v{v}, 0xffff0000, v{v}')

    def gen(self):
        A = self.A; G = self
        RING = self.ring; nt = self.nt; wnt = self.wnt
        sW = 3
        pX, pK, pV, pWQ, pWO, pW1, pB1, pW2, pB2, pOUT, pDBG, pWS = 4, 6, 8, 10, 12, 16, 18, 20, 22, 24, 26, 28
        rK, rV, rWQ, rWO, rWS, rDBG, rX, rW1, rW2, rB1, rB2, rOUT = 32, 36, 40, 44, 48, 52, 56, 60, 64, 68, 72, 76
        sOff, sT, sH, sB, sS, sBH, sRole, sSpin, sT2, sU = 80, 81, 82, 83, 84, 85, 86, 87, 88, 89
        sM = 90
        sPK = 92
        sAt = 93
        vL, vN, vG = 1, 2, 3
        vK, vV, vWQ, vWO, vC1, vMLp, vMLq, vRS = 4, 5, 6, 7, 8, 9, 10, 11
        vSEL = 12
        vMASK = 20
        vBQ = 24
        vS = 32
        vD = 64
        vO = 80
        vB = 88
        vXP = 104
        vDQ = 120
        vT = 124
        vMX, vLS, vM, vNM, vF, vML0, vML1, vCNT = 140, 141, 142, 143, 208, 210, 211, 212
        vW1 = 144
        vW2 = 160
        vR = 176
        vB1, vXV, vB2V, vHV, vOPA, vSENT, vOUTA = 213, 214, 215, 216, 217, 220, 218
        vA1, vA2, vA3, vA4 = 224, 225, 226, 227
        vXR = 228
        vWOFF1, vWOFF2, vB1OFF, vHOFF, vGA = 232, 233, 234, 235, 236
        vONE, vATO = 237, 238
        vXOFF, vB2OFF, vC2OFF = 239, 240, 241
        vPROG = (242, 209); vPUBO, vPRO, vLIMW, vLIMR, vLIM, vPV, vPT, vPT2, vWIN = 243, 244, 245, 246, 247, 248, 249, 219, 253
        vSNAP, vEFF = 254, 255
        sLim, sSp2 = 94, 95
        THR = self.kw.get('thr'); CHK = self.kw.get('chk', 2); NREP = self.kw.get('nrep', 32)
        aW = 128
        T = lambda i: vT + i

        A('s_cmp_ge_u32 s2, 256'); A('s_cbranch_scc1 L_end')
        if self.kw.get('wgx'): A('s_xor_b32 s2, s2, %d' % self.kw['wgx'])
        if self.kw.get('hperm'):
            pc = sum(v << (4 * i) for i, v in enumerate(self.kw['hperm']))
            A('s_and_b32 s3, s2, 7'); A('s_lshl_b32 s3, s3, 2'); A('s_lshr_b32 s3, %d, s3' % pc); A('s_and_b32 s3, s3, 7')
            A('s_andn2_b32 s2, s2, 7'); A('s_or_b32 s2, s2, s3')
        A(f's_load_dwordx16 s[4:19], s[0:1], 0'); A('s_load_dwordx8 s[20:27], s[0:1], 64'); A('s_load_dwordx2 s[28:29], s[0:1], 96')
        if self.diag:
            A('v_mov_b32 v251, 0')
            G.stamp(0)
        A(f'v_and_b32 v{vL}, 63, v0'); A(f'v_lshrrev_b32 v{T(0)}, 6, v0'); A(f'v_and_b32 v{vN}, 15, v0')
        A(f'v_readfirstlane_b32 s{sW}, v{T(0)}')
        A(f'v_lshrrev_b32 v{vG}, 4, v{vL}')
        A(f's_and_b32 s{sH}, s2, 31'); A(f's_lshr_b32 s{sB}, s2, 5'); A(f's_and_b32 s{sB}, s{sB}, 1'); A(f's_lshr_b32 s{sS}, s2, 6'); A(f's_and_b32 s{sBH}, s2, 63')
        if self.kw.get('hmap') == 'c4':
            A(f's_and_b32 s{sT}, s2, 7'); A(f's_lshl_b32 s{sT}, s{sT}, 2'); A(f's_bfe_u32 s{sH}, s2, 0x20003'); A(f's_or_b32 s{sH}, s{sH}, s{sT}')
            A(f's_lshl_b32 s{sT}, s{sB}, 5'); A(f's_or_b32 s{sBH}, s{sH}, s{sT}')
        if self.kw.get('only') is not None:
            kind, val = self.kw['only']
            if kind == 'cls': A(f's_and_b32 s{sT}, s{sH}, 3'); A(f's_cmp_eq_u32 s{sT}, {val}'); A('s_cbranch_scc0 L_end')
            if kind == 'lt': A(f's_cmp_lt_u32 s2, {val}'); A('s_cbranch_scc0 L_end')
        A(f's_lshl_b32 s{sT}, s{sW}, 12')
        A(f'v_lshrrev_b32 v{T(0)}, 1, v{vN}'); A(f'v_lshlrev_b32 v{T(0)}, 8, v{T(0)}')
        A(f'v_and_b32 v{T(1)}, 1, v{vN}'); A(f'v_lshl_add_u32 v{T(0)}, v{T(1)}, 6, v{T(0)}')
        A(f'v_lshl_add_u32 v{T(0)}, v{vG}, 4, v{T(0)}'); A(f'v_add_u32 v{vK}, s{sT}, v{T(0)}')
        A(f'v_lshlrev_b32 v{T(0)}, 9, v{vG}'); A(f'v_lshl_add_u32 v{T(0)}, v{vN}, 4, v{T(0)}'); A(f'v_add_u32 v{vV}, s{sT}, v{T(0)}')
        A(f's_lshl_b32 s{sT}, s{sW}, 20'); A(f'v_lshlrev_b32 v{T(0)}, 18, v{vG}'); A(f'v_lshl_add_u32 v{T(0)}, v{vN}, 4, v{T(0)}'); A(f'v_add_u32 v{vWQ}, s{sT}, v{T(0)}')
        QX = self.kw.get('qx')
        vTG, vEW, vQE, vQS, vQL = 144, 146, 148, 149, 150
        sQ, sJ = 98, 99
        if QX:
            A(f's_lshr_b32 s{sJ}, s2, 5')
            A(f's_lshl_b32 s{sT}, s{sW}, 17'); A(f'v_lshlrev_b32 v{T(0)}, 15, v{vG}'); A(f'v_lshl_add_u32 v{T(0)}, v{vN}, 4, v{T(0)}'); A(f'v_add_u32 v{vWQ}, s{sT}, v{T(0)}')
            A(f's_mul_i32 s{sT}, s{sH}, {QX_STR}'); A(f's_add_u32 s{sT}, s{sT}, {WS_QX}'); A(f'v_mov_b32 v{vQE}, s{sT}')
            A(f's_lshl_b32 s{sT2}, s{sJ}, 11'); A(f's_add_u32 s{sT2}, s{sT2}, s{sT}'); A(f's_add_u32 s{sT2}, s{sT2}, 1024')
            A(f's_lshl_b32 s{sQ}, s{sW}, 9'); A(f's_add_u32 s{sT2}, s{sT2}, s{sQ}')
            A(f'v_lshlrev_b32 v{T(0)}, 4, v{vL}'); A(f'v_add_u32 v{T(1)}, s{sT2}, v{T(0)}'); A(f'v_mov_b32 v{T(3)}, {OOB}')
            A(f'v_cmp_gt_u32 vcc, 32, v{vL}'); A(f'v_cndmask_b32 v{vQS}, v{T(3)}, v{T(1)}, vcc')
            A(f's_lshl_b32 s{sT2}, s{sW}, 12'); A(f's_add_u32 s{sT2}, s{sT2}, s{sT}'); A(f's_lshl_b32 s{sQ}, s{sB}, 10'); A(f's_add_u32 s{sT2}, s{sT2}, s{sQ}')
            A(f's_add_u32 s{sT2}, s{sT2}, 1024'); A(f'v_add_u32 v{vQL}, s{sT2}, v{T(0)}')
            A(f's_mov_b32 s{sQ}, 0')
        A(f's_lshl_b32 s{sT}, s{sB}, 10'); A(f'v_lshlrev_b32 v{T(2)}, 4, v{vL}'); A(f'v_add_u32 v{T(2)}, s{sT}, v{T(2)}')
        if QX:
            A(f'v_lshrrev_b32 v{T(2)}, 5, v{vL}'); A(f'v_lshlrev_b32 v{T(2)}, 10, v{T(2)}'); A(f'v_and_b32 v{T(3)}, 31, v{vL}'); A(f'v_lshl_add_u32 v{T(2)}, v{T(3)}, 5, v{T(2)}')
        A(f's_lshl_b32 s{sT}, s{sB}, 5'); A(f's_lshl_b32 s{sT2}, s{sW}, 3'); A(f's_add_u32 s{sT}, s{sT}, s{sT2}')
        A(f's_lshl_b32 s{sT}, s{sT}, 13')
        A(f's_lshl_b32 s{sT2}, s{sH}, 2'); A(f's_add_u32 s{sT2}, s{sT2}, s{sS}'); A(f's_lshl_b32 s{sT2}, s{sT2}, 6')
        A(f's_add_u32 s{sT}, s{sT}, s{sT2}'); A(f's_add_u32 s{sT}, s{sT}, {WS_C1}')
        A(f'v_lshlrev_b32 v{T(0)}, 1, v{vG}'); A(f'v_lshrrev_b32 v{T(1)}, 2, v{vN}'); A(f'v_add_u32 v{T(0)}, v{T(0)}, v{T(1)}')
        A(f'v_lshlrev_b32 v{T(0)}, 13, v{T(0)}'); A(f'v_and_b32 v{T(1)}, 3, v{vN}'); A(f'v_lshl_add_u32 v{T(0)}, v{T(1)}, 4, v{T(0)}')
        A(f'v_add_u32 v{T(0)}, s{sT}, v{T(0)}')
        A(f'v_mov_b32 v{T(1)}, {OOB}'); A(f'v_cmp_gt_u32 vcc, 8, v{vN}')
        A(f'v_cndmask_b32 v{vC1}, v{T(1)}, v{T(0)}, vcc')
        W2 = self.kw.get('wot2')
        vXO2, vOHW, vOHR = 243, 244, 245
        if W2:
            assert not THR
            A(f'v_lshrrev_b32 v{T(0)}, 2, v{vN}'); A(f'v_lshlrev_b32 v{T(0)}, 1, v{T(0)}'); A(f'v_lshrrev_b32 v{T(1)}, 1, v{vG}'); A(f'v_add_u32 v{T(0)}, v{T(0)}, v{T(1)}')
            A(f'v_lshlrev_b32 v{T(0)}, 13, v{T(0)}'); A(f'v_and_b32 v{T(1)}, 3, v{vN}'); A(f'v_lshl_add_u32 v{T(0)}, v{T(1)}, 4, v{T(0)}')
            if self.kw.get('c1x4'):
                A(f'v_add_u32 v{T(0)}, s{sT}, v{T(0)}'); A(f'v_and_b32 v{T(1)}, 1, v{vG}'); A(f'v_cmp_eq_u32 vcc, 0, v{T(1)}')
                A(f'v_mov_b32 v{T(1)}, {OOB}'); A(f'v_cndmask_b32 v{vC1}, v{T(1)}, v{T(0)}, vcc')
            else:
                A(f'v_and_b32 v{T(1)}, 1, v{vG}'); A(f'v_lshl_add_u32 v{T(0)}, v{T(1)}, 3, v{T(0)}')
                A(f'v_add_u32 v{vC1}, s{sT}, v{T(0)}')
            A(f'v_mov_b32 v{vXO2}, {OOB}')
            A(f's_lshl_b32 s{sT2}, s{sW}, 9'); A(f'v_lshrrev_b32 v{T(0)}, 3, v{vN}'); A(f'v_lshlrev_b32 v{T(0)}, 8, v{T(0)}'); A(f'v_lshl_add_u32 v{T(0)}, v{vG}, 6, v{T(0)}')
            A(f'v_and_b32 v{T(1)}, 7, v{vN}'); A(f'v_lshl_add_u32 v{T(0)}, v{T(1)}, 3, v{T(0)}'); A(f'v_add_u32 v{vOHW}, s{sT2}, v{T(0)}')
            A(f'v_lshrrev_b32 v{T(0)}, 2, v{vN}'); A(f'v_lshlrev_b32 v{T(0)}, 9, v{T(0)}'); A(f'v_and_b32 v{T(1)}, 1, v{vN}'); A(f'v_lshl_add_u32 v{T(0)}, v{T(1)}, 8, v{T(0)}')
            A(f'v_lshl_add_u32 v{vOHR}, v{vG}, 4, v{T(0)}')
        A(f's_lshl_b32 s{sT}, s{sBH}, 7'); A(f's_lshl_b32 s{sT2}, s{sS}, 2'); A(f's_add_u32 s{sT2}, s{sT2}, s{sW}'); A(f's_lshl_b32 s{sT2}, s{sT2}, 3')
        A(f's_add_u32 s{sT2}, s{sT2}, s{sT}'); A(f'v_mov_b32 v{T(0)}, s{sT2}'); A(f'v_mov_b32 v{T(1)}, {OOB}')
        A(f'v_cmp_eq_u32 vcc, 0, v{vL}'); A(f'v_cndmask_b32 v{vMLp}, v{T(1)}, v{T(0)}, vcc')
        A(f'v_lshlrev_b32 v{T(0)}, 3, v{vN}'); A(f'v_add_u32 v{vMLq}, s{sT}, v{T(0)}')
        kp, vp = self.kw.get('kpat'), self.kw.get('vpat')
        if kp == 'v' or vp == 'k' or kp == 'lin' or vp == 'lin':
            A(f's_lshl_b32 s{sT}, s{sW}, 12')
            if kp == 'v' and vp is None: A(f'v_mov_b32 v{vK}, v{vV}')
            if vp == 'k' and kp is None: A(f'v_mov_b32 v{vV}, v{vK}')
            if kp == 'lin': A(f'v_lshlrev_b32 v{T(0)}, 4, v{vL}'); A(f'v_add_u32 v{vK}, s{sT}, v{T(0)}')
            if vp == 'lin': A(f'v_lshlrev_b32 v{T(0)}, 4, v{vL}'); A(f'v_add_u32 v{vV}, s{sT}, v{T(0)}')
        rot = self.kw.get('rot')
        if rot:
            A(f's_mul_i32 s99, s2, {rot}'); A(f's_lshr_b32 s{sT}, s2, 5'); A(f's_add_u32 s99, s99, s{sT}'); A('s_and_b32 s99, s99, 31'); A('s_lshl_b32 s99, s99, 14')
        A(f's_mov_b32 s{sRole}, 0')
        A(f's_and_b32 s{sT}, s2, 7'); A(f's_mul_i32 s{sT}, s{sT}, 14'); A(f's_lshr_b32 s{sT2}, s2, 3'); A(f's_add_u32 s{sU}, s{sT}, s{sT2}')
        A(f's_cmp_lt_u32 s2, 112'); A(f's_cselect_b32 s{sRole}, 1, 0')
        A(f's_sub_u32 s{sT}, s2, 128'); A(f's_cmp_lt_u32 s{sT}, 64'); A(f's_cselect_b32 s{sRole}, 2, s{sRole}'); A(f's_cselect_b32 s{sU}, s{sT}, s{sU}')
        for r_ in (vRS, vWOFF1, vWOFF2, vB1OFF, vHOFF, vOUTA, vXOFF, vB2OFF, vC2OFF): A(f'v_mov_b32 v{r_}, {OOB}')
        A(f's_cmp_eq_u32 s{sRole}, 1'); A('s_cbranch_scc0 L_r1')
        A(f'v_lshrrev_b32 v{T(0)}, 3, v{vN}'); A(f'v_lshlrev_b32 v{T(0)}, 5, v{T(0)}')
        A(f'v_lshl_add_u32 v{T(0)}, v{vG}, 1, v{T(0)}'); A(f'v_bfe_u32 v{T(1)}, v{vN}, 2, 1'); A(f'v_add_u32 v{T(0)}, v{T(0)}, v{T(1)}')
        A(f's_lshl_b32 s{sT}, s{sW}, 3'); A(f'v_add_u32 v{T(0)}, s{sT}, v{T(0)}')
        A(f'v_mul_u32_u24 v{T(0)}, {112*64}, v{T(0)}'); A(f'v_and_b32 v{T(1)}, 3, v{vN}'); A(f'v_lshl_add_u32 v{T(0)}, v{T(1)}, 4, v{T(0)}')
        if self.kw.get('fakec2'):
            A(f's_and_b32 s{sT}, s2, 7'); A(f's_lshl_b32 s{sT}, s{sT}, 3'); A(f's_lshr_b32 s{sT2}, s2, 3'); A(f's_add_u32 s{sT}, s{sT}, s{sT2}')
            A(f's_lshl_b32 s{sT}, s{sT}, 6'); A(f's_add_u32 s{sT}, s{sT}, {WS_C2}')
            A(f's_cmp_lt_u32 s2, 64'); A(f's_cselect_b32 s{sT}, s{sT}, {OOB}'); A(f'v_add_u32 v{vRS}, s{sT}, v{T(0)}')
        else:
            A(f's_lshl_b32 s{sT}, s{sU}, 6'); A(f's_add_u32 s{sT}, s{sT}, {WS_C2}'); A(f'v_add_u32 v{vRS}, s{sT}, v{T(0)}')
        A(f'v_lshrrev_b32 v{T(0)}, 1, v{vG}'); A(f'v_lshlrev_b32 v{T(0)}, 2, v{T(0)}'); A(f'v_and_b32 v{T(1)}, 1, v{vG}'); A(f'v_lshl_add_u32 v{T(0)}, v{T(1)}, 1, v{T(0)}')
        A(f's_lshl_b32 s{sT}, s{sW}, 7'); A(f'v_add_u32 v{T(0)}, s{sT}, v{T(0)}'); A(f'v_mul_u32_u24 v{T(0)}, 3584, v{T(0)}')
        A(f's_lshl_b32 s{sT}, s{sU}, 5'); A(f'v_lshl_add_u32 v{T(0)}, v{vN}, 1, v{T(0)}'); A(f'v_add_u32 v{vWOFF1}, s{sT}, v{T(0)}')
        A(f's_lshl_b32 s{sT}, s{sU}, 14'); A(f's_lshl_b32 s{sT2}, s{sW}, 8'); A(f's_add_u32 s{sT}, s{sT}, s{sT2}')
        A(f'v_lshlrev_b32 v{T(0)}, 12, v{vG}'); A(f'v_lshl_add_u32 v{T(0)}, v{vN}, 4, v{T(0)}'); A(f'v_add_u32 v{vWOFF2}, s{sT}, v{T(0)}')
        A(f's_lshl_b32 s{sT}, s{sU}, 5'); A(f'v_and_b32 v{T(0)}, 3, v{vN}'); A(f'v_lshl_add_u32 v{T(0)}, v{vG}, 2, v{T(0)}'); A(f'v_lshlrev_b32 v{T(0)}, 1, v{T(0)}'); A(f'v_add_u32 v{vB1OFF}, s{sT}, v{T(0)}')
        A(f'v_lshrrev_b32 v{T(0)}, 5, v{vL}'); A(f'v_lshlrev_b32 v{T(0)}, 11, v{T(0)}'); A(f'v_and_b32 v{T(1)}, 31, v{vL}'); A(f'v_lshl_add_u32 v{T(0)}, v{T(1)}, 4, v{T(0)}')
        WSH = 0x1d0000 if (self.kw.get('hrep') not in (None, True) and self.kw['hrep'] > 8) else WS_H
        A(f'v_add_u32 v{vHOFF}, {WSH}, v{T(0)}')
        if self.kw.get('hrep'):
            NR = 4 if self.kw['hrep'] is True else self.kw['hrep']
            if self.kw.get('hmap'): A(f's_lshr_b32 s{sT}, s2, 3'); A(f's_and_b32 s{sT}, s{sT}, {NR-1}')
            else: A(f's_and_b32 s{sT}, s2, {NR-1}')
            A(f's_lshl_b32 s{sT}, s{sT}, 12'); A(f'v_add_u32 v{vHOFF}, s{sT}, v{vHOFF}')
        if self.kw.get('w1oob'): A(f'v_mov_b32 v{vWOFF1}, {OOB}')
        if self.kw.get('w2oob'): A(f'v_mov_b32 v{vWOFF2}, {OOB}')
        A('s_branch L_r2')
        A('L_r1:')
        A(f's_cmp_eq_u32 s{sRole}, 2'); A('s_cbranch_scc0 L_r2')
        A(f's_cmp_eq_u32 s{sW}, 0'); A('s_cbranch_scc0 L_r2')
        A(f's_lshl_b32 s{sT}, s{sU}, 6'); A(f's_add_u32 s{sT}, s{sT}, {WSH}')
        if self.kw.get('hrep'):
            if W2: A(f'v_and_b32 v{T(0)}, 3, v{vN}'); A(f'v_lshlrev_b32 v{T(0)}, 2, v{T(0)}'); A(f'v_lshl_add_u32 v{T(0)}, v{vG}, 4, v{T(0)}')
            else: A(f'v_and_b32 v{T(0)}, 3, v{vN}'); A(f'v_lshlrev_b32 v{T(0)}, 4, v{T(0)}'); A(f'v_lshl_add_u32 v{T(0)}, v{vG}, 2, v{T(0)}')
            A(f'v_lshrrev_b32 v{T(1)}, 2, v{vN}'); A(f'v_lshl_add_u32 v{T(0)}, v{T(1)}, 12, v{T(0)}'); A(f'v_add_u32 v{vRS}, s{sT}, v{T(0)}')
        else:
            A(f'v_lshlrev_b32 v{T(0)}, 4, v{vN}'); A(f'v_lshl_add_u32 v{T(0)}, v{vG}, 2, v{T(0)}'); A(f'v_add_u32 v{T(0)}, s{sT}, v{T(0)}')
            A(f'v_mov_b32 v{T(1)}, {OOB}'); A(f'v_cmp_gt_u32 vcc, 4, v{vN}'); A(f'v_cndmask_b32 v{vRS}, v{T(1)}, v{T(0)}, vcc')
        A(f's_and_b32 s{sT}, s{sU}, 31'); A(f's_lshr_b32 s{sT2}, s{sT}, 1'); A(f's_lshl_b32 s{sT2}, s{sT2}, 5')
        A(f's_and_b32 s{sT}, s{sT}, 1'); A(f's_lshl_b32 s{sT}, s{sT}, 2'); A(f's_add_u32 s{sT}, s{sT}, s{sT2}')
        if W2:
            assert self.kw.get('hrep')
            A(f'v_and_b32 v{T(0)}, 3, v{vN}'); A(f'v_lshl_add_u32 v{T(0)}, v{T(0)}, 3, v{vG}'); A(f'v_add_u32 v{T(0)}, s{sT}, v{T(0)}')
            A(f's_lshr_b32 s{sT2}, s{sU}, 5'); A(f's_lshl_b32 s{sT2}, s{sT2}, 10'); A(f'v_lshlrev_b32 v{T(0)}, 1, v{T(0)}'); A(f'v_add_u32 v{vXO2}, s{sT2}, v{T(0)}')
        A(f'v_and_b32 v{T(0)}, 3, v{vN}'); A(f'v_lshl_add_u32 v{T(0)}, v{vG}, 3, v{T(0)}'); A(f'v_add_u32 v{T(0)}, s{sT}, v{T(0)}')
        A(f'v_lshlrev_b32 v{vB2OFF}, 1, v{T(0)}')
        A(f's_lshr_b32 s{sT}, s{sU}, 5'); A(f's_lshl_b32 s{sT}, s{sT}, 10'); A(f'v_add_u32 v{vXOFF}, s{sT}, v{vB2OFF}')
        A(f'v_mov_b32 v{T(1)}, {OOB}'); A(f'v_cmp_gt_u32 vcc, 4, v{vN}'); A(f'v_cndmask_b32 v{vOUTA}, v{T(1)}, v{vXOFF}, vcc')
        A(f's_lshl_b32 s{sT}, s{sU}, 13'); A(f's_add_u32 s{sT}, s{sT}, {WS_C1}'); A(f'v_lshlrev_b32 v{T(0)}, 4, v{vL}'); A(f'v_add_u32 v{vHOFF}, s{sT}, v{T(0)}')
        A(f's_mul_i32 s{sT}, s{sU}, 7168'); A(f's_add_u32 s{sT}, s{sT}, {WS_C2}'); A(f'v_add_u32 v{vC2OFF}, s{sT}, v{T(0)}')
        A('L_r2:')
        for i in range(4): A(f'v_mov_b32 v{vSENT+i}, -1')
        A('s_waitcnt lgkmcnt(0)')
        if self.kw.get('st2'): G.stamp(24)
        A(f's_lshl_b32 s{sT}, s{sBH}, 21'); A(f's_lshl_b32 s{sT2}, s{sS}, 19'); A(f's_add_u32 s{sT}, s{sT}, s{sT2}')
        if self.kw.get('krot'): A(f's_add_u32 s{sT}, s{sT}, {self.kw["krot"] << 21}'); A(f's_and_b32 s{sT}, s{sT}, {(64 << 21) - 1}')
        G.srd(rX, pX, pX + 1, 2048)
        vQX, vQR, vQP = vR, vR + 16, vR + 24
        WSZ = (WS_QX + 32 * QX_STR) if QX else WS_SIZE + (0x100000 if self.diag else 0)
        if WSH != WS_H: WSZ = WSH + self.kw['hrep'] * 4096
        if QX and QX.get('skip'):
            G.srd(rWS, pWS, pWS + 1, WSZ)
        elif QX:
            G.vmop(f'buffer_load_dwordx4 v[{vQR}:{vQR+3}], v{T(2)}, s[{rX}:{rX+3}], 0 offen', 'x')
            G.vmop(f'buffer_load_dwordx4 v[{vQR+4}:{vQR+7}], v{T(2)}, s[{rX}:{rX+3}], 0 offen offset:16', 'x')
            A(f's_lshl_b32 s{sT2}, s{sH}, 8')
            G.srd(rWQ, pWQ, pWQ + 1, 0, f's{sT2}'); A(f's_sub_u32 s{rWQ+2}, {512*8192}, s{sT2}')
            A(f's_lshl_b32 s{sT2}, s{sJ}, 19')
            for i in range(4):
                G.vmop(f'buffer_load_dwordx4 a[{aW+4*i}:{aW+4*i+3}], v{vWQ}, s[{rWQ}:{rWQ+3}], s{sT2} offen', f'wq{i}')
                if i < 3: A(f's_add_u32 s{sT2}, s{sT2}, 8192')
            G.srd(rWS, pWS, pWS + 1, WSZ)
            G.vmop(f'buffer_load_dwordx2 v[{vEW}:{vEW+1}], v{vQE}, s[{rWS}:{rWS+3}], 0 offen sc1', 'E')
        G.srd(rK, pK, pK + 1, 0x80000, f's{sT}')
        if not QX: G.vmop(f'buffer_load_dwordx4 v[{vXR}:{vXR+3}], v{T(2)}, s[{rX}:{rX+3}], 0 offen', 'x')
        if self.kw.get('xwait'): G.vmwait('x')
        koffs = [0, 2048, 128, 2176]
        voffs = [0, 2048, 256, 2304]
        if kp == 'v': koffs = list(voffs)
        if vp == 'k': voffs = list(koffs)
        if kp == 'lin': koffs = [0, 1024, 2048, 3072]
        if vp == 'lin': voffs = [0, 1024, 2048, 3072]
        if kp == 'adj': koffs = [0, 128, 2048, 2176]
        if vp == 'adj': voffs = [0, 256, 2048, 2304]
        last_soff = [None]
        def load_one(u, q, setoff=True):
            isK = u < 32; t = u % 32
            if setoff:
                if self.kw.get('rot'):
                    A(f's_add_u32 s{sOff}, s99, {t*16384}'); A(f's_and_b32 s{sOff}, s{sOff}, {31*16384}')
                else:
                    A(f's_mov_b32 s{sOff}, {t*16384}')
            r = ((u % RING) * 4 + q) * 4
            if isK: G.vmop(f'buffer_load_dwordx4 a[{r}:{r+3}], v{vK}, s[{rK}:{rK+3}], s{sOff} offen offset:{koffs[q]} {nt}', f'u{u}')
            else:   G.vmop(f'buffer_load_dwordx4 a[{r}:{r+3}], v{vV}, s[{rV}:{rV+3}], s{sOff} offen offset:{voffs[q]} {nt}', f'u{u}')
            G.lidx[4 * u + q] = len(G.vm) - 1
        def unit_loads(u):
            for q in range(4): load_one(u, q, q == 0)
        PRO = self.kw.get('pro')
        kcur = [None]; kiss = [0]
        def issue_k():
            m = kiss[0]; u_, q_ = m // 4, m % 4
            load_one(u_, q_, u_ != kcur[0]); kcur[0] = u_; kiss[0] += 1
        if QX:
            for _ in range(QX['k0']): issue_k()
        elif PRO:
            for _ in range(PRO[0]): issue_k()
        elif self.pre > 0: unit_loads(0)
        if self.kw.get('st2'): G.stamp(25)
        G.srd(rV, pV, pV + 1, 0x80000, f's{sT}')
        if not QX: G.srd(rWS, pWS, pWS + 1, WSZ)
        A(f's_lshl_b32 s{sT}, s{sH}, 8')
        if self.kw.get('wqsame'): A(f's_mov_b32 s{sT}, 0')
        if self.kw.get('wqrot'): A(f's_add_u32 s{sT}, s{sH}, {self.kw["wqrot"]}'); A(f's_and_b32 s{sT}, s{sT}, 31'); A(f's_lshl_b32 s{sT}, s{sT}, 8')
        if self.kw.get('wqx'): A(f's_lshr_b32 s{sT}, s2, 3'); A(f's_lshl_b32 s{sT}, s{sT}, 8')
        if self.kw.get('wqx4'): A(f's_lshr_b32 s{sT}, s2, 2'); A(f's_and_b32 s{sT}, s{sT}, 31'); A(f's_lshl_b32 s{sT}, s{sT}, 8')
        if QX: pass
        elif self.kw.get('wqbase'):
            pb = {'K': pK, 'V': pV, 'O': pWO}[self.kw['wqbase']]
            G.srd(rWQ, pb, pb + 1, 0, f's{sT}'); A(f's_sub_u32 s{rWQ+2}, {512*8192}, s{sT}')
        else:
            G.srd(rWQ, pWQ, pWQ + 1, 0, f's{sT}'); A(f's_sub_u32 s{rWQ+2}, {512*8192}, s{sT}')
        if self.kw.get('noinit'):
            A(f'v_mov_b32 v{vC1}, {OOB}'); A(f'v_mov_b32 v{vMLp}, {OOB}'); A(f'v_mov_b32 v{vRS}, {OOB}'); A(f'v_mov_b32 v{vHOFF}, {OOB}'); A(f'v_mov_b32 v{vC2OFF}, {OOB}'); A(f'v_mov_b32 v{vMLq}, {OOB}')
        if W2 and not self.kw.get('c1x4'): G.vmop(f'buffer_store_dwordx2 v[{vSENT}:{vSENT+1}], v{vC1}, s[{rWS}:{rWS+3}], 0 offen sc1', 'init')
        else: G.vmop(f'buffer_store_dwordx4 v[{vSENT}:{vSENT+3}], v{vC1}, s[{rWS}:{rWS+3}], 0 offen sc1', 'init')
        G.vmop(f'buffer_store_dwordx2 v[{vSENT}:{vSENT+1}], v{vMLp}, s[{rWS}:{rWS+3}], 0 offen sc1', 'init')
        A(f's_cmp_eq_u32 s{sRole}, 1'); A('s_cbranch_scc0 L_i1')
        G.vmop(f'buffer_store_dwordx4 v[{vSENT}:{vSENT+3}], v{vRS}, s[{rWS}:{rWS+3}], 0 offen sc1', 'init', True)
        A('L_i1:')
        A(f's_cmp_eq_u32 s{sRole}, 2'); A('s_cbranch_scc0 L_i2')
        G.vmop(f'buffer_store_dword v{vSENT}, v{vRS}, s[{rWS}:{rWS+3}], 0 offen sc1', 'init', True)
        NRH = self.kw.get('hrep'); NRH = 1 if NRH in (None, True) else NRH // 4
        for r_ in range(1, NRH):
            A(f's_mov_b32 s{sT}, {r_*16384}')
            G.vmop(f'buffer_store_dword v{vSENT}, v{vRS}, s[{rWS}:{rWS+3}], s{sT} offen sc1', 'init', True)
        A('L_i2:')
        if self.kw.get('st2'): G.stamp(26)
        def wq_load(i):
            if self.kw.get('nowq0'): return
            if self.nowq and i >= 4: return
            A(f's_mov_b32 s{sT}, {i*8192}')
            r = aW + 4 * i
            G.vmop(f'buffer_load_dwordx4 a[{r}:{r+3}], v{vWQ}, s[{rWQ}:{rWQ+3}], s{sT} offen {wnt}', f'wq{i}')
            if self.kw.get('st2') and i == 15: G.stamp(27)
            if self.kw.get('st2') and i == 31: G.stamp(28)
        il = self.kw.get('il', 0)
        done_u = 1 if self.pre > 0 else 0
        if QX:
            for _ in range(QX.get('n1', 0)): issue_k()
        elif PRO:
            k0_, pa, pb_, Wp = PRO[:4]
            ktot = PRO[4] if len(PRO) > 4 else 28
            S = []
            for i in range(32):
                S.append(('wq', i))
                if i % pa == pa - 1 and i < 31: S += [('k', None)] * pb_
            S += [('k', None)] * 32
            sp = [0]
            def pro_next():
                while sp[0] < len(S):
                    kind, i = S[sp[0]]; sp[0] += 1
                    if kind == 'wq':
                        A(f's_mov_b32 s{sLim}, {i*8192}')
                        r = aW + 4 * i
                        G.vmop(f'buffer_load_dwordx4 a[{r}:{r+3}], v{vWQ}, s[{rWQ}:{rWQ+3}], s{sLim} offen {wnt}', f'wq{i}')
                        if self.kw.get('st2') and i == 15: G.stamp(27)
                        if self.kw.get('st2') and i == 31: G.stamp(28)
                        return True
                    if kiss[0] < ktot:
                        issue_k(); return True
                return False
            for _ in range(PRO[5] if len(PRO) > 5 else Wp - k0_ - 1): pro_next()
        else:
            for i in range(32):
                wq_load(i)
                if il and i % 4 == 3 and done_u < 1 + il and i < 31:
                    unit_loads(done_u); done_u += 1
            for u in range(done_u, self.pre): unit_loads(u)
        G.stamp(9)
        A(f's_lshl_b32 s{sT}, s{sH}, 17')
        if self.kw.get('wosame'): A(f's_mov_b32 s{sT}, 0')
        if self.kw.get('wox'): A(f's_lshr_b32 s{sT}, s2, 3'); A(f's_lshl_b32 s{sT}, s{sT}, 17')
        if self.kw.get('wox4'): A(f's_lshr_b32 s{sT}, s2, 2'); A(f's_and_b32 s{sT}, s{sT}, 31'); A(f's_lshl_b32 s{sT}, s{sT}, 17')
        if self.kw.get('woxcd'): A(f's_and_b32 s{sT}, s{sH}, 7'); A(f's_lshl_b32 s{sT}, s{sT}, 17')
        G.srd(rWO, pWO, pWO + 1, 131072, f's{sT}')
        G.srd(rDBG, pDBG, pDBG + 1, 256)
        G.srd(rW1, pW1, pW1 + 1, 512 * 3584)
        G.srd(rW2, pW2, pW2 + 1, 1792 * 1024)
        G.srd(rB1, pB1, pB1 + 1, 3584)
        G.srd(rB2, pB2, pB2 + 1, 1024)
        G.srd(rOUT, pOUT, pOUT + 1, 2048)
        A(f's_mov_b32 s{sPK}, 0x05040100')
        A(f's_lshl_b32 s{sT}, s{sW}, 8'); A(f'v_lshlrev_b32 v{T(0)}, {11 if W2 else 15}, v{vG}'); A(f'v_lshl_add_u32 v{T(0)}, v{vN}, 4, v{T(0)}'); A(f'v_add_u32 v{vWO}, s{sT}, v{T(0)}')
        if W2: A('s_mov_b32 s100, 0x07060302')
        A(f's_lshr_b32 s{sAt}, s2, 4'); A(f's_and_b32 s{sAt}, s{sAt}, 15'); A(f's_cmp_eq_u32 s{sW}, %d' % self.kw.get('atw', 0)); A(f's_cselect_b32 s{sAt}, s{sAt}, 99')
        ATT = self.kw.get('att')
        if ATT:
            A(f'v_mov_b32 v{vONE}, 1'); A(f's_lshr_b32 s{sT}, s2, {3 if self.kw.get("xr") else 6}'); A(f's_and_b32 s{sT}, s{sT}, 3'); A(f's_lshl_b32 s{sT}, s{sT}, {5 if self.kw.get("xr") else 6}'); A(f's_mov_b32 s95, s{sT}'); A(f's_cmp_eq_u32 s{sW}, ' + (f's{sW}' if self.kw.get('xlast') else '0')); A(f's_cselect_b32 s{sT}, s{sT}, {OOB}')
            A(f'v_mov_b32 v{vATO}, {OOB}'); A(f'v_mov_b32 v{T(0)}, s{sT}'); A(f'v_cmp_eq_u32 vcc, 0, v{vL}'); A(f'v_cndmask_b32 v{vATO}, v{vATO}, v{T(0)}, vcc')
        else:
            A(f'v_mov_b32 v{vONE}, 1'); A(f'v_mov_b32 v{vATO}, {OOB}'); A(f'v_cmp_eq_u32 vcc, 0, v{vL}'); A(f'v_cndmask_b32 v{vATO}, v{vATO}, 0, vcc')
        XR = self.kw.get('xr')
        if XR:
            if ATT:
                A('s_add_u32 s94, s95, 128'); A(f's_mov_b32 s95, {OOB}'); A(f's_cmp_eq_u32 s{sW}, {XR[4][1] if len(XR) > 4 else 0}'); A('s_cselect_b32 s94, s94, s95')
            else:
                A(f's_mov_b32 s95, {OOB}'); A(f's_cmp_eq_u32 s{sW}, 0'); A('s_cselect_b32 s94, 128, s95')
            A(f'v_mov_b32 v246, {OOB}'); A(f'v_mov_b32 v247, s94'); A(f'v_cmp_eq_u32 vcc, 0, v{vL}'); A(f'v_cndmask_b32 v246, v246, v247, vcc')
            A(f's_mov_b32 s95, {L_DUM2}'); A(f's_cmp_eq_u32 s{sW}, 0'); A(f's_cselect_b32 s94, {L_LIM}, s95'); A('v_mov_b32 v248, s94')
            A(f'v_mov_b32 v249, {L_LIM}'); A('v_mov_b32 v247, 0'); A('ds_write_b32 v249, v247'); A('s_mov_b32 s94, 0')
            if self.kw.get('xlast'):
                assert ATT and len(XR) == 4 and L_DUM2 - L_LIM == 256
                A('ds_write_b32 v249, v247 offset:4')
                A(f'v_lshlrev_b32 v246, 2, v{vL}'); A(f'v_add_u32 v246, {L_DUM2}, v246'); A(f'v_mov_b32 v253, {L_LIM + 4}')
                A(f'v_cmp_eq_u32 vcc, 0, v{vL}'); A('v_cndmask_b32 v246, v246, v253, vcc')
            A('s_waitcnt lgkmcnt(0)'); A('v_mov_b32 v247, 1')
        A(f'v_and_b32 v{T(0)}, 1, v{vN}'); A(f'v_cmp_eq_u32 vcc, 1, v{T(0)}')
        A(f'v_mov_b32 v{T(1)}, 0x0c0c0100'); A(f'v_mov_b32 v{T(2)}, 0x01000c0c'); A(f'v_cndmask_b32 v{T(3)}, v{T(1)}, v{T(2)}, vcc')
        A(f'v_mov_b32 v{T(1)}, 0x0c0c0302'); A(f'v_mov_b32 v{T(2)}, 0x03020c0c'); A(f'v_cndmask_b32 v{T(4)}, v{T(1)}, v{T(2)}, vcc')
        A(f'v_mov_b32 v{T(1)}, 0x0000ffff'); A(f'v_mov_b32 v{T(2)}, 0xffff0000'); A(f'v_cndmask_b32 v{T(5)}, v{T(1)}, v{T(2)}, vcc')
        A(f'v_bfe_u32 v{T(0)}, v{vN}, 1, 2'); A(f'v_mov_b32 v{T(6)}, 0x0c0c0c0c')
        for jj in range(4):
            A(f'v_cmp_eq_u32 vcc, {jj}, v{T(0)}')
            A(f'v_cndmask_b32 v{vSEL+jj}, v{T(6)}, v{T(3)}, vcc'); A(f'v_cndmask_b32 v{vSEL+4+jj}, v{T(6)}, v{T(4)}, vcc')
            A(f'v_cndmask_b32 v{vMASK+jj}, 0, v{T(5)}, vcc')
        if QX:
            A(f's_lshl_b32 s{sT}, s{sW}, 11'); A(f'v_lshlrev_b32 v{T(0)}, 5, v{vL}'); A(f'v_add_u32 v{vA1}, s{sT}, v{T(0)}')
            A(f's_lshl_b32 s{sT2}, s{sJ}, 2'); A(f's_add_u32 s{sT2}, s{sT2}, s{sW}'); A(f's_lshl_b32 s{sT2}, s{sT2}, 5'); A(f's_add_u32 s{sT}, s{sT}, s{sT2}')
            A(f'v_lshrrev_b32 v{T(0)}, 3, v{vN}'); A(f'v_lshlrev_b32 v{T(0)}, 10, v{T(0)}'); A(f'v_lshl_add_u32 v{T(0)}, v{vG}, 3, v{T(0)}'); A(f'v_add_u32 v{vA2}, s{sT}, v{T(0)}')
        else:
            A(f's_lshl_b32 s{sT}, s{sW}, 10'); A(f'v_lshlrev_b32 v{T(0)}, 4, v{vL}'); A(f'v_add_u32 v{vA1}, s{sT}, v{T(0)}')
            A(f's_mul_i32 s{sT}, s{sW}, 1280'); A(f'v_lshlrev_b32 v{T(0)}, 6, v{vG}'); A(f'v_add_u32 v{vA2}, s{sT}, v{T(0)}')
        if THR:
            PSTR = self.kw.get('pstr', 4)
            GSTR = self.kw.get('gstr', 256 if PSTR == 4 else 8 * PSTR)
            A(f's_and_b32 s{sT}, s2, 3'); A(f's_lshl_b32 s{sT}, s{sT}, 3'); A(f's_lshr_b32 s{sT2}, s2, 3'); A(f's_sub_u32 s{sT2}, s{sT2}, s{sT}'); A(f's_and_b32 s{sT2}, s{sT2}, 31')
            A(f's_mul_i32 s{sT2}, s{sT2}, {GSTR}'); A(f's_add_u32 s{sT2}, s{sT2}, {WS_PROG}')
            A(f'v_mov_b32 v{vPT}, {OOB}'); A(f'v_and_b32 v{vPRO}, 7, v{vL}'); A(f'v_mul_u32_u24 v{vPRO}, {PSTR}, v{vPRO}'); A(f'v_add_u32 v{vPRO}, s{sT2}, v{vPRO}')
            A(f's_and_b32 s{sT}, s2, 7'); A(f's_mul_i32 s{sT}, s{sT}, {PSTR}'); A(f's_add_u32 s{sT}, s{sT}, s{sT2}')
            A(f'v_mov_b32 v{vPUBO}, s{sT}'); A(f'v_cmp_eq_u32 vcc, 0, v{vL}'); A(f'v_cndmask_b32 v{vPUBO}, v{vPT}, v{vPUBO}, vcc')
            A(f'v_lshlrev_b32 v{vLIMW}, 2, v{vL}'); A(f'v_add_u32 v{vLIMW}, {L_DUM2}, v{vLIMW}')
            A(f'v_mov_b32 v{vLIMR}, {L_LIM}'); A(f'v_mov_b32 v{vWIN}, {THR}')
            A(f's_cmp_eq_u32 s{sW}, 0'); A('s_cbranch_scc1 L_thw0')
            A(f'v_mov_b32 v{vPUBO}, {OOB}'); A(f'v_mov_b32 v{vPRO}, {OOB}'); A('s_branch L_thw1')
            A('L_thw0:')
            A(f'v_cndmask_b32 v{vLIMW}, v{vLIMW}, v{vLIMR}, vcc')
            A('L_thw1:')
            A(f'ds_write_b32 v{vLIMW}, v{vWIN}'); A(f'v_mov_b32 v{vLIM}, {THR}'); A(f'v_mov_b32 v{vEFF}, 0')
            for r_ in vPROG: A(f'v_mov_b32 v{r_}, 0')
        noq = self.kw.get('noq')
        if noq: A('s_branch L_noq')
        if QX and QX.get('skip'):
            L_keep = list(self.L); vm_keep = list(self.vm); done_keep = self.done; kiss_keep = kiss[0]; kcur_keep = kcur[0]; lidx_keep = dict(self.lidx)
            self.vm += [('x', False), ('wq0', False), ('wq1', False), ('wq2', False), ('wq3', False), ('E', False)]
        if self.kw.get('st2'): G.stamp(29)
        G.vmwait('x')
        if self.kw.get('st2'): G.stamp(30)
        if THR:
            G.vmop(f'buffer_load_dword v{vSNAP}, v{vPRO}, s[{rWS}:{rWS+3}], 0 offen sc1', 'snap')
        if QX:
            for _ in range(QX.get('n2', 0)): issue_k()
            X = [vQX + i for i in range(16)]
            for k in range(8):
                A(f'v_lshlrev_b32 v{X[2*k]}, 16, v{vQR+k}'); A(f'v_and_b32 v{X[2*k+1]}, 0xffff0000, v{vQR+k}')
            self.ln_stats(X, T(8), T(9), T(10), T(11), 1.0 / 512, self.half_allreduce)
            self.ln_apply(X, T(8), T(9))
            for k in range(8): A(f'v_cvt_pk_bf16_f32 v{vQR+k}, v{X[2*k]}, v{X[2*k+1]}')
            A(f'ds_write_b128 v{vA1}, v[{vQR}:{vQR+3}] offset:{L_XN2}'); A(f'ds_write_b128 v{vA1}, v[{vQR+4}:{vQR+7}] offset:{L_XN2+16}')
            for _ in range(QX.get('n3', 0)): issue_k()
            A('s_waitcnt lgkmcnt(0)')
            A(f'ds_read_b64 v[{vXP}:{vXP+1}], v{vA2} offset:{L_XN2}')
        else:
            X = [T(i) for i in range(8)]
            for k in range(4):
                A(f'v_lshlrev_b32 v{X[2*k]}, 16, v{vXR+k}'); A(f'v_and_b32 v{X[2*k+1]}, 0xffff0000, v{vXR+k}')
            self.ln_stats(X, T(8), T(9), T(10), T(11), 1.0 / 512, self.wave_allreduce)
            self.ln_apply(X, T(8), T(9))
            for k in range(4): A(f'v_cvt_pk_bf16_f32 v{vXR+k}, v{X[2*k]}, v{X[2*k+1]}')
            A(f'ds_write_b128 v{vA1}, v[{vXR}:{vXR+3}] offset:{L_XN}')
            A('s_waitcnt lgkmcnt(0)')
            for k in range(4): A(f'ds_read_b128 v[{vXP+4*k}:{vXP+4*k+3}], v{vA2} offset:{L_XN+16*k}')
        A(f's_lshl_b32 s{sT}, s{sW}, 9'); A(f'v_and_b32 v{T(0)}, 7, v{vN}'); A(f'v_lshl_add_u32 v{T(0)}, v{vG}, 5, v{T(0)}'); A(f'v_lshlrev_b32 v{T(0)}, 2, v{T(0)}')
        A(f'v_add_u32 v{vA1}, s{sT}, v{T(0)}')
        A(f'v_mov_b32 v{T(1)}, {L_DUMMY - L_OP}'); A(f'v_cmp_gt_u32 vcc, 8, v{vN}'); A(f'v_cndmask_b32 v{vOPA}, v{T(1)}, v{vA1}, vcc')
        A(f'v_lshlrev_b32 v{vA3}, 3, v{vL}')
        A('s_waitcnt lgkmcnt(0)')
        if self.kw.get('st2'): G.stamp(31)
        def delta_steps(nsteps, acc, tagf, first_zero=True):
            if self.kw.get('dpipe') and tagf is None:
                def prm(i):
                    bset = vB + 4 * (i & 1)
                    for jj in range(4):
                        A(f'v_perm_b32 v{bset+jj}, v{vXP+(i>>1)}, v{vXP+(i>>1)}, v{vSEL+4*(i&1)+jj}')
                prm(0)
                for i in range(nsteps):
                    if i + 1 < nsteps: prm(i + 1)
                    bset = vB + 4 * (i & 1); r = aW + 4 * i
                    c = '0' if i == 0 else f'v[{acc}:{acc+3}]'
                    A(f'v_mfma_f32_16x16x32_bf16 v[{acc}:{acc+3}], a[{r}:{r+3}], v[{bset}:{bset+3}], {c}')
                return
            for i in range(nsteps):
                bset = vB + 4 * (i & 1)
                for jj in range(4):
                    A(f'v_perm_b32 v{bset+jj}, v{vXP+(i>>1)}, v{vXP+(i>>1)}, v{vSEL+4*(i&1)+jj}')
                if tagf is not None and i % 4 == 0: G.vmwait(tagf(i + 3))
                r = aW + 4 * i
                c = '0' if i == 0 else f'v[{acc}:{acc+3}]'
                A(f'v_mfma_f32_16x16x32_bf16 v[{acc}:{acc+3}], a[{r}:{r+3}], v[{bset}:{bset+3}], {c}')
        if QX:
            for i in range(4):
                bset = vB + 4 * (i & 1)
                for jj in range(4):
                    A(f'v_perm_b32 v{bset+jj}, v{vXP+(i>>1)}, v{vXP+(i>>1)}, v{vSEL+4*(i&1)+jj}')
                G.vmwait(f'wq{i}')
                c = '0' if i == 0 else f'v[{vDQ}:{vDQ+3}]'
                A(f'v_mfma_f32_16x16x32_bf16 v[{vDQ}:{vDQ+3}], a[{aW+4*i}:{aW+4*i+3}], v[{bset}:{bset+3}], {c}')
            A(f's_lshl_b32 s{sT}, s{sW}, 10'); A(f'v_and_b32 v{T(0)}, 7, v{vN}'); A(f'v_lshl_add_u32 v{T(0)}, v{vG}, 5, v{T(0)}'); A(f'v_lshlrev_b32 v{T(0)}, 2, v{T(0)}')
            A(f'v_lshrrev_b32 v{T(1)}, 3, v{vN}'); A(f'v_lshl_add_u32 v{T(0)}, v{T(1)}, 9, v{T(0)}'); A(f'v_add_u32 v{T(0)}, s{sT}, v{T(0)}')
            A(f's_lshl_b32 s{sT}, s{sW}, 8'); A(f'v_add_u32 v{T(1)}, s{sT}, v{vA3}')
            for i in range(4): A(f'ds_write_b32 v{T(0)}, v{vDQ+i} offset:{L_XN + 32*i}')
            for _ in range(QX.get('n4', 0)): issue_k()
            A('s_waitcnt lgkmcnt(0)'); A('s_barrier')
            for w in range(4): A(f'ds_read_b64 v[{T(2*w+2)}:{T(2*w+3)}], v{T(1)} offset:{L_XN + 1024*w}')
            G.vmwait('E')
            A(f'v_add_u32 v{vTG}, 0x9e3779b9, v{vEW}'); A(f'v_add_u32 v{vTG+1}, 0x7f4a7c15, v{vEW+1}')
            A('s_waitcnt lgkmcnt(0)')
            A(f'v_pk_add_f32 v[{T(2)}:{T(3)}], v[{T(2)}:{T(3)}], v[{T(4)}:{T(5)}]'); A(f'v_pk_add_f32 v[{T(6)}:{T(7)}], v[{T(6)}:{T(7)}], v[{T(8)}:{T(9)}]')
            A(f'v_pk_add_f32 v[{T(2)}:{T(3)}], v[{T(2)}:{T(3)}], v[{T(6)}:{T(7)}]')
            A(f'v_mov_b32 v{T(4)}, v{vTG}'); A(f'v_mov_b32 v{T(5)}, v{vTG+1}')
            G.vmop(f'buffer_store_dwordx4 v[{T(2)}:{T(5)}], v{vQS}, s[{rWS}:{rWS+3}], 0 offen sc1', 'qst')
            G.stamp(10)
            for _ in range(QX.get('n4b', 0)): issue_k()
            Wq, Pq, polls = QX['W'], QX['P'], list(QX['polls'])
            def q_poll(lab, firm):
                if not firm: A(f's_cmp_eq_u32 s{sQ}, 1'); A(f's_cbranch_scc1 {lab}')
                G.vmop(f'buffer_load_dwordx4 v[{vQP}:{vQP+3}], v{vQL}, s[{rWS}:{rWS+3}], 0 offen sc1', 'qpoll', not firm)
                G.vmop(f'buffer_load_dwordx4 v[{vQP+4}:{vQP+7}], v{vQL}, s[{rWS}:{rWS+3}], 0 offen offset:2048 sc1', 'qpoll', not firm)
                if not firm: A(f'{lab}:')
                return len(G.vm) - 1
            def q_cmp():
                A(f'v_cmp_ne_u32 vcc, v{vTG}, v{vQP+2}'); A(f'v_cmp_ne_u32 s[{sM}:{sM+1}], v{vTG+1}, v{vQP+3}'); A(f's_or_b64 vcc, vcc, s[{sM}:{sM+1}]')
                A(f'v_cmp_ne_u32 s[{sM}:{sM+1}], v{vTG}, v{vQP+6}'); A(f's_or_b64 vcc, vcc, s[{sM}:{sM+1}]')
                A(f'v_cmp_ne_u32 s[{sM}:{sM+1}], v{vTG+1}, v{vQP+7}'); A(f's_or_b64 vcc, vcc, s[{sM}:{sM+1}]')
                if QX.get('fake'): A('s_mov_b64 vcc, 0')
            def q_check(lab, idx):
                A(f's_cmp_eq_u32 s{sQ}, 1'); A(f's_cbranch_scc1 {lab}')
                n = sum(1 for (t_, o_) in G.vm[idx + 1:] if not o_)
                A(f's_waitcnt vmcnt({n})')
                q_cmp()
                A(f's_cbranch_vccnz {lab}'); A(f's_mov_b32 s{sQ}, 1')
                A(f'{lab}:')
            pend = None; nq = 0
            while True:
                m = kiss[0]
                if pend is not None and (m >= pend[0] or m >= Pq):
                    q_check(f'L_qc{nq}', pend[1]); pend = None
                if polls and polls[0] <= m and pend is None:
                    polls.pop(0); nq += 1
                    pend = (m + QX.get('d', Wq), q_poll(f'L_qp{nq}', nq == 1))
                    continue
                if m >= Pq: break
                if m - Wq >= 0: G.vmwait_idx(G.lidx[m - Wq])
                issue_k()
            A(f's_cmp_eq_u32 s{sQ}, 1'); A('s_cbranch_scc1 L_qok')
            A(f's_mov_b32 s{sSpin}, {self.spin}')
            G.stamp(12)
            A('L_qspin:')
            A(f'buffer_load_dwordx4 v[{vQP}:{vQP+3}], v{vQL}, s[{rWS}:{rWS+3}], 0 offen sc1')
            A(f'buffer_load_dwordx4 v[{vQP+4}:{vQP+7}], v{vQL}, s[{rWS}:{rWS+3}], 0 offen offset:2048 sc1')
            A('s_waitcnt vmcnt(0)')
            q_cmp()
            A('s_cbranch_vccz L_qok')
            A(f's_sub_u32 s{sSpin}, s{sSpin}, 1'); A('s_cbranch_scc0 L_qspin')
            A('L_qok:')
            G.stamp(11)
            A(f'v_pk_add_f32 v[{vQP}:{vQP+1}], v[{vQP}:{vQP+1}], v[{vQP+4}:{vQP+5}]')
            A(f's_lshl_b32 s{sT}, s{sW}, 9'); A(f'v_add_u32 v{T(0)}, s{sT}, v{vA3}')
            A(f'ds_write_b64 v{T(0)}, v[{vQP}:{vQP+1}] offset:{L_QP}')
            for _ in range(QX.get('n5', 0)): issue_k()
        elif PRO:
            for i in range(32):
                bset = vB + 4 * (i & 1)
                for jj in range(4):
                    A(f'v_perm_b32 v{bset+jj}, v{vXP+(i>>1)}, v{vXP+(i>>1)}, v{vSEL+4*(i&1)+jj}')
                idx = max(k for k, (t_, o_) in enumerate(G.vm) if t_ == f'wq{i}')
                G.vmwait_idx(idx)
                while len(G.vm) - 1 - idx < Wp and pro_next(): pass
                r = aW + 4 * i
                c = '0' if i == 0 else f'v[{vDQ}:{vDQ+3}]'
                A(f'v_mfma_f32_16x16x32_bf16 v[{vDQ}:{vDQ+3}], a[{r}:{r+3}], v[{bset}:{bset+3}], {c}')
            for _ in range(self.kw.get('kq', 0)): issue_k()
        else:
            delta_steps(32, vDQ, lambda i: f'wq{min(i, 3) if self.nowq else i}')
        if not QX:
            for i in range(4): A(f'ds_write_b32 v{vA1}, v{vDQ+i} offset:{L_QP + 32*i}')
        if self.kw.get('wbal'):
            A(f's_lshl_b32 s{sT2}, s{sW}, 8'); A(f'v_lshlrev_b32 v246, 2, v{vL}'); A(f'v_add_u32 v246, s{sT2}, v246')
            A(f'v_and_b32 v247, 3, v{vL}'); A(f'v_lshlrev_b32 v247, 8, v247'); A('v_mov_b32 v248, %d' % ((self.kw['wbal'][2] - self.kw['wlean']) if self.kw.get('wlean') else 0)); A(f'ds_write_b32 v246, v248 offset:{L_PRG}')
            if self.kw.get('wlean'): A('v_mov_b32 v248, %d' % self.kw['wlean'])
        A('s_waitcnt lgkmcnt(0)'); A('s_barrier')
        A(f's_cmp_eq_u32 s{sW}, 0'); A('s_cbranch_scc0 L_c1')
        A(f'v_mov_b32 v{T(0)}, 1'); A(f'v_mov_b32 v{T(1)}, {OOB}'); A(f'v_cmp_eq_u32 vcc, 0, v{vL}'); A(f'v_cndmask_b32 v{T(1)}, v{T(1)}, 0, vcc')
        if not self.kw.get('noatom') and not self.kw.get('atsp'): G.vmop(f'buffer_atomic_add v{T(0)}, v{T(1)}, s[{rDBG}:{rDBG+3}], 0 offen', 'atom', True)
        A('L_c1:')
        for w in range(4): A(f'ds_read_b64 v[{T(2*w+2)}:{T(2*w+3)}], v{vA3} offset:{L_QP + 512*w}')
        if noq:
            A('L_noq:')
            A(f's_cmp_eq_u32 s{sW}, 0'); A('s_cbranch_scc0 L_c1b')
            A(f'v_mov_b32 v{T(0)}, 1'); A(f'v_mov_b32 v{T(1)}, {OOB}'); A(f'v_cmp_eq_u32 vcc, 0, v{vL}'); A(f'v_cndmask_b32 v{T(1)}, v{T(1)}, 0, vcc')
            if not self.kw.get('noatom'): A(f'buffer_atomic_add v{T(0)}, v{T(1)}, s[{rDBG}:{rDBG+3}], 0 offen')
            A('L_c1b:')
        LOOK = self.kw.get('look', RING); LOOKV = self.kw.get('lookv', LOOK)
        nxt = [self.pre]
        def issue_upto(u_hi):
            while nxt[0] <= min(u_hi, 63):
                unit_loads(nxt[0]); nxt[0] += 1
        if PRO or QX:
            while kiss[0] < self.kw.get('topup', 0): issue_k()
        else: issue_upto(LOOK - 1)
        SL = self.kw.get('slide'); SLV = self.kw.get('slidev', SL)
        nxl = [kiss[0] if (PRO or QX) else 4 * nxt[0]]
        m0_ = nxl[0]
        import math
        def lagof(m):
            f = SL if m < 128 else SLV
            eb = self.kw.get('eb')
            if eb and m >= 128 + 4 * eb[0]: f = eb[1]
            kb = self.kw.get('kb')
            if kb and m < 128 and m >= 4 * kb[0]: f = kb[1]
            rp = self.kw.get('ramp')
            if rp and m < 128:
                f = max(f, min(31, int(rp[0] - rp[1] * (m - m0_))))
            if isinstance(f, int) or float(f).is_integer(): return int(f)
            g = int(m // f)
            return int(math.floor((g + 1) * f) - math.floor(g * f))
        WB = self.kw.get('wbal')
        vPW, vPR, vPJ, vPQ, vPX, vPN = 246, 247, 248, 249, 253, 254
        sPA, sPB = 94, 95
        wb_live = [False]; wb_n = [0]
        BB = self.kw.get('wbb')
        def cond_waits(m, j):
            if XR and m >= 128 and lagof(m) == SLV and m - SLV == j:
                def cnt_(idx): return sum(1 for (t_, o_) in G.vm[idx + 1:] if not o_)
                wb_n[0] += 1; lab = f'L_xr{wb_n[0]}'
                lv = XR[1]
                assert lv[0][1] == SLV
                for k_, (th_, w_) in enumerate(lv):
                    nw = lv[k_ + 1][1] if k_ + 1 < len(lv) else SL
                    if isinstance(th_, tuple): th_ = th_[m & 1]
                    A(f's_cmp_ge_u32 s94, {th_}'); A(f's_cbranch_scc1 {lab}'); A(f's_waitcnt vmcnt({cnt_(G.lidx[m - nw])})')
                A(f'{lab}:')
                return
            if not (WB and wb_live[0] and lagof(m) == SL and m - SL == j): return
            def cnt(idx): return sum(1 for (t_, o_) in G.vm[idx + 1:] if not o_)
            i5, i4 = G.lidx[m - SL + 1], G.lidx[m - SL + 2]
            wb_n[0] += 1; lab = f'L_wb{wb_n[0]}'
            A(f's_cbranch_vccnz {lab}'); A(f's_waitcnt vmcnt({cnt(i5)})')
            if WB[1]: A(f's_cbranch_scc{1 if BB else 0} {lab}'); A(f's_waitcnt vmcnt({cnt(i4)})')
            A(f'{lab}:')
        WL = self.kw.get('wlean')
        def wb_step(j):
            if not WB: return
            if WL:
                assert self.kw.get('wpost') and WB[2] % WL == 0
                last = 128 + 4 * self.kw['eb'][0] - SL
                if j >= WB[2] and j < last:
                    if j % WL == 0:
                        A(f'ds_add_u32 v{vPW}, v{vPJ} offset:{L_PRG}'); A(f'ds_read_b32 v{vPQ}, v{vPR} offset:{L_PRG}')
                    if j % WL == 1 % WL:
                        A('s_waitcnt lgkmcnt(0)'); A(f'v_cmp_le_u32 vcc, {j - 1 + WB[0]}, v{vPQ}')
                        wb_live[0] = True
                else: wb_live[0] = False
                return
            live = j >= WB[2] and j < 128 + 4 * self.kw['eb'][0] - SL
            if live and j % 2 == 0:
                A('s_waitcnt lgkmcnt(0)')
                A(f'v_max_u32_dpp v{vPX}, v{vPQ}, v{vPQ} quad_perm:[1,0,3,2] row_mask:0xf bank_mask:0xf')
                if WB[1] and not BB: A(f'v_min_u32_dpp v{vPN}, v{vPQ}, v{vPQ} quad_perm:[1,0,3,2] row_mask:0xf bank_mask:0xf')
                A(f'v_max_u32_dpp v{vPX}, v{vPX}, v{vPX} quad_perm:[2,3,0,1] row_mask:0xf bank_mask:0xf')
                if WB[1] and not BB: A(f'v_min_u32_dpp v{vPN}, v{vPN}, v{vPN} quad_perm:[2,3,0,1] row_mask:0xf bank_mask:0xf')
                A(f'v_readfirstlane_b32 s{sPA}, v{vPX}')
                if WB[1] and not BB: A(f'v_readfirstlane_b32 s{sPB}, v{vPN}')
                if BB:
                    A(f's_cmp_ge_u32 s{sPA}, {j + WB[1]}'); A('s_cselect_b64 vcc, -1, 0'); A(f's_cmp_ge_u32 s{sPA}, {j + WB[0]}')
                else: A(f's_cmp_ge_u32 s{sPA}, {j + WB[0]}')
                if BB: pass
                elif WB[1]:
                    A(f's_cselect_b32 s{sPA}, 0, 1'); A(f's_cmp_le_u32 s{sPB}, {j - WB[1]}'); A(f's_addc_u32 s{sPA}, s{sPA}, 0')
                    A(f's_cmp_eq_u32 s{sPA}, 0'); A('s_cselect_b64 vcc, -1, 0'); A(f's_cmp_eq_u32 s{sPA}, 2')
                else: A('s_cselect_b64 vcc, -1, 0')
            wb_live[0] = live if not self.kw.get('wpost') else (live and (j % 2 == 0 or wb_live[0]))
            if j >= WB[2] - 2 and j < 128 + 4 * self.kw['eb'][0] - SL:
                A(f'v_mov_b32 v{vPJ}, {j}'); A(f'ds_write_b32 v{vPW}, v{vPJ} offset:{L_PRG}')
                if j % 2 == 1: A(f'ds_read_b32 v{vPQ}, v{vPR} offset:{L_PRG}')
        def slide_issue(j, boost=0):
            while nxl[0] <= 255 and (nxl[0] - lagof(nxl[0]) <= j or nxl[0] <= j + boost):
                m = nxl[0]; u_, q_ = m // 4, m % 4
                ap = self.kw.get('apace')
                if ap and not boost and m < 128 and m - ap > j and not (WB and lagof(m) == SL): G.vmwait_idx(G.lidx[m - ap])
                if not (boost and self.kw.get('xr')): cond_waits(m, j)
                load_one(u_, q_, u_ != slide_issue.cur); slide_issue.cur = u_
                nxl[0] += 1
        slide_issue.cur = None
        prog_k = [0]
        def prog_reduce(src):
            A(f'v_cmp_ne_u32 vcc, v{src}, v{vSNAP}'); A(f'v_cndmask_b32 v{vPT}, 0, v{src}, vcc'); A(f'v_max_u32 v{vEFF}, v{vEFF}, v{vPT}')
            A(f'v_min_u32_dpp v{vPT}, v{vEFF}, v{vEFF} row_ror:1 row_mask:0xf bank_mask:0xf')
            for r_ in (2, 4): A(f'v_min_u32_dpp v{vPT}, v{vPT}, v{vPT} row_ror:{r_} row_mask:0xf bank_mask:0xf')
            A(f'v_add_u32 v{vPT}, v{vWIN}, v{vPT}')
            A(f'ds_write_b32 v{vLIMW}, v{vPT}')
        def throttled_issue(g, u_hi):
            u_hi = min(u_hi, 63)
            if not THR: issue_upto(u_hi); return
            need_gate = u_hi >= nxt[0] and u_hi > THR
            if need_gate:
                lab = f'L_th{g}'
                A('s_waitcnt lgkmcnt(0)'); A(f'v_readfirstlane_b32 s{sLim}, v{vLIM}')
                A(f's_cmp_ge_u32 s{sLim}, {u_hi}'); A(f's_cbranch_scc1 {lab}_ok')
                A(f's_mov_b32 s{sSp2}, 4096')
                A(f'{lab}:')
                A(f's_cmp_eq_u32 s{sW}, 0'); A(f's_cbranch_scc0 {lab}_w')
                A(f'buffer_load_dword v{vPV}, v{vPRO}, s[{rWS}:{rWS+3}], 0 offen sc1'); A('s_waitcnt vmcnt(0)')
                prog_reduce(vPV)
                A(f'{lab}_w:')
                A(f'ds_read_b32 v{vLIM}, v{vLIMR}'); A('s_waitcnt lgkmcnt(0)'); A(f'v_readfirstlane_b32 s{sLim}, v{vLIM}')
                A(f's_cmp_ge_u32 s{sLim}, {u_hi}'); A(f's_cbranch_scc1 {lab}_ok')
                A(f's_sub_u32 s{sSp2}, s{sSp2}, 1'); A(f's_cbranch_scc0 {lab}')
                A(f'v_mov_b32 v{vWIN}, 0x100000')
                A(f'{lab}_ok:')
            more = nxt[0] <= 63 or True
            last_gate = 63 - 1
            do_chk = (g % CHK == 0) and nxt[0] < 63
            if do_chk:
                k = prog_k[0]
                G.vmop(f'buffer_load_dword v{vPROG[k & 1]}, v{vPRO}, s[{rWS}:{rWS+3}], 0 offen sc1', f'prog{k}')
            if g % self.kw.get('pubn', 1) == 0 and g < 63 - 2:
                A(f'v_mov_b32 v{vPV}, {g + 1}')
                G.vmop(f'buffer_store_dword v{vPV}, v{vPUBO}, s[{rWS}:{rWS+3}], 0 offen sc1', 'pub')
            issue_upto(u_hi)
            if do_chk:
                k = prog_k[0]
                if k > 0:
                    G.vmwait(f'prog{k-1}')
                    prog_reduce(vPROG[(k - 1) & 1])
                prog_k[0] += 1
            if nxt[0] <= 63: A(f'ds_read_b32 v{vLIM}, v{vLIMR}')
        A(f's_lshl_b32 s{sT}, s{sW}, 8'); A(f'v_lshlrev_b32 v{T(0)}, 2, v{vL}'); A(f'v_add_u32 v{T(0)}, s{sT}, v{T(0)}')
        A(f'v_lshrrev_b32 v{T(1)}, 3, v{vN}'); A(f'v_lshlrev_b32 v{T(1)}, 6, v{T(1)}'); A(f'v_lshl_add_u32 v{T(1)}, v{vG}, 4, v{T(1)}'); A(f'v_add_u32 v{T(1)}, s{sT}, v{T(1)}')
        A('s_waitcnt lgkmcnt(0)')
        A(f'v_pk_add_f32 v[{T(2)}:{T(3)}], v[{T(2)}:{T(3)}], v[{T(4)}:{T(5)}]'); A(f'v_pk_add_f32 v[{T(6)}:{T(7)}], v[{T(6)}:{T(7)}], v[{T(8)}:{T(9)}]')
        A(f'v_pk_add_f32 v[{T(2)}:{T(3)}], v[{T(2)}:{T(3)}], v[{T(6)}:{T(7)}]')
        A(f'v_cvt_pk_bf16_f32 v{T(2)}, v{T(2)}, v{T(3)}')
        A(f'ds_write_b32 v{T(0)}, v{T(2)} offset:{L_QB}')
        A('s_waitcnt lgkmcnt(0)')
        A(f'ds_read_b128 v[{vBQ}:{vBQ+3}], v{T(1)} offset:{L_QB}'); A(f'ds_read_b128 v[{vBQ+4}:{vBQ+7}], v{T(1)} offset:{L_QB+128}')
        A(f'v_mov_b32 v{vMX}, 0xff800000')
        for i in range(8): A(f'v_mov_b32 v{vO+i}, 0')
        A('s_waitcnt lgkmcnt(0)')
        G.stamp(1)
        if QX and QX.get('skip'):
            self.L[:] = L_keep; self.vm[:] = vm_keep; self.done = done_keep; kiss[0] = kiss_keep; kcur[0] = kcur_keep; self.lidx = lidx_keep
            nxl[0] = kiss[0]; m0_ = nxl[0]
            for i in range(8): A(f'v_mov_b32 v{vBQ+i}, 0'); A(f'v_mov_b32 v{vO+i}, 0')
            A(f'v_mov_b32 v{vMX}, 0xff800000')
            A(f's_lshl_b32 s{sT}, s{sW}, 9'); A(f'v_and_b32 v{T(0)}, 7, v{vN}'); A(f'v_lshl_add_u32 v{T(0)}, v{vG}, 5, v{T(0)}'); A(f'v_lshlrev_b32 v{T(0)}, 2, v{T(0)}')
            A(f'v_add_u32 v{vA1}, s{sT}, v{T(0)}')
            A(f'v_mov_b32 v{T(1)}, {L_DUMMY - L_OP}'); A(f'v_cmp_gt_u32 vcc, 8, v{vN}'); A(f'v_cndmask_b32 v{vOPA}, v{T(1)}, v{vA1}, vcc')
            A(f'v_lshlrev_b32 v{vA3}, 3, v{vL}')
            A(f'v_mov_b32 v{vTG}, 0'); A(f'v_mov_b32 v{vTG+1}, 0')
            G.stamp(1)
        if self.kw.get('qonly'): A('s_branch L_fin')
        if self.stop == 'q':
            return self.finish_debug([vBQ + i for i in range(8)])

        wo_loads = []
        for i in range(32):
            r = aW + 4 * i
            wo_loads.append((i // 4 * 4096, f'buffer_load_dwordx4 a[{r}:{r+3}], v{vWO}, s[{rWO}:{rWO+3}], s{sT} offen offset:{(i%4)*1024} {wnt}', f'wo{i}'))
        if W2:
            wo_loads = []
            for k in range(32):
                c_, e_ = k >> 3, ((k & 7) >> 1) + 4 * (k & 1)
                r = aW + 4 * (8 * c_ + e_)
                wo_loads.append(((32 * c_ + 8 * (e_ & 3)) * 1024, f'buffer_load_dwordx4 a[{r}:{r+3}], v{vWO}, s[{rWO}:{rWO+3}], s{sT} offen offset:{(e_>>2)*1024} {wnt}', f'wo{k}'))
        tr_items = []
        for c_ in range(4 if W2 else 0):
            b_ = aW + 32 * c_
            for ep in range(4):
                for p_ in range(ep, 4):
                    it = []
                    prs = [(ep, p_)] if ep == p_ else [(ep, p_), (p_, ep)]
                    for q_, (x_, y_) in enumerate(prs):
                        it += [f'v_accvgpr_read_b32 v{T(4*q_)}, a{b_+8*x_+y_}', f'v_accvgpr_read_b32 v{T(4*q_+1)}, a{b_+8*x_+4+y_}']
                    for q_, (x_, y_) in enumerate(prs):
                        it += [f'v_perm_b32 v{T(4*q_+2)}, v{T(4*q_+1)}, v{T(4*q_)}, s{sPK}', f'v_perm_b32 v{T(4*q_+3)}, v{T(4*q_+1)}, v{T(4*q_)}, s100']
                    for q_, (x_, y_) in enumerate(prs):
                        it += [f'v_accvgpr_write_b32 a{b_+8*y_+x_}, v{T(4*q_+2)}', f'v_accvgpr_write_b32 a{b_+8*y_+4+x_}, v{T(4*q_+3)}']
                    tr_items.append(it)
        tr_done = [0, 0]
        def emit_tr(upto):
            while tr_done[0] < len(tr_items) and tr_done[1] < upto:
                if tr_done[0] == 0: G.vmwait_idx(max(i_ for i_, (t_, o_) in enumerate(G.vm) if t_ == 'wo31'))
                for x_ in tr_items[tr_done[0]]: A(x_)
                tr_done[1] += len(tr_items[tr_done[0]]); tr_done[0] += 1
        def emit_wo(k0, k1):
            for k in range(k0, k1):
                if W2:
                    so, s, tag = wo_loads[k]
                    if k == k0 or k % 2 == 0: A(f's_mov_b32 s{sT}, {so}')
                    G.vmop(s, tag); continue
                so, s, tag = wo_loads[k]
                if self.kw.get('wotiny'): so = 0
                if k == k0 or k % 4 == 0: A(f's_mov_b32 s{sT}, {so}')
                G.vmop(s, tag)
        EX = self.kw.get('exact', False)
        def emit_role_loads(part):
            lab = f'L_rl{part}'
            if part < 16:
                if not EX: A(f's_cmp_eq_u32 s{sRole}, 1'); A(f's_cbranch_scc0 {lab}')
                s_ = part // 4; e3 = part % 4
                A(f's_mov_b32 s{sT}, {(32*s_ + 8*e3)*3584}')
                for eh in (0, 1):
                    e = e3 + 4 * eh
                    G.vmop(f'buffer_load_ushort v{vR + 8*s_ + e}, v{vWOFF1}, s[{rW1}:{rW1+3}], s{sT} offen offset:{eh*3584} {wnt}', 'w1g', not EX)
                if not EX: A(f'{lab}:')
            else:
                if not EX: A(f's_cmp_eq_u32 s{sRole}, 1'); A(f's_cbranch_scc0 {lab}a')
                for ii in range(4):
                    G.vmop(f'buffer_load_dwordx4 v[{vW2+4*ii}:{vW2+4*ii+3}], v{vWOFF2}, s[{rW2}:{rW2+3}], 0 offen offset:{ii*1024} {wnt}', 'w2l', not EX)
                G.vmop(f'buffer_load_ushort v{vB1}, v{vB1OFF}, s[{rB1}:{rB1+3}], 0 offen', 'b1l', not EX)
                if not EX:
                    A(f'{lab}a:')
                    A(f's_cmp_eq_u32 s{sRole}, 2'); A(f's_cbranch_scc0 {lab}b')
                G.vmop(f'buffer_load_ushort v{vXV}, v{vXO2 if W2 else vXOFF}, s[{rX}:{rX+3}], 0 offen', 'xv', not EX)
                G.vmop(f'buffer_load_ushort v{vB2V}, v{vB2OFF}, s[{rB2}:{rB2+3}], 0 offen', 'b2l', not EX)
                if not EX: A(f'{lab}b:')
        def kproc(t):
            if self.kw.get('novalu'): return
            D0 = vD + 8 * (t & 1); D1 = D0 + 4
            sA, sB_ = T(0), T(1)
            A(f'v_add_f32_dpp v{sA}, v{D0+1}, v{D0} row_ror:8 row_mask:0xf bank_mask:0x3')
            A(f'v_add_f32_dpp v{sB_}, v{D0+3}, v{D0+2} row_ror:8 row_mask:0xf bank_mask:0x3')
            A(f'v_add_f32_dpp v{sA}, v{D1}, v{D1+1} row_ror:8 row_mask:0xf bank_mask:0xc')
            A(f'v_add_f32_dpp v{sB_}, v{D1+2}, v{D1+3} row_ror:8 row_mask:0xf bank_mask:0xc')
            A(f'v_cvt_pk_bf16_f32 v{T(2)}, v{sA}, v{sB_}')
            A(f'v_max3_f32 v{vMX}, v{vMX}, v{sA}, v{sB_}')
            A(f'v_lshlrev_b32 v{T(3)}, 16, v{T(2)}'); A(f'v_and_b32 v{T(4)}, 0xffff0000, v{T(2)}')
            A(f'v_mul_f32 v{T(3)}, {SCALE}, v{T(3)}'); A(f'v_mul_f32 v{T(4)}, {SCALE}, v{T(4)}')
            A(f'v_cvt_pk_bf16_f32 v{vS+t}, v{T(3)}, v{T(4)}')
        if SL: slide_issue(-1)
        for t in range(32):
            u = t
            D0 = vD + 8 * (t & 1); D1 = D0 + 4
            r = (u % RING) * 16
            mf = [f'v_mfma_f32_16x16x32_bf16 v[{D0}:{D0+3}], a[{r}:{r+3}], v[{vBQ}:{vBQ+3}], 0',
                  f'v_mfma_f32_16x16x32_bf16 v[{D1}:{D1+3}], a[{r+4}:{r+7}], v[{vBQ}:{vBQ+3}], 0',
                  f'v_mfma_f32_16x16x32_bf16 v[{D0}:{D0+3}], a[{r+8}:{r+11}], v[{vBQ+4}:{vBQ+7}], v[{D0}:{D0+3}]',
                  f'v_mfma_f32_16x16x32_bf16 v[{D1}:{D1+3}], a[{r+12}:{r+15}], v[{vBQ+4}:{vBQ+7}], v[{D1}:{D1+3}]']
            if SL:
                for q in range(4):
                    j = 4 * u + q
                    G.vmwait_idx(G.lidx[j])
                    if not self.kw.get('wpost'): wb_step(j)
                    if XR and t == XR[3] and q == 3:
                        if self.kw.get('xlast'):
                            A('ds_add_rtn_u32 v253, v246, v247'); A('s_waitcnt lgkmcnt(0)'); A('v_readfirstlane_b32 s95, v253')
                            A('s_cmp_eq_u32 s95, 3'); A(f's_cselect_b32 vcc_lo, 0, {OOB}'); A(f'v_max_u32 v{vATO}, vcc_lo, v{vATO}')
                            A('s_cselect_b32 vcc_lo, 0, 256'); A('v_mov_b32 v248, vcc_lo'); A(f'v_add_u32 v248, {L_LIM}, v248')
                        G.vmop(f'buffer_atomic_add v247, v{vATO if ATT else 246}, s[{rDBG}:{rDBG+3}], 0 offen sc0', 'xrk')
                    slide_issue(j, self.kw.get('sboost', 0) if (t == 31 and q == 3) else 0)
                    A(mf[q])
                    if self.kw.get('wpost'): wb_step(j)
            else:
                G.vmwait(f'u{u}')
                for m_ in mf: A(m_)
                throttled_issue(u, u + (self.kw.get('boost', LOOK) if t >= 32 - self.kw.get('boostn', 1) else LOOK))
            if ATT and t == 31 and not XR:
                G.vmop(f'buffer_atomic_add v{vONE}, v{vATO}, s[{rDBG}:{rDBG+3}], 0 offen', 'atom')
            if self.kw.get('atsp') and t < 16 and not ATT:
                A(f's_cmp_eq_u32 s{sAt}, {t}'); A(f's_cbranch_scc0 L_at{t}')
                G.vmop(f'buffer_atomic_add v{vONE}, v{vATO}, s[{rDBG}:{rDBG+3}], 0 offen', 'atom', True)
                A(f'L_at{t}:')
            wt0, wper = self.kw.get('wot', (2, 2))
            if not self.nowo and t >= wt0 and wper * (t - wt0) < 32: emit_wo(wper * (t - wt0), min(32, wper * (t - wt0 + 1)))
            if t in (7, 15, 23): G.stamp(16 + t // 8)
            if self.kw.get('st4'): A('s_memrealtime s[96:97]'); A('s_waitcnt lgkmcnt(0)'); A('v_writelane_b32 v252, s96, %d' % t)
            if t == 27 and not self.kw.get('nocnt') and not ATT:
                A(f'v_mov_b32 v{T(5)}, 0')
                G.vmop(f'buffer_load_dword v{vCNT}, v{T(5)}, s[{rDBG}:{rDBG+3}], 0 offen sc1', 'cnt')
            if t > 0: kproc(t - 1)
        kproc(31)
        G.stamp(2)
        self.wave_allreduce('max', vMX, T(0))
        G.rbf(vM, vMX); A(f'v_mul_f32 v{vM}, {SCALE}, v{vM}'); G.rbf(vM)
        A(f'v_mul_f32 v{vNM}, {LOG2E}, v{vM}'); A(f'v_sub_f32 v{vNM}, 0, v{vNM}')
        A(f's_mov_b32 s{sT2}, {LOG2E}')
        A(f'v_mov_b32 v{vLS}, 0')
        for t in range(0 if self.kw.get('notrans') else 32):
            a, b = T(2 * (t & 1)), T(2 * (t & 1) + 1)
            A(f'v_lshlrev_b32 v{a}, 16, v{vS+t}'); A(f'v_and_b32 v{b}, 0xffff0000, v{vS+t}')
            A(f'v_fma_f32 v{a}, v{a}, s{sT2}, v{vNM}'); A(f'v_fma_f32 v{b}, v{b}, s{sT2}, v{vNM}')
            A(f'v_exp_f32 v{a}, v{a}'); A(f'v_exp_f32 v{b}, v{b}')
            A(f'v_add_f32 v{vLS}, v{vLS}, v{a}'); A(f'v_cvt_pk_bf16_f32 v{vS+t}, v{a}, v{b}'); A(f'v_add_f32 v{vLS}, v{vLS}, v{b}')
        self.wave_allreduce('add', vLS, T(0))
        A(f'v_mul_f32 v{vLS}, 0.125, v{vLS}') if False else A(f'v_mul_f32 v{vLS}, 0x3e000000, v{vLS}')
        A(f'v_mov_b32 v{T(0)}, v{vM}'); A(f'v_mov_b32 v{T(1)}, v{vLS}')
        if not self.kw.get('nocnt'):
            G.vmop(f'buffer_store_dwordx2 v[{T(0)}:{T(1)}], v{vMLp}, s[{rWS}:{rWS+3}], 0 offen sc1', 'mlst')
            if not ATT: G.vmwait('cnt')
        else: A('s_branch L_cnt_ok')
        def cnt_addr():
            if XR:
                A(f'v_lshlrev_b32 v{T(5)}, 5, v{vL}'); A(f'v_mov_b32 v{T(6)}, {OOB}'); A(f'v_cmp_gt_u32 vcc, 4, v{vL}'); A(f'v_cndmask_b32 v{T(5)}, v{T(6)}, v{T(5)}, vcc')
            else: A(f'v_lshlrev_b32 v{T(5)}, 6, v{vL}')
        def cnt_check():
            A(f's_mov_b32 s{sSpin}, {self.spin}')
            A('L_cnt:')
            if ATT:
                A(f'v_cmp_gt_u32 vcc, 64, v{vCNT}'); A('s_and_b32 vcc_lo, vcc_lo, 15'); A('s_cbranch_scc0 L_cnt_ok')
            else:
                A(f'v_readfirstlane_b32 s{sT}, v{vCNT}')
                A(f's_cmp_ge_u32 s{sT}, 256'); A('s_cbranch_scc1 L_cnt_ok')
            A(f's_sub_u32 s{sSpin}, s{sSpin}, 1'); A('s_cbranch_scc1 L_cnt_ok')
            if ATT: cnt_addr()
            else: A(f'v_mov_b32 v{T(5)}, 0')
            A(f'buffer_load_dword v{vCNT}, v{T(5)}, s[{rDBG}:{rDBG+3}], 0 offen sc1'); A('s_waitcnt vmcnt(0)')
            A('s_branch L_cnt')
            A('L_cnt_ok:')
            if QX:
                A(f's_cmp_lt_u32 s2, 32'); A('s_cbranch_scc0 L_eup'); A(f's_cmp_eq_u32 s{sW}, 0'); A('s_cbranch_scc0 L_eup')
                A(f'v_mov_b32 v{T(0)}, {OOB}'); A(f'v_cmp_eq_u32 vcc, 0, v{vL}'); A(f'v_cndmask_b32 v{T(0)}, v{T(0)}, v{vQE}, vcc')
                G.vmop(f'buffer_store_dwordx2 v[{vTG}:{vTG+1}], v{T(0)}, s[{rWS}:{rWS+3}], 0 offen sc1', 'eup', True)
                A('L_eup:')
        if not ATT: cnt_check()
        G.stamp(3)
        dl = self.kw.get('delay')
        if dl:
            which, n = dl
            A(f's_cmp_lt_u32 s{sBH}, 8'); A('s_cbranch_scc%d L_nodelay' % (0 if which == 'slow' else 1))
            for _ in range(n): A('s_sleep 64')
            A('L_nodelay:')
        def vprep(t):
            if self.kw.get('novalu'): return
            for ab in range(2):
                bs = vB + 8 * (t & 1) + 4 * ab
                for jj in range(4):
                    A(f'v_perm_b32 v{bs+jj}, v{vS+t}, v{vS+t}, v{vSEL+4*ab+jj}')
        def ml_compute():
            A(f'v_mov_b32 v{T(10)}, v{vML0}')
            for r_ in (1, 2, 4, 8): A(f'v_max_f32_dpp v{T(10)}, v{T(10)}, v{T(10)} row_ror:{r_} row_mask:0xf bank_mask:0xf')
            A(f'v_sub_f32 v{T(11)}, v{vML0}, v{T(10)}'); A(f'v_mul_f32 v{T(11)}, {LOG2E}, v{T(11)}'); A(f'v_exp_f32 v{T(11)}, v{T(11)}')
            A(f'v_mul_f32 v{T(11)}, v{T(11)}, v{vML1}')
            for r_ in (1, 2, 4, 8): A(f'v_add_f32_dpp v{T(11)}, v{T(11)}, v{T(11)} row_ror:{r_} row_mask:0xf bank_mask:0xf')
            A(f'v_sub_f32 v{T(10)}, v{vM}, v{T(10)}'); A(f'v_mul_f32 v{T(10)}, {LOG2E}, v{T(10)}'); A(f'v_exp_f32 v{T(10)}, v{T(10)}')
            A(f'v_rcp_f32 v{T(12)}, v{T(11)}'); A(f'v_mul_f32 v{vF}, v{T(10)}, v{T(12)}')
            A(f'v_cmp_u_f32 vcc, v{T(11)}, v{T(11)}')
        def xbias(k):
            b_ = self.kw.get('xbias', (0, 0))[k]
            if b_: A(f's_cmp_eq_u32 s{sRole}, 1'); A(f's_cselect_b32 vcc_lo, {b_}, 0'); A('s_add_u32 s95, s95, vcc_lo')
        vprep(0)
        for t in range(32):
            u = 32 + t
            r = (u % RING) * 16
            bs = vB + 8 * (t & 1)
            mf = [f'v_mfma_f32_16x16x32_bf16 v[{vO}:{vO+3}], a[{r}:{r+3}], v[{bs}:{bs+3}], v[{vO}:{vO+3}]',
                  f'v_mfma_f32_16x16x32_bf16 v[{vO+4}:{vO+7}], a[{r+4}:{r+7}], v[{bs}:{bs+3}], v[{vO+4}:{vO+7}]',
                  f'v_mfma_f32_16x16x32_bf16 v[{vO}:{vO+3}], a[{r+8}:{r+11}], v[{bs+4}:{bs+7}], v[{vO}:{vO+3}]',
                  f'v_mfma_f32_16x16x32_bf16 v[{vO+4}:{vO+7}], a[{r+12}:{r+15}], v[{bs+4}:{bs+7}], v[{vO+4}:{vO+7}]']
            if SL:
                for q in range(4):
                    j = 4 * u + q
                    G.vmwait_idx(G.lidx[j])
                    if not self.kw.get('wpost'): wb_step(j)
                    slide_issue(j, self.kw.get('xmb', 0) if (XR and len(XR) > 4 and t == XR[4][0] and q == 3) else 0)
                    A(mf[q])
                    if self.kw.get('wpost'): wb_step(j)
            else:
                G.vmwait(f'u{u}')
                for m_ in mf: A(m_)
                throttled_issue(u, u + LOOKV)
            wt0, wper = self.kw.get('wot', (2, 2))
            if not self.nowo and wper * (32 + t - wt0) < 32: emit_wo(wper * (32 + t - wt0), min(32, wper * (32 + t - wt0 + 1)))
            if XR:
                tws = [XR[0]] + ([XR[4][2]] if len(XR) > 4 else [])
                rds = sorted(set(tw + d_ for tw in tws for d_ in XR[2]))
                if t - 1 in rds:
                    A('s_waitcnt lgkmcnt(0)'); A('v_readfirstlane_b32 s94, v253')
                if t == tws[0]:
                    G.vmwait('xrk'); A('v_readfirstlane_b32 s95, v247'); xbias(0); A('s_nop 0'); A('v_mov_b32 v247, s95'); A('ds_write_b32 v248, v247')
                if len(XR) > 4 and t == XR[4][0]:
                    A(f's_mov_b32 s95, {L_DUM2}'); A(f's_cmp_eq_u32 s{sW}, {XR[4][1]}'); A(f's_cselect_b32 s95, {L_LIM}, s95'); A('s_waitcnt lgkmcnt(0)'); A('v_mov_b32 v248, s95'); A('v_mov_b32 v247, 1')
                    G.vmop(f'buffer_atomic_add v247, v246, s[{rDBG}:{rDBG+3}], 0 offen sc0', 'xrk2')
                if len(XR) > 4 and t == XR[4][2]:
                    G.vmwait('xrk2'); A('v_readfirstlane_b32 s95, v247'); xbias(1); A('s_nop 0'); A('v_mov_b32 v247, s95'); A('ds_write_b32 v248, v247')
                if t in rds: A('ds_read_b32 v253, v249')
            if XR and self.diag and t == 16: A('v_writelane_b32 v251, s94, 12')
            if t < 17 and not self.norole: emit_role_loads(t)
            if t in (7, 15, 23): G.stamp(20 + t // 8)
            if self.kw.get('st4'): A('s_memrealtime s[96:97]'); A('s_waitcnt lgkmcnt(0)'); A('v_writelane_b32 v252, s96, %d' % (32 + t))
            if W2: emit_tr(16 * (t + 1) if t < 24 else 9999)
            if t == 27:
                A(f's_cmp_eq_u32 s{sRole}, 1'); A('s_cbranch_scc0 L_pk1')
                for s_ in range(4):
                    for jj in range(4):
                        A(f'v_perm_b32 v{vW1+4*s_+jj}, v{vR+8*s_+2*jj+1}, v{vR+8*s_+2*jj}, s{sPK}')
                A('L_pk1:')
            if ATT and t == ATT[0]:
                cnt_addr()
                G.vmop(f'buffer_load_dword v{vCNT}, v{T(5)}, s[{rDBG}:{rDBG+3}], 0 offen sc1', 'cnt')
            if ATT and t == ATT[1]:
                assert ATT[1] <= 17
                G.vmwait('cnt'); cnt_check()
            if t == 17 and not self.kw.get('nocnt'):
                G.vmop(f'buffer_load_dwordx2 v[{vML0}:{vML1}], v{vMLq}, s[{rWS}:{rWS+3}], 0 offen sc1', 'mlq')
            if t == 25 and not self.kw.get('nocnt'):
                G.vmwait('mlq')
                A(f's_mov_b32 s{sSpin}, {self.spin}')
                A('L_ml:')
                ml_compute()
                A('s_cbranch_vccz L_ml_ok')
                A(f's_sub_u32 s{sSpin}, s{sSpin}, 1'); A('s_cbranch_scc1 L_ml_ok')
                A(f'buffer_load_dwordx2 v[{vML0}:{vML1}], v{vMLq}, s[{rWS}:{rWS+3}], 0 offen sc1'); A('s_waitcnt vmcnt(0)')
                A('s_branch L_ml')
                A('L_ml_ok:')
            if t < 31: vprep(t + 1)
        G.stamp(4)
        if self.kw.get('quit'): A('s_branch L_fin')
        if W2:
            assert tr_done[0] == len(tr_items)
            for i in range(4): A(f'v_add_f32_dpp v{T(i)}, v{vO+4+i}, v{vO+i} row_ror:8 row_mask:0xf bank_mask:0x3')
            for i in range(4): A(f'v_add_f32_dpp v{T(i)}, v{vO+i}, v{vO+4+i} row_ror:8 row_mask:0xf bank_mask:0xc')
            for i in range(4): A(f'v_mul_f32 v{T(i)}, v{vF}, v{T(i)}')
            A(f'v_cvt_pk_bf16_f32 v{T(4)}, v{T(0)}, v{T(1)}'); A(f'v_cvt_pk_bf16_f32 v{T(5)}, v{T(2)}, v{T(3)}')
            A(f'v_cmp_lt_u32 vcc, 7, v{vN}')
            A(f'v_lshlrev_b32 v{T(6)}, 16, v{T(4)}'); A(f'v_and_b32 v{T(7)}, 0xffff0000, v{T(4)}'); A(f'v_lshlrev_b32 v{T(8)}, 16, v{T(5)}'); A(f'v_and_b32 v{T(9)}, 0xffff0000, v{T(5)}')
            for i in range(4): A(f'v_sub_f32 v{T(i)}, v{T(i)}, v{T(6+i)}')
            A(f'v_cvt_pk_bf16_f32 v{T(6)}, v{T(0)}, v{T(1)}'); A(f'v_cvt_pk_bf16_f32 v{T(7)}, v{T(2)}, v{T(3)}')
            A(f'v_cndmask_b32 v{T(4)}, v{T(4)}, v{T(6)}, vcc'); A(f'v_cndmask_b32 v{T(5)}, v{T(5)}, v{T(7)}, vcc')
            A(f'ds_write_b64 v{vOHW}, v[{T(4)}:{T(5)}] offset:{L_OH}')
            A('s_waitcnt lgkmcnt(0)'); A('s_barrier')
            for c_ in range(4): A(f'ds_read_b128 v[{vXP+4*c_}:{vXP+4*c_+3}], v{vOHR} offset:{L_OH+64*c_}')
            DJ = lambda j_: vR + 4 * j_
            order = [0, 4, 1, 5, 2, 6, 3, 7]
            fin = []
            def s_add(j_): A(f'v_add_f32 v{DJ(j_)}, v{DJ(j_)}, v{DJ(j_)+1}')
            def u_pair(j_):
                A(f'v_permlane32_swap_b32 v{DJ(j_)}, v{DJ(j_+4)}'); A(f'v_add_f32 v{DJ(j_)}, v{DJ(j_)}, v{DJ(j_+4)}')
            seq = [(0,0),(0,1),(1,0),(1,1),(2,0),(2,1),(3,0),(3,1),(0,2),(1,2),(2,2),(3,2),(0,3),(1,3),(2,3),(3,3)]
            sw32 = lambda j_: A(f'v_permlane32_swap_b32 v{DJ(j_)}, v{DJ(j_+4)}')
            uadd = lambda j_: A(f'v_add_f32 v{DJ(j_)}, v{DJ(j_)}, v{DJ(j_+4)}')
            post = {10: [lambda: s_add(0), lambda: s_add(4)], 11: [lambda: s_add(1), lambda: s_add(5)], 12: [lambda: sw32(0), lambda: sw32(1)],
                    13: [lambda: uadd(0), lambda: uadd(1)]}
            seen = set()
            for x_, (c_, p_) in enumerate(seq):
                if c_ not in seen: seen.add(c_); A(f's_waitcnt lgkmcnt({3-c_})')
                for j_ in (p_, p_ + 4):
                    cc = '0' if c_ == 0 else f'v[{DJ(j_)}:{DJ(j_)+3}]'
                    rb = aW + 32 * c_ + 4 * j_
                    A(f'v_mfma_f32_16x16x32_bf16 v[{DJ(j_)}:{DJ(j_)+3}], v[{vXP+4*c_}:{vXP+4*c_+3}], a[{rb}:{rb+3}], {cc}')
                for f_ in post.get(x_, []): f_()
            s_add(2); s_add(6); sw32(2); uadd(2)
            A(f'v_permlane16_swap_b32 v{DJ(0)}, v{DJ(2)}'); s_add(3); s_add(7); A(f'v_add_f32 v{T(0)}, v{DJ(0)}, v{DJ(2)}')
            sw32(3); uadd(3)
            A(f'v_permlane16_swap_b32 v{DJ(1)}, v{DJ(3)}'); A(f'v_add_f32 v{T(1)}, v{DJ(1)}, v{DJ(3)}')
            TSF = self.kw.get('tsf', 'sc1'); TLF = self.kw.get('tlf', 'sc1')
            if self.kw.get('c1x4'):
                A(f'v_mov_b32 v{T(2)}, v{T(0)}'); A(f'v_mov_b32 v{T(3)}, v{T(1)}')
                A(f'v_permlane16_swap_b32 v{T(0)}, v{T(2)}'); A(f'v_permlane16_swap_b32 v{T(1)}, v{T(3)}')
                G.vmop(f'buffer_store_dwordx4 v[{T(0)}:{T(3)}], v{vC1}, s[{rWS}:{rWS+3}], 0 offen {TSF}', 'c1st')
            else:
                G.vmop(f'buffer_store_dwordx2 v[{T(0)}:{T(1)}], v{vC1}, s[{rWS}:{rWS+3}], 0 offen {TSF}', 'c1st')
            G.stamp(5)
        L_keep3_ = len(self.L); vm_keep3_ = list(G.vm); n3_keep = G.done
        for i in range(4): A(f'v_add_f32_dpp v{T(i)}, v{vO+4+i}, v{vO+i} row_ror:8 row_mask:0xf bank_mask:0xf')
        for i in range(4): A(f'v_mul_f32 v{T(i)}, v{vF}, v{T(i)}')
        for i in range(4): A(f'ds_write_b32 v{vOPA}, v{T(i)} offset:{L_OP + 32*i}')
        A(f's_lshl_b32 s{sT}, s{sW}, 9'); A(f'v_lshlrev_b32 v{T(10)}, 2, v{vL}'); A(f'v_add_u32 v{T(10)}, s{sT}, v{T(10)}')
        A(f'v_lshrrev_b32 v{T(11)}, 3, v{vN}'); A(f'v_lshlrev_b32 v{T(11)}, 8, v{T(11)}'); A(f'v_lshl_add_u32 v{T(11)}, v{vG}, 6, v{T(11)}'); A(f'v_add_u32 v{T(11)}, s{sT}, v{T(11)}')
        A('s_waitcnt lgkmcnt(0)'); A('s_barrier')
        for w in range(4): A(f'ds_read_b64 v[{T(2*w+2)}:{T(2*w+3)}], v{vA3} offset:{L_OP + 512*w}')
        A('s_waitcnt lgkmcnt(0)')
        A(f'v_pk_add_f32 v[{T(2)}:{T(3)}], v[{T(2)}:{T(3)}], v[{T(4)}:{T(5)}]'); A(f'v_pk_add_f32 v[{T(6)}:{T(7)}], v[{T(6)}:{T(7)}], v[{T(8)}:{T(9)}]')
        A(f'v_pk_add_f32 v[{T(2)}:{T(3)}], v[{T(2)}:{T(3)}], v[{T(6)}:{T(7)}]')
        A(f'v_cvt_pk_bf16_f32 v{T(4)}, v{T(2)}, v{T(3)}')
        A(f'v_lshlrev_b32 v{T(5)}, 16, v{T(4)}'); A(f'v_and_b32 v{T(6)}, 0xffff0000, v{T(4)}')
        A(f'v_sub_f32 v{T(5)}, v{T(2)}, v{T(5)}'); A(f'v_sub_f32 v{T(6)}, v{T(3)}, v{T(6)}')
        A(f'ds_write_b32 v{T(10)}, v{T(4)} offset:{L_OH}')
        A(f'v_cvt_pk_bf16_f32 v{T(5)}, v{T(5)}, v{T(6)}')
        A(f'ds_write_b32 v{T(10)}, v{T(5)} offset:{L_OH+256}')
        A('s_waitcnt lgkmcnt(0)')
        for k in range(4): A(f'ds_read_b128 v[{vXP+4*k}:{vXP+4*k+3}], v{T(11)} offset:{L_OH+16*k}')
        A('s_waitcnt lgkmcnt(0)')
        delta_steps(32, vDQ, None)
        for i in range(4): A(f'v_add_f32_dpp v{T(i)}, v{vDQ+i}, v{vDQ+i} row_ror:8 row_mask:0xf bank_mask:0xf')
        TSF = self.kw.get('tsf', 'sc1'); TLF = self.kw.get('tlf', 'sc1')
        G.vmop(f'buffer_store_dwordx4 v[{T(0)}:{T(3)}], v{vC1}, s[{rWS}:{rWS+3}], 0 offen {TSF}', 'c1st')
        G.stamp(5)
        if W2: del self.L[L_keep3_:]; G.vm[:] = vm_keep3_; G.done = n3_keep
        A(f's_cmp_eq_u32 s{sRole}, 1'); A('s_cbranch_scc1 L_m1')
        A(f's_cmp_eq_u32 s{sRole}, 2'); A('s_cbranch_scc0 L_fin')
        if self.kw.get('rwarm'):
            A(f's_cmp_lt_u32 s{sW}, 2'); A('s_cbranch_scc0 L_fin')
        else:
            A(f's_cmp_eq_u32 s{sW}, 0'); A('s_cbranch_scc0 L_fin')
        def gather_multi(nl, voff, lab, sets):
            D = len(sets)
            def issue(rs):
                for k in range(nl):
                    if k % 4 == 0: A(f's_mov_b32 s{sT}, {(k//4)*4096}')
                    A(f'buffer_load_dwordx4 v[{rs+4*k}:{rs+4*k+3}], v{voff}, s[{rWS}:{rWS+3}], s{sT} offen offset:{(k%4)*1024} {TLF}')
            A(f's_mov_b32 s{sSpin}, {self.spin}')
            for rs in sets: issue(rs)
            A(f'{lab}:')
            for si, rs in enumerate(sets):
                base = nl * (D - 1)
                A(f's_waitcnt vmcnt({base + nl - 2})')
                for c in (0, 2): A(f'v_pk_add_f32 v[{T(c)}:{T(c+1)}], v[{rs+c}:{rs+c+1}], v[{rs+4+c}:{rs+4+c+1}]')
                for k in range(2, nl):
                    A(f's_waitcnt vmcnt({base + nl - 1 - k})')
                    for c in (0, 2): A(f'v_pk_add_f32 v[{T(c)}:{T(c+1)}], v[{T(c)}:{T(c+1)}], v[{rs+4*k+c}:{rs+4*k+c+1}]')
                A(f'v_cmp_u_f32 vcc, v{T(0)}, v{T(1)}'); A(f'v_cmp_u_f32 s[{sM}:{sM+1}], v{T(2)}, v{T(3)}')
                A(f's_or_b64 vcc, vcc, s[{sM}:{sM+1}]')
                A(f's_cbranch_vccz {lab}_ok')
                if lab in self.kw.get('mmask', ()):
                    MP = ['s[82:83]', 's[84:85]', 's[88:89]', 's[90:91]', 's[94:95]', 's[98:99]', 's[100:101]', 'vcc']
                    for k in range(nl): A(f'v_cmp_u_f32 {MP[k]}, v{rs+4*k}, v{rs+4*k+3}')
                    for k in range(nl):
                        if k % 4 == 0: A(f's_mov_b32 s{sT}, {(k//4)*4096}')
                        A(f's_or_b64 exec, {MP[k]}, 15')
                        A(f'buffer_load_dwordx4 v[{rs+4*k}:{rs+4*k+3}], v{voff}, s[{rWS}:{rWS+3}], s{sT} offen offset:{(k%4)*1024} {TLF}')
                    A('s_mov_b64 exec, -1')
                else: issue(rs)
            A(f's_sub_u32 s{sSpin}, s{sSpin}, 1'); A(f's_cbranch_scc0 {lab}')
            A(f'{lab}_ok:')
            gather_finish()
        def gather_finish():
            A(f'v_permlane32_swap_b32 v{T(0)}, v{T(2)}'); A(f'v_permlane32_swap_b32 v{T(1)}, v{T(3)}')
            A(f'v_add_f32 v{T(0)}, v{T(0)}, v{T(2)}'); A(f'v_add_f32 v{T(1)}, v{T(1)}, v{T(3)}')
            A(f'v_permlane16_swap_b32 v{T(0)}, v{T(1)}'); A(f'v_add_f32 v{T(0)}, v{T(0)}, v{T(1)}')
            A(f'v_add_f32_dpp v{T(0)}, v{T(0)}, v{T(0)} row_ror:4 row_mask:0xf bank_mask:0xf')
            A(f'v_add_f32_dpp v{T(0)}, v{T(0)}, v{T(0)} row_ror:8 row_mask:0xf bank_mask:0xf')
        def gather_reduce(nl, voff, lab):
            ms = self.kw.get('mset', {}).get(lab)
            if ms: return gather_multi(nl, voff, lab, [176, 32, 144, 64][:ms])
            A(f's_mov_b32 s{sSpin}, {self.spin}')
            A(f'{lab}:')
            for k in range(nl):
                if k % 4 == 0: A(f's_mov_b32 s{sT}, {(k//4)*4096}')
                A(f'buffer_load_dwordx4 v[{vR+4*k}:{vR+4*k+3}], v{voff}, s[{rWS}:{rWS+3}], s{sT} offen offset:{(k%4)*1024} {TLF}')
            k = 1
            A(f's_waitcnt vmcnt({nl-2})')
            for c in (0, 2): A(f'v_pk_add_f32 v[{T(c)}:{T(c+1)}], v[{vR+c}:{vR+c+1}], v[{vR+4+c}:{vR+4+c+1}]')
            for k in range(2, nl):
                A(f's_waitcnt vmcnt({nl-1-k})')
                for c in (0, 2): A(f'v_pk_add_f32 v[{T(c)}:{T(c+1)}], v[{T(c)}:{T(c+1)}], v[{vR+4*k+c}:{vR+4*k+c+1}]')
            A(f'v_cmp_u_f32 vcc, v{T(0)}, v{T(1)}'); A(f'v_cmp_u_f32 s[{sM}:{sM+1}], v{T(2)}, v{T(3)}')
            A(f's_or_b64 vcc, vcc, s[{sM}:{sM+1}]')
            A(f's_cbranch_vccz {lab}_ok')
            A(f's_sub_u32 s{sSpin}, s{sSpin}, 1'); A(f's_cbranch_scc0 {lab}')
            A(f'{lab}_ok:')
            A(f'v_permlane32_swap_b32 v{T(0)}, v{T(2)}'); A(f'v_permlane32_swap_b32 v{T(1)}, v{T(3)}')
            A(f'v_add_f32 v{T(0)}, v{T(0)}, v{T(2)}'); A(f'v_add_f32 v{T(1)}, v{T(1)}, v{T(3)}')
            A(f'v_permlane16_swap_b32 v{T(0)}, v{T(1)}'); A(f'v_add_f32 v{T(0)}, v{T(0)}, v{T(1)}')
            A(f'v_add_f32_dpp v{T(0)}, v{T(0)}, v{T(0)} row_ror:4 row_mask:0xf bank_mask:0xf')
            A(f'v_add_f32_dpp v{T(0)}, v{T(0)}, v{T(0)} row_ror:8 row_mask:0xf bank_mask:0xf')
        A(f'v_lshlrev_b32 v{vXV}, 16, v{vXV}'); A(f'v_lshlrev_b32 v{vB2V}, 16, v{vB2V}')
        gather_reduce(8, vHOFF, 'L_g1')
        G.stamp(6)
        if self.diag and self.kw.get('stspin'): A(f'v_writelane_b32 v251, s{sSpin}, 23')
        G.rbf(T(0)); A(f'v_add_f32 v{T(0)}, v{vXV}, v{T(0)}'); G.rbf(vHV, T(0))
        A(f'buffer_store_dword v{vHV}, v{vRS}, s[{rWS}:{rWS+3}], 0 offen {TSF}')
        for r_ in range(1, NRH):
            A(f's_mov_b32 s{sT}, {r_*16384}')
            A(f'buffer_store_dword v{vHV}, v{vRS}, s[{rWS}:{rWS+3}], s{sT} offen {TSF}')
        G.stamp(7)
        if W2:
            A(f'v_and_b32 v{T(4)}, 3, v{vN}'); A(f'v_lshl_add_u32 v{T(4)}, v{T(4)}, 4, v{vG}'); A(f'v_lshlrev_b32 v{T(4)}, 2, v{T(4)}')
            A(f'ds_bpermute_b32 v{vHV}, v{T(4)}, v{vHV}'); A('s_waitcnt lgkmcnt(0)')
        if self.kw.get('gate2'):
            gk = self.kw['gate2'] - 1
            A(f's_mov_b32 s{sSpin}, {self.spin}'); A(f's_mov_b32 s{sT}, {(gk//4)*4096}')
            GD = self.kw.get('g2set', 0)
            if GD:
                assert self.kw.get('gany') and max(self.kw.get('mset', {}).values()) <= 3
                gs = [64 + 4 * i for i in range(GD)]
                ldg = lambda r_: A(f'buffer_load_dwordx4 v[{r_}:{r_+3}], v{vC2OFF}, s[{rWS}:{rWS+3}], s{sT} offen offset:{(gk%4)*1024} {TLF}')
                for r_ in gs: ldg(r_)
                A('L_gt2:')
                for r_ in gs:
                    A(f's_waitcnt vmcnt({GD-1})')
                    A(f'v_cmp_u_f32 vcc, v{r_}, v{r_}'); A('s_cmp_eq_u64 vcc, -1'); A('s_cbranch_scc0 L_gt2_ok')
                    ldg(r_)
                A(f's_sub_u32 s{sSpin}, s{sSpin}, 1'); A('s_cbranch_scc0 L_gt2')
                A('L_gt2_ok:')
            if not GD: A('L_gt2:')

            if not GD:
                A(f'buffer_load_dwordx4 v[{vR}:{vR+3}], v{vC2OFF}, s[{rWS}:{rWS+3}], s{sT} offen offset:{(gk%4)*1024} {TLF}')
                A('s_waitcnt vmcnt(0)')
                if self.kw.get('gany'):
                    A(f'v_cmp_u_f32 vcc, v{vR}, v{vR}'); A('s_cmp_eq_u64 vcc, -1'); A('s_cbranch_scc0 L_gt2_ok')
                else:
                    A(f'v_cmp_u_f32 vcc, v{vR}, v{vR+1}'); A(f'v_cmp_u_f32 s[{sM}:{sM+1}], v{vR+2}, v{vR+3}'); A(f's_or_b64 vcc, vcc, s[{sM}:{sM+1}]')
                    A('s_cbranch_vccz L_gt2_ok')
                A(f's_sub_u32 s{sSpin}, s{sSpin}, 1'); A('s_cbranch_scc0 L_gt2')
                A('L_gt2_ok:')
        gather_reduce(4 if self.kw.get('fakec2') else 7, vC2OFF, 'L_g2')
        G.stamp(8)
        if self.diag and self.kw.get('stspin'): A(f'v_writelane_b32 v251, s{sSpin}, 19')
        G.rbf(T(0)); A(f'v_add_f32 v{T(0)}, v{vB2V}, v{T(0)}'); G.rbf(T(0)); A(f'v_add_f32 v{T(0)}, v{vHV}, v{T(0)}')
        A(f'v_cvt_pk_bf16_f32 v{T(0)}, v{T(0)}, v{T(0)}')
        A(f'buffer_store_short v{T(0)}, v{vOUTA}, s[{rOUT}:{rOUT+3}], 0 offen')
        A('s_branch L_fin')
        A('L_m1:')
        A(f's_lshl_b32 s{sT}, s{sW}, 9'); A(f'v_lshrrev_b32 v{T(0)}, 5, v{vL}'); A(f'v_lshlrev_b32 v{T(0)}, 8, v{T(0)}'); A(f'v_and_b32 v{T(1)}, 31, v{vL}')
        A(f'v_lshl_add_u32 v{T(0)}, v{T(1)}, 3, v{T(0)}'); A(f'v_add_u32 v{vA1}, s{sT}, v{T(0)}')
        A(f'v_and_b32 v{T(0)}, 1, v{vN}'); A(f'v_lshlrev_b32 v{T(0)}, 8, v{T(0)}'); A(f'v_lshl_add_u32 v{T(0)}, v{vG}, 4, v{T(0)}'); A(f'v_add_u32 v{vA2}, s{sT}, v{T(0)}')
        A(f's_lshl_b32 s{sT}, s{sW}, 7'); A(f'v_lshlrev_b32 v{T(0)}, 2, v{vN}'); A(f'v_add_u32 v{vA3}, s{sT}, v{T(0)}')
        A(f'v_lshrrev_b32 v{T(0)}, 3, v{vN}'); A(f'v_lshlrev_b32 v{T(0)}, 6, v{T(0)}'); A(f'v_and_b32 v{T(1)}, 3, v{vN}'); A(f'v_lshl_add_u32 v{T(1)}, v{vG}, 2, v{T(1)}')
        A(f'v_lshl_add_u32 v{vA4}, v{T(1)}, 2, v{T(0)}')
        A(f'v_lshlrev_b32 v{vB1}, 16, v{vB1}')
        ML_ = self.kw.get('mlin')
        if ML_:
            assert self.kw.get('mq') and not THR
            A(f'v_mov_b32 v{T(1)}, 0x3f803f80'); A(f'v_lshlrev_b32 v{T(0)}, 2, v{vL}'); A(f'ds_write_b32 v{T(0)}, v{T(1)} offset:{L_ONE}')
            A(f'v_and_b32 v{T(0)}, 3, v{vN}'); A(f'v_cmp_eq_u32 vcc, 2, v{T(0)}'); A(f'v_mov_b32 v{T(1)}, {L_ONE - L_YB}'); A(f'v_cndmask_b32 v{vA2}, v{vA2}, v{T(1)}, vcc')
            A(f's_lshl_b32 s{sT}, s{sW}, 8'); A(f'v_and_b32 v{T(0)}, 1, v{vG}'); A(f'v_cmp_eq_u32 s[{sM}:{sM+1}], 1, v{T(0)}')
            A(f'v_lshlrev_b32 v{T(0)}, 7, v{T(0)}'); A(f'v_lshl_add_u32 v{T(0)}, v{vN}, 3, v{T(0)}'); A(f'v_add_u32 v{vA3}, s{sT}, v{T(0)}')
            A(f'v_lshrrev_b32 v{T(0)}, 3, v{vN}'); A(f'v_lshlrev_b32 v{vB2OFF}, 8, v{T(0)}')
            A(f'v_lshlrev_b32 v{T(0)}, 7, v{T(0)}'); A(f'v_and_b32 v{T(1)}, 3, v{vN}'); A(f'v_lshl_add_u32 v{T(1)}, v{vG}, 2, v{T(1)}')
            A(f'v_lshl_add_u32 v{vA4}, v{T(1)}, 3, v{T(0)}')
        MW = self.kw.get('mwarm')
        if MW:
            A(f'v_mov_b32 v{vXOFF}, v{vHOFF}'); A(f'v_mov_b32 v{vC2OFF}, v{vRS}')
            A(f'v_mov_b32 v{vHOFF}, {OOB}'); A(f'v_mov_b32 v{vRS}, {OOB}'); A(f's_mov_b32 s{sU}, 0')
            A('L_m1p:')
        A(f's_mov_b32 s{sSpin}, {self.spin}')
        H = [vR + i for i in range(16)]
        MQ = self.kw.get('mq')
        if MQ:
            assert not THR
            A(f's_lshl_b32 s{sLim}, s{sW}, 9')
            A(f'v_lshlrev_b32 v{vWOFF2}, 3, v{vL}'); A(f'v_add_u32 v{vWOFF1}, s{sLim}, v{vWOFF2}')
            if MW: L_ = self.L; lab_ = L_.index('L_m1p:'); ins_ = L_[-3:]; del L_[-3:]; L_[lab_:lab_] = ins_
            if self.kw.get('gate3'):
                A(f's_lshr_b32 s{sT}, s2, {self.kw["gate3"] - 1}'); A(f's_and_b32 s{sT}, s{sT}, 7')
                A(f'v_bfe_u32 v{T(0)}, v{vL}, 2, 3'); A(f'v_cmp_eq_u32 vcc, s{sT}, v{T(0)}')
                A(f'v_mov_b32 v{T(1)}, {OOB}'); A(f'v_cndmask_b32 v{vB2OFF}, v{T(1)}, v{vHOFF}, vcc')
                A('L_gt3:')
                A(f'buffer_load_dwordx4 v[{vR}:{vR+3}], v{vB2OFF}, s[{rWS}:{rWS+3}], s{sLim} offen {TLF}')
                A('s_waitcnt vmcnt(0)')
                A(f'v_add_f32 v{T(0)}, v{H[0]}, v{H[1]}'); A(f'v_add_f32 v{T(1)}, v{H[2]}, v{H[3]}'); A(f'v_add_f32 v{T(0)}, v{T(0)}, v{T(1)}')
                A(f'v_cmp_u_f32 vcc, v{T(0)}, v{T(0)}')
                A('s_cbranch_vccz L_gt3_ok')
                A(f's_sub_u32 s{sSpin}, s{sSpin}, 1'); A('s_cbranch_scc0 L_gt3')
                A(f's_mov_b32 s{sSpin}, 0')
                A('L_gt3_ok:')
            D3 = self.kw.get('m1set', 0)
            if D3:
                sets3 = [vR + 4 + 4 * i for i in range(D3)]
                ld3 = lambda r_: A(f'buffer_load_dwordx4 v[{r_}:{r_+3}], v{vHOFF}, s[{rWS}:{rWS+3}], s{sLim} offen {TLF}')
                for r_ in sets3: ld3(r_)
                A('L_g3:')
                for si, r_ in enumerate(sets3):
                    A(f's_waitcnt vmcnt({D3-1})')
                    A(f'v_add_f32 v{T(0)}, v{r_}, v{r_+1}'); A(f'v_add_f32 v{T(1)}, v{r_+2}, v{r_+3}'); A(f'v_add_f32 v{T(0)}, v{T(0)}, v{T(1)}')
                    A(f'v_mov_b64 v[{H[0]}:{H[1]}], v[{r_}:{r_+1}]'); A(f'v_cmp_u_f32 vcc, v{T(0)}, v{T(0)}'); A(f'v_mov_b64 v[{H[2]}:{H[3]}], v[{r_+2}:{r_+3}]')
                    A('s_cbranch_vccz L_g3_ok')
                    ld3(r_)
                A(f's_sub_u32 s{sSpin}, s{sSpin}, 1'); A('s_cbranch_scc0 L_g3')
            else:
                A('L_g3:')
                A(f'buffer_load_dwordx4 v[{vR}:{vR+3}], v{vHOFF}, s[{rWS}:{rWS+3}], s{sLim} offen {TLF}')
                A('s_waitcnt vmcnt(0)')
                A(f'v_add_f32 v{T(0)}, v{H[0]}, v{H[1]}'); A(f'v_add_f32 v{T(1)}, v{H[2]}, v{H[3]}'); A(f'v_add_f32 v{T(0)}, v{T(0)}, v{T(1)}')
                A(f'v_cmp_u_f32 vcc, v{T(0)}, v{T(0)}')
                A('s_cbranch_vccz L_g3_ok')
                A(f's_sub_u32 s{sSpin}, s{sSpin}, 1'); A('s_cbranch_scc0 L_g3')
            A('L_g3_ok:')
            G.stamp(6)
            if self.diag and self.kw.get('stspin'): A(f'v_writelane_b32 v251, s{sSpin}, 19')
            if ML_:
                assert not self.kw.get('gate3')
                A(f'v_cvt_pk_bf16_f32 v{T(14)}, v{H[0]}, v{H[1]}'); A(f'v_cvt_pk_bf16_f32 v{T(15)}, v{H[2]}, v{H[3]}')
                A(f'ds_write_b64 v{vA1}, v[{T(14)}:{T(15)}] offset:{L_YB}')
                for s_ in range(4): A(f'ds_read_b128 v[{vXP+4*s_}:{vXP+4*s_+3}], v{vA2} offset:{L_YB+64*s_}')
                self.half_allreduce('add', T(0), T(1))
                A(f'v_mul_f32 v{T(2)}, 0x3c000000, v{T(0)}')
                A(f'v_sub_f32 v{T(4)}, v{H[0]}, v{T(2)}'); A(f'v_sub_f32 v{T(5)}, v{H[1]}, v{T(2)}'); A(f'v_sub_f32 v{T(6)}, v{H[2]}, v{T(2)}'); A(f'v_sub_f32 v{T(7)}, v{H[3]}, v{T(2)}')
                A(f'v_mul_f32 v{T(3)}, v{T(4)}, v{T(4)}'); A(f'v_mul_f32 v{T(1)}, v{T(5)}, v{T(5)}')
                A(f'v_fmac_f32 v{T(3)}, v{T(6)}, v{T(6)}'); A(f'v_fmac_f32 v{T(1)}, v{T(7)}, v{T(7)}')
                A(f'v_add_f32 v{T(3)}, v{T(3)}, v{T(1)}')
                for s_ in range(4):
                    A(f's_waitcnt lgkmcnt({3-s_})')
                    c = '0' if s_ == 0 else f'v[{vDQ}:{vDQ+3}]'
                    A(f'v_mfma_f32_16x16x32_bf16 v[{vDQ}:{vDQ+3}], v[{vXP+4*s_}:{vXP+4*s_+3}], v[{vW1+4*s_}:{vW1+4*s_+3}], {c}')
                    if self.kw.get('mtrim'): A(f'v_add_f32_dpp v{T(3)}, v{T(3)}, v{T(3)} row_ror:{1 << s_} row_mask:0xf bank_mask:0xf')
                if self.kw.get('mtrim'):
                    A(f'v_mov_b32 v{T(1)}, v{T(3)}'); A(f'v_permlane16_swap_b32 v{T(3)}, v{T(1)}'); A(f'v_add_f32 v{T(3)}, v{T(3)}, v{T(1)}')
                else: self.half_allreduce('add', T(3), T(1))
                A(f'ds_write_b64 v{vWOFF1}, v[{T(2)}:{T(3)}] offset:{L_QP}')
                A(f'v_cndmask_b32 v{T(4)}, v{vDQ}, v{vDQ+1}, s[{sM}:{sM+1}]'); A(f'v_mov_b32 v{T(5)}, v{vDQ+2}')
                A(f'ds_write_b64 v{vA3}, v[{T(4)}:{T(5)}] offset:{L_TP3}')
                A('s_waitcnt lgkmcnt(0)'); A('s_barrier')
                for w in range(4): A(f'ds_read_b64 v[{T(4+2*w)}:{T(5+2*w)}], v{vB2OFF} offset:{L_QP+512*w}')
                for w in range(4): A(f'ds_read_b64 v[{vXP+2*w}:{vXP+2*w+1}], v{vA4} offset:{L_TP3+256*w}')
                A('s_waitcnt lgkmcnt(6)')
                A(f'v_pk_add_f32 v[{T(12)}:{T(13)}], v[{T(4)}:{T(5)}], v[{T(6)}:{T(7)}]')
                A('s_waitcnt lgkmcnt(4)')
                A(f'v_pk_add_f32 v[{T(14)}:{T(15)}], v[{T(8)}:{T(9)}], v[{T(10)}:{T(11)}]')
                A(f'v_pk_add_f32 v[{T(12)}:{T(13)}], v[{T(12)}:{T(13)}], v[{T(14)}:{T(15)}]')
                A(f'v_mul_f32 v{T(0)}, 0x3e800000, v{T(12)}')
                for w in range(4): A(f'v_sub_f32 v{T(4+2*w)}, v{T(4+2*w)}, v{T(0)}')
                A(f'v_mul_f32 v{T(1)}, v{T(4)}, v{T(4)}'); A(f'v_mul_f32 v{T(2)}, v{T(6)}, v{T(6)}')
                A(f'v_fmac_f32 v{T(1)}, v{T(8)}, v{T(8)}'); A(f'v_fmac_f32 v{T(2)}, v{T(10)}, v{T(10)}')
                A(f'v_add_f32 v{T(1)}, v{T(1)}, v{T(2)}')
                A(f'v_mov_b32 v{T(3)}, v{T(13)}'); A(f'v_fmac_f32 v{T(3)}, 0x43000000, v{T(1)}')
                A('s_waitcnt lgkmcnt(0)')
                A(f'v_pk_add_f32 v[{vXP}:{vXP+1}], v[{vXP}:{vXP+1}], v[{vXP+2}:{vXP+3}]'); A(f'v_pk_add_f32 v[{vXP+4}:{vXP+5}], v[{vXP+4}:{vXP+5}], v[{vXP+6}:{vXP+7}]')
                A(f'v_pk_add_f32 v[{vXP}:{vXP+1}], v[{vXP}:{vXP+1}], v[{vXP+4}:{vXP+5}]')
                self.ln_finish(T(0), T(3), T(8), T(9), 1.0 / 512)
                A(f'v_fma_f32 v{T(0)}, -v{T(8)}, v{vXP+1}, v{vXP}'); A(f'v_mul_f32 v{T(0)}, v{T(0)}, v{T(9)}')
            if not ML_: self.half_allreduce('add', T(0), T(1))
            if not ML_: A(f'v_mul_f32 v{T(2)}, 0x3c000000, v{T(0)}')
            L_keep_ = len(self.L)
            A(f'v_sub_f32 v{T(4)}, v{H[0]}, v{T(2)}'); A(f'v_sub_f32 v{T(5)}, v{H[1]}, v{T(2)}'); A(f'v_sub_f32 v{T(6)}, v{H[2]}, v{T(2)}'); A(f'v_sub_f32 v{T(7)}, v{H[3]}, v{T(2)}')
            A(f'v_mul_f32 v{T(3)}, v{T(4)}, v{T(4)}'); A(f'v_mul_f32 v{T(1)}, v{T(5)}, v{T(5)}')
            A(f'v_fmac_f32 v{T(3)}, v{T(6)}, v{T(6)}'); A(f'v_fmac_f32 v{T(1)}, v{T(7)}, v{T(7)}')
            A(f'v_add_f32 v{T(3)}, v{T(3)}, v{T(1)}')
            self.half_allreduce('add', T(3), T(1))
            A(f'ds_write_b64 v{vWOFF1}, v[{T(2)}:{T(3)}] offset:{L_QP}')
            A('s_waitcnt lgkmcnt(0)'); A('s_barrier')
            for w in range(4): A(f'ds_read_b64 v[{T(4+2*w)}:{T(5+2*w)}], v{vWOFF2} offset:{L_QP+512*w}')
            A('s_waitcnt lgkmcnt(2)')
            A(f'v_pk_add_f32 v[{T(12)}:{T(13)}], v[{T(4)}:{T(5)}], v[{T(6)}:{T(7)}]')
            A('s_waitcnt lgkmcnt(0)')
            A(f'v_pk_add_f32 v[{T(14)}:{T(15)}], v[{T(8)}:{T(9)}], v[{T(10)}:{T(11)}]')
            A(f'v_pk_add_f32 v[{T(12)}:{T(13)}], v[{T(12)}:{T(13)}], v[{T(14)}:{T(15)}]')
            A(f'v_mul_f32 v{T(0)}, 0x3e800000, v{T(12)}')
            for w in range(4): A(f'v_sub_f32 v{T(4+2*w)}, v{T(4+2*w)}, v{T(0)}')
            A(f'v_mul_f32 v{T(1)}, v{T(4)}, v{T(4)}'); A(f'v_mul_f32 v{T(2)}, v{T(6)}, v{T(6)}')
            A(f'v_fmac_f32 v{T(1)}, v{T(8)}, v{T(8)}'); A(f'v_fmac_f32 v{T(2)}, v{T(10)}, v{T(10)}')
            A(f'v_add_f32 v{T(1)}, v{T(1)}, v{T(2)}')
            A(f'v_mov_b32 v{T(3)}, v{T(13)}'); A(f'v_fmac_f32 v{T(3)}, 0x43000000, v{T(1)}')
            if ML_: del self.L[L_keep_:]
        else:
            A('L_g3:')
            for kk in range(4):
                A(f's_add_u32 s{sT}, s{sW}, {kk}'); A(f's_and_b32 s{sT}, s{sT}, 3'); A(f's_lshl_b32 s{sT}, s{sT}, 9')
                A(f'buffer_load_dwordx4 v[{vR+4*kk}:{vR+4*kk+3}], v{vHOFF}, s[{rWS}:{rWS+3}], s{sT} offen {TLF}')
            A('s_waitcnt vmcnt(0)')
            A(f'v_pk_add_f32 v[{T(0)}:{T(1)}], v[{H[0]}:{H[1]}], v[{H[2]}:{H[3]}]')
            for k in range(2, 8): A(f'v_pk_add_f32 v[{T(0)}:{T(1)}], v[{T(0)}:{T(1)}], v[{H[2*k]}:{H[2*k+1]}]')
            A(f'v_add_f32 v{T(0)}, v{T(0)}, v{T(1)}')
            A(f'v_cmp_u_f32 vcc, v{T(0)}, v{T(0)}')
            A('s_cbranch_vccz L_g3_ok')
            A(f's_sub_u32 s{sSpin}, s{sSpin}, 1'); A('s_cbranch_scc0 L_g3')
            A('L_g3_ok:')
            G.stamp(6)
            self.half_allreduce('add', T(0), T(1))
            A(f'v_mul_f32 v{T(0)}, 0x3b000000, v{T(0)}')
            A(f'v_sub_f32 v{T(2)}, v{H[0]}, v{T(0)}'); A(f'v_mul_f32 v{T(3)}, v{T(2)}, v{T(2)}')
            A(f'v_sub_f32 v{T(4)}, v{H[1]}, v{T(0)}'); A(f'v_mul_f32 v{T(5)}, v{T(4)}, v{T(4)}')
            for k in range(2, 16, 2):
                A(f'v_sub_f32 v{T(2)}, v{H[k]}, v{T(0)}'); A(f'v_sub_f32 v{T(4)}, v{H[k+1]}, v{T(0)}')
                A(f'v_fmac_f32 v{T(3)}, v{T(2)}, v{T(2)}'); A(f'v_fmac_f32 v{T(5)}, v{T(4)}, v{T(4)}')
            A(f'v_add_f32 v{T(3)}, v{T(3)}, v{T(5)}')
            self.half_allreduce('add', T(3), T(1))
        L_keep2_ = len(self.L)
        self.ln_finish(T(0), T(3), T(8), T(9), 1.0 / 512)
        Y = H[0:4]
        self.ln_apply(Y, T(8), T(9))
        A(f'v_cvt_pk_bf16_f32 v{T(4)}, v{Y[0]}, v{Y[1]}'); A(f'v_cvt_pk_bf16_f32 v{T(5)}, v{Y[2]}, v{Y[3]}')
        A(f'ds_write_b64 v{vA1}, v[{T(4)}:{T(5)}] offset:{L_YB}')
        A('s_waitcnt lgkmcnt(0)')
        for s_ in range(4): A(f'ds_read_b128 v[{vXP+4*s_}:{vXP+4*s_+3}], v{vA2} offset:{L_YB+64*s_}')
        for s_ in range(4):
            A(f's_waitcnt lgkmcnt({3-s_})')
            c = '0' if s_ == 0 else f'v[{vDQ}:{vDQ+3}]'
            A(f'v_mfma_f32_16x16x32_bf16 v[{vDQ}:{vDQ+3}], v[{vXP+4*s_}:{vXP+4*s_+3}], v[{vW1+4*s_}:{vW1+4*s_+3}], {c}')
        A(f'ds_write_b32 v{vA3}, v{vDQ} offset:{L_TP}'); A(f'ds_write_b32 v{vA3}, v{vDQ+1} offset:{L_TP+64}')
        A('s_waitcnt lgkmcnt(0)'); A('s_barrier')
        for w in range(4): A(f'ds_read_b32 v{T(w)}, v{vA4} offset:{L_TP+128*w}')
        A('s_waitcnt lgkmcnt(0)')
        A(f'v_add_f32 v{T(0)}, v{T(0)}, v{T(1)}'); A(f'v_add_f32 v{T(2)}, v{T(2)}, v{T(3)}'); A(f'v_add_f32 v{T(0)}, v{T(0)}, v{T(2)}')
        if ML_: del self.L[L_keep2_:]
        G.rbf(T(0)); A(f'v_add_f32 v{T(0)}, v{vB1}, v{T(0)}'); G.rbf(T(0))
        import struct, math
        f2u = lambda f: struct.unpack('<I', struct.pack('<f', f))[0]
        K0 = -2 * math.log2(math.e) * math.sqrt(2 / math.pi); K1 = K0 * 0.044715
        A(f'v_mul_f32 v{T(1)}, v{T(0)}, v{T(0)}'); A(f'v_mov_b32 v{T(2)}, {hex(f2u(K0))}'); A(f'v_fmac_f32 v{T(2)}, {hex(f2u(K1))}, v{T(1)}')
        A(f'v_mul_f32 v{T(1)}, v{T(0)}, v{T(2)}'); A(f'v_exp_f32 v{T(1)}, v{T(1)}'); A(f'v_add_f32 v{T(1)}, 1.0, v{T(1)}'); A(f'v_rcp_f32 v{T(1)}, v{T(1)}')
        A(f'v_mul_f32 v{T(0)}, v{T(0)}, v{T(1)}'); A(f'v_cvt_pk_bf16_f32 v{vGA}, v{T(0)}, v{T(0)}')
        def w2and(ii):
            for jj in range(4):
                A(f'v_and_b32_dpp v{vB+4*ii+jj}, v{vGA}, v{vMASK+jj} quad_perm:[{ii},{ii},{ii},{ii}] row_mask:0xf bank_mask:0xf')
        def w2mf(ii):
            bs = vB + 4 * ii
            c = '0' if ii == 0 else f'v[{vDQ}:{vDQ+3}]'
            A(f'v_mfma_f32_16x16x32_bf16 v[{vDQ}:{vDQ+3}], v[{vW2+4*ii}:{vW2+4*ii+3}], v[{bs}:{bs+3}], {c}')
        if self.kw.get('mtrim'):
            w2and(0); w2and(1); w2mf(0); w2and(2); w2mf(1); w2and(3); w2mf(2); w2mf(3)
        else:
            for ii in range(4): w2and(ii)
            for ii in range(4): w2mf(ii)
        A(f'buffer_store_dwordx4 v[{vDQ}:{vDQ+3}], v{vRS}, s[{rWS}:{rWS+3}], 0 offen {TSF}')
        G.stamp(7)
        if MW:
            A(f's_cmp_eq_u32 s{sU}, 0'); A('s_cbranch_scc0 L_fin')
            A(f's_mov_b32 s{sU}, 1'); A(f'v_mov_b32 v{vHOFF}, v{vXOFF}'); A(f'v_mov_b32 v{vRS}, v{vC2OFF}')
            A('s_branch L_m1p')
        A('L_fin:')
        if self.diag:
            A(f's_lshl_b32 s{sT}, s2, 2'); A(f's_add_u32 s{sT}, s{sT}, s{sW}'); A(f's_lshl_b32 s{sT}, s{sT}, 7'); A(f's_add_u32 s{sT}, s{sT}, {WS_DIAG}')
            A('s_memrealtime s[96:97]'); A('s_getreg_b32 s98, hwreg(HW_REG_XCC_ID)'); A('s_waitcnt lgkmcnt(0)')
            A('v_writelane_b32 v251, s96, 14'); A('v_writelane_b32 v251, s98, 15')
            A(f'v_lshlrev_b32 v{T(0)}, 2, v{vL}'); A(f'v_add_u32 v{T(0)}, s{sT}, v{T(0)}')
            A(f'v_mov_b32 v{T(1)}, {OOB}'); A(f'v_cmp_gt_u32 vcc, 32, v{vL}'); A(f'v_cndmask_b32 v{T(0)}, v{T(1)}, v{T(0)}, vcc')
            A(f'buffer_store_dword v251, v{T(0)}, s[{rWS}:{rWS+3}], 0 offen')
            if self.kw.get('st3') or self.kw.get('st4'):
                A(f's_lshl_b32 s{sT}, s2, 2'); A(f's_add_u32 s{sT}, s{sT}, s{sW}'); A(f's_lshl_b32 s{sT}, s{sT}, 8'); A(f's_add_u32 s{sT}, s{sT}, {WS_DIAG + 0x20000}')
                A(f'v_lshlrev_b32 v{T(0)}, 2, v{vL}'); A(f'v_add_u32 v{T(0)}, s{sT}, v{T(0)}')
                A(f'buffer_store_dword v252, v{T(0)}, s[{rWS}:{rWS+3}], 0 offen')
        A('L_end:')
        A('s_endpgm')
        return self.wrap()

    def ln_finish(self, mean, ss, om, orstd, inv_n):
        A = self.A
        import struct
        f2u = lambda f: struct.unpack('<I', struct.pack('<f', f))[0]
        A(f'v_mul_f32 v{ss}, {hex(f2u(inv_n))}, v{ss}'); self.rbf(ss)
        A(f'v_add_f32 v{ss}, {hex(f2u(1e-5))}, v{ss}'); self.rbf(ss)
        A(f'v_sqrt_f32 v{ss}, v{ss}'); self.rbf(ss)
        A(f'v_rcp_f32 v{orstd}, v{ss}')
        self.rbf(om, mean)
    def ln_stats(self, X, om, orstd, t0, t1, inv_n, red):
        A = self.A
        import struct
        f2u = lambda f: struct.unpack('<I', struct.pack('<f', f))[0]
        A(f'v_add_f32 v{t0}, v{X[0]}, v{X[1]}')
        for x in X[2:]: A(f'v_add_f32 v{t0}, v{t0}, v{x}')
        red('add', t0, t1)
        A(f'v_mul_f32 v{t0}, {hex(f2u(inv_n))}, v{t0}')
        A(f'v_sub_f32 v{t1}, v{X[0]}, v{t0}'); A(f'v_mul_f32 v{orstd}, v{t1}, v{t1}')
        for x in X[1:]:
            A(f'v_sub_f32 v{t1}, v{x}, v{t0}'); A(f'v_fmac_f32 v{orstd}, v{t1}, v{t1}')
        red('add', orstd, t1)
        A(f'v_mov_b32 v{t1}, v{orstd}')
        self.ln_finish(t0, t1, om, orstd, inv_n)
    def ln_apply(self, X, m, rstd):
        A = self.A
        for k in range(0, len(X), 2):
            A(f'v_sub_f32 v{X[k]}, v{X[k]}, v{m}'); A(f'v_sub_f32 v{X[k+1]}, v{X[k+1]}, v{m}')
            A(f'v_cvt_pk_bf16_f32 v{X[k+1]}, v{X[k]}, v{X[k+1]}')
            A(f'v_lshlrev_b32 v{X[k]}, 16, v{X[k+1]}'); A(f'v_and_b32 v{X[k+1]}, 0xffff0000, v{X[k+1]}')
            A(f'v_mul_f32 v{X[k]}, v{X[k]}, v{rstd}'); A(f'v_mul_f32 v{X[k+1]}, v{X[k+1]}, v{rstd}')

    def finish_debug(self, regs):
        raise NotImplementedError

    def wrap(self):
        body = hz.fix(self.L)
        H = []
        H.append(f'; @launch grid=(256,1,1) block=(256,1,1) lds={LDS_SIZE + (1024 if self.kw.get("wbal") else 0)}')
        H.append('.amdgcn_target "amdgcn-amd-amdhsa--gfx950"')
        H.append('.text'); H.append(f'.globl {KN}'); H.append('.p2align 8'); H.append(f'.type {KN},@function'); H.append(f'{KN}:')
        H += body
        H.append('.section .rodata,"a"'); H.append('.p2align 6'); H.append(f'.amdhsa_kernel {KN}')
        H.append('  .amdhsa_next_free_vgpr 512'); H.append('  .amdhsa_next_free_sgpr 102'); H.append('  .amdhsa_accum_offset 256')
        H.append('  .amdhsa_group_segment_fixed_size 0'); H.append('  .amdhsa_kernarg_size 104'); H.append('  .amdhsa_user_sgpr_count 2')
        H.append('  .amdhsa_user_sgpr_kernarg_segment_ptr 1'); H.append('  .amdhsa_system_sgpr_workgroup_id_x 1')
        H.append('.end_amdhsa_kernel')
        return '\n'.join(H) + '\n'

if __name__ == '__main__':
    import ast
    kw = eval('dict(%s)' % (sys.argv[2] if len(sys.argv) > 2 else ''))
    open(sys.argv[1], 'w').write(Gen(**kw).gen())
```
